```python
import torch

def _softmax(x, axis=-1):
    return torch.softmax(x, dim=axis)
def _gelu(x):
    return torch.nn.functional.gelu(x, approximate="tanh")
def _silu(x):
    return torch.nn.functional.silu(x)
def _sigmoid(x):
    return torch.sigmoid(x)
def _layernorm(x, axis=-1, eps=1e-5):
    m = x.mean(dim=axis, keepdim=True)
    v = x.var(dim=axis, keepdim=True, unbiased=False)
    return (x - m) / torch.sqrt(v + eps)
def _scatter_add(tgt, idx, src, axis=0):
    return tgt.clone().index_add_(axis, idx, src)
def _segment_sum(src, seg, n):
    out = torch.zeros((n,) + src.shape[1:], dtype=src.dtype)
    return out.index_add_(0, seg, src)
def _pad(x, pw):
    flat = tuple(v for pair in reversed(pw) for v in pair)
    return torch.nn.functional.pad(x, flat)

kernel_name = 'recurrent_scan__gqa_block_cached__glu_gated_reglu__decode'

def setup_inputs():

    _w = (lambda a: (lambda t: t.to(torch.bfloat16) if t.is_floating_point() else t)(torch.as_tensor(a)))
    def _A_setup():
        B, Sq, D = 2, 1, 512
        Hq, Hkv, Sk, Dh = 32, 8, 32768, 128
        assert Hq % Hkv == 0, (Hq, Hkv)
        return {
            "x": _w((lambda *s: torch.randn(*s, dtype=torch.bfloat16) * 0.4)(B, Sq, D)),
            "k_cache": _w((lambda *s: torch.randn(*s, dtype=torch.bfloat16) * 1.6)(B, Hkv, Sk, Dh)),
            "v_cache": _w((lambda *s: torch.randn(*s, dtype=torch.bfloat16) * 1.6)(B, Hkv, Sk, Dh)),
            "wq": _w((lambda *s: torch.randn(*s, dtype=torch.bfloat16) * 1.6)(D, Hq * Dh) * (D ** -0.5)),
            "wo": _w((lambda *s: torch.randn(*s, dtype=torch.bfloat16) * 1.6)(Hq * Dh, D) * ((Hq * Dh) ** -0.5)),
        }
    _A_in = _A_setup()

    def _B_setup():
        B, S, D, F = 2, 1, 512, 1792
        return {
            "x": _w((lambda *s: torch.randn(*s, dtype=torch.bfloat16) * 0.4)(B, S, D)),
            "W_gate": _w((lambda *s: torch.randn(*s, dtype=torch.bfloat16) * 1.6)(D, F) * (2.0 / D) ** 0.5),
            "W_up": _w((lambda *s: torch.randn(*s, dtype=torch.bfloat16) * 1.6)(D, F) * (2.0 / D) ** 0.5),
            "W_down": _w((lambda *s: torch.randn(*s, dtype=torch.bfloat16) * 1.6)(F, D) * (1.0 / F) ** 0.5),
        }
    _B_in = _B_setup()

    return {
        "A_x": _A_in["x"],
        "A_k_cache": _A_in["k_cache"],
        "A_v_cache": _A_in["v_cache"],
        "A_wq": _A_in["wq"],
        "A_wo": _A_in["wo"],
        "B_x": _B_in["x"],
        "B_W_gate": _B_in["W_gate"],
        "B_W_up": _B_in["W_up"],
        "B_W_down": _B_in["W_down"],
    }

def reference(A_x, A_k_cache, A_v_cache, A_wq, A_wo, B_x, B_W_gate, B_W_up, B_W_down):
    def _A_ref(x, k_cache, v_cache, wq, wo):
        B, Sq, D = x.shape
        Hq, Dh = 32, 128
        Hkv = k_cache.shape[1]
        rep = Hq // Hkv
        q = (lambda x, *d: x.permute(*d))((x @ wq).reshape(B, Sq, Hq, Dh), 0, 2, 1, 3)
        k = (lambda x, n, axis: torch.repeat_interleave(x, n, dim=axis))(k_cache, rep, axis=1)
        v = (lambda x, n, axis: torch.repeat_interleave(x, n, dim=axis))(v_cache, rep, axis=1)
        scores = torch.einsum("bhqd,bhkd->bhqk", q, k) * (Dh ** -0.5)
        p = _softmax(scores, axis=-1)
        o = torch.einsum("bhqk,bhkd->bhqd", p, v)
        return (lambda x, *d: x.permute(*d))(o, 0, 2, 1, 3).reshape(B, Sq, Hq * Dh) @ wo

    def _B_ref(x, W_gate, W_up, W_down):
        gate = torch.einsum("bsd,df->bsf", x, W_gate)
        up = torch.einsum("bsd,df->bsf", x, W_up)
        gate = gate * (lambda x, dt: x.to(dt))(gate > 0, gate.dtype)
        h = gate * up
        return torch.einsum("bsf,fd->bsd", h, W_down)

    x = A_x
    xn = _layernorm(x, axis=-1)
    s = _A_ref(xn, A_k_cache, A_v_cache, A_wq, A_wo)
    g = _silu(_B_ref(xn, B_W_gate, B_W_up, B_W_down))
    return x + s * g
```

```python
import struct, sys, math

KN = "recurrent_scan__gqa_block_cached__glu_gated_reglu__decode_kernel"
HEADER = open("recurrent_scan__gqa_block_cached__glu_gated_reglu__decode.s.ref").read().split("; @launch")[0]

def f2u(x):
    return struct.unpack("<I", struct.pack("<f", x))[0]

WS_EPOCH = 0
WS_QP = 0x10000
WS_FP = 0x40000
WS_CT = 0x80000
WS_P1 = 0x100000
WS_P2 = 0x200000
WS_TS = 0x400000
L_W0 = 0
L_W1 = 16384
L_XN = 32768
L_Z = 34816
L_Q = 35072
L_TAG = 36096
L_H = 36112
L_ST = 36160
L_OB = 36288
L_O = 0
L_END = 36352
PHI = 0x9E3779B9

ROLES = [('X', slice(0, 1)), ('S', slice(1, 5))]

def gen(S=4, N=4, kvflags="nt", wflags="nt", woflags="nt", NS=24, outflags="", ts=False, spin=1 << 20, probe=None, bar0=True, wofirst=True):
    L = []
    if probe is not None: ts = True
    def a(s): L.append("    " + s)
    def lab(s): L.append(s + ":")
    def stamp(idx):
        if ts:
            a("s_waitcnt lgkmcnt(0)")
            a("s_memrealtime s[70:71]")
            a("s_waitcnt lgkmcnt(0)")
            a(f"s_mov_b32 s{80+idx}, s70")
    pc = [0]
    def dump_stamps(role=None):
        if probe is not None:
            prole, pidx = probe[:2]
            if role == prole:
                pc[0] += 1
                if len(probe) > 2:
                    a(f"s_and_b32 s73, s2, {probe[2]}")
                    a(f"s_cmp_lg_u32 s73, {probe[3]}")
                    a(f"s_cbranch_scc1 L_pe{pc[0]}")
                a(f"s_cmp_eq_u32 s{80+pidx}, 0")
                a(f"s_cbranch_scc1 L_pe{pc[0]}")
                a(f"s_add_u32 s72, s{80+pidx}, 10000")
                lab(f"L_pl{pc[0]}")
                a("s_memrealtime s[70:71]")
                a("s_waitcnt lgkmcnt(0)")
                a("s_sub_u32 s73, s70, s72")
                a("s_cmp_lt_i32 s73, 0")
                a(f"s_cbranch_scc1 L_pl{pc[0]}")
                lab(f"L_pe{pc[0]}")
            return
        if ts:
            a("s_mov_b64 exec, 1")
            a("s_mul_i32 s70, s2, 5")
            a("s_add_u32 s70, s70, s3")
            a("s_lshl_b32 s70, s70, 6")
            a(f"s_add_u32 s70, s70, {WS_TS}")
            a("v_mov_b32 v1, s70")
            a("s_getreg_b32 s95, hwreg(HW_REG_XCC_ID)")
            for q in range(4):
                for i in range(4):
                    a(f"v_mov_b32 v{4+i}, s{80+q*4+i}")
                a(f"global_store_dwordx4 v1, v[4:7], s[26:27] offset:{q*16}")
                a("s_nop 1")
    def tagregs():
        a("s_mov_b32 s56, s33")
        a("s_lshr_b32 s57, s33, 8")
        a("s_lshr_b32 s58, s33, 16")
        a("s_lshr_b32 s59, s33, 24")
        for i in range(4): a(f"s_mov_b32 s{60+i}, {0x07060500 + i:#x}")
    def embed(v, vtag):
        for i in range(4): a(f"v_perm_b32 v{v+i}, v{v+i}, v{vtag}, s{60+i}")
    def check(regs, acc):
        first = True
        for r in regs:
            for i in range(4):
                if first:
                    a(f"v_xor_b32 v{acc}, s{56+i}, v{r+i}"); first = False
                else:
                    a(f"v_bitop3_b32 v{acc}, v{acc}, v{r+i}, s{56+i} bitop3:0xf6")
        a(f"v_and_b32 v{acc}, 0xff, v{acc}")
        a(f"v_cmp_ne_u32 vcc, 0, v{acc}")
    def pollend(name):
        a("s_sub_u32 s40, s40, 1")
        a(f"s_cbranch_scc1 {name}_done")
        a(f"s_cbranch_vccnz {name}")
        lab(f"{name}_done")

    L.append(HEADER.rstrip("\n"))
    L.append(f"; @launch grid=(256,1,1) block=(320,1,1) lds={L_END}")
    L.append('.amdgcn_target "amdgcn-amd-amdhsa--gfx950"')
    L.append(".text")
    L.append(f".globl {KN}")
    L.append(".p2align 8")
    L.append(f".type {KN},@function")
    lab(KN)
    a("s_load_dwordx16 s[4:19], s[0:1], 0")
    a("s_load_dwordx8 s[20:27], s[0:1], 64")
    a("s_cmp_ge_u32 s2, 256")
    a("s_cbranch_scc1 L_end")
    if ts:
        for i in range(16): a(f"s_mov_b32 s{80+i}, 0")
        a("s_memrealtime s[70:71]")
    a("v_lshrrev_b32 v1, 6, v0")
    a("v_and_b32 v0, 63, v0")
    a("v_readfirstlane_b32 s3, v1")
    a("s_and_b32 s28, s2, 7")
    a("s_lshr_b32 s29, s2, 3")
    a("s_lshr_b32 s30, s29, 2")
    a("s_bfe_u32 s31, s29, 0x10001")
    a("s_and_b32 s32, s29, 1")
    a("s_lshl_b32 s32, s32, 3")
    a("s_add_u32 s32, s32, s28")
    a("s_lshl_b32 s34, s30, 4")
    a("s_add_u32 s34, s34, s32")
    a("s_cmp_lg_u32 s3, 0")
    a("s_cbranch_scc1 L_swave")

    a("s_setprio 2")
    a("v_lshlrev_b32 v1, 5, v0")
    a("v_lshrrev_b32 v2, 3, v0")
    a("v_and_b32 v3, 7, v0")
    a("s_and_b32 s35, s29, 3")
    a("s_lshl_b32 s36, s35, 20")
    a("s_lshl_b32 s37, s30, 10")
    a("s_add_u32 s36, s36, s37")
    a("s_lshl_b32 s37, s28, 7")
    a("s_add_u32 s36, s36, s37")
    a("v_lshl_add_u32 v4, v2, 13, s36")
    a("v_lshl_add_u32 v4, v3, 4, v4")
    a(f"s_mov_b32 m0, {L_W0}")
    a("s_waitcnt lgkmcnt(0)")
    if ts: a("s_mov_b32 s80, s70")
    a("s_load_dword s33, s[26:27], 0")
    a("global_load_dwordx4 v[8:11], v1, s[4:5]")
    a("global_load_dwordx4 v[12:15], v1, s[4:5] offset:16")
    if NS < 32:
        a("s_cmp_ge_u32 s32, 4")
        a("s_cbranch_scc1 L_nozero")
        a("s_lshl_b32 s36, s31, 3")
        a("s_add_u32 s36, s36, s30")
        a("s_lshl_b32 s36, s36, 2")
        a("s_add_u32 s36, s36, s32")
        a("s_lshl_b32 s36, s36, 8")
        a(f"s_add_u32 s36, s36, {WS_CT}")
        a("v_mov_b32 v5, s36")
        a("v_mov_b32 v6, 0")
        a("s_mov_b64 exec, 1")
        a("global_store_dword v5, v6, s[26:27] sc1")
        a("s_mov_b64 exec, -1")
        lab("L_nozero")
    for i in range(16):
        a(f"global_load_lds_dwordx4 v4, s[10:11] {wflags}")
        a("s_add_u32 m0, m0, 1024")
        a("v_add_u32 v4, 0x10000, v4")
    if bar0: a("s_barrier")
    a("s_cmp_ge_u32 s29, 28")
    a("s_cbranch_scc1 L_noffn1")
    a(f"s_mul_i32 s36, s28, {64*3584}")
    a("s_lshl_b32 s37, s29, 7")
    a("s_add_u32 s36, s36, s37")
    a("v_mul_u32_u24 v4, 3584, v2")
    a("v_lshl_add_u32 v4, v3, 4, v4")
    a("v_add_u32 v4, s36, v4")
    a("s_mov_b32 s40, 8")
    lab("L_fdma")
    a(f"global_load_lds_dwordx4 v4, s[16:17] {wflags}")
    a("s_add_u32 m0, m0, 8192")
    a("s_sub_u32 s40, s40, 1")
    a(f"global_load_lds_dwordx4 v4, s[18:19] {wflags}")
    a(f"v_add_u32 v4, {8*3584}, v4")
    a("s_sub_u32 m0, m0, 7168")
    a("s_cmp_lg_u32 s40, 0")
    a("s_cbranch_scc1 L_fdma")
    a("s_waitcnt vmcnt(32)")
    a("s_branch L_ln")
    lab("L_noffn1")
    a("s_waitcnt vmcnt(16)")
    lab("L_ln")
    stamp(1)
    for i in range(8):
        a(f"v_lshlrev_b32 v{16+2*i}, 16, v{8+i}")
        a(f"v_and_b32 v{17+2*i}, 0xffff0000, v{8+i}")
    def red32(v, t):
        a("s_nop 1")
        for r in (8, 4, 2, 1):
            a(f"v_add_f32_dpp {v}, {v}, {v} row_ror:{r} row_mask:0xf bank_mask:0xf")
            a("s_nop 1")
        a(f"v_mov_b32 {t}, {v}")
        a("s_nop 1")
        a(f"v_permlane16_swap_b32 {v}, {t}")
        a("s_nop 0")
        a(f"v_add_f32 {v}, {v}, {t}")
    a("v_add_f32 v6, v16, v17")
    for i in range(2, 16):
        a(f"v_add_f32 v6, v6, v{16+i}")
    red32("v6", "v7")
    a(f"v_mul_f32 v6, {f2u(1.0/512):#x}, v6")
    a("v_sub_f32 v32, v16, v6")
    a("v_mul_f32 v33, v32, v32")
    for i in range(1, 16):
        a(f"v_sub_f32 v32, v{16+i}, v6")
        a("v_fmac_f32 v33, v32, v32")
    red32("v33", "v7")
    a(f"v_mul_f32 v33, {f2u(1.0/512):#x}, v33")
    a("v_cvt_pk_bf16_f32 v6, v6, v33")
    a("v_and_b32 v33, 0xffff0000, v6")
    a("v_lshlrev_b32 v6, 16, v6")
    a(f"v_add_f32 v33, {f2u(1e-5):#x}, v33")
    a("v_cvt_pk_bf16_f32 v33, v33, v33")
    a("v_lshlrev_b32 v33, 16, v33")
    a("v_sqrt_f32 v33, v33")
    a("s_nop 0")
    a("v_cvt_pk_bf16_f32 v33, v33, v33")
    a("v_lshlrev_b32 v33, 16, v33")
    a("v_rcp_f32 v33, v33")
    for i in range(8):
        a(f"v_sub_f32 v{16+2*i}, v{16+2*i}, v6")
        a(f"v_sub_f32 v{17+2*i}, v{17+2*i}, v6")
        a(f"v_cvt_pk_bf16_f32 v{8+i}, v{16+2*i}, v{17+2*i}")
        a(f"v_lshlrev_b32 v{16+2*i}, 16, v{8+i}")
        a(f"v_and_b32 v{17+2*i}, 0xffff0000, v{8+i}")
        a(f"v_mul_f32 v{16+2*i}, v{16+2*i}, v33")
        a(f"v_mul_f32 v{17+2*i}, v{17+2*i}, v33")
        a(f"v_cvt_pk_bf16_f32 v{8+i}, v{16+2*i}, v{17+2*i}")
    a(f"ds_write_b128 v1, v[8:11] offset:{L_XN}")
    a(f"ds_write_b128 v1, v[12:15] offset:{L_XN+16}")
    a("v_lshlrev_b32 v5, 2, v0")
    a("v_mov_b32 v6, 0")
    a(f"ds_write_b32 v5, v6 offset:{L_Z}")
    a("v_lshrrev_b32 v6, 4, v0")
    a("v_bfe_u32 v7, v0, 2, 2")
    a("v_and_b32 v2, 3, v0")
    a("v_lshlrev_b32 v3, 10, v6")
    a("v_lshl_add_u32 v3, v7, 7, v3")
    a("v_lshl_add_u32 v3, v2, 3, v3")
    a("v_and_b32 v2, 1, v0")
    a("v_lshlrev_b32 v4, 10, v2")
    a("v_lshl_add_u32 v4, v6, 4, v4")
    a("v_bfe_u32 v7, v0, 1, 3")
    a("s_lshl_b32 s36, s35, 8")
    a(f"s_add_u32 s36, s36, {L_XN}")
    a("v_add_u32 v5, s36, v4")
    a(f"v_mov_b32 v34, {L_Z}")
    for k in range(4):
        a(f"v_cmp_eq_u32 s[{44+2*k}:{45+2*k}], {k}, v7")
    a("s_nop 0")
    for k in range(4):
        a(f"v_cndmask_b32 v{36+k}, v34, v5, s[{44+2*k}:{45+2*k}]")
    def gemv(wbase, xsel):
        for ks in range(4):
            o = (ks & 1) * 32
            for blk in range(4):
                xr, xo = xsel(ks, blk)
                a(f"ds_read_b128 v[{48+o+4*blk}:{51+o+4*blk}], v{xr} offset:{xo}")
                a(f"ds_read_b64_tr_b16 v[{64+o+4*blk}:{65+o+4*blk}], v3 offset:{wbase + ks*4096 + blk*32}")
                a(f"ds_read_b64_tr_b16 v[{66+o+4*blk}:{67+o+4*blk}], v3 offset:{wbase + ks*4096 + blk*32 + 512}")
            for blk in range(4):
                a(f"s_waitcnt lgkmcnt({9-3*blk})")
                c = "0" if (ks == 0 and blk == 0) else "v[8:11]"
                a(f"v_mfma_f32_16x16x32_bf16 v[8:11], v[{64+o+4*blk}:{67+o+4*blk}], v[{48+o+4*blk}:{51+o+4*blk}], {c}")
    a("s_lshl_b32 s36, s30, 14")
    a("s_lshl_b32 s37, s35, 11")
    a("s_add_u32 s36, s36, s37")
    a("s_lshl_b32 s37, s28, 8")
    a("s_add_u32 s36, s36, s37")
    a(f"s_add_u32 s36, s36, {WS_QP}")
    a("v_lshl_add_u32 v1, v2, 13, s36")
    a("v_lshl_add_u32 v1, v7, 6, v1")
    a("v_lshl_add_u32 v1, v6, 4, v1")
    a("s_waitcnt lgkmcnt(0)")
    a(f"s_add_u32 s33, s33, {PHI:#x}")
    tagregs()
    a("v_mov_b32 v35, s33")
    a("s_cmp_ge_u32 s29, 28")
    a("s_cbranch_scc1 L_w0")
    a("s_waitcnt vmcnt(16)")
    a("s_branch L_w1")
    lab("L_w0")
    a("s_waitcnt vmcnt(0)")
    lab("L_w1")
    stamp(2)
    gemv(L_W0, lambda ks, blk: (36 + blk, ks * 64))
    a("s_mov_b32 s36, 0x00ff00ff")
    a("s_mov_b32 s37, 0x00ff00ff")
    a("s_nop 5")
    embed(8, 35)
    a("s_mov_b64 exec, s[36:37]")
    a("global_store_dwordx4 v1, v[8:11], s[26:27] sc1")
    a("s_mov_b64 exec, -1")
    stamp(3)
    a("s_cmp_ge_u32 s29, 28")
    a("s_cbranch_scc1 L_noffn2")
    a("s_lshl_b32 s36, s28, 7")
    a(f"s_add_u32 s36, s36, {L_XN}")
    a("v_add_u32 v5, s36, v4")
    for k in range(4):
        a(f"v_cndmask_b32 v{36+k}, v34, v5, s[{44+2*k}:{45+2*k}]")
    for k in range(4):
        a(f"v_cmp_eq_u32 s[{44+2*k}:{45+2*k}], {4+k}, v7")
    a("s_nop 0")
    for k in range(4):
        a(f"v_cndmask_b32 v{40+k}, v34, v5, s[{44+2*k}:{45+2*k}]")
    a("s_mul_i32 s36, s28, 7168")
    a("s_lshl_b32 s37, s29, 8")
    a("s_add_u32 s36, s36, s37")
    a(f"s_add_u32 s36, s36, {WS_FP}")
    a("v_bfe_u32 v5, v0, 3, 1")
    a("v_lshl_add_u32 v5, v2, 1, v5")
    a(f"v_mul_u32_u24 v5, {8*7168}, v5")
    a("v_bfe_u32 v1, v0, 1, 2")
    a("v_lshl_add_u32 v1, v1, 6, v5")
    a("v_lshl_add_u32 v1, v6, 4, v1")
    a("v_add_u32 v1, s36, v1")
    a("s_waitcnt vmcnt(1)")
    gemv(L_W1, lambda ks, blk: (36 + (ks >> 1) * 4 + blk, (ks & 1) * 64))
    a("s_nop 7")
    embed(8, 35)
    a("global_store_dwordx4 v1, v[8:11], s[26:27] sc1")
    lab("L_noffn2")
    stamp(4)
    a("s_lshl_b32 s36, s30, 14")
    a("s_lshl_b32 s37, s31, 13")
    a("s_add_u32 s36, s36, s37")
    a(f"s_add_u32 s36, s36, {WS_QP + 4096}")
    a("v_lshl_add_u32 v1, v0, 4, s36")
    a(f"s_mov_b32 s40, {spin}")
    lab("L_qpoll")
    for i in range(8):
        a(f"global_load_dwordx4 v[{48+4*i}:{51+4*i}], v1, s[26:27] offset:{i*1024-4096} sc1")
    a("s_waitcnt vmcnt(0)")
    check([48 + 4 * i for i in range(8)], 2)
    pollend("L_qpoll")
    for i in range(32):
        a(f"v_and_b32 v{48+i}, 0xffffff00, v{48+i}")
    for i in range(8):
        a(f"v_add_f32 v{48+i}, v{48+i}, v{56+i}")
        a(f"v_add_f32 v{64+i}, v{64+i}, v{72+i}")
    for i in range(8):
        a(f"v_add_f32 v{48+i}, v{48+i}, v{64+i}")
    for i in range(4):
        a(f"v_cvt_pk_bf16_f32 v{48+i}, v{48+2*i}, v{49+2*i}")
    a("v_lshlrev_b32 v1, 3, v0")
    a("v_mov_b32 v2, 0")
    a(f"ds_write_b64 v1, v[48:49] offset:{L_Q}")
    a(f"ds_write_b64 v1, v[50:51] offset:{L_Q+512}")
    a(f"ds_write_b32 v2, v35 offset:{L_TAG}")
    a("s_waitcnt lgkmcnt(0)")
    stamp(5)
    a("s_barrier")
    a("s_setprio 0")
    a("s_mul_i32 s36, s34, 56")
    a("s_andn2_b32 s36, s36, 15")
    a(f"s_mul_i32 s37, s31, {16*7168}")
    a("s_add_u32 s36, s36, s37")
    a(f"s_add_u32 s36, s36, {WS_FP}")
    a("v_lshrrev_b32 v1, 2, v0")
    a("v_mul_u32_u24 v1, 7168, v1")
    a("v_and_b32 v3, 3, v0")
    a("v_lshl_add_u32 v1, v3, 4, v1")
    a("v_add_u32 v1, s36, v1")
    a(f"s_mov_b32 s40, {spin}")
    lab("L_hpoll")
    a("global_load_dwordx4 v[8:11], v1, s[26:27] sc1")
    a("s_waitcnt vmcnt(0)")
    check([8], 2)
    pollend("L_hpoll")
    for i in range(4): a(f"v_and_b32 v{8+i}, 0xffffff00, v{8+i}")
    for r in (4, 8):
        for i in range(4):
            a(f"v_add_f32_dpp v{8+i}, v{8+i}, v{8+i} row_ror:{r} row_mask:0xf bank_mask:0xf")
    for i in range(4): a(f"v_mov_b32 v{12+i}, v{8+i}")
    for i in range(4): a(f"v_permlane16_swap_b32 v{8+i}, v{12+i}")
    for i in range(4): a(f"v_add_f32 v{8+i}, v{8+i}, v{12+i}")
    a("v_cvt_pk_bf16_f32 v8, v8, v9")
    a("v_cvt_pk_bf16_f32 v9, v10, v11")
    a("v_mov_b32 v10, v8")
    a("v_mov_b32 v11, v9")
    a("s_nop 1")
    a("v_permlane32_swap_b32 v8, v10")
    a("v_permlane32_swap_b32 v9, v11")
    for p in range(2):
        a(f"v_lshlrev_b32 v12, 16, v{8+p}")
        a(f"v_and_b32 v13, 0xffff0000, v{8+p}")
        a(f"v_lshlrev_b32 v14, 16, v{10+p}")
        a(f"v_and_b32 v15, 0xffff0000, v{10+p}")
        a("v_max_f32 v12, 0, v12")
        a("v_max_f32 v13, 0, v13")
        a("v_mul_f32 v12, v12, v14")
        a("v_mul_f32 v13, v13, v15")
        a(f"v_cvt_pk_bf16_f32 v{16+p}, v12, v13")
    a("v_lshlrev_b32 v3, 3, v3")
    a(f"ds_write_b64 v3, v[16:17] offset:{L_H}")
    a("s_waitcnt lgkmcnt(0)")
    stamp(6)
    a("s_barrier")
    dump_stamps("X")
    a("s_endpgm")

    VKO, VVO, VM, VL, VM0, VM1 = 18, 19, 20, 21, 22, 23
    VA, VQ, VO, VS, VW, VD, VR = 24, 32, 36, 44, 60, 92, 108
    lab("L_swave")
    a("s_sub_u32 s42, s3, 1")
    a("s_lshl_b32 s43, s31, 7")
    a("s_add_u32 s43, s43, s34")
    a("s_lshr_b32 s36, s43, 4")
    a("s_lshl_b32 s55, s36, 23")
    a(f"s_mul_i32 s52, s32, {NS*16384}")
    a("s_add_u32 s52, s52, s55")
    a("s_lshl_b32 s35, s42, 12")
    a("s_add_u32 s52, s52, s35")
    a("s_add_u32 s37, s42, s32")
    a("s_and_b32 s37, s37, 3")
    a("s_lshl_b32 s35, s37, 12")
    a("s_add_u32 s55, s55, s35")
    a(f"s_add_u32 s55, s55, {16*NS*16384}")
    a("s_lshl_b32 s36, s36, 2")
    a("s_add_u32 s36, s36, s37")
    a("s_lshl_b32 s36, s36, 8")
    a(f"s_add_u32 s36, s36, {WS_CT}")
    a("v_mov_b32 v14, s36")
    a("v_mov_b32 v15, 1")
    a("v_mov_b32 v16, -1")
    a("v_lshrrev_b32 v2, 4, v0")
    a("v_and_b32 v3, 3, v0")
    a("v_bfe_u32 v4, v0, 2, 2")
    a("v_lshlrev_b32 v5, 8, v4")
    a("v_lshl_add_u32 v5, v2, 6, v5")
    a(f"v_lshl_add_u32 v{VKO}, v3, 4, v5")
    a(f"v_lshlrev_b32 v{VVO}, 4, v0")
    a("s_lshl_b32 s36, s42, 8")
    a("s_add_u32 s36, s36, 4096")
    a("s_lshl_b32 s35, s34, 15")
    a("s_add_u32 s35, s35, s36")
    a("v_lshl_add_u32 v5, v0, 2, s35")
    a(f"s_mul_i32 s35, s34, {14*1024}")
    a("s_add_u32 s35, s35, s36")
    a("v_lshl_add_u32 v6, v0, 2, s35")
    a("s_waitcnt lgkmcnt(0)")
    if ts: a("s_mov_b32 s80, s70")
    a("s_mov_b32 s44, s6"); a("s_mov_b32 s45, s7"); a("s_mov_b32 s46, 0x8000000"); a("s_mov_b32 s47, 0x20000")
    a("s_mov_b32 s48, s8"); a("s_mov_b32 s49, s9"); a("s_mov_b32 s50, 0x8000000"); a("s_mov_b32 s51, 0x20000")
    if bar0: a("s_barrier")
    def issueK(slot):
        for u in range(4):
            r = VR + slot * 32 + 4 * u
            a(f"buffer_load_dwordx4 v[{r}:{r+3}], v{VKO}, s[44:47], s52 offen offset:{u*1024} {kvflags}")
    def issueV(slot):
        for t in range(4):
            r = VR + slot * 32 + 16 + 4 * t
            a(f"buffer_load_dwordx4 v[{r}:{r+3}], v{VVO}, s[48:51], s52 offen offset:{t*1024} {kvflags}")
        a("s_add_u32 s52, s52, 16384")
    groups = []
    def wgrp(base, vaddr, sreg, r0, r1):
        def f():
            for r in range(r0, r1):
                if r % 8 == 0 and r > 0: a(f"v_add_u32 v{vaddr}, 8192, v{vaddr}")
                a(f"global_load_dword v{base+r}, v{vaddr}, {sreg} offset:{(r%8)*1024-4096} {woflags}")
        return ([256] * (r1 - r0), f)
    wg_ = [wgrp(VW, 5, "s[12:13]", 0, 16), wgrp(VW, 5, "s[12:13]", 16, 32), wgrp(VD, 6, "s[20:21]", 0, 14)]
    kv_ = []
    for slot in range(S):
        kv_.append(([1024] * 4, (lambda s=slot: issueK(s))))
        kv_.append(([1024] * 4, (lambda s=slot: issueV(s))))
    if wofirst: groups = wg_ + kv_
    else: groups = kv_[:2] + wg_ + kv_[2:]
    issued = []
    for sizes, f in groups:
        n = 0; tot = 0
        for sz in reversed(issued):
            if tot + sz > N * 1024: break
            tot += sz; n += 1
        if n < len(issued): a(f"s_waitcnt vmcnt({min(n, 63 - len(sizes))})")
        f(); issued += sizes
    assert (2 * S - 1) * 4 >= N + 4
    assert wofirst or (2 * S - 3) * 4 >= N
    a("v_mov_b32 v6, 0xffff")
    a("v_mov_b32 v7, 0xffff0000")
    a("v_and_b32 v8, 1, v0")
    a("v_cmp_eq_u32 vcc, 1, v8")
    a("v_and_b32 v8, 2, v0")
    a("s_nop 0")
    a("v_cndmask_b32 v6, v6, v7, vcc")
    a("v_cmp_eq_u32 vcc, 2, v8")
    a(f"v_mov_b32 v{VM}, {f2u(-3.0e38):#x}")
    a(f"v_mov_b32 v{VL}, 0")
    a(f"v_cndmask_b32 v{VM1}, 0, v6, vcc")
    a(f"v_xor_b32 v{VM0}, v{VM1}, v6")
    for i in range(8): a(f"v_mov_b32 v{VO+i}, 0")
    a("s_mov_b32 s35, 0x05040100")
    a("s_mov_b32 s36, 0x07060302")
    for r in range(23):
        a(f"v_perm_b32 v6, v{VW+2*r+1}, v{VW+2*r}, s35")
        a(f"v_perm_b32 v{VW+2*r+1}, v{VW+2*r+1}, v{VW+2*r}, s36")
        a(f"v_mov_b32 v{VW+2*r}, v6")
    C = math.log2(math.e) / math.sqrt(128.0)
    a(f"s_mov_b32 s53, {f2u(C):#x}")
    a("v_mov_b32 v6, 0")
    stamp(1)
    a("s_barrier")
    a(f"ds_read_b128 v[{VQ}:{VQ+3}], v{VKO} offset:{L_Q}")
    a(f"ds_read_b32 v17, v6 offset:{L_TAG}")
    stamp(2)
    assert N <= 8 and NS >= S + 1
    POOL = 16 * (32 - NS)
    a("s_mov_b32 s54, 1000")
    a(f"s_mov_b32 s41, {S}")
    a("s_waitcnt lgkmcnt(0)")
    a("v_readfirstlane_b32 s33, v17")
    def claim():
        if NS < 32:
            a("s_mov_b64 exec, 1")
            a("global_atomic_add v16, v14, v15, s[26:27] sc0 sc1")
            a("s_mov_b64 exec, -1")
    lab("L_loop")
    tail_snips = []
    for slot in range(S):
        K = VR + slot * 32
        V = K + 16
        if N > 4:
            a("s_cmp_eq_u32 s54, 0")
            a(f"s_cbranch_scc0 L_nk{slot}")
            a("s_waitcnt vmcnt(4)")
            lab(f"L_nk{slot}")
        for u in range(4):
            a(f"v_mfma_f32_16x16x32_bf16 v[{VS+4*u}:{VS+4*u+3}], v[{K+4*u}:{K+4*u+3}], v[{VQ}:{VQ+3}], 0")
        a(f"s_cmp_lt_u32 s54, {S}")
        a(f"s_cbranch_scc1 L_dk{slot}")
        a(f"s_waitcnt vmcnt({N})")
        a(f"s_cmp_ge_u32 s41, {NS}")
        a(f"s_cbranch_scc1 L_tk{slot}")
        lab(f"L_gk{slot}")
        if N > 4:
            a("s_add_u32 s41, s41, 1")
            a(f"s_cmp_lt_u32 s41, {NS}")
            a(f"s_cbranch_scc1 L_nc{slot}")
            claim()
            lab(f"L_nc{slot}")
        issueK(slot)
        lab(f"L_rk{slot}")
        tail_snips.append([f"L_tk{slot}:",
                           "    v_readfirstlane_b32 s35, v16",
                           "    s_nop 1",
                           "    s_lshl_b32 s52, s35, 14",
                           "    s_add_u32 s52, s52, s55",
                           f"    s_cmp_lt_u32 s35, {POOL}",
                           f"    s_cbranch_scc1 L_gk{slot}",
                           f"    s_mov_b32 s54, {S-1}",
                           f"L_dk{slot}:",
                           "    s_nop 4",
                           f"    s_branch L_rk{slot}"])
        for u in range(4):
            a(f"v_mov_b32_dpp v{4+u}, v{VS+4*u} quad_perm:[0,0,0,0] row_mask:0xf bank_mask:0xf")
        for p in range(1, 4):
            for u in range(4):
                a(f"v_add_f32_dpp v{4+u}, v{VS+4*u+p}, v{4+u} quad_perm:[{p},{p},{p},{p}] row_mask:0xf bank_mask:0xf")
        a("v_max3_f32 v1, v4, v5, v6")
        a(f"v_max3_f32 v1, v1, v7, v{VM}")
        a("v_mov_b32 v2, v1")
        a("s_nop 1")
        a("v_permlane16_swap_b32 v1, v2")
        a("s_nop 0")
        a("v_max_f32 v1, v1, v2")
        a("v_mov_b32 v2, v1")
        a("s_nop 1")
        a("v_permlane32_swap_b32 v1, v2")
        a("s_nop 0")
        a("v_max_f32 v1, v1, v2")
        a(f"v_sub_f32 v2, v{VM}, v1")
        a("v_mul_f32 v3, s53, v1")
        a("v_mul_f32 v2, s53, v2")
        a(f"v_mov_b32 v{VM}, v1")
        a("v_exp_f32 v2, v2")
        for i in range(4):
            a(f"v_fma_f32 v{4+i}, v{4+i}, s53, -v3")
        for i in range(4):
            a(f"v_exp_f32 v{4+i}, v{4+i}")
        for g in range(4):
            a(f"v_mov_b32_dpp v8, v2 row_newbcast:{4*g} row_mask:{1<<g:#x} bank_mask:0xf")
        a(f"v_fma_f32 v{VL}, v{VL}, v2, v4")
        a("v_add_f32 v9, v5, v6")
        a(f"v_add_f32 v{VL}, v{VL}, v7")
        a(f"v_add_f32 v{VL}, v{VL}, v9")
        for i in range(4):
            a(f"v_cvt_pk_bf16_f32 v{4+i}, v{4+i}, v{4+i}")
        for i in range(8):
            a(f"v_mul_f32 v{VO+i}, v{VO+i}, v8")
        for i in range(4):
            a(f"v_and_b32 v{VA+2*i}, v{4+i}, v{VM0}")
            a(f"v_and_b32 v{VA+2*i+1}, v{4+i}, v{VM1}")
        a("s_cmp_eq_u32 s54, 0")
        a(f"s_cbranch_scc0 L_nv{slot}")
        a("s_waitcnt vmcnt(0)")
        lab(f"L_nv{slot}")
        for t in range(4):
            a(f"v_mfma_f32_16x16x16_bf16 v[{VO}:{VO+3}], v[{VA+2*t}:{VA+2*t+1}], v[{V+4*t}:{V+4*t+1}], v[{VO}:{VO+3}]")
            a(f"v_mfma_f32_16x16x16_bf16 v[{VO+4}:{VO+7}], v[{VA+2*t}:{VA+2*t+1}], v[{V+4*t+2}:{V+4*t+3}], v[{VO+4}:{VO+7}]")
        a(f"s_cmp_lt_u32 s54, {S}")
        a(f"s_cbranch_scc1 L_dv{slot}")
        a(f"s_waitcnt vmcnt({N})")
        if N <= 4:
            a("s_add_u32 s41, s41, 1")
            a(f"s_cmp_lt_u32 s41, {NS}")
            a(f"s_cbranch_scc1 L_nc{slot}")
            claim()
            lab(f"L_nc{slot}")
        issueV(slot)
        lab(f"L_rv{slot}")
        tail_snips.append([f"L_dv{slot}:",
                           "    s_sub_u32 s54, s54, 1",
                           f"    s_cbranch_scc0 L_rv{slot}",
                           "    s_branch L_done"])
    a("s_branch L_loop")
    for sn in tail_snips: L.extend(sn)
    lab("L_done")
    stamp(3)
    if ts: a("s_mov_b32 s94, s41")
    a(f"v_mov_b32 v2, v{VL}")
    a(f"v_mul_f32 v10, s53, v{VM}")
    a("v_lshrrev_b32 v3, 4, v0")
    a(f"v_permlane16_swap_b32 v{VL}, v2")
    a("v_and_b32 v4, 15, v0")
    a("v_bfe_u32 v5, v0, 2, 2")
    a(f"v_add_f32 v11, v{VL}, v2")
    a("v_mov_b32 v2, v11")
    a("s_lshl_b32 s35, s42, 11")
    a("v_lshl_add_u32 v6, v0, 5, s35")
    a("v_permlane32_swap_b32 v11, v2")
    a("s_lshl_b32 s36, s42, 3")
    a("v_lshl_add_u32 v7, v5, 5, s36")
    a("v_add_f32 v11, v11, v2")
    a(f"ds_write_b128 v6, v[{VO}:{VO+3}] offset:{L_O}")
    a(f"ds_write_b128 v6, v[{VO+4}:{VO+7}] offset:{L_O+16}")
    a(f"ds_write_b64 v7, v[10:11] offset:{L_ST}")
    a("s_lshl_b32 s35, s42, 9")
    a("v_lshl_add_u32 v6, v0, 3, s35")
    a("s_lshl_b32 s36, s42, 5")
    a("v_mov_b32 v7, s36")
    a("s_waitcnt lgkmcnt(0)")
    a("s_barrier")
    a(f"ds_read_b128 v[8:11], v7 offset:{L_ST}")
    a(f"ds_read_b128 v[12:15], v7 offset:{L_ST+16}")
    for w in range(4):
        a(f"ds_read_b64 v[{24+2*w}:{25+2*w}], v6 offset:{L_O + w*2048}")
    a("s_lshl_b32 s35, s43, 12")
    a("s_lshl_b32 s36, s42, 10")
    a("s_add_u32 s36, s35, s36")
    a(f"s_add_u32 s37, s36, {WS_P1}")
    a("v_lshl_add_u32 v1, v0, 4, s37")
    a("s_waitcnt lgkmcnt(4)")
    a("v_max3_f32 v2, v8, v10, v12")
    a("v_max_f32 v2, v2, v14")
    for w in range(4):
        a(f"v_sub_f32 v{8+2*w}, v{8+2*w}, v2")
    for w in range(4):
        a(f"v_exp_f32 v{8+2*w}, v{8+2*w}")
    a("s_nop 0")
    a("v_mul_f32 v16, v8, v9")
    a("v_fmac_f32 v16, v10, v11")
    a("v_fmac_f32 v16, v12, v13")
    a("v_fmac_f32 v16, v14, v15")
    a("s_waitcnt lgkmcnt(0)")
    a("v_rcp_f32 v5, v16")
    a("v_log_f32 v16, v16")
    a("v_mul_f32 v36, v8, v24")
    a("v_mul_f32 v37, v8, v25")
    for w in range(1, 4):
        a(f"v_fmac_f32 v36, v{8+2*w}, v{24+2*w}")
        a(f"v_fmac_f32 v37, v{8+2*w}, v{25+2*w}")
    a("v_add_f32 v38, v2, v16")
    a("v_mov_b32 v39, s33")
    a("v_mul_f32 v36, v36, v5")
    a("v_mul_f32 v37, v37, v5")
    a("global_store_dwordx4 v1, v[36:39], s[26:27] sc1")
    stamp(4)
    a("s_andn2_b32 s36, s43, 15")
    a("s_lshl_b32 s36, s36, 12")
    a("s_lshl_b32 s37, s32, 8")
    a("s_add_u32 s36, s36, s37")
    a("s_lshl_b32 s37, s42, 6")
    a("s_add_u32 s36, s36, s37")
    a(f"s_add_u32 s36, s36, {WS_P1}")
    a("v_lshl_add_u32 v1, v4, 12, s36")
    a("v_lshl_add_u32 v1, v3, 4, v1")
    a("global_load_dwordx4 v[8:11], v1, s[26:27] sc1")
    a("s_and_b32 s36, s34, 1")
    a("s_lshl_b32 s36, s36, 2")
    a("v_mov_b32 v6, s36")
    for i in range(4):
        a(f"ds_read2_b32 v[{24+2*i}:{25+2*i}], v6 offset0:{2*i} offset1:{2*i+1}".replace("v6 offset0", "v6 offset0"))
    L[-5] = f"    v_mov_b32 v6, s36"
    L.insert(len(L) - 5, f"    s_add_u32 s36, s36, {L_H}")
    tagregs()
    a("v_mov_b32 v42, 0")
    a("v_mov_b32 v43, 0")
    a("s_waitcnt lgkmcnt(0)")
    for r in range(7):
        a(f"v_dot2_f32_bf16 v42, v{VD+2*r}, v{24+r}, v42")
        a(f"v_dot2_f32_bf16 v43, v{VD+2*r+1}, v{24+r}, v43")
    a(f"s_mov_b32 s40, {spin}")
    a("s_branch L_p1chk")
    lab("L_p1poll")
    a("global_load_dwordx4 v[8:11], v1, s[26:27] sc1")
    lab("L_p1chk")
    a("s_waitcnt vmcnt(0)")
    a("v_cmp_ne_u32 vcc, s33, v11")
    pollend("L_p1poll")
    stamp(5)
    a("v_mov_b32 v2, v10")
    a("s_nop 1")
    for r in (8, 4, 2, 1):
        a(f"v_max_f32_dpp v2, v2, v2 row_ror:{r} row_mask:0xf bank_mask:0xf")
        a("s_nop 1")
    a("v_sub_f32 v10, v10, v2")
    a("v_exp_f32 v10, v10")
    a("s_lshl_b32 s36, s42, 4")
    a("v_lshl_add_u32 v7, v3, 2, s36")
    a("v_mul_f32 v8, v8, v10")
    a("v_mul_f32 v9, v9, v10")
    a("s_nop 0")
    for r in (8, 4, 2, 1):
        for v in (10, 8, 9):
            a(f"v_add_f32_dpp v{v}, v{v}, v{v} row_ror:{r} row_mask:0xf bank_mask:0xf")
    a("v_rcp_f32 v10, v10")
    a("v_mov_b32 v6, 0")
    a("v_mul_f32 v8, v8, v10")
    a("v_mul_f32 v9, v9, v10")
    a("v_cvt_pk_bf16_f32 v8, v8, v9")
    a(f"ds_write_b32 v7, v8 offset:{L_OB}")
    a("s_lshl_b32 s36, s42, 6")
    a("s_lshl_b32 s37, s43, 3")
    a("s_add_u32 s36, s36, s37")
    a("v_add_u32 v1, s36, v0")
    a("v_and_b32 v1, 255, v1")
    a(f"s_add_u32 s37, s35, {WS_P2}")
    a("v_lshl_add_u32 v1, v1, 4, s37")
    a("s_waitcnt lgkmcnt(0)")
    a("s_barrier")
    for i in range(4):
        a(f"ds_read_b128 v[{VS+4*i}:{VS+4*i+3}], v6 offset:{L_OB + 16*i}")
    a("v_mov_b32 v40, 0")
    a("v_mov_b32 v41, 0")
    for r in range(16):
        if r % 4 == 0:
            a(f"s_waitcnt lgkmcnt({3 - r//4})")
        a(f"v_dot2_f32_bf16 v40, v{VW+2*r}, v{VS+r}, v40")
        a(f"v_dot2_f32_bf16 v41, v{VW+2*r+1}, v{VS+r}, v41")
    a("v_perm_b32 v42, v42, v17, s62")
    a("v_perm_b32 v43, v43, v17, s63")
    a("s_nop 0")
    a("v_perm_b32 v40, v40, v17, s60")
    a("v_perm_b32 v41, v41, v17, s61")
    a("global_store_dwordx4 v1, v[40:43], s[26:27] sc1")
    stamp(6)
    a("s_cmp_lg_u32 s42, 0")
    a("s_cbranch_scc1 L_sexit")
    a("s_lshr_b32 s35, s28, 2")
    a("s_and_b32 s36, s28, 3")
    a("s_lshl_b32 s36, s36, 5")
    a("s_add_u32 s36, s36, s29")
    a("v_and_b32 v2, 1, v0")
    a("v_lshrrev_b32 v3, 1, v0")
    a("s_lshl_b32 s37, s36, 1")
    a("v_lshl_add_u32 v4, v3, 3, s37")
    a("v_add_u32 v4, v4, v2")
    a("v_and_b32 v4, 255, v4")
    a("s_lshl_b32 s38, s35, 19")
    a(f"s_add_u32 s38, s38, {WS_P2}")
    a("v_lshl_add_u32 v4, v4, 4, s38")
    a("v_lshl_add_u32 v4, v3, 12, v4")
    a("v_add_u32 v5, 0x20000, v4")
    a("v_add_u32 v6, 0x40000, v4")
    a("v_add_u32 v7, 0x60000, v4")
    a("s_lshl_b32 s38, s35, 10")
    a("s_lshl_b32 s39, s36, 3")
    a("s_add_u32 s38, s38, s39")
    a("v_lshl_add_u32 v1, v2, 2, s38")
    a("global_load_dword v16, v1, s[4:5]")
    a(f"s_mov_b32 s40, {spin}")
    lab("L_p2poll")
    for k in range(4):
        a(f"global_load_dwordx4 v[{24+4*k}:{27+4*k}], v{4+k}, s[26:27] sc1")
    a("s_waitcnt vmcnt(0)")
    check([24, 28, 32, 36], 2)
    pollend("L_p2poll")
    stamp(7)
    for i in range(16): a(f"v_and_b32 v{24+i}, 0xffffff00, v{24+i}")
    for i in range(4):
        a(f"v_add_f32 v{24+i}, v{24+i}, v{28+i}")
        a(f"v_add_f32 v{32+i}, v{32+i}, v{36+i}")
    for i in range(4): a(f"v_add_f32 v{8+i}, v{24+i}, v{32+i}")
    for r in (2, 4, 8):
        for i in range(4):
            a(f"v_add_f32_dpp v{8+i}, v{8+i}, v{8+i} row_ror:{r} row_mask:0xf bank_mask:0xf")
    for op in ("v_permlane16_swap_b32", "v_permlane32_swap_b32"):
        for i in range(4): a(f"v_mov_b32 v{12+i}, v{8+i}")
        for i in range(4): a(f"{op} v{8+i}, v{12+i}")
        for i in range(4): a(f"v_add_f32 v{8+i}, v{8+i}, v{12+i}")
    a("v_cvt_pk_bf16_f32 v10, v10, v11")
    a("v_cvt_pk_bf16_f32 v8, v8, v9")
    a("v_and_b32 v11, 0xffff0000, v10")
    a("v_lshlrev_b32 v10, 16, v10")
    a(f"v_mul_f32 v13, {f2u(-math.log2(math.e)):#x}, v11")
    a(f"v_mul_f32 v12, {f2u(-math.log2(math.e)):#x}, v10")
    a("v_exp_f32 v13, v13")
    a("v_exp_f32 v12, v12")
    a("v_and_b32 v9, 0xffff0000, v8")
    a("v_add_f32 v13, 1.0, v13")
    a("v_add_f32 v12, 1.0, v12")
    a("v_rcp_f32 v13, v13")
    a("v_rcp_f32 v12, v12")
    a("v_lshlrev_b32 v8, 16, v8")
    a("v_mul_f32 v11, v11, v13")
    a("v_mul_f32 v10, v10, v12")
    a("v_cvt_pk_bf16_f32 v10, v10, v11")
    a("v_lshlrev_b32 v12, 16, v16")
    a("v_and_b32 v13, 0xffff0000, v16")
    a("v_and_b32 v11, 0xffff0000, v10")
    a("v_lshlrev_b32 v10, 16, v10")
    a("v_mul_f32 v9, v9, v11")
    a("v_mul_f32 v8, v8, v10")
    a("v_cvt_pk_bf16_f32 v8, v8, v9")
    a("v_and_b32 v9, 0xffff0000, v8")
    a("v_lshlrev_b32 v8, 16, v8")
    a("v_add_f32 v9, v9, v13")
    a("v_add_f32 v8, v8, v12")
    a("v_cvt_pk_bf16_f32 v8, v8, v9")
    a("s_mov_b64 exec, 3")
    a(f"global_store_dword v1, v8, s[22:23] {outflags}")
    a("s_cmp_lg_u32 s2, 0")
    a("s_cbranch_scc1 L_sexit")
    a("s_mov_b64 exec, 1")
    a("v_mov_b32 v2, 0")
    a(f"global_store_dword v2, v17, s[26:27] {outflags}")
    lab("L_sexit")
    stamp(8)
    dump_stamps("S")
    lab("L_end")
    a("s_endpgm")
    nv = VR + 32 * S
    L.append('.section .rodata,"a"')
    L.append(".p2align 6")
    L.append(f".amdhsa_kernel {KN}")
    L.append(f"  .amdhsa_next_free_vgpr {nv}")
    L.append("  .amdhsa_next_free_sgpr 102")
    L.append(f"  .amdhsa_accum_offset {nv}")
    L.append("  .amdhsa_group_segment_fixed_size 0")
    L.append("  .amdhsa_kernarg_size 96")
    L.append("  .amdhsa_user_sgpr_count 2")
    L.append("  .amdhsa_user_sgpr_kernarg_segment_ptr 1")
    L.append("  .amdhsa_system_sgpr_workgroup_id_x 1")
    L.append("  .amdhsa_float_denorm_mode_32 3")
    L.append(".end_amdhsa_kernel")
    return "\n".join(L) + "\n"

if __name__ == "__main__":
    import json
    cfg = json.loads(sys.argv[1]) if len(sys.argv) > 1 else {}
    sys.stdout.write(gen(**cfg))
```

```python
import struct, sys, math

KN = "recurrent_scan__gqa_block_cached__glu_gated_reglu__decode_kernel"
HEADER = open("recurrent_scan__gqa_block_cached__glu_gated_reglu__decode.s.ref").read().split("; @launch")[0]

def f2u(x):
    return struct.unpack("<I", struct.pack("<f", x))[0]

WS_EPOCH = 0
WS_QP = 0x10000
WS_FP = 0x40000
WS_CT = 0x80000
WS_P1 = 0x100000
WS_P2 = 0x200000
WS_TS = 0x400000
WS_TT = 0x500000
L_XN = 0
L_Q = 2048
L_Z = 3072
L_TAG = 3328
L_H = 3344
L_ST = 3392
L_OB = 3520
L_XR = 4096
L_O = 6144
L_W0 = 14336
L_WO = 30720
L_END = L_WO + 46 * 1024
PHI = 0x9E3779B9

ROLES = [('X', slice(0, 1)), ('S', slice(1, 5))]

def gen(S=5, N=4, NP=None, NS=24, kvflags="nt", wflags="nt", woflags="", outflags="", stflags="sc1", ldflags="sc1",
        atflags="sc0 sc1", sleep1=0, sleep2=0, xinfl=7, pmap="w0 w1 n0 n1 n2 n3 n4 r0 r1 r2 r3", tmap=None, skip=(), bar0=True, warm=True, l2pf=True, pools=4, sat=False, early=False, xbar="post", exp=None, i1bit=11, dmaun=4, layout="E X1 S W X2", qdelay=0, qstflags="sc1", qldflags="sc1", ts=False, spin=1 << 20, probe=None):
    R = 2
    POOL = 64 // pools * (32 - NS)
    if tmap is None:
        kb_ = (32 - NS).bit_length() - 1 if NS < 32 else 0
        syms = [f"n{i}" for i in range(kb_)] + [f"r{i}" for i in range(4)]
        tmap = " ".join(f"{x}=t{i}" for i, x in enumerate(syms))
        if pools == 8: tmap = tmap.rsplit("=", 1)[0] + "=p2"
    if NP is None: NP = N
    SEC = {}
    cur = [None]
    def section(name):
        cur[0] = SEC.setdefault(name, [])
    if probe is not None: ts = True
    def a(s): cur[0].append("    " + s)
    def lab(s): cur[0].append(s + ":")
    NW = 6 if warm else 5
    skn = [0]
    def guard(lines):
        if not warm:
            for x in lines: a(x)
            return
        skn[0] += 1
        a(f"s_cbranch_execz L_g{skn[0]}")
        for x in lines: a(x)
        lab(f"L_g{skn[0]}")
    def stamp(idx):
        if ts:
            a("s_waitcnt lgkmcnt(0)")
            a("s_memrealtime s[70:71]")
            a("s_waitcnt lgkmcnt(0)")
            a(f"s_mov_b32 s{80+idx}, s70")
    pc = [0]
    def dump_stamps(role=None):
        if probe is not None:
            prole, pidx = probe[:2]
            if role == prole:
                pc[0] += 1
                if len(probe) > 2:
                    a(f"s_and_b32 s73, s2, {probe[2]}")
                    a(f"s_cmp_lg_u32 s73, {probe[3]}")
                    a(f"s_cbranch_scc1 L_pe{pc[0]}")
                a(f"s_cmp_eq_u32 s{80+pidx}, 0")
                a(f"s_cbranch_scc1 L_pe{pc[0]}")
                a(f"s_add_u32 s72, s{80+pidx}, 10000")
                lab(f"L_pl{pc[0]}")
                a("s_memrealtime s[70:71]")
                a("s_waitcnt lgkmcnt(0)")
                a("s_sub_u32 s73, s70, s72")
                a("s_cmp_lt_i32 s73, 0")
                a(f"s_cbranch_scc1 L_pl{pc[0]}")
                lab(f"L_pe{pc[0]}")
            return
        if ts:
            a("s_mov_b64 exec, 1")
            a("s_mul_i32 s70, s2, 5")
            a("s_add_u32 s70, s70, s3")
            a("s_lshl_b32 s70, s70, 6")
            a(f"s_add_u32 s70, s70, {WS_TS}")
            a("v_mov_b32 v1, s70")
            a("s_getreg_b32 s95, hwreg(HW_REG_XCC_ID)")
            for q in range(4):
                for i in range(4):
                    a(f"v_mov_b32 v{4+i}, s{80+q*4+i}")
                a(f"global_store_dwordx4 v1, v[4:7], s[26:27] offset:{q*16}")
                a("s_nop 1")
    def tagregs():
        a("s_mov_b32 s56, s33")
        a("s_lshr_b32 s57, s33, 8")
        a("s_lshr_b32 s58, s33, 16")
        a("s_lshr_b32 s59, s33, 24")
        for i in range(4): a(f"s_mov_b32 s{60+i}, {0x07060500 + i:#x}")
    def embed(v, vtag):
        for i in range(4): a(f"v_perm_b32 v{v+i}, v{v+i}, v{vtag}, s{60+i}")
    def check(regs, acc):
        first = True
        for r in regs:
            for i in range(4):
                if first:
                    a(f"v_xor_b32 v{acc}, s{56+i}, v{r+i}"); first = False
                else:
                    a(f"v_bitop3_b32 v{acc}, v{acc}, v{r+i}, s{56+i} bitop3:0xf6")
        a(f"v_and_b32 v{acc}, 0xff, v{acc}")
        a(f"v_cmp_ne_u32 vcc, 0, v{acc}")
    def pollend(name):
        a("s_sub_u32 s40, s40, 1")
        a(f"s_cbranch_scc1 {name}_done")
        a(f"s_cbranch_vccnz {name}")
        lab(f"{name}_done")

    VKO, VVO, VM, VL, VM0, VM1 = 18, 19, 20, 21, 22, 23
    VA, VQ, VO, VS, VR = 24, 32, 36, 44, 60
    VT = VR + 64
    def decode():
        a("s_and_b32 s28, s2, 7")
        a("s_lshr_b32 s29, s2, 3")
        a("s_bfe_u32 s30, s2, 0x30004")
        a("s_lshr_b32 s31, s2, 7")
        a("s_and_b32 s32, s2, 15")
        a("s_and_b32 s34, s2, 127")
        a("s_lshr_b32 s38, s2, 4")
    def zero_stamps():
        if ts:
            a("s_mov_b32 s80, s70")
            for i in range(1, 16): a(f"s_mov_b32 s{80+i}, 0")
    section("X1")
    lab("L_xwave")
    if ts: a("s_memrealtime s[72:73]")
    a("s_setprio 2")
    a("v_lshlrev_b32 v1, 5, v0")
    a("v_lshrrev_b32 v2, 3, v0")
    a("v_and_b32 v3, 7, v0")
    decode()
    a("s_lshr_b32 s35, s32, 3")
    a("s_lshl1_add_u32 s35, s31, s35")
    a("s_lshl_b32 s36, s35, 20")
    a("s_lshl_b32 s37, s30, 10")
    a("s_add_u32 s36, s36, s37")
    a("s_lshl_b32 s37, s28, 7")
    a("s_add_u32 s36, s36, s37")
    a("v_lshl_add_u32 v4, v2, 13, s36")
    a("v_lshl_add_u32 v4, v3, 4, v4")
    a("v_mov_b32 v6, 0")
    a(f"ds_write_b32 v6, v6 offset:{L_TAG+4}")
    a(f"s_movk_i32 m0, {L_W0}")
    if NS < 32:
        a(f"s_mul_i32 s36, s38, {pools}")
        a("s_add_u32 s36, s36, s32")
        a("s_lshl_b32 s36, s36, 8")
        a(f"s_add_u32 s36, s36, {WS_CT}")
        a("v_lshl_add_u32 v5, v0, 2, s36")
    a("s_waitcnt lgkmcnt(0)")
    if xbar == "pre": a("s_barrier")
    if ts: a("s_memrealtime s[74:75]")
    a("global_load_dwordx4 v[8:11], v1, s[4:5]")
    a("global_load_dwordx4 v[12:15], v1, s[4:5] offset:16")
    a(f"s_mov_b32 s36, {0 if 'wq' in skip else 0x10000}")
    lab("L_wqdma")
    for i in range(dmaun):
        a(f"global_load_lds_dwordx4 v4, s[10:11] {wflags}")
        a("s_addk_i32 m0, 1024")
        a("v_add_u32 v4, s36, v4")
    a(f"s_cmpk_lg_u32 m0, {L_W0 + 16384}")
    a("s_cbranch_scc1 L_wqdma")
    if NS < 32:
        a(f"s_cmp_ge_u32 s32, {pools}")
        a("s_cbranch_scc1 L_nozero")
        a("global_store_dword v5, v6, s[26:27] sc1")
        lab("L_nozero")
    if ts: a("s_memrealtime s[76:77]")
    if xbar == "post": a("s_barrier")
    if ts: a("s_memrealtime s[78:79]")
    a("s_load_dword s33, s[26:27], 0")
    zero_stamps()
    a("v_lshlrev_b32 v5, 2, v0")
    a(f"ds_write_b32 v5, v6 offset:{L_Z}")
    if "X1 X2" not in layout: a("s_branch L_x2")

    section("W")
    if warm:
        lab("L_wwave")
        if l2pf:
            a("s_getpc_b64 s[68:69]")
            lab("L_wpc")
            a(f"s_sub_u32 s68, s68, L_wpc-{KN}")
            a("s_subb_u32 s69, s69, 0")
            a("v_lshlrev_b32 v7, 7, v0")
            a("v_add_u32 v8, 8192, v7")
            a("v_min_u32 v8, L_codeend-" + KN + "-4, v8")
            a("global_load_dword v9, v7, s[68:69]")
            a("global_load_dword v9, v8, s[68:69]")
        a("s_waitcnt lgkmcnt(0)")
        a("s_barrier")
        a("s_mov_b64 s[68:69], s[26:27]")
        for r in [6, 14, VKO, VVO] + list(range(VT, VT + 16)): a(f"v_mov_b32 v{r}, 0")
        a("s_mov_b64 exec, 0")
        a("s_mov_b32 s42, 0")
        a("s_mov_b32 s54, 1")
        a("s_mov_b32 s41, 0")
        a("s_mov_b32 s33, 0")
        a("s_branch L_prek0")

    section("E")
    lab(KN)
    a("s_load_dwordx2 s[44:45], s[0:1], 8")
    a("s_load_dwordx2 s[48:49], s[0:1], 16")
    a("s_load_dwordx16 s[4:19], s[0:1], 0")
    a("s_load_dwordx8 s[20:27], s[0:1], 64")
    if ts: a("s_memrealtime s[70:71]")
    a("v_lshrrev_b32 v1, 6, v0")
    a("s_cmpk_ge_u32 s2, 256")
    a("s_cbranch_scc1 L_end")
    a("v_readfirstlane_b32 s3, v1")
    a("v_and_b32 v0, 63, v0")
    a("s_brev_b32 s46, 16"); a("s_mov_b32 s47, 0x20000")
    a("s_brev_b32 s50, 16"); a("s_mov_b32 s51, s47")
    a("s_sub_u32 s42, s3, 1")
    a("s_cbranch_scc1 L_xwave")
    if warm:
        a("s_cmp_eq_u32 s3, 5")
        a("s_cbranch_scc1 L_wwave")
    pm = [set(x.split("^")) for x in pmap.split()]
    assert len(pm) == 11
    PB = [b for b in range(11, 23) if b != i1bit]
    def mask_of(sym, m=pm): return sum(1 << PB[p] for p in range(11) if sym in m[p])
    def scalar_part(dst, m, srcs):
        a(f"s_lshl_b32 {dst}, s38, 23")
        for pre, (reg, nb) in srcs.items():
            masks = [mask_of(f"{pre}{i}", m) for i in range(nb)]
            if not any(masks): continue
            if masks[0] and all(masks[i] == masks[0] << i for i in range(nb)) and bin(masks[0]).count("1") == 1:
                a(f"s_lshl_b32 s35, {reg}, {masks[0].bit_length()-1}")
                a(f"s_xor_b32 {dst}, {dst}, s35")
                continue
            for i in range(nb):
                if masks[i]:
                    a(f"s_bfe_i32 s35, {reg}, {0x10000 + i:#x}")
                    a(f"s_and_b32 s35, s35, {masks[i]:#x}")
                    a(f"s_xor_b32 {dst}, {dst}, s35")
    def lane_part(vdst, ssrc, m, pre, nb):
        a(f"v_mov_b32 v{vdst}, {ssrc}")
        for i in range(nb):
            mk = mask_of(f"{pre}{i}", m)
            if mk:
                a(f"v_bfe_i32 v7, v0, {i}, 1")
                a(f"v_and_b32 v7, {mk:#x}, v7")
                a(f"v_xor_b32 v{vdst}, v{vdst}, v7")
    def nconst(n):
        c = 0
        for i in range(5):
            if n >> i & 1: c ^= mask_of(f"n{i}")
        return c
    if pmap == "w0 w1 n0 n1 n2 n3 n4 r0 r1 r2 r3" and i1bit == 11:
        a("s_lshl_b32 s52, s2, 19")
        a("s_lshl_b32 s35, s42, 12")
        a("s_or_b32 s52, s52, s35")
    else:
        a("s_and_b32 s32, s2, 15")
        a("s_lshr_b32 s38, s2, 4")
        scalar_part("s52", pm, {"w": ("s42", 2), "r": ("s32", 4), "g": ("s38", 4)})
    a("v_lshrrev_b32 v2, 4, v0")
    a("v_and_b32 v3, 3, v0")
    a("v_bfe_u32 v4, v0, 2, 2")
    a("v_lshlrev_b32 v5, 8, v4")
    a("v_lshl_add_u32 v5, v2, 6, v5")
    a(f"v_lshl_add_u32 v{VKO}, v3, 4, v5")
    a(f"v_lshlrev_b32 v{VVO}, 4, v0")
    a("s_waitcnt lgkmcnt(0)")
    if not early: a("s_barrier")
    def issueK(slot):
        for u in range(4):
            r = VR + slot * 32 + 4 * u
            if i1bit == 11: a(f"buffer_load_dwordx4 v[{r}:{r+3}], v{VKO}, s[44:47], s52 offen offset:{u*1024} {kvflags}")
            else:
                if u == 2: a(f"s_bitset1_b32 s52, {i1bit}")
                a(f"buffer_load_dwordx4 v[{r}:{r+3}], v{VKO}, s[44:47], s52 offen offset:{(u&1)*1024} {kvflags}")
    def issueV(slot):
        for t in (range(4) if i1bit == 11 else (2, 3, 0, 1)):
            r = VR + slot * 32 + 16 + 4 * t
            if i1bit == 11: a(f"buffer_load_dwordx4 v[{r}:{r+3}], v{VVO}, s[48:51], s52 offen offset:{t*1024} {kvflags}")
            else:
                if t == 0: a(f"s_bitset0_b32 s52, {i1bit}")
                a(f"buffer_load_dwordx4 v[{r}:{r+3}], v{VVO}, s[48:51], s52 offen offset:{(t&1)*1024} {kvflags}")
    def s_setup():
        if "E S" not in layout: a("s_branch L_srest")
        section("S")
        lab("L_srest")
        zero_stamps()
        if ts:
            a("v_mov_b32 v13, 0")
            if probe is None:
                a("s_memrealtime s[70:71]")
                a("s_waitcnt lgkmcnt(0)")
                a("v_writelane_b32 v13, s70, 1")
        if early: a("s_barrier")
        decode()
        a("s_mov_b32 s66, s52")
        a("s_mov_b32 s43, s2")
        a("s_add_u32 s37, s42, s32")
        a("s_and_b32 s37, s37, 3")
        if pools == 8:
            a("s_lshr_b32 s36, s32, 3")
            a("s_lshl_b32 s36, s36, 2")
            a("s_or_b32 s37, s37, s36")
        lane_part(10, "s66", pm, "n", 5)
        if NS < 32:
            kb = (32 - NS).bit_length() - 1
            assert 32 - NS == 1 << kb and POOL <= 128
            sub = {k: set(v.split("^")) for k, v in (x.split("=") for x in tmap.split())}
            sub["w0"] = {"p0"}; sub["w1"] = {"p1"}
            for i in range(kb, 5): sub[f"n{i}"] = {"1"}
            tm = []
            for terms in pm:
                acc = set()
                for t in terms: acc ^= sub.get(t, {t})
                tm.append(acc)
            scalar_part("s55", tm, {"p": ("s37", 3), "g": ("s38", 4)})
            a(f"s_xor_b32 s55, s55, {mask_of('1', tm):#x}")
            lane_part(11, "s55", tm, "t", 6)
            a(f"v_xor_b32 v12, {mask_of('t6', tm):#x}, v11")
        a(f"s_mul_i32 s36, s38, {pools}")
        a("s_add_u32 s36, s36, s37")
        a("s_lshl_b32 s36, s36, 8")
        a(f"s_add_u32 s36, s36, {WS_CT}")
        a("s_add_u32 s68, s26, s36")
        a("s_addc_u32 s69, s27, 0")
        a("s_mov_b32 s67, -1")
        a("v_mov_b32 v14, s36")
        a("v_mov_b32 v15, 1")
        a("v_mov_b32 v16, -1")
        a("v_mov_b32 v6, 0xffff")
        a("v_mov_b32 v7, 0xffff0000")
        a("v_and_b32 v8, 1, v0")
        a("v_cmp_eq_u32 vcc, 1, v8")
        a("v_and_b32 v8, 2, v0")
        a("s_nop 0")
        a("v_cndmask_b32 v6, v6, v7, vcc")
        a("v_cmp_eq_u32 vcc, 2, v8")
        a(f"v_mov_b32 v{VM}, {f2u(-3.0e38):#x}")
        a(f"v_mov_b32 v{VL}, 0")
        a(f"v_cndmask_b32 v{VM1}, 0, v6, vcc")
        a(f"v_xor_b32 v{VM0}, v{VM1}, v6")
        for i in range(8): a(f"v_mov_b32 v{VO+i}, 0")
        a(f"s_mov_b32 s53, {f2u(math.log2(math.e) / math.sqrt(128.0)):#x}")
        a("s_mov_b32 s54, 1000")
        a(f"s_mov_b32 s41, {S}")
        a("v_mov_b32 v6, 0")
    done_setup = False
    for h in range(2 * S):
        if 4 * h > NP:
            if not done_setup:
                s_setup(); done_setup = True
            a(f"s_waitcnt vmcnt({NP})")
        if h % 2 == 0 and h > 0: a(f"s_xor_b32 s52, s66, {nconst(h // 2):#x}")
        (issueK if h % 2 == 0 else issueV)(h // 2)
        if ts and probe is None and h % 2 == 1 and h > 1:
            a("s_memrealtime s[70:71]")
            a("s_waitcnt lgkmcnt(0)")
            a(f"v_writelane_b32 v13, s70, {h // 2 + 1}")
    assert done_setup
    assert N <= 8 and NS >= S + 1 and S - R >= 2 and (2 * S - 1) * 4 >= NP + 4
    stamp(1)
    a(f"s_mov_b32 s40, {spin * 8}")
    lab("L_qflag")
    a(f"ds_read_b64 v[2:3], v6 offset:{L_TAG}")
    a("s_waitcnt lgkmcnt(0)")
    a("v_cmp_eq_u32 vcc, 0, v3")
    a("s_cbranch_vccz L_qflag_done")
    a("s_sleep 1")
    a("s_sub_u32 s40, s40, 1")
    a("s_cbranch_scc0 L_qflag")
    lab("L_qflag_done")
    a(f"ds_read_b128 v[{VQ}:{VQ+3}], v{VKO} offset:{L_Q}")
    a("v_mov_b32 v17, v2")
    a("v_readfirstlane_b32 s33, v2")
    stamp(2)
    a("s_waitcnt lgkmcnt(0)")
    def claim():
        if exp == "fake":
            pass
        elif NS < 32 and sat:
            a("s_mov_b32 s67, 1")
            a("s_atomic_add s67, s[68:69], 0 glc")
        elif NS < 32:
            a("s_mov_b64 exec, 1")
            a(f"global_atomic_add v16, v14, v15, s[26:27] {atflags}")
            a("s_mov_b64 exec, -1")
    def qk(slot):
        K = VR + slot * 32
        for u in range(4):
            a(f"v_mfma_f32_16x16x32_bf16 v[{VS+4*u}:{VS+4*u+3}], v[{K+4*u}:{K+4*u+3}], v[{VQ}:{VQ+3}], 0")
    def softmax():
        for u in range(4):
            a(f"v_mov_b32_dpp v{4+u}, v{VS+4*u} quad_perm:[0,0,0,0] row_mask:0xf bank_mask:0xf")
        for p in range(1, 4):
            for u in range(4):
                a(f"v_add_f32_dpp v{4+u}, v{VS+4*u+p}, v{4+u} quad_perm:[{p},{p},{p},{p}] row_mask:0xf bank_mask:0xf")
        a("v_max3_f32 v1, v4, v5, v6")
        a(f"v_max3_f32 v1, v1, v7, v{VM}")
        a("v_mov_b32 v2, v1")
        a("s_nop 1")
        a("v_permlane16_swap_b32 v1, v2")
        a("s_nop 0")
        a("v_max_f32 v1, v1, v2")
        a("v_mov_b32 v2, v1")
        a("s_nop 1")
        a("v_permlane32_swap_b32 v1, v2")
        a("s_nop 0")
        a("v_max_f32 v1, v1, v2")
        a(f"v_sub_f32 v2, v{VM}, v1")
        a("v_mul_f32 v3, s53, v1")
        a("v_mul_f32 v2, s53, v2")
        a(f"v_mov_b32 v{VM}, v1")
        a("v_exp_f32 v2, v2")
        for i in range(4):
            a(f"v_fma_f32 v{4+i}, v{4+i}, s53, -v3")
        for i in range(4):
            a(f"v_exp_f32 v{4+i}, v{4+i}")
        for g in range(4):
            a(f"v_mov_b32_dpp v8, v2 row_newbcast:{4*g} row_mask:{1<<g:#x} bank_mask:0xf")
        a(f"v_fma_f32 v{VL}, v{VL}, v2, v4")
        a("v_add_f32 v9, v5, v6")
        a(f"v_add_f32 v{VL}, v{VL}, v7")
        a(f"v_add_f32 v{VL}, v{VL}, v9")
        for i in range(4):
            a(f"v_cvt_pk_bf16_f32 v{4+i}, v{4+i}, v{4+i}")
        for i in range(8):
            a(f"v_mul_f32 v{VO+i}, v{VO+i}, v8")
        for i in range(4):
            a(f"v_and_b32 v{VA+2*i}, v{4+i}, v{VM0}")
            a(f"v_and_b32 v{VA+2*i+1}, v{4+i}, v{VM1}")
    def pv(slot):
        V = VR + slot * 32 + 16
        for t in range(4):
            a(f"v_mfma_f32_16x16x16_bf16 v[{VO}:{VO+3}], v[{VA+2*t}:{VA+2*t+1}], v[{V+4*t}:{V+4*t+1}], v[{VO}:{VO+3}]")
            a(f"v_mfma_f32_16x16x16_bf16 v[{VO+4}:{VO+7}], v[{VA+2*t}:{VA+2*t+1}], v[{V+4*t+2}:{V+4*t+3}], v[{VO+4}:{VO+7}]")
    NPRE = S - R
    lab("L_loop")
    snips = []
    for slot in range(R):
        if N > 4:
            a("s_cmp_eq_u32 s54, 0")
            a(f"s_cbranch_scc0 L_nk{slot}")
            a("s_waitcnt vmcnt(4)")
            lab(f"L_nk{slot}")
        qk(slot)
        a("v_readlane_b32 s52, v10, s41")
        a(f"s_cmp_lt_u32 s54, {R}")
        a(f"s_cbranch_scc1 L_dk{slot}")
        a(f"s_waitcnt vmcnt({N})")
        a(f"s_cmp_ge_u32 s41, {NS}")
        a(f"s_cbranch_scc1 L_tk{slot}")
        lab(f"L_gk{slot}")
        if N > 4:
            a("s_add_u32 s41, s41, 1")
            a(f"s_cmp_lt_u32 s41, {NS}")
            a(f"s_cbranch_scc1 L_nc{slot}")
            claim()
            lab(f"L_nc{slot}")
        issueK(slot)
        lab(f"L_rk{slot}")
        sn = [f"L_tk{slot}:"] + (["    s_waitcnt lgkmcnt(0)", "    s_mov_b32 s35, s67"] if sat else ["    v_readfirstlane_b32 s35, v16", "    s_nop 3"]) + [
              "    v_readlane_b32 s36, v11, s35", "    v_readlane_b32 s37, v12, s35", "    s_bitcmp1_b32 s35, 6", "    s_nop 0",
              "    s_cselect_b32 s52, s37, s36",
              f"    s_cmp_lt_u32 s35, {POOL}", f"    s_cbranch_scc1 L_gk{slot}",
              f"    s_mov_b32 s54, {R-1}", f"L_dk{slot}:", "    s_nop 4", f"    s_branch L_rk{slot}"]
        if exp == "dummy":
            sn = [f"L_tk{slot}:", "    s_waitcnt lgkmcnt(0)", "    s_cmp_lt_u32 s41, 32", f"    s_cbranch_scc1 L_gk{slot}"] + sn[-4:]
        if exp == "fake":
            sn = [f"L_tk{slot}:", f"    s_sub_u32 s35, s41, {NS}", "    s_lshl_b32 s35, s35, 4", "    s_add_u32 s35, s35, s32"] + sn[3:]
        snips.append(sn)
        softmax()
        a("s_cmp_eq_u32 s54, 0")
        a(f"s_cbranch_scc0 L_nv{slot}")
        a("s_waitcnt vmcnt(0)")
        lab(f"L_nv{slot}")
        pv(slot)
        a(f"s_cmp_lt_u32 s54, {R}")
        a(f"s_cbranch_scc1 L_dv{slot}")
        a(f"s_waitcnt vmcnt({N})")
        if N <= 4:
            a("s_add_u32 s41, s41, 1")
            a(f"s_cmp_lt_u32 s41, {NS}")
            a(f"s_cbranch_scc1 L_nc{slot}")
            claim()
            lab(f"L_nc{slot}")
        issueV(slot)
        if ts and probe is None:
            a("s_memrealtime s[70:71]")
            a("s_mov_b32 m0, s41")
            a("s_waitcnt lgkmcnt(0)")
            a("v_writelane_b32 v13, s70, m0")
        a(f"s_cmp_le_u32 s41, {S + NPRE + 1}")
        a(f"s_cbranch_scc1 L_pre{slot}")
        lab(f"L_rv{slot}")
        snips.append([f"L_dv{slot}:", "    s_sub_u32 s54, s54, 1", f"    s_cbranch_scc0 L_rv{slot}", "    s_branch L_done"])
    a("s_branch L_loop")
    for sn in snips: cur[0].extend(sn)
    assert NS > S + NPRE + 1
    T_OW, T_SW, T_OR, T_SR, T_P1S, T_P1L, T_OBW, T_P2S, T_WO, T_H, T_F0, T_XO, T_X = [VT + i for i in (0, 1, 2, 3, 4, 5, 6, 7, 8, 9, 10, 14, 15)]
    VW = VT + 16
    VD = VW + 32
    assert VW + 46 <= VR + 32 * S
    def tail_setup():
        a("v_lshrrev_b32 v3, 4, v0")
        a("v_and_b32 v4, 15, v0")
        a("v_bfe_u32 v5, v0, 2, 2")
        a("s_lshl_b32 s35, s42, 11")
        a(f"v_lshl_add_u32 v{T_OW}, v0, 5, s35")
        a("s_lshl_b32 s36, s42, 3")
        a(f"v_lshl_add_u32 v{T_SW}, v5, 5, s36")
        a("s_lshl_b32 s35, s42, 9")
        a(f"v_lshl_add_u32 v{T_OR}, v0, 3, s35")
        a("s_lshl_b32 s36, s42, 5")
        a(f"v_mov_b32 v{T_SR}, s36")
        a("s_lshl_b32 s35, s43, 12")
        a("s_lshl_b32 s36, s42, 10")
        a("s_add_u32 s36, s35, s36")
        a(f"s_add_u32 s37, s36, {WS_P1}")
        a(f"v_lshl_add_u32 v{T_P1S}, v0, 4, s37")
        a("s_lshl_b32 s36, s38, 16")
        a("s_lshl_b32 s37, s32, 8")
        a("s_add_u32 s36, s36, s37")
        a("s_lshl_b32 s37, s42, 6")
        a("s_add_u32 s36, s36, s37")
        a(f"s_add_u32 s36, s36, {WS_P1}")
        a(f"v_lshl_add_u32 v{T_P1L}, v4, 12, s36")
        a(f"v_lshl_add_u32 v{T_P1L}, v3, 4, v{T_P1L}")
        a("s_lshl_b32 s36, s42, 4")
        a(f"v_lshl_add_u32 v{T_OBW}, v3, 2, s36")
        a("s_lshl_b32 s36, s42, 6")
        a("s_lshl_b32 s37, s43, 3")
        a("s_add_u32 s36, s36, s37")
        a("v_add_u32 v1, s36, v0")
        a("v_and_b32 v1, 255, v1")
        a(f"s_add_u32 s37, s35, {WS_P2}")
        a(f"v_lshl_add_u32 v{T_P2S}, v1, 4, s37")
        a("s_lshl_b32 s36, s42, 8")
        a(f"s_add_u32 s36, s36, {L_WO}")
        a(f"v_lshl_add_u32 v{T_WO}, v0, 2, s36")
        a("s_and_b32 s36, s34, 1")
        a("s_lshl_b32 s36, s36, 2")
        a(f"s_add_u32 s36, s36, {L_H}")
        a(f"v_mov_b32 v{T_H}, s36")
        a("s_lshr_b32 s35, s28, 2")
        a("s_and_b32 s36, s28, 3")
        a("s_lshl_b32 s36, s36, 5")
        a("s_add_u32 s36, s36, s29")
        a("v_and_b32 v2, 1, v0")
        a("v_lshrrev_b32 v3, 1, v0")
        a("s_lshl_b32 s37, s36, 1")
        a("v_lshl_add_u32 v4, v3, 3, s37")
        a("v_add_u32 v4, v4, v2")
        a("v_and_b32 v4, 255, v4")
        a("s_lshl_b32 s37, s35, 19")
        a(f"s_add_u32 s37, s37, {WS_P2}")
        a("v_lshl_add_u32 v4, v4, 4, s37")
        a(f"v_lshl_add_u32 v{T_F0}, v3, 12, v4")
        for k in range(1, 4): a(f"v_add_u32 v{T_F0+k}, {k << 17:#x}, v{T_F0}")
        a("s_lshl_b32 s37, s35, 10")
        a("s_lshl_b32 s36, s36, 3")
        a("s_add_u32 s37, s37, s36")
        a(f"v_lshl_add_u32 v{T_XO}, v2, 2, s37")
        tagregs()
        a("s_mov_b32 s64, 0x05040100")
        a("s_mov_b32 s65, 0x07060302")
    for slot in range(R):
        mine = [k for k in range(NPRE + 1) if k % R == slot]
        lab(f"L_pre{slot}")
        for n, k in enumerate(mine):
            if n < len(mine) - 1:
                a(f"s_cmp_lg_u32 s41, {S + 1 + k}")
                a(f"s_cbranch_scc1 L_pre{slot}_{n+1}")
            lab(f"L_prek{k}")
            if k < NPRE:
                qk(R + k)
                a("s_nop 4")
                softmax()
                a("s_nop 1")
                pv(R + k)
            else:
                tail_setup()
            if warm: a(f"s_cbranch_execz {'L_prek%d' % (k + 1) if k < NPRE else 'L_loop'}")
            a(f"s_branch L_rv{slot}")
            if n < len(mine) - 1: lab(f"L_pre{slot}_{n+1}")

    lab("L_done")
    stamp(3)
    if ts: a("s_mov_b32 s94, s41")
    if ts and probe is None: a(f"v_mov_b32 v{VR}, v13")
    a(f"v_mov_b32 v2, v{VL}")
    a(f"v_mul_f32 v10, s53, v{VM}")
    a("s_nop 0")
    a(f"v_permlane16_swap_b32 v{VL}, v2")
    a("s_nop 0")
    a(f"v_add_f32 v11, v{VL}, v2")
    a("v_mov_b32 v2, v11")
    a(f"ds_write_b128 v{T_OW}, v[{VO}:{VO+3}] offset:{L_O}")
    a(f"ds_write_b128 v{T_OW}, v[{VO+4}:{VO+7}] offset:{L_O+16}")
    a("v_permlane32_swap_b32 v11, v2")
    a("s_nop 0")
    a("v_add_f32 v11, v11, v2")
    a(f"ds_write_b64 v{T_SW}, v[10:11] offset:{L_ST}")
    a("s_waitcnt lgkmcnt(0)")
    guard(["s_barrier"])
    a(f"ds_read_b128 v[8:11], v{T_SR} offset:{L_ST}")
    a(f"ds_read_b128 v[12:15], v{T_SR} offset:{L_ST+16}")
    for w in range(4):
        a(f"ds_read_b64 v[{24+2*w}:{25+2*w}], v{T_OR} offset:{L_O + w*2048}")
    a("v_mov_b32 v39, v17")
    a("s_waitcnt lgkmcnt(4)")
    a("v_max3_f32 v2, v8, v10, v12")
    a("v_max_f32 v2, v2, v14")
    for w in range(4):
        a(f"v_sub_f32 v{8+2*w}, v{8+2*w}, v2")
    for w in range(4):
        a(f"v_exp_f32 v{8+2*w}, v{8+2*w}")
    a("v_mul_f32 v16, v8, v9")
    a("v_fmac_f32 v16, v10, v11")
    a("v_fmac_f32 v16, v12, v13")
    a("v_fmac_f32 v16, v14, v15")
    a("s_waitcnt lgkmcnt(0)")
    a("v_rcp_f32 v5, v16")
    a("v_log_f32 v16, v16")
    a("v_mul_f32 v36, v8, v24")
    a("v_mul_f32 v37, v8, v25")
    for w in range(1, 4):
        a(f"v_fmac_f32 v36, v{8+2*w}, v{24+2*w}")
        a(f"v_fmac_f32 v37, v{8+2*w}, v{25+2*w}")
    a("v_add_f32 v38, v2, v16")
    a("v_mul_f32 v36, v36, v5")
    a("v_mul_f32 v37, v37, v5")
    guard([f"global_store_dwordx4 v{T_P1S}, v[36:39], s[26:27] {stflags}"] + ([] if ts else [f"global_load_dwordx4 v[8:11], v{T_P1L}, s[26:27] {ldflags}"]))
    stamp(4)
    if ts: guard([f"global_load_dwordx4 v[8:11], v{T_P1L}, s[26:27] {ldflags}"])
    a(f"ds_read_b32 v{T_X}, v{T_XO} offset:{L_XR}")
    for i in range(4):
        a(f"ds_read2_b32 v[{24+2*i}:{25+2*i}], v{T_H} offset0:{2*i} offset1:{2*i+1}")
    order = list(range(16, 23)) + list(range(16))
    def rd(r): a(f"ds_read2st64_b32 v[{VW+2*r}:{VW+2*r+1}], v{T_WO} offset0:{8*r} offset1:{8*r+4}")
    def pm(r):
        a(f"v_perm_b32 v6, v{VW+2*r+1}, v{VW+2*r}, s64")
        a(f"v_perm_b32 v{VW+2*r+1}, v{VW+2*r+1}, v{VW+2*r}, s65")
        a(f"v_mov_b32 v{VW+2*r}, v6")
    DEPTH = 7
    for n, r in enumerate(order):
        rd(r)
        if n >= DEPTH:
            a(f"s_waitcnt lgkmcnt({DEPTH})")
            pm(order[n - DEPTH])
    for n in range(len(order) - DEPTH, len(order)):
        a(f"s_waitcnt lgkmcnt({len(order) - 1 - n})")
        pm(order[n])
    a("v_mov_b32 v42, 0")
    a("v_mov_b32 v43, 0")
    for r in range(7):
        a(f"v_dot2_f32_bf16 v42, v{VD+2*r}, v{24+r}, v42")
        a(f"v_dot2_f32_bf16 v43, v{VD+2*r+1}, v{24+r}, v43")
    a("v_mov_b32 v40, 0")
    a("v_mov_b32 v41, 0")
    a("v_mov_b32 v6, 0")
    a(f"s_mov_b32 s40, {spin}")
    a("v_perm_b32 v42, v42, v17, s62")
    a("v_perm_b32 v43, v43, v17, s63")
    a("s_branch L_p1chk")
    lab("L_p1poll")
    if sleep1: a(f"s_sleep {sleep1}")
    a(f"global_load_dwordx4 v[8:11], v{T_P1L}, s[26:27] {ldflags}")
    lab("L_p1chk")
    a("s_waitcnt vmcnt(0)")
    a("v_cmp_ne_u32 vcc, s33, v11")
    pollend("L_p1poll")
    stamp(5)
    a("v_max_f32_dpp v2, v10, v10 row_ror:8 row_mask:0xf bank_mask:0xf")
    a("s_nop 1")
    for r in (4, 2, 1):
        a(f"v_max_f32_dpp v2, v2, v2 row_ror:{r} row_mask:0xf bank_mask:0xf")
        if r > 1: a("s_nop 1")
    a("v_sub_f32 v10, v10, v2")
    a("v_exp_f32 v10, v10")
    a("s_nop 0")
    a("v_mul_f32 v8, v8, v10")
    a("v_mul_f32 v9, v9, v10")
    for r in (8, 4, 2, 1):
        for v in (10, 8, 9):
            a(f"v_add_f32_dpp v{v}, v{v}, v{v} row_ror:{r} row_mask:0xf bank_mask:0xf")
    a("v_rcp_f32 v10, v10")
    a("s_nop 0")
    a("v_mul_f32 v8, v8, v10")
    a("v_mul_f32 v9, v9, v10")
    a("v_cvt_pk_bf16_f32 v8, v8, v9")
    a(f"ds_write_b32 v{T_OBW}, v8 offset:{L_OB}")
    a("s_waitcnt lgkmcnt(0)")
    guard(["s_barrier"])
    for i in range(4):
        a(f"ds_read_b128 v[{VS+4*i}:{VS+4*i+3}], v6 offset:{L_OB + 16*i}")
    for r in range(16):
        if r % 4 == 0:
            a(f"s_waitcnt lgkmcnt({3 - r//4})")
        a(f"v_dot2_f32_bf16 v40, v{VW+2*r}, v{VS+r}, v40")
        a(f"v_dot2_f32_bf16 v41, v{VW+2*r+1}, v{VS+r}, v41")
    a("s_nop 1")
    a("v_perm_b32 v40, v40, v17, s60")
    a("v_perm_b32 v41, v41, v17, s61")
    guard([f"global_store_dwordx4 v{T_P2S}, v[40:43], s[26:27] {stflags}"])
    stamp(6)
    a("s_cmp_lg_u32 s42, 0")
    a("s_cbranch_scc1 L_sexit")
    a(f"s_mov_b32 s40, {spin}")
    lab("L_p2poll")
    if sleep2: a(f"s_sleep {sleep2}")
    guard([f"global_load_dwordx4 v[{24+4*k}:{27+4*k}], v{T_F0+k}, s[26:27] {ldflags}" for k in range(4)])
    a("s_waitcnt vmcnt(0)")
    check([24, 28, 32, 36], 2)
    pollend("L_p2poll")
    stamp(7)
    for i in range(16): a(f"v_and_b32 v{24+i}, 0xffffff00, v{24+i}")
    for i in range(4):
        a(f"v_add_f32 v{24+i}, v{24+i}, v{28+i}")
        a(f"v_add_f32 v{32+i}, v{32+i}, v{36+i}")
    for i in range(4): a(f"v_add_f32 v{8+i}, v{24+i}, v{32+i}")
    for r in (2, 4, 8):
        for i in range(4):
            a(f"v_add_f32_dpp v{8+i}, v{8+i}, v{8+i} row_ror:{r} row_mask:0xf bank_mask:0xf")
    for op in ("v_permlane16_swap_b32", "v_permlane32_swap_b32"):
        for i in range(4): a(f"v_mov_b32 v{12+i}, v{8+i}")
        for i in range(4): a(f"{op} v{8+i}, v{12+i}")
        for i in range(4): a(f"v_add_f32 v{8+i}, v{8+i}, v{12+i}")
    a("v_cvt_pk_bf16_f32 v10, v10, v11")
    a("v_cvt_pk_bf16_f32 v8, v8, v9")
    a("v_and_b32 v11, 0xffff0000, v10")
    a("v_lshlrev_b32 v10, 16, v10")
    a(f"v_mul_f32 v13, {f2u(-math.log2(math.e)):#x}, v11")
    a(f"v_mul_f32 v12, {f2u(-math.log2(math.e)):#x}, v10")
    a("v_exp_f32 v13, v13")
    a("v_exp_f32 v12, v12")
    a("v_and_b32 v9, 0xffff0000, v8")
    a("v_add_f32 v13, 1.0, v13")
    a("v_add_f32 v12, 1.0, v12")
    a("v_rcp_f32 v13, v13")
    a("v_rcp_f32 v12, v12")
    a("v_lshlrev_b32 v8, 16, v8")
    a("v_mul_f32 v11, v11, v13")
    a("v_mul_f32 v10, v10, v12")
    a("v_cvt_pk_bf16_f32 v10, v10, v11")
    a(f"v_lshlrev_b32 v12, 16, v{T_X}")
    a(f"v_and_b32 v13, 0xffff0000, v{T_X}")
    a("v_and_b32 v11, 0xffff0000, v10")
    a("v_lshlrev_b32 v10, 16, v10")
    a("v_mul_f32 v9, v9, v11")
    a("v_mul_f32 v8, v8, v10")
    a("v_cvt_pk_bf16_f32 v8, v8, v9")
    a("v_and_b32 v9, 0xffff0000, v8")
    a("v_lshlrev_b32 v8, 16, v8")
    a("v_add_f32 v9, v9, v13")
    a("v_add_f32 v8, v8, v12")
    a("v_cvt_pk_bf16_f32 v8, v8, v9")
    if warm: a("s_cbranch_execz L_end")
    a("s_mov_b64 exec, 3")
    a(f"global_store_dword v{T_XO}, v8, s[22:23] {outflags}")
    a("s_cmp_lg_u32 s2, 0")
    a("s_cbranch_scc1 L_sexit")
    a("s_mov_b64 exec, 1")
    a(f"global_store_dword v6, v17, s[26:27] {outflags}")
    lab("L_sexit")
    stamp(8)
    if ts and probe is None:
        a("s_mov_b64 exec, -1")
        a("s_lshl_b32 s70, s2, 2")
        a("s_add_u32 s70, s70, s42")
        a("s_lshl_b32 s70, s70, 8")
        a(f"s_add_u32 s70, s70, {WS_TT}")
        a("v_lshl_add_u32 v1, v0, 2, s70")
        a(f"global_store_dword v1, v{VR}, s[26:27]")
    dump_stamps("S")
    lab("L_end")
    a("s_endpgm")

    section("X2")
    lab("L_x2")
    a("v_lshrrev_b32 v46, 4, v0")
    a("v_bfe_u32 v7, v0, 2, 2")
    a("v_and_b32 v5, 3, v0")
    a("v_lshlrev_b32 v44, 10, v46")
    a("v_lshl_add_u32 v44, v7, 7, v44")
    a("v_lshl_add_u32 v44, v5, 3, v44")
    a("v_and_b32 v45, 1, v0")
    a("v_lshlrev_b32 v4, 10, v45")
    a("v_lshl_add_u32 v4, v46, 4, v4")
    a("v_bfe_u32 v47, v0, 1, 3")
    a("s_lshl_b32 s36, s35, 8")
    a("v_add_u32 v5, s36, v4")
    a(f"v_mov_b32 v34, {L_Z}")
    for k in range(4):
        a(f"v_cmp_eq_u32 s[{44+2*k}:{45+2*k}], {k}, v47")
    a("s_nop 0")
    for k in range(4):
        a(f"v_cndmask_b32 v{36+k}, v34, v5, s[{44+2*k}:{45+2*k}]")
    a("s_lshl_b32 s36, s30, 14")
    a("s_lshl_b32 s37, s35, 11")
    a("s_add_u32 s36, s36, s37")
    a("s_lshl_b32 s37, s28, 8")
    a("s_add_u32 s36, s36, s37")
    a(f"s_add_u32 s36, s36, {WS_QP}")
    a("v_lshl_add_u32 v5, v45, 13, s36")
    a("v_lshl_add_u32 v5, v47, 6, v5")
    a("v_lshl_add_u32 v5, v46, 4, v5")
    a("s_waitcnt vmcnt(16)")
    stamp(1)
    if ts:
        a("s_mov_b32 s89, s72"); a("s_mov_b32 s90, s74"); a("s_mov_b32 s91, s76"); a("s_mov_b32 s92, s78")
    a(f"ds_write_b128 v1, v[8:11] offset:{L_XR}")
    a(f"ds_write_b128 v1, v[12:15] offset:{L_XR+16}")
    for i in range(8):
        a(f"v_lshlrev_b32 v{16+2*i}, 16, v{8+i}")
        a(f"v_and_b32 v{17+2*i}, 0xffff0000, v{8+i}")
    def red32(v, t):
        a("s_nop 1")
        for r in (8, 4, 2, 1):
            a(f"v_add_f32_dpp {v}, {v}, {v} row_ror:{r} row_mask:0xf bank_mask:0xf")
            a("s_nop 1")
        a(f"v_mov_b32 {t}, {v}")
        a("s_nop 1")
        a(f"v_permlane16_swap_b32 {v}, {t}")
        a("s_nop 0")
        a(f"v_add_f32 {v}, {v}, {t}")
    a("v_add_f32 v6, v16, v17")
    for i in range(2, 16):
        a(f"v_add_f32 v6, v6, v{16+i}")
    red32("v6", "v7")
    a(f"v_mul_f32 v6, {f2u(1.0/512):#x}, v6")
    a("v_sub_f32 v32, v16, v6")
    a("v_mul_f32 v33, v32, v32")
    for i in range(1, 16):
        a(f"v_sub_f32 v32, v{16+i}, v6")
        a("v_fmac_f32 v33, v32, v32")
    red32("v33", "v7")
    a(f"v_mul_f32 v33, {f2u(1.0/512):#x}, v33")
    a("v_cvt_pk_bf16_f32 v6, v6, v33")
    a("v_and_b32 v33, 0xffff0000, v6")
    a("v_lshlrev_b32 v6, 16, v6")
    a(f"v_add_f32 v33, {f2u(1e-5):#x}, v33")
    a("v_cvt_pk_bf16_f32 v33, v33, v33")
    a("v_lshlrev_b32 v33, 16, v33")
    a("v_sqrt_f32 v33, v33")
    a("s_nop 0")
    a("v_cvt_pk_bf16_f32 v33, v33, v33")
    a("v_lshlrev_b32 v33, 16, v33")
    a("v_rcp_f32 v33, v33")
    for i in range(8):
        a(f"v_sub_f32 v{16+2*i}, v{16+2*i}, v6")
        a(f"v_sub_f32 v{17+2*i}, v{17+2*i}, v6")
        a(f"v_cvt_pk_bf16_f32 v{8+i}, v{16+2*i}, v{17+2*i}")
        a(f"v_lshlrev_b32 v{16+2*i}, 16, v{8+i}")
        a(f"v_and_b32 v{17+2*i}, 0xffff0000, v{8+i}")
        a(f"v_mul_f32 v{16+2*i}, v{16+2*i}, v33")
        a(f"v_mul_f32 v{17+2*i}, v{17+2*i}, v33")
        a(f"v_cvt_pk_bf16_f32 v{8+i}, v{16+2*i}, v{17+2*i}")
    a(f"ds_write_b128 v1, v[8:11] offset:{L_XN}")
    a(f"ds_write_b128 v1, v[12:15] offset:{L_XN+16}")
    def gemv(xsel):
        for ks in range(4):
            o = (ks & 1) * 32
            for blk in range(4):
                xr, xo = xsel(ks, blk)
                a(f"ds_read_b128 v[{48+o+4*blk}:{51+o+4*blk}], v{xr} offset:{xo}")
                a(f"ds_read_b64_tr_b16 v[{64+o+4*blk}:{65+o+4*blk}], v44 offset:{L_W0 + ks*4096 + blk*32}")
                a(f"ds_read_b64_tr_b16 v[{66+o+4*blk}:{67+o+4*blk}], v44 offset:{L_W0 + ks*4096 + blk*32 + 512}")
            for blk in range(4):
                a(f"s_waitcnt lgkmcnt({9-3*blk})")
                c = "0" if (ks == 0 and blk == 0) else "v[8:11]"
                a(f"v_mfma_f32_16x16x32_bf16 v[8:11], v[{64+o+4*blk}:{67+o+4*blk}], v[{48+o+4*blk}:{51+o+4*blk}], {c}")
    a("s_waitcnt lgkmcnt(0)")
    a(f"s_add_u32 s33, s33, {PHI:#x}")
    tagregs()
    a("v_mov_b32 v32, s33")
    a("v_mov_b32 v33, 1")
    a("s_waitcnt vmcnt(0)")
    stamp(2)
    gemv(lambda ks, blk: (36 + blk, ks * 64))
    a("s_mov_b32 s36, 0x00ff00ff")
    a("s_mov_b32 s37, 0x00ff00ff")
    a("s_lshl_b32 s39, s30, 14")
    a("s_lshl_b32 s40, s31, 13")
    a("s_add_u32 s39, s39, s40")
    a(f"s_add_u32 s39, s39, {WS_QP + 4096}")
    a("v_lshl_add_u32 v1, v0, 4, s39")
    a(f"s_mov_b32 s40, {0 if 'qwait' in skip else spin}")
    embed(8, 32)
    a("s_mov_b64 exec, s[36:37]")
    if "qst" not in skip: a(f"global_store_dwordx4 v5, v[8:11], s[26:27] {qstflags}")
    a("s_mov_b64 exec, -1")
    stamp(3)
    for i in range(qdelay): a("s_sleep 32")
    stamp(7)
    lab("L_qpoll")
    for i in range(8):
        if "qld" not in skip: a(f"global_load_dwordx4 v[{48+4*i}:{51+4*i}], v1, s[26:27] offset:{i*1024-4096} {qldflags}")
    a("s_waitcnt vmcnt(0)")
    check([48 + 4 * i for i in range(8)], 6)
    pollend("L_qpoll")
    for i in range(32):
        a(f"v_and_b32 v{48+i}, 0xffffff00, v{48+i}")
    for i in range(8):
        a(f"v_add_f32 v{48+i}, v{48+i}, v{56+i}")
        a(f"v_add_f32 v{64+i}, v{64+i}, v{72+i}")
    for i in range(8):
        a(f"v_add_f32 v{48+i}, v{48+i}, v{64+i}")
    for i in range(4):
        a(f"v_cvt_pk_bf16_f32 v{48+i}, v{48+2*i}, v{49+2*i}")
    a("v_lshlrev_b32 v1, 3, v0")
    a("v_mov_b32 v6, 0")
    a(f"ds_write_b64 v1, v[48:49] offset:{L_Q}")
    a(f"ds_write_b64 v1, v[50:51] offset:{L_Q+512}")
    a("s_waitcnt lgkmcnt(0)")
    a(f"ds_write_b64 v6, v[32:33] offset:{L_TAG}")
    stamp(5)
    a("s_setprio 0")
    if "ffn" in skip: a("s_branch L_noffn")
    a("s_cmp_ge_u32 s29, 28")
    a("s_cbranch_scc1 L_noffn")
    a(f"s_mul_i32 s36, s28, {64*3584}")
    a("s_lshl_b32 s37, s29, 7")
    a("s_add_u32 s36, s36, s37")
    a("v_mul_u32_u24 v1, 3584, v2")
    a("v_lshl_add_u32 v1, v3, 4, v1")
    a("v_add_u32 v1, s36, v1")
    a(f"s_mov_b32 m0, {L_W0}")
    a("s_mov_b32 s40, 8")
    lab("L_fdma")
    a(f"global_load_lds_dwordx4 v1, s[16:17] {wflags}")
    a("s_add_u32 m0, m0, 8192")
    a("s_sub_u32 s40, s40, 1")
    a(f"global_load_lds_dwordx4 v1, s[18:19] {wflags}")
    a(f"v_add_u32 v1, {8*3584}, v1")
    a("s_sub_u32 m0, m0, 7168")
    a(f"s_waitcnt vmcnt({xinfl})")
    a("s_cmp_lg_u32 s40, 0")
    a("s_cbranch_scc1 L_fdma")
    a("s_lshl_b32 s36, s28, 7")
    a("v_add_u32 v5, s36, v4")
    for k in range(4):
        a(f"v_cndmask_b32 v{36+k}, v34, v5, s[{44+2*k}:{45+2*k}]")
    for k in range(4):
        a(f"v_cmp_eq_u32 s[{44+2*k}:{45+2*k}], {4+k}, v47")
    a("s_nop 0")
    for k in range(4):
        a(f"v_cndmask_b32 v{40+k}, v34, v5, s[{44+2*k}:{45+2*k}]")
    a("s_mul_i32 s36, s28, 7168")
    a("s_lshl_b32 s37, s29, 8")
    a("s_add_u32 s36, s36, s37")
    a(f"s_add_u32 s36, s36, {WS_FP}")
    a("v_bfe_u32 v5, v0, 3, 1")
    a("v_lshl_add_u32 v5, v45, 1, v5")
    a(f"v_mul_u32_u24 v5, {8*7168}, v5")
    a("v_bfe_u32 v1, v0, 1, 2")
    a("v_lshl_add_u32 v1, v1, 6, v5")
    a("v_lshl_add_u32 v1, v46, 4, v1")
    a("v_add_u32 v1, s36, v1")
    a("s_waitcnt vmcnt(0)")
    gemv(lambda ks, blk: (36 + (ks >> 1) * 4 + blk, (ks & 1) * 64))
    a("s_nop 7")
    embed(8, 32)
    a("global_store_dwordx4 v1, v[8:11], s[26:27] sc1")
    lab("L_noffn")
    stamp(4)
    if "wo" in skip: a("s_branch L_nowo")
    a("s_lshl_b32 s36, s34, 15")
    a("v_lshl_add_u32 v1, v0, 4, s36")
    a(f"s_mov_b32 m0, {L_WO}")
    a("s_mov_b32 s40, 16")
    lab("L_wodma")
    a(f"global_load_lds_dwordx4 v1, s[12:13] {woflags}")
    a(f"global_load_lds_dwordx4 v1, s[12:13] offset:1024 {woflags}")
    a("v_add_u32 v1, 2048, v1")
    a("s_add_u32 m0, m0, 2048")
    a(f"s_waitcnt vmcnt({xinfl})")
    a("s_sub_u32 s40, s40, 1")
    a("s_cmp_lg_u32 s40, 0")
    a("s_cbranch_scc1 L_wodma")
    a(f"s_mul_i32 s36, s34, {14*1024}")
    a("v_lshl_add_u32 v1, v0, 4, s36")
    a("s_mov_b32 s40, 7")
    lab("L_wddma")
    a(f"global_load_lds_dwordx4 v1, s[20:21] {woflags}")
    a(f"global_load_lds_dwordx4 v1, s[20:21] offset:1024 {woflags}")
    a("v_add_u32 v1, 2048, v1")
    a("s_add_u32 m0, m0, 2048")
    a(f"s_waitcnt vmcnt({xinfl})")
    a("s_sub_u32 s40, s40, 1")
    a("s_cmp_lg_u32 s40, 0")
    a("s_cbranch_scc1 L_wddma")
    lab("L_nowo")
    a("s_mul_i32 s36, s34, 56")
    a("s_andn2_b32 s36, s36, 15")
    a(f"s_mul_i32 s37, s31, {16*7168}")
    a("s_add_u32 s36, s36, s37")
    a(f"s_add_u32 s36, s36, {WS_FP}")
    a("v_lshrrev_b32 v1, 2, v0")
    a("v_mul_u32_u24 v1, 7168, v1")
    a("v_and_b32 v3, 3, v0")
    a("v_lshl_add_u32 v1, v3, 4, v1")
    a("v_add_u32 v1, s36, v1")
    a(f"s_mov_b32 s40, {0 if 'ffn' in skip else spin}")
    lab("L_hpoll")
    if "hld" not in skip: a("global_load_dwordx4 v[8:11], v1, s[26:27] sc1")
    a("s_waitcnt vmcnt(0)")
    check([8], 2)
    pollend("L_hpoll")
    for i in range(4): a(f"v_and_b32 v{8+i}, 0xffffff00, v{8+i}")
    for r in (4, 8):
        for i in range(4):
            a(f"v_add_f32_dpp v{8+i}, v{8+i}, v{8+i} row_ror:{r} row_mask:0xf bank_mask:0xf")
    for i in range(4): a(f"v_mov_b32 v{12+i}, v{8+i}")
    for i in range(4): a(f"v_permlane16_swap_b32 v{8+i}, v{12+i}")
    for i in range(4): a(f"v_add_f32 v{8+i}, v{8+i}, v{12+i}")
    a("v_cvt_pk_bf16_f32 v8, v8, v9")
    a("v_cvt_pk_bf16_f32 v9, v10, v11")
    a("v_mov_b32 v10, v8")
    a("v_mov_b32 v11, v9")
    a("s_nop 1")
    a("v_permlane32_swap_b32 v8, v10")
    a("v_permlane32_swap_b32 v9, v11")
    for p in range(2):
        a(f"v_lshlrev_b32 v12, 16, v{8+p}")
        a(f"v_and_b32 v13, 0xffff0000, v{8+p}")
        a(f"v_lshlrev_b32 v14, 16, v{10+p}")
        a(f"v_and_b32 v15, 0xffff0000, v{10+p}")
        a("v_max_f32 v12, 0, v12")
        a("v_max_f32 v13, 0, v13")
        a("v_mul_f32 v12, v12, v14")
        a("v_mul_f32 v13, v13, v15")
        a(f"v_cvt_pk_bf16_f32 v{16+p}, v12, v13")
    a("v_lshlrev_b32 v3, 3, v3")
    a(f"ds_write_b64 v3, v[16:17] offset:{L_H}")
    a("s_waitcnt vmcnt(0) lgkmcnt(0)")
    stamp(6)
    a("s_barrier")
    dump_stamps("X")
    a("s_endpgm")

    L = [HEADER.rstrip("\n"), f"; @launch grid=(256,1,1) block=({NW*64},1,1) lds={L_END}",
         '.amdgcn_target "amdgcn-amd-amdhsa--gfx950"', ".text", f".globl {KN}", ".p2align 8", f".type {KN},@function"]
    for name in layout.split(): L.extend(SEC[name])
    L.append("L_codeend:")
    nv = VR + 32 * S
    L.append('.section .rodata,"a"')
    L.append(".p2align 6")
    L.append(f".amdhsa_kernel {KN}")
    L.append(f"  .amdhsa_next_free_vgpr {nv}")
    L.append("  .amdhsa_next_free_sgpr 102")
    L.append(f"  .amdhsa_accum_offset {nv}")
    L.append("  .amdhsa_group_segment_fixed_size 0")
    L.append("  .amdhsa_kernarg_size 96")
    L.append("  .amdhsa_user_sgpr_count 2")
    L.append("  .amdhsa_user_sgpr_kernarg_segment_ptr 1")
    L.append("  .amdhsa_system_sgpr_workgroup_id_x 1")
    L.append("  .amdhsa_float_denorm_mode_32 3")
    L.append(".end_amdhsa_kernel")
    return "\n".join(L) + "\n"

if __name__ == "__main__":
    import json
    cfg = json.loads(sys.argv[1]) if len(sys.argv) > 1 else {}
    sys.stdout.write(gen(**cfg))
```

```python
import struct, sys, math

KN = "recurrent_scan__gqa_block_cached__glu_gated_reglu__decode_kernel"
HEADER = open("recurrent_scan__gqa_block_cached__glu_gated_reglu__decode.s.ref").read().split("; @launch")[0]

def f2u(x):
    return struct.unpack("<I", struct.pack("<f", x))[0]

WS_EPOCH = 0
WS_QP = 0x10000
WS_FP = 0x40000
WS_CT = 0x80000
WS_P1 = 0x100000
WS_P2 = 0x200000
WS_TS = 0x400000
WS_TT = 0x500000
L_XN = 0
L_Q = 2048
L_Z = 3072
L_TAG = 3328
L_H = 3344
L_ST = 3392
L_OB = 3520
L_XR = 4096
L_O = 6144
L_W0 = 14336
L_WO = 30720
L_END = L_WO + 46 * 1024
PHI = 0x9E3779B9

ROLES = [('X', slice(0, 1)), ('S', slice(1, 5))]

def gen(S=5, N=4, NP=None, NS=24, kvflags="nt", wflags="nt", woflags="nt", outflags="", stflags="sc1", ldflags="sc1",
        atflags="sc0 sc1", sleep1=0, sleep2=0, xinfl=7, pmap="w0 w1 n0 n1 n2 n3 n4 r0 r1 r2 r3", tmap=None, skip=(), bar0=True, warm=True, l2pf=True, pools=4, sat=False, early=False, xbar="post", exp=None, i1bit=11, dbg=None, dmaun=4, layout="E X1 S W X2", qdelay=0, qstflags="sc1", qldflags="sc1", ts=False, spin=1 << 20, probe=None):
    R = 2
    POOL = 64 // pools * (32 - NS)
    if tmap is None:
        kb_ = (32 - NS).bit_length() - 1 if NS < 32 else 0
        syms = [f"n{i}" for i in range(kb_)] + [f"r{i}" for i in range(4)]
        tmap = " ".join(f"{x}=t{i}" for i, x in enumerate(syms))
        if pools == 8: tmap = tmap.rsplit("=", 1)[0] + "=p2"
    if NP is None: NP = N
    SEC = {}
    cur = [None]
    def section(name):
        cur[0] = SEC.setdefault(name, [])
    if probe is not None: ts = True
    def a(s): cur[0].append("    " + s)
    def lab(s): cur[0].append(s + ":")
    NW = 6 if warm else 5
    skn = [0]
    def guard(lines):
        if not warm:
            for x in lines: a(x)
            return
        skn[0] += 1
        a(f"s_cbranch_execz L_g{skn[0]}")
        for x in lines: a(x)
        lab(f"L_g{skn[0]}")
    def stamp(idx):
        if ts:
            a("s_waitcnt lgkmcnt(0)")
            a("s_memrealtime s[70:71]")
            a("s_waitcnt lgkmcnt(0)")
            a(f"s_mov_b32 s{80+idx}, s70")
    pc = [0]
    def dump_stamps(role=None):
        if probe is not None:
            prole, pidx = probe[:2]
            if role == prole:
                pc[0] += 1
                if len(probe) > 2:
                    a(f"s_and_b32 s73, s2, {probe[2]}")
                    a(f"s_cmp_lg_u32 s73, {probe[3]}")
                    a(f"s_cbranch_scc1 L_pe{pc[0]}")
                a(f"s_cmp_eq_u32 s{80+pidx}, 0")
                a(f"s_cbranch_scc1 L_pe{pc[0]}")
                a(f"s_add_u32 s72, s{80+pidx}, 10000")
                lab(f"L_pl{pc[0]}")
                a("s_memrealtime s[70:71]")
                a("s_waitcnt lgkmcnt(0)")
                a("s_sub_u32 s73, s70, s72")
                a("s_cmp_lt_i32 s73, 0")
                a(f"s_cbranch_scc1 L_pl{pc[0]}")
                lab(f"L_pe{pc[0]}")
            return
        if ts:
            a("s_mov_b64 exec, 1")
            a("s_mul_i32 s70, s2, 5")
            a("s_add_u32 s70, s70, s3")
            a("s_lshl_b32 s70, s70, 6")
            a(f"s_add_u32 s70, s70, {WS_TS}")
            a("v_mov_b32 v1, s70")
            a("s_getreg_b32 s95, hwreg(HW_REG_XCC_ID)")
            for q in range(4):
                for i in range(4):
                    a(f"v_mov_b32 v{4+i}, s{80+q*4+i}")
                a(f"global_store_dwordx4 v1, v[4:7], s[26:27] offset:{q*16}")
                a("s_nop 1")
    def tagregs():
        a("s_mov_b32 s56, s33")
        a("s_lshr_b32 s57, s33, 8")
        a("s_lshr_b32 s58, s33, 16")
        a("s_lshr_b32 s59, s33, 24")
        for i in range(4): a(f"s_mov_b32 s{60+i}, {0x07060500 + i:#x}")
    def embed(v, vtag):
        for i in range(4): a(f"v_perm_b32 v{v+i}, v{v+i}, v{vtag}, s{60+i}")
    def check(regs, acc):
        first = True
        for r in regs:
            for i in range(4):
                if first:
                    a(f"v_xor_b32 v{acc}, s{56+i}, v{r+i}"); first = False
                else:
                    a(f"v_bitop3_b32 v{acc}, v{acc}, v{r+i}, s{56+i} bitop3:0xf6")
        a(f"v_and_b32 v{acc}, 0xff, v{acc}")
        a(f"v_cmp_ne_u32 vcc, 0, v{acc}")
    def pollend(name):
        a("s_sub_u32 s40, s40, 1")
        a(f"s_cbranch_scc1 {name}_done")
        a(f"s_cbranch_vccnz {name}")
        lab(f"{name}_done")

    VKO, VVO, VM, VL, VM0, VM1 = 18, 19, 20, 21, 22, 23
    VA, VQ, VO, VS, VR = 24, 32, 36, 44, 60
    VT = VR + 64
    def decode():
        a("s_and_b32 s28, s2, 7")
        a("s_lshr_b32 s29, s2, 3")
        a("s_bfe_u32 s30, s2, 0x30004")
        a("s_lshr_b32 s31, s2, 7")
        a("s_and_b32 s32, s2, 15")
        a("s_and_b32 s34, s2, 127")
        a("s_lshr_b32 s38, s2, 4")
    def zero_stamps():
        if ts:
            a("s_mov_b32 s80, s70")
            for i in range(1, 16): a(f"s_mov_b32 s{80+i}, 0")
    section("X1")
    lab("L_xwave")
    if ts: a("s_memrealtime s[72:73]")
    a("s_setprio 2")
    a("v_lshlrev_b32 v1, 5, v0")
    a("v_lshrrev_b32 v2, 3, v0")
    a("v_and_b32 v3, 7, v0")
    decode()
    a("s_lshr_b32 s35, s32, 3")
    a("s_lshl1_add_u32 s35, s31, s35")
    a("s_lshl_b32 s36, s35, 20")
    a("s_lshl_b32 s37, s30, 10")
    a("s_add_u32 s36, s36, s37")
    a("s_lshl_b32 s37, s28, 7")
    a("s_add_u32 s36, s36, s37")
    a("v_lshl_add_u32 v4, v2, 13, s36")
    a("v_lshl_add_u32 v4, v3, 4, v4")
    a("v_mov_b32 v6, 0")
    a(f"ds_write_b32 v6, v6 offset:{L_TAG+4}")
    a(f"s_movk_i32 m0, {L_W0}")
    if NS < 32:
        a(f"s_mul_i32 s36, s38, {pools}")
        a("s_add_u32 s36, s36, s32")
        a("s_lshl_b32 s36, s36, 8")
        a(f"s_add_u32 s36, s36, {WS_CT}")
        a("v_lshl_add_u32 v5, v0, 2, s36")
    a("s_waitcnt lgkmcnt(0)")
    if xbar == "pre": a("s_barrier")
    if ts: a("s_memrealtime s[74:75]")
    a("global_load_dwordx4 v[8:11], v1, s[4:5]")
    a("global_load_dwordx4 v[12:15], v1, s[4:5] offset:16")
    a(f"s_mov_b32 s36, {0 if 'wq' in skip else 0x10000}")
    lab("L_wqdma")
    for i in range(dmaun):
        a(f"global_load_lds_dwordx4 v4, s[10:11] {wflags}")
        a("s_addk_i32 m0, 1024")
        a("v_add_u32 v4, s36, v4")
    a(f"s_cmpk_lg_u32 m0, {L_W0 + 16384}")
    a("s_cbranch_scc1 L_wqdma")
    if NS < 32:
        a(f"s_cmp_ge_u32 s32, {pools}")
        a("s_cbranch_scc1 L_nozero")
        a("global_store_dword v5, v6, s[26:27] sc1")
        lab("L_nozero")
    if ts: a("s_memrealtime s[76:77]")
    if xbar == "post": a("s_barrier")
    if ts: a("s_memrealtime s[78:79]")
    a("s_load_dword s33, s[26:27], 0")
    zero_stamps()
    a("v_lshlrev_b32 v5, 2, v0")
    a(f"ds_write_b32 v5, v6 offset:{L_Z}")
    if "X1 X2" not in layout: a("s_branch L_x2")

    section("W")
    if warm:
        lab("L_wwave")
        if l2pf:
            a("s_getpc_b64 s[68:69]")
            lab("L_wpc")
            a(f"s_sub_u32 s68, s68, L_wpc-{KN}")
            a("s_subb_u32 s69, s69, 0")
            a("v_lshlrev_b32 v7, 7, v0")
            a("v_add_u32 v8, 8192, v7")
            a("v_min_u32 v8, L_codeend-" + KN + "-4, v8")
            a("global_load_dword v9, v7, s[68:69]")
            a("global_load_dword v9, v8, s[68:69]")
        a("s_waitcnt lgkmcnt(0)")
        a("s_barrier")
        a("s_mov_b64 s[68:69], s[26:27]")
        for r in [6, 14, VKO, VVO] + list(range(VT, VT + 16)): a(f"v_mov_b32 v{r}, 0")
        a("s_mov_b64 exec, 0")
        a("s_mov_b32 s42, 0")
        a("s_mov_b32 s54, 1")
        a("s_mov_b32 s41, 0")
        a("s_mov_b32 s33, 0")
        a("s_branch L_prek0")

    section("E")
    lab(KN)
    a("s_load_dwordx2 s[44:45], s[0:1], 8")
    a("s_load_dwordx2 s[48:49], s[0:1], 16")
    a("s_load_dwordx16 s[4:19], s[0:1], 0")
    a("s_load_dwordx8 s[20:27], s[0:1], 64")
    if ts: a("s_memrealtime s[70:71]")
    a("v_lshrrev_b32 v1, 6, v0")
    a("s_cmpk_ge_u32 s2, 256")
    a("s_cbranch_scc1 L_end")
    a("v_readfirstlane_b32 s3, v1")
    a("v_and_b32 v0, 63, v0")
    a("s_brev_b32 s46, 16"); a("s_mov_b32 s47, 0x20000")
    a("s_brev_b32 s50, 16"); a("s_mov_b32 s51, s47")
    a("s_sub_u32 s42, s3, 1")
    a("s_cbranch_scc1 L_xwave")
    if warm:
        a("s_cmp_eq_u32 s3, 5")
        a("s_cbranch_scc1 L_wwave")
    pm = [set(x.split("^")) for x in pmap.split()]
    assert len(pm) == 11
    PB = [b for b in range(11, 23) if b != i1bit]
    def mask_of(sym, m=pm): return sum(1 << PB[p] for p in range(11) if sym in m[p])
    def scalar_part(dst, m, srcs):
        a(f"s_lshl_b32 {dst}, s38, 23")
        for pre, (reg, nb) in srcs.items():
            masks = [mask_of(f"{pre}{i}", m) for i in range(nb)]
            if not any(masks): continue
            if masks[0] and all(masks[i] == masks[0] << i for i in range(nb)) and bin(masks[0]).count("1") == 1:
                a(f"s_lshl_b32 s35, {reg}, {masks[0].bit_length()-1}")
                a(f"s_xor_b32 {dst}, {dst}, s35")
                continue
            for i in range(nb):
                if masks[i]:
                    a(f"s_bfe_i32 s35, {reg}, {0x10000 + i:#x}")
                    a(f"s_and_b32 s35, s35, {masks[i]:#x}")
                    a(f"s_xor_b32 {dst}, {dst}, s35")
    def lane_part(vdst, ssrc, m, pre, nb):
        a(f"v_mov_b32 v{vdst}, {ssrc}")
        for i in range(nb):
            mk = mask_of(f"{pre}{i}", m)
            if mk:
                a(f"v_bfe_i32 v7, v0, {i}, 1")
                a(f"v_and_b32 v7, {mk:#x}, v7")
                a(f"v_xor_b32 v{vdst}, v{vdst}, v7")
    def nconst(n):
        c = 0
        for i in range(5):
            if n >> i & 1: c ^= mask_of(f"n{i}")
        return c
    if pmap == "w0 w1 n0 n1 n2 n3 n4 r0 r1 r2 r3" and i1bit == 11:
        a("s_lshl_b32 s52, s2, 19")
        a("s_lshl_b32 s35, s42, 12")
        a("s_or_b32 s52, s52, s35")
    else:
        a("s_and_b32 s32, s2, 15")
        a("s_lshr_b32 s38, s2, 4")
        scalar_part("s52", pm, {"w": ("s42", 2), "r": ("s32", 4), "g": ("s38", 4)})
    a("v_lshrrev_b32 v2, 4, v0")
    a("v_and_b32 v3, 3, v0")
    a("v_bfe_u32 v4, v0, 2, 2")
    a("v_lshlrev_b32 v5, 8, v4")
    a("v_lshl_add_u32 v5, v2, 6, v5")
    a(f"v_lshl_add_u32 v{VKO}, v3, 4, v5")
    a(f"v_lshlrev_b32 v{VVO}, 4, v0")
    a("s_waitcnt lgkmcnt(0)")
    if not early: a("s_barrier")
    def issueK(slot):
        for u in range(4):
            r = VR + slot * 32 + 4 * u
            if i1bit == 11: a(f"buffer_load_dwordx4 v[{r}:{r+3}], v{VKO}, s[44:47], s52 offen offset:{u*1024} {kvflags}")
            else:
                if u == 2: a(f"s_bitset1_b32 s52, {i1bit}")
                a(f"buffer_load_dwordx4 v[{r}:{r+3}], v{VKO}, s[44:47], s52 offen offset:{(u&1)*1024} {kvflags}")
    def issueV(slot):
        for t in (range(4) if i1bit == 11 else (2, 3, 0, 1)):
            r = VR + slot * 32 + 16 + 4 * t
            if i1bit == 11: a(f"buffer_load_dwordx4 v[{r}:{r+3}], v{VVO}, s[48:51], s52 offen offset:{t*1024} {kvflags}")
            else:
                if t == 0: a(f"s_bitset0_b32 s52, {i1bit}")
                a(f"buffer_load_dwordx4 v[{r}:{r+3}], v{VVO}, s[48:51], s52 offen offset:{(t&1)*1024} {kvflags}")
    def s_setup():
        if "E S" not in layout: a("s_branch L_srest")
        section("S")
        lab("L_srest")
        zero_stamps()
        if ts:
            a("v_mov_b32 v13, 0")
            if probe is None:
                a("s_memrealtime s[70:71]")
                a("s_waitcnt lgkmcnt(0)")
                a("v_writelane_b32 v13, s70, 1")
        if early: a("s_barrier")
        decode()
        a("s_mov_b32 s66, s52")
        a("s_mov_b32 s43, s2")
        a("s_add_u32 s37, s42, s32")
        a("s_and_b32 s37, s37, 3")
        if pools == 8:
            a("s_lshr_b32 s36, s32, 3")
            a("s_lshl_b32 s36, s36, 2")
            a("s_or_b32 s37, s37, s36")
        lane_part(10, "s66", pm, "n", 5)
        if NS < 32:
            kb = (32 - NS).bit_length() - 1
            assert 32 - NS == 1 << kb and POOL <= 128
            sub = {k: set(v.split("^")) for k, v in (x.split("=") for x in tmap.split())}
            sub["w0"] = {"p0"}; sub["w1"] = {"p1"}
            for i in range(kb, 5): sub[f"n{i}"] = {"1"}
            tm = []
            for terms in pm:
                acc = set()
                for t in terms: acc ^= sub.get(t, {t})
                tm.append(acc)
            scalar_part("s55", tm, {"p": ("s37", 3), "g": ("s38", 4)})
            a(f"s_xor_b32 s55, s55, {mask_of('1', tm):#x}")
            lane_part(11, "s55", tm, "t", 6)
            a(f"v_xor_b32 v12, {mask_of('t6', tm):#x}, v11")
        a(f"s_mul_i32 s36, s38, {pools}")
        a("s_add_u32 s36, s36, s37")
        a("s_lshl_b32 s36, s36, 8")
        a(f"s_add_u32 s36, s36, {WS_CT}")
        a("s_add_u32 s68, s26, s36")
        a("s_addc_u32 s69, s27, 0")
        a("s_mov_b32 s67, -1")
        a("v_mov_b32 v14, s36")
        a("v_mov_b32 v15, 1")
        a("v_mov_b32 v16, -1")
        a("v_mov_b32 v6, 0xffff")
        a("v_mov_b32 v7, 0xffff0000")
        a("v_and_b32 v8, 1, v0")
        a("v_cmp_eq_u32 vcc, 1, v8")
        a("v_and_b32 v8, 2, v0")
        a("s_nop 0")
        a("v_cndmask_b32 v6, v6, v7, vcc")
        a("v_cmp_eq_u32 vcc, 2, v8")
        a(f"v_mov_b32 v{VM}, {f2u(-3.0e38):#x}")
        a(f"v_mov_b32 v{VL}, 0")
        a(f"v_cndmask_b32 v{VM1}, 0, v6, vcc")
        a(f"v_xor_b32 v{VM0}, v{VM1}, v6")
        for i in range(8): a(f"v_mov_b32 v{VO+i}, 0")
        a(f"s_mov_b32 s53, {f2u(math.log2(math.e) / math.sqrt(128.0)):#x}")
        a("s_mov_b32 s54, 1000")
        a(f"s_mov_b32 s41, {S}")
        a("v_mov_b32 v6, 0")
    done_setup = False
    for h in range(2 * S):
        if 4 * h > NP:
            if not done_setup:
                s_setup(); done_setup = True
            a(f"s_waitcnt vmcnt({NP})")
        if h % 2 == 0 and h > 0: a(f"s_xor_b32 s52, s66, {nconst(h // 2):#x}")
        (issueK if h % 2 == 0 else issueV)(h // 2)
        if ts and probe is None and h % 2 == 1 and h > 1:
            a("s_memrealtime s[70:71]")
            a("s_waitcnt lgkmcnt(0)")
            a(f"v_writelane_b32 v13, s70, {h // 2 + 1}")
    assert done_setup
    assert N <= 8 and NS >= S + 1 and S - R >= 2 and (2 * S - 1) * 4 >= NP + 4
    stamp(1)
    a(f"s_mov_b32 s40, {spin * 8}")
    lab("L_qflag")
    a(f"ds_read_b64 v[2:3], v6 offset:{L_TAG}")
    a("s_waitcnt lgkmcnt(0)")
    a("v_cmp_eq_u32 vcc, 0, v3")
    a("s_cbranch_vccz L_qflag_done")
    a("s_sleep 1")
    a("s_sub_u32 s40, s40, 1")
    a("s_cbranch_scc0 L_qflag")
    lab("L_qflag_done")
    a(f"ds_read_b128 v[{VQ}:{VQ+3}], v{VKO} offset:{L_Q}")
    a("v_mov_b32 v17, v2")
    a("v_readfirstlane_b32 s33, v2")
    stamp(2)
    a("s_waitcnt lgkmcnt(0)")
    def claim():
        if exp == "fake":
            pass
        elif NS < 32 and sat:
            a("s_mov_b32 s67, 1")
            a("s_atomic_add s67, s[68:69], 0 glc")
        elif NS < 32:
            a("s_mov_b64 exec, 1")
            a(f"global_atomic_add v16, v14, v15, s[26:27] {atflags}")
            a("s_mov_b64 exec, -1")
    def qk(slot):
        K = VR + slot * 32
        for u in range(4):
            a(f"v_mfma_f32_16x16x32_bf16 v[{VS+4*u}:{VS+4*u+3}], v[{K+4*u}:{K+4*u+3}], v[{VQ}:{VQ+3}], 0")
    def softmax():
        for u in range(4):
            a(f"v_mov_b32_dpp v{4+u}, v{VS+4*u} quad_perm:[0,0,0,0] row_mask:0xf bank_mask:0xf")
        for p in range(1, 4):
            for u in range(4):
                a(f"v_add_f32_dpp v{4+u}, v{VS+4*u+p}, v{4+u} quad_perm:[{p},{p},{p},{p}] row_mask:0xf bank_mask:0xf")
        a("v_max3_f32 v1, v4, v5, v6")
        a(f"v_max3_f32 v1, v1, v7, v{VM}")
        a("v_mov_b32 v2, v1")
        a("s_nop 1")
        a("v_permlane16_swap_b32 v1, v2")
        a("s_nop 0")
        a("v_max_f32 v1, v1, v2")
        a("v_mov_b32 v2, v1")
        a("s_nop 1")
        a("v_permlane32_swap_b32 v1, v2")
        a("s_nop 0")
        a("v_max_f32 v1, v1, v2")
        a(f"v_sub_f32 v2, v{VM}, v1")
        a("v_mul_f32 v3, s53, v1")
        a("v_mul_f32 v2, s53, v2")
        a(f"v_mov_b32 v{VM}, v1")
        a("v_exp_f32 v2, v2")
        for i in range(4):
            a(f"v_fma_f32 v{4+i}, v{4+i}, s53, -v3")
        for i in range(4):
            a(f"v_exp_f32 v{4+i}, v{4+i}")
        for g in range(4):
            a(f"v_mov_b32_dpp v8, v2 row_newbcast:{4*g} row_mask:{1<<g:#x} bank_mask:0xf")
        a(f"v_fma_f32 v{VL}, v{VL}, v2, v4")
        a("v_add_f32 v9, v5, v6")
        a(f"v_add_f32 v{VL}, v{VL}, v7")
        a(f"v_add_f32 v{VL}, v{VL}, v9")
        for i in range(4):
            a(f"v_cvt_pk_bf16_f32 v{4+i}, v{4+i}, v{4+i}")
        for i in range(8):
            a(f"v_mul_f32 v{VO+i}, v{VO+i}, v8")
        for i in range(4):
            a(f"v_and_b32 v{VA+2*i}, v{4+i}, v{VM0}")
            a(f"v_and_b32 v{VA+2*i+1}, v{4+i}, v{VM1}")
    def pv(slot):
        V = VR + slot * 32 + 16
        for t in range(4):
            a(f"v_mfma_f32_16x16x16_bf16 v[{VO}:{VO+3}], v[{VA+2*t}:{VA+2*t+1}], v[{V+4*t}:{V+4*t+1}], v[{VO}:{VO+3}]")
            a(f"v_mfma_f32_16x16x16_bf16 v[{VO+4}:{VO+7}], v[{VA+2*t}:{VA+2*t+1}], v[{V+4*t+2}:{V+4*t+3}], v[{VO+4}:{VO+7}]")
    NPRE = S - R
    lab("L_loop")
    snips = []
    for slot in range(R):
        if N > 4:
            a("s_cmp_eq_u32 s54, 0")
            a(f"s_cbranch_scc0 L_nk{slot}")
            a("s_waitcnt vmcnt(4)")
            lab(f"L_nk{slot}")
        qk(slot)
        a("v_readlane_b32 s52, v10, s41")
        a(f"s_cmp_lt_u32 s54, {R}")
        a(f"s_cbranch_scc1 L_dk{slot}")
        a(f"s_waitcnt vmcnt({N})")
        a(f"s_cmp_ge_u32 s41, {NS}")
        a(f"s_cbranch_scc1 L_tk{slot}")
        lab(f"L_gk{slot}")
        if N > 4:
            a("s_add_u32 s41, s41, 1")
            a(f"s_cmp_lt_u32 s41, {NS}")
            a(f"s_cbranch_scc1 L_nc{slot}")
            claim()
            lab(f"L_nc{slot}")
        issueK(slot)
        lab(f"L_rk{slot}")
        sn = [f"L_tk{slot}:"] + (["    s_waitcnt lgkmcnt(0)", "    s_mov_b32 s35, s67"] if sat else ["    v_readfirstlane_b32 s35, v16", "    s_nop 3"]) + [
              "    v_readlane_b32 s36, v11, s35", "    v_readlane_b32 s37, v12, s35", "    s_bitcmp1_b32 s35, 6", "    s_nop 0",
              "    s_cselect_b32 s52, s37, s36",
              f"    s_cmp_lt_u32 s35, {POOL}", f"    s_cbranch_scc1 L_gk{slot}",
              f"    s_mov_b32 s54, {R-1}", f"L_dk{slot}:", "    s_nop 4", f"    s_branch L_rk{slot}"]
        if exp == "dummy":
            sn = [f"L_tk{slot}:", "    s_waitcnt lgkmcnt(0)", "    s_cmp_lt_u32 s41, 32", f"    s_cbranch_scc1 L_gk{slot}"] + sn[-4:]
        if exp == "fake":
            sn = [f"L_tk{slot}:", f"    s_sub_u32 s35, s41, {NS}", "    s_lshl_b32 s35, s35, 4", "    s_add_u32 s35, s35, s32"] + sn[3:]
        snips.append(sn)
        softmax()
        a("s_cmp_eq_u32 s54, 0")
        a(f"s_cbranch_scc0 L_nv{slot}")
        a("s_waitcnt vmcnt(0)")
        lab(f"L_nv{slot}")
        pv(slot)
        a(f"s_cmp_lt_u32 s54, {R}")
        a(f"s_cbranch_scc1 L_dv{slot}")
        a(f"s_waitcnt vmcnt({N})")
        if N <= 4:
            a("s_add_u32 s41, s41, 1")
            a(f"s_cmp_lt_u32 s41, {NS}")
            a(f"s_cbranch_scc1 L_nc{slot}")
            claim()
            lab(f"L_nc{slot}")
        issueV(slot)
        if ts and probe is None:
            a("s_memrealtime s[70:71]")
            a("s_mov_b32 m0, s41")
            a("s_waitcnt lgkmcnt(0)")
            a("v_writelane_b32 v13, s70, m0")
        a(f"s_cmp_le_u32 s41, {S + NPRE + 1}")
        a(f"s_cbranch_scc1 L_pre{slot}")
        lab(f"L_rv{slot}")
        snips.append([f"L_dv{slot}:", "    s_sub_u32 s54, s54, 1", f"    s_cbranch_scc0 L_rv{slot}", "    s_branch L_done"])
    a("s_branch L_loop")
    for sn in snips: cur[0].extend(sn)
    assert NS > S + NPRE + 1
    T_OW, T_SW, T_OR, T_SR, T_P1S, T_P1L, T_OBW, T_P2S, T_WO, T_H, T_F0, T_XO, T_X = [VT + i for i in (0, 1, 2, 3, 4, 5, 6, 7, 8, 9, 10, 14, 15)]
    VW = VT + 16
    VD = VW + 32
    assert VW + 46 <= VR + 32 * S
    def tail_setup():
        a("v_lshrrev_b32 v3, 4, v0")
        a("v_and_b32 v4, 15, v0")
        a("v_bfe_u32 v5, v0, 2, 2")
        a("s_lshl_b32 s35, s42, 11")
        a(f"v_lshl_add_u32 v{T_OW}, v0, 5, s35")
        a("s_lshl_b32 s36, s42, 3")
        a(f"v_lshl_add_u32 v{T_SW}, v5, 5, s36")
        a("s_lshl_b32 s35, s42, 9")
        a(f"v_lshl_add_u32 v{T_OR}, v0, 3, s35")
        a("s_lshl_b32 s36, s42, 5")
        a(f"v_mov_b32 v{T_SR}, s36")
        a("s_lshl_b32 s35, s43, 12")
        a("s_lshl_b32 s36, s42, 10")
        a("s_add_u32 s36, s35, s36")
        a(f"s_add_u32 s37, s36, {WS_P1}")
        a(f"v_lshl_add_u32 v{T_P1S}, v0, 4, s37")
        a("s_lshl_b32 s36, s38, 16")
        a("s_lshl_b32 s37, s32, 8")
        a("s_add_u32 s36, s36, s37")
        a("s_lshl_b32 s37, s42, 6")
        a("s_add_u32 s36, s36, s37")
        a(f"s_add_u32 s36, s36, {WS_P1}")
        a(f"v_lshl_add_u32 v{T_P1L}, v4, 12, s36")
        a(f"v_lshl_add_u32 v{T_P1L}, v3, 4, v{T_P1L}")
        a("s_lshl_b32 s36, s42, 4")
        a(f"v_lshl_add_u32 v{T_OBW}, v3, 2, s36")
        a("s_lshl_b32 s36, s42, 6")
        a("s_lshl_b32 s37, s43, 3")
        a("s_add_u32 s36, s36, s37")
        a("v_add_u32 v1, s36, v0")
        a("v_and_b32 v1, 255, v1")
        a(f"s_add_u32 s37, s35, {WS_P2}")
        a(f"v_lshl_add_u32 v{T_P2S}, v1, 4, s37")
        a("s_lshl_b32 s36, s42, 8")
        a(f"s_add_u32 s36, s36, {L_WO}")
        a(f"v_lshl_add_u32 v{T_WO}, v0, 2, s36")
        a("s_and_b32 s36, s34, 1")
        a("s_lshl_b32 s36, s36, 2")
        a(f"s_add_u32 s36, s36, {L_H}")
        a(f"v_mov_b32 v{T_H}, s36")
        a("s_lshr_b32 s35, s28, 2")
        a("s_and_b32 s36, s28, 3")
        a("s_lshl_b32 s36, s36, 5")
        a("s_add_u32 s36, s36, s29")
        a("v_and_b32 v2, 1, v0")
        a("v_lshrrev_b32 v3, 1, v0")
        a("s_lshl_b32 s37, s36, 1")
        a("v_lshl_add_u32 v4, v3, 3, s37")
        a("v_add_u32 v4, v4, v2")
        a("v_and_b32 v4, 255, v4")
        a("s_lshl_b32 s37, s35, 19")
        a(f"s_add_u32 s37, s37, {WS_P2}")
        a("v_lshl_add_u32 v4, v4, 4, s37")
        a(f"v_lshl_add_u32 v{T_F0}, v3, 12, v4")
        for k in range(1, 4): a(f"v_add_u32 v{T_F0+k}, {k << 17:#x}, v{T_F0}")
        a("s_lshl_b32 s37, s35, 10")
        a("s_lshl_b32 s36, s36, 3")
        a("s_add_u32 s37, s37, s36")
        a(f"v_lshl_add_u32 v{T_XO}, v2, 2, s37")
        tagregs()
        a("s_mov_b32 s64, 0x05040100")
        a("s_mov_b32 s65, 0x07060302")
    for slot in range(R):
        mine = [k for k in range(NPRE + 1) if k % R == slot]
        lab(f"L_pre{slot}")
        for n, k in enumerate(mine):
            if n < len(mine) - 1:
                a(f"s_cmp_lg_u32 s41, {S + 1 + k}")
                a(f"s_cbranch_scc1 L_pre{slot}_{n+1}")
            lab(f"L_prek{k}")
            if k < NPRE:
                qk(R + k)
                a("s_nop 4")
                softmax()
                a("s_nop 1")
                pv(R + k)
            else:
                tail_setup()
            if warm: a(f"s_cbranch_execz {'L_prek%d' % (k + 1) if k < NPRE else 'L_loop'}")
            a(f"s_branch L_rv{slot}")
            if n < len(mine) - 1: lab(f"L_pre{slot}_{n+1}")

    lab("L_done")
    stamp(3)
    if ts: a("s_mov_b32 s94, s41")
    if ts and probe is None: a(f"v_mov_b32 v{VR}, v13")
    a(f"v_mov_b32 v2, v{VL}")
    a(f"v_mul_f32 v10, s53, v{VM}")
    a("s_nop 0")
    a(f"v_permlane16_swap_b32 v{VL}, v2")
    a("s_nop 0")
    a(f"v_add_f32 v11, v{VL}, v2")
    a("v_mov_b32 v2, v11")
    a(f"ds_write_b128 v{T_OW}, v[{VO}:{VO+3}] offset:{L_O}")
    a(f"ds_write_b128 v{T_OW}, v[{VO+4}:{VO+7}] offset:{L_O+16}")
    a("v_permlane32_swap_b32 v11, v2")
    a("s_nop 0")
    a("v_add_f32 v11, v11, v2")
    a(f"ds_write_b64 v{T_SW}, v[10:11] offset:{L_ST}")
    a("s_waitcnt lgkmcnt(0)")
    guard(["s_barrier"])
    a(f"ds_read_b128 v[8:11], v{T_SR} offset:{L_ST}")
    a(f"ds_read_b128 v[12:15], v{T_SR} offset:{L_ST+16}")
    for w in range(4):
        a(f"ds_read_b64 v[{24+2*w}:{25+2*w}], v{T_OR} offset:{L_O + w*2048}")
    a("v_mov_b32 v39, v17")
    a("s_waitcnt lgkmcnt(4)")
    a("v_max3_f32 v2, v8, v10, v12")
    a("v_max_f32 v2, v2, v14")
    for w in range(4):
        a(f"v_sub_f32 v{8+2*w}, v{8+2*w}, v2")
    for w in range(4):
        a(f"v_exp_f32 v{8+2*w}, v{8+2*w}")
    a("v_mul_f32 v16, v8, v9")
    a("v_fmac_f32 v16, v10, v11")
    a("v_fmac_f32 v16, v12, v13")
    a("v_fmac_f32 v16, v14, v15")
    a("s_waitcnt lgkmcnt(0)")
    a("v_rcp_f32 v5, v16")
    a("v_log_f32 v16, v16")
    a("v_mul_f32 v36, v8, v24")
    a("v_mul_f32 v37, v8, v25")
    for w in range(1, 4):
        a(f"v_fmac_f32 v36, v{8+2*w}, v{24+2*w}")
        a(f"v_fmac_f32 v37, v{8+2*w}, v{25+2*w}")
    a("v_add_f32 v38, v2, v16")
    a("v_mul_f32 v36, v36, v5")
    a("v_mul_f32 v37, v37, v5")
    guard([f"global_store_dwordx4 v{T_P1S}, v[36:39], s[26:27] {stflags}"] + ([] if ts else [f"global_load_dwordx4 v[8:11], v{T_P1L}, s[26:27] {ldflags}"]))
    stamp(4)
    if ts: guard([f"global_load_dwordx4 v[8:11], v{T_P1L}, s[26:27] {ldflags}"])
    a(f"ds_read_b32 v{T_X}, v{T_XO} offset:{L_XR}")
    for i in range(4):
        a(f"ds_read2_b32 v[{24+2*i}:{25+2*i}], v{T_H} offset0:{2*i} offset1:{2*i+1}")
    order = list(range(16, 23)) + list(range(16))
    def rd(r): a(f"ds_read2st64_b32 v[{VW+2*r}:{VW+2*r+1}], v{T_WO} offset0:{8*r} offset1:{8*r+4}")
    def pm(r):
        a(f"v_perm_b32 v6, v{VW+2*r+1}, v{VW+2*r}, s64")
        a(f"v_perm_b32 v{VW+2*r+1}, v{VW+2*r+1}, v{VW+2*r}, s65")
        a(f"v_mov_b32 v{VW+2*r}, v6")
    DEPTH = 7
    for n, r in enumerate(order):
        rd(r)
        if n >= DEPTH:
            a(f"s_waitcnt lgkmcnt({DEPTH})")
            pm(order[n - DEPTH])
    for n in range(len(order) - DEPTH, len(order)):
        a(f"s_waitcnt lgkmcnt({len(order) - 1 - n})")
        pm(order[n])
    a("v_mov_b32 v42, 0")
    a("v_mov_b32 v43, 0")
    for r in range(7):
        a(f"v_dot2_f32_bf16 v42, v{VD+2*r}, v{24+r}, v42")
        a(f"v_dot2_f32_bf16 v43, v{VD+2*r+1}, v{24+r}, v43")
    a("v_mov_b32 v40, 0")
    a("v_mov_b32 v41, 0")
    a("v_mov_b32 v6, 0")
    a(f"s_mov_b32 s40, {spin}")
    a("v_perm_b32 v42, v42, v17, s62")
    a("v_perm_b32 v43, v43, v17, s63")
    a("s_branch L_p1chk")
    lab("L_p1poll")
    if sleep1: a(f"s_sleep {sleep1}")
    a(f"global_load_dwordx4 v[8:11], v{T_P1L}, s[26:27] {ldflags}")
    lab("L_p1chk")
    a("s_waitcnt vmcnt(0)")
    a("v_cmp_ne_u32 vcc, s33, v11")
    pollend("L_p1poll")
    stamp(5)
    a("v_max_f32_dpp v2, v10, v10 row_ror:8 row_mask:0xf bank_mask:0xf")
    a("s_nop 1")
    for r in (4, 2, 1):
        a(f"v_max_f32_dpp v2, v2, v2 row_ror:{r} row_mask:0xf bank_mask:0xf")
        if r > 1: a("s_nop 1")
    a("v_sub_f32 v10, v10, v2")
    a("v_exp_f32 v10, v10")
    a("s_nop 0")
    a("v_mul_f32 v8, v8, v10")
    a("v_mul_f32 v9, v9, v10")
    for r in (8, 4, 2, 1):
        for v in (10, 8, 9):
            a(f"v_add_f32_dpp v{v}, v{v}, v{v} row_ror:{r} row_mask:0xf bank_mask:0xf")
    a("v_rcp_f32 v10, v10")
    a("s_nop 0")
    a("v_mul_f32 v8, v8, v10")
    a("v_mul_f32 v9, v9, v10")
    a("v_cvt_pk_bf16_f32 v8, v8, v9")
    a(f"ds_write_b32 v{T_OBW}, v8 offset:{L_OB}")
    a("s_waitcnt lgkmcnt(0)")
    guard(["s_barrier"])
    for i in range(4):
        a(f"ds_read_b128 v[{VS+4*i}:{VS+4*i+3}], v6 offset:{L_OB + 16*i}")
    for r in range(16):
        if r % 4 == 0:
            a(f"s_waitcnt lgkmcnt({3 - r//4})")
        a(f"v_dot2_f32_bf16 v40, v{VW+2*r}, v{VS+r}, v40")
        a(f"v_dot2_f32_bf16 v41, v{VW+2*r+1}, v{VS+r}, v41")
    a("s_nop 1")
    a("v_perm_b32 v40, v40, v17, s60")
    a("v_perm_b32 v41, v41, v17, s61")
    guard([f"global_store_dwordx4 v{T_P2S}, v[40:43], s[26:27] {stflags}"])
    stamp(6)
    a("s_cmp_lg_u32 s42, 0")
    a("s_cbranch_scc1 L_sexit")
    a(f"s_mov_b32 s40, {spin}")
    lab("L_p2poll")
    if sleep2: a(f"s_sleep {sleep2}")
    guard([f"global_load_dwordx4 v[{24+4*k}:{27+4*k}], v{T_F0+k}, s[26:27] {ldflags}" for k in range(4)])
    a("s_waitcnt vmcnt(0)")
    check([24, 28, 32, 36], 2)
    pollend("L_p2poll")
    stamp(7)
    for i in range(16): a(f"v_and_b32 v{24+i}, 0xffffff00, v{24+i}")
    for i in range(4):
        a(f"v_add_f32 v{24+i}, v{24+i}, v{28+i}")
        a(f"v_add_f32 v{32+i}, v{32+i}, v{36+i}")
    for i in range(4): a(f"v_add_f32 v{8+i}, v{24+i}, v{32+i}")
    for r in (2, 4, 8):
        for i in range(4):
            a(f"v_add_f32_dpp v{8+i}, v{8+i}, v{8+i} row_ror:{r} row_mask:0xf bank_mask:0xf")
    for op in ("v_permlane16_swap_b32", "v_permlane32_swap_b32"):
        for i in range(4): a(f"v_mov_b32 v{12+i}, v{8+i}")
        for i in range(4): a(f"{op} v{8+i}, v{12+i}")
        for i in range(4): a(f"v_add_f32 v{8+i}, v{8+i}, v{12+i}")
    a("v_cvt_pk_bf16_f32 v10, v10, v11")
    a("v_cvt_pk_bf16_f32 v8, v8, v9")
    a("v_and_b32 v11, 0xffff0000, v10")
    a("v_lshlrev_b32 v10, 16, v10")
    a(f"v_mul_f32 v13, {f2u(-math.log2(math.e)):#x}, v11")
    a(f"v_mul_f32 v12, {f2u(-math.log2(math.e)):#x}, v10")
    a("v_exp_f32 v13, v13")
    a("v_exp_f32 v12, v12")
    a("v_and_b32 v9, 0xffff0000, v8")
    a("v_add_f32 v13, 1.0, v13")
    a("v_add_f32 v12, 1.0, v12")
    a("v_rcp_f32 v13, v13")
    a("v_rcp_f32 v12, v12")
    a("v_lshlrev_b32 v8, 16, v8")
    a("v_mul_f32 v11, v11, v13")
    a("v_mul_f32 v10, v10, v12")
    a("v_cvt_pk_bf16_f32 v10, v10, v11")
    a(f"v_lshlrev_b32 v12, 16, v{T_X}")
    a(f"v_and_b32 v13, 0xffff0000, v{T_X}")
    a("v_and_b32 v11, 0xffff0000, v10")
    a("v_lshlrev_b32 v10, 16, v10")
    a("v_mul_f32 v9, v9, v11")
    a("v_mul_f32 v8, v8, v10")
    a("v_cvt_pk_bf16_f32 v8, v8, v9")
    a("v_and_b32 v9, 0xffff0000, v8")
    a("v_lshlrev_b32 v8, 16, v8")
    a("v_add_f32 v9, v9, v13")
    a("v_add_f32 v8, v8, v12")
    a("v_cvt_pk_bf16_f32 v8, v8, v9")
    if warm: a("s_cbranch_execz L_end")
    a("s_mov_b64 exec, 3")
    a(f"global_store_dword v{T_XO}, v8, s[22:23] {outflags}")
    a("s_cmp_lg_u32 s2, 0")
    a("s_cbranch_scc1 L_sexit")
    a("s_mov_b64 exec, 1")
    a(f"global_store_dword v6, v17, s[26:27] {outflags}")
    lab("L_sexit")
    if dbg == "class":
        a("s_getreg_b32 s35, hwreg(HW_REG_XCC_ID)")
        a("s_bfe_u32 s35, s35, 0x10002")
        a("s_lshr_b32 s36, s32, 3")
        a("s_cmp_lg_u32 s35, s36")
        a("s_cbranch_scc1 L_nodbg")
        a("s_mov_b64 exec, 1")
        a("s_lshl_b32 s36, s38, 2")
        a("v_mov_b32 v1, s36")
        a("v_mov_b32 v2, s41")
        a("global_atomic_add v1, v2, s[24:25]")
        lab("L_nodbg")
    if dbg == "ptr":
        a("s_mov_b64 exec, 1")
        a("v_mov_b32 v1, 0")
        for i, r in enumerate((44, 45, 48, 49, 26, 27)):
            a(f"v_mov_b32 v2, s{r}")
            a(f"global_store_dword v1, v2, s[24:25] offset:{4*i}")
    stamp(8)
    if ts and probe is None:
        a("s_mov_b64 exec, -1")
        a("s_lshl_b32 s70, s2, 2")
        a("s_add_u32 s70, s70, s42")
        a("s_lshl_b32 s70, s70, 8")
        a(f"s_add_u32 s70, s70, {WS_TT}")
        a("v_lshl_add_u32 v1, v0, 2, s70")
        a(f"global_store_dword v1, v{VR}, s[26:27]")
    dump_stamps("S")
    lab("L_end")
    a("s_endpgm")

    section("X2")
    lab("L_x2")
    a("v_lshrrev_b32 v46, 4, v0")
    a("v_bfe_u32 v7, v0, 2, 2")
    a("v_and_b32 v5, 3, v0")
    a("v_lshlrev_b32 v44, 10, v46")
    a("v_lshl_add_u32 v44, v7, 7, v44")
    a("v_lshl_add_u32 v44, v5, 3, v44")
    a("v_and_b32 v45, 1, v0")
    a("v_lshlrev_b32 v4, 10, v45")
    a("v_lshl_add_u32 v4, v46, 4, v4")
    a("v_bfe_u32 v47, v0, 1, 3")
    a("s_lshl_b32 s36, s35, 8")
    a("v_add_u32 v5, s36, v4")
    a(f"v_mov_b32 v34, {L_Z}")
    for k in range(4):
        a(f"v_cmp_eq_u32 s[{44+2*k}:{45+2*k}], {k}, v47")
    a("s_nop 0")
    for k in range(4):
        a(f"v_cndmask_b32 v{36+k}, v34, v5, s[{44+2*k}:{45+2*k}]")
    a("s_lshl_b32 s36, s30, 14")
    a("s_lshl_b32 s37, s35, 11")
    a("s_add_u32 s36, s36, s37")
    a("s_lshl_b32 s37, s28, 8")
    a("s_add_u32 s36, s36, s37")
    a(f"s_add_u32 s36, s36, {WS_QP}")
    a("v_lshl_add_u32 v5, v45, 13, s36")
    a("v_lshl_add_u32 v5, v47, 6, v5")
    a("v_lshl_add_u32 v5, v46, 4, v5")
    a("s_waitcnt vmcnt(16)")
    stamp(1)
    if ts:
        a("s_mov_b32 s89, s72"); a("s_mov_b32 s90, s74"); a("s_mov_b32 s91, s76"); a("s_mov_b32 s92, s78")
    a(f"ds_write_b128 v1, v[8:11] offset:{L_XR}")
    a(f"ds_write_b128 v1, v[12:15] offset:{L_XR+16}")
    for i in range(8):
        a(f"v_lshlrev_b32 v{16+2*i}, 16, v{8+i}")
        a(f"v_and_b32 v{17+2*i}, 0xffff0000, v{8+i}")
    def red32(v, t):
        a("s_nop 1")
        for r in (8, 4, 2, 1):
            a(f"v_add_f32_dpp {v}, {v}, {v} row_ror:{r} row_mask:0xf bank_mask:0xf")
            a("s_nop 1")
        a(f"v_mov_b32 {t}, {v}")
        a("s_nop 1")
        a(f"v_permlane16_swap_b32 {v}, {t}")
        a("s_nop 0")
        a(f"v_add_f32 {v}, {v}, {t}")
    a("v_add_f32 v6, v16, v17")
    for i in range(2, 16):
        a(f"v_add_f32 v6, v6, v{16+i}")
    red32("v6", "v7")
    a(f"v_mul_f32 v6, {f2u(1.0/512):#x}, v6")
    a("v_sub_f32 v32, v16, v6")
    a("v_mul_f32 v33, v32, v32")
    for i in range(1, 16):
        a(f"v_sub_f32 v32, v{16+i}, v6")
        a("v_fmac_f32 v33, v32, v32")
    red32("v33", "v7")
    a(f"v_mul_f32 v33, {f2u(1.0/512):#x}, v33")
    a("v_cvt_pk_bf16_f32 v6, v6, v33")
    a("v_and_b32 v33, 0xffff0000, v6")
    a("v_lshlrev_b32 v6, 16, v6")
    a(f"v_add_f32 v33, {f2u(1e-5):#x}, v33")
    a("v_cvt_pk_bf16_f32 v33, v33, v33")
    a("v_lshlrev_b32 v33, 16, v33")
    a("v_sqrt_f32 v33, v33")
    a("s_nop 0")
    a("v_cvt_pk_bf16_f32 v33, v33, v33")
    a("v_lshlrev_b32 v33, 16, v33")
    a("v_rcp_f32 v33, v33")
    for i in range(8):
        a(f"v_sub_f32 v{16+2*i}, v{16+2*i}, v6")
        a(f"v_sub_f32 v{17+2*i}, v{17+2*i}, v6")
        a(f"v_cvt_pk_bf16_f32 v{8+i}, v{16+2*i}, v{17+2*i}")
        a(f"v_lshlrev_b32 v{16+2*i}, 16, v{8+i}")
        a(f"v_and_b32 v{17+2*i}, 0xffff0000, v{8+i}")
        a(f"v_mul_f32 v{16+2*i}, v{16+2*i}, v33")
        a(f"v_mul_f32 v{17+2*i}, v{17+2*i}, v33")
        a(f"v_cvt_pk_bf16_f32 v{8+i}, v{16+2*i}, v{17+2*i}")
    a(f"ds_write_b128 v1, v[8:11] offset:{L_XN}")
    a(f"ds_write_b128 v1, v[12:15] offset:{L_XN+16}")
    def gemv(xsel):
        for ks in range(4):
            o = (ks & 1) * 32
            for blk in range(4):
                xr, xo = xsel(ks, blk)
                a(f"ds_read_b128 v[{48+o+4*blk}:{51+o+4*blk}], v{xr} offset:{xo}")
                a(f"ds_read_b64_tr_b16 v[{64+o+4*blk}:{65+o+4*blk}], v44 offset:{L_W0 + ks*4096 + blk*32}")
                a(f"ds_read_b64_tr_b16 v[{66+o+4*blk}:{67+o+4*blk}], v44 offset:{L_W0 + ks*4096 + blk*32 + 512}")
            for blk in range(4):
                a(f"s_waitcnt lgkmcnt({9-3*blk})")
                c = "0" if (ks == 0 and blk == 0) else "v[8:11]"
                a(f"v_mfma_f32_16x16x32_bf16 v[8:11], v[{64+o+4*blk}:{67+o+4*blk}], v[{48+o+4*blk}:{51+o+4*blk}], {c}")
    a("s_waitcnt lgkmcnt(0)")
    a(f"s_add_u32 s33, s33, {PHI:#x}")
    tagregs()
    a("v_mov_b32 v32, s33")
    a("v_mov_b32 v33, 1")
    a("s_waitcnt vmcnt(0)")
    stamp(2)
    gemv(lambda ks, blk: (36 + blk, ks * 64))
    a("s_mov_b32 s36, 0x00ff00ff")
    a("s_mov_b32 s37, 0x00ff00ff")
    a("s_lshl_b32 s39, s30, 14")
    a("s_lshl_b32 s40, s31, 13")
    a("s_add_u32 s39, s39, s40")
    a(f"s_add_u32 s39, s39, {WS_QP + 4096}")
    a("v_lshl_add_u32 v1, v0, 4, s39")
    a(f"s_mov_b32 s40, {0 if 'qwait' in skip else spin}")
    embed(8, 32)
    a("s_mov_b64 exec, s[36:37]")
    if "qst" not in skip: a(f"global_store_dwordx4 v5, v[8:11], s[26:27] {qstflags}")
    a("s_mov_b64 exec, -1")
    stamp(3)
    for i in range(qdelay): a("s_sleep 32")
    stamp(7)
    lab("L_qpoll")
    for i in range(8):
        if "qld" not in skip: a(f"global_load_dwordx4 v[{48+4*i}:{51+4*i}], v1, s[26:27] offset:{i*1024-4096} {qldflags}")
    a("s_waitcnt vmcnt(0)")
    check([48 + 4 * i for i in range(8)], 6)
    pollend("L_qpoll")
    for i in range(32):
        a(f"v_and_b32 v{48+i}, 0xffffff00, v{48+i}")
    for i in range(8):
        a(f"v_add_f32 v{48+i}, v{48+i}, v{56+i}")
        a(f"v_add_f32 v{64+i}, v{64+i}, v{72+i}")
    for i in range(8):
        a(f"v_add_f32 v{48+i}, v{48+i}, v{64+i}")
    for i in range(4):
        a(f"v_cvt_pk_bf16_f32 v{48+i}, v{48+2*i}, v{49+2*i}")
    a("v_lshlrev_b32 v1, 3, v0")
    a("v_mov_b32 v6, 0")
    a(f"ds_write_b64 v1, v[48:49] offset:{L_Q}")
    a(f"ds_write_b64 v1, v[50:51] offset:{L_Q+512}")
    a("s_waitcnt lgkmcnt(0)")
    a(f"ds_write_b64 v6, v[32:33] offset:{L_TAG}")
    stamp(5)
    a("s_setprio 0")
    if "ffn" in skip: a("s_branch L_noffn")
    a("s_cmp_ge_u32 s29, 28")
    a("s_cbranch_scc1 L_noffn")
    a(f"s_mul_i32 s36, s28, {64*3584}")
    a("s_lshl_b32 s37, s29, 7")
    a("s_add_u32 s36, s36, s37")
    a("v_mul_u32_u24 v1, 3584, v2")
    a("v_lshl_add_u32 v1, v3, 4, v1")
    a("v_add_u32 v1, s36, v1")
    a(f"s_mov_b32 m0, {L_W0}")
    a("s_mov_b32 s40, 8")
    lab("L_fdma")
    a(f"global_load_lds_dwordx4 v1, s[16:17] {wflags}")
    a("s_add_u32 m0, m0, 8192")
    a("s_sub_u32 s40, s40, 1")
    a(f"global_load_lds_dwordx4 v1, s[18:19] {wflags}")
    a(f"v_add_u32 v1, {8*3584}, v1")
    a("s_sub_u32 m0, m0, 7168")
    a(f"s_waitcnt vmcnt({xinfl})")
    a("s_cmp_lg_u32 s40, 0")
    a("s_cbranch_scc1 L_fdma")
    a("s_lshl_b32 s36, s28, 7")
    a("v_add_u32 v5, s36, v4")
    for k in range(4):
        a(f"v_cndmask_b32 v{36+k}, v34, v5, s[{44+2*k}:{45+2*k}]")
    for k in range(4):
        a(f"v_cmp_eq_u32 s[{44+2*k}:{45+2*k}], {4+k}, v47")
    a("s_nop 0")
    for k in range(4):
        a(f"v_cndmask_b32 v{40+k}, v34, v5, s[{44+2*k}:{45+2*k}]")
    a("s_mul_i32 s36, s28, 7168")
    a("s_lshl_b32 s37, s29, 8")
    a("s_add_u32 s36, s36, s37")
    a(f"s_add_u32 s36, s36, {WS_FP}")
    a("v_bfe_u32 v5, v0, 3, 1")
    a("v_lshl_add_u32 v5, v45, 1, v5")
    a(f"v_mul_u32_u24 v5, {8*7168}, v5")
    a("v_bfe_u32 v1, v0, 1, 2")
    a("v_lshl_add_u32 v1, v1, 6, v5")
    a("v_lshl_add_u32 v1, v46, 4, v1")
    a("v_add_u32 v1, s36, v1")
    a("s_waitcnt vmcnt(0)")
    gemv(lambda ks, blk: (36 + (ks >> 1) * 4 + blk, (ks & 1) * 64))
    a("s_nop 7")
    embed(8, 32)
    a("global_store_dwordx4 v1, v[8:11], s[26:27] sc1")
    lab("L_noffn")
    stamp(4)
    if "wo" in skip: a("s_branch L_nowo")
    a("s_lshl_b32 s36, s34, 15")
    a("v_lshl_add_u32 v1, v0, 4, s36")
    a(f"s_mov_b32 m0, {L_WO}")
    a("s_mov_b32 s40, 16")
    lab("L_wodma")
    a(f"global_load_lds_dwordx4 v1, s[12:13] {woflags}")
    a(f"global_load_lds_dwordx4 v1, s[12:13] offset:1024 {woflags}")
    a("v_add_u32 v1, 2048, v1")
    a("s_add_u32 m0, m0, 2048")
    a(f"s_waitcnt vmcnt({xinfl})")
    a("s_sub_u32 s40, s40, 1")
    a("s_cmp_lg_u32 s40, 0")
    a("s_cbranch_scc1 L_wodma")
    a(f"s_mul_i32 s36, s34, {14*1024}")
    a("v_lshl_add_u32 v1, v0, 4, s36")
    a("s_mov_b32 s40, 7")
    lab("L_wddma")
    a(f"global_load_lds_dwordx4 v1, s[20:21] {woflags}")
    a(f"global_load_lds_dwordx4 v1, s[20:21] offset:1024 {woflags}")
    a("v_add_u32 v1, 2048, v1")
    a("s_add_u32 m0, m0, 2048")
    a(f"s_waitcnt vmcnt({xinfl})")
    a("s_sub_u32 s40, s40, 1")
    a("s_cmp_lg_u32 s40, 0")
    a("s_cbranch_scc1 L_wddma")
    lab("L_nowo")
    a("s_mul_i32 s36, s34, 56")
    a("s_andn2_b32 s36, s36, 15")
    a(f"s_mul_i32 s37, s31, {16*7168}")
    a("s_add_u32 s36, s36, s37")
    a(f"s_add_u32 s36, s36, {WS_FP}")
    a("v_lshrrev_b32 v1, 2, v0")
    a("v_mul_u32_u24 v1, 7168, v1")
    a("v_and_b32 v3, 3, v0")
    a("v_lshl_add_u32 v1, v3, 4, v1")
    a("v_add_u32 v1, s36, v1")
    a(f"s_mov_b32 s40, {0 if 'ffn' in skip else spin}")
    lab("L_hpoll")
    if "hld" not in skip: a("global_load_dwordx4 v[8:11], v1, s[26:27] sc1")
    a("s_waitcnt vmcnt(0)")
    check([8], 2)
    pollend("L_hpoll")
    for i in range(4): a(f"v_and_b32 v{8+i}, 0xffffff00, v{8+i}")
    for r in (4, 8):
        for i in range(4):
            a(f"v_add_f32_dpp v{8+i}, v{8+i}, v{8+i} row_ror:{r} row_mask:0xf bank_mask:0xf")
    for i in range(4): a(f"v_mov_b32 v{12+i}, v{8+i}")
    for i in range(4): a(f"v_permlane16_swap_b32 v{8+i}, v{12+i}")
    for i in range(4): a(f"v_add_f32 v{8+i}, v{8+i}, v{12+i}")
    a("v_cvt_pk_bf16_f32 v8, v8, v9")
    a("v_cvt_pk_bf16_f32 v9, v10, v11")
    a("v_mov_b32 v10, v8")
    a("v_mov_b32 v11, v9")
    a("s_nop 1")
    a("v_permlane32_swap_b32 v8, v10")
    a("v_permlane32_swap_b32 v9, v11")
    for p in range(2):
        a(f"v_lshlrev_b32 v12, 16, v{8+p}")
        a(f"v_and_b32 v13, 0xffff0000, v{8+p}")
        a(f"v_lshlrev_b32 v14, 16, v{10+p}")
        a(f"v_and_b32 v15, 0xffff0000, v{10+p}")
        a("v_max_f32 v12, 0, v12")
        a("v_max_f32 v13, 0, v13")
        a("v_mul_f32 v12, v12, v14")
        a("v_mul_f32 v13, v13, v15")
        a(f"v_cvt_pk_bf16_f32 v{16+p}, v12, v13")
    a("v_lshlrev_b32 v3, 3, v3")
    a(f"ds_write_b64 v3, v[16:17] offset:{L_H}")
    a("s_waitcnt vmcnt(0) lgkmcnt(0)")
    stamp(6)
    a("s_barrier")
    dump_stamps("X")
    a("s_endpgm")

    L = [HEADER.rstrip("\n"), f"; @launch grid=(256,1,1) block=({NW*64},1,1) lds={L_END}",
         '.amdgcn_target "amdgcn-amd-amdhsa--gfx950"', ".text", f".globl {KN}", ".p2align 8", f".type {KN},@function"]
    for name in layout.split(): L.extend(SEC[name])
    L.append("L_codeend:")
    nv = VR + 32 * S
    L.append('.section .rodata,"a"')
    L.append(".p2align 6")
    L.append(f".amdhsa_kernel {KN}")
    L.append(f"  .amdhsa_next_free_vgpr {nv}")
    L.append("  .amdhsa_next_free_sgpr 102")
    L.append(f"  .amdhsa_accum_offset {nv}")
    L.append("  .amdhsa_group_segment_fixed_size 0")
    L.append("  .amdhsa_kernarg_size 96")
    L.append("  .amdhsa_user_sgpr_count 2")
    L.append("  .amdhsa_user_sgpr_kernarg_segment_ptr 1")
    L.append("  .amdhsa_system_sgpr_workgroup_id_x 1")
    L.append("  .amdhsa_float_denorm_mode_32 3")
    L.append(".end_amdhsa_kernel")
    return "\n".join(L) + "\n"

if __name__ == "__main__":
    import json
    cfg = json.loads(sys.argv[1]) if len(sys.argv) > 1 else {}
    sys.stdout.write(gen(**cfg))
```

```python
import struct, sys, math

KN = "recurrent_scan__gqa_block_cached__glu_gated_reglu__decode_kernel"
HEADER = open("recurrent_scan__gqa_block_cached__glu_gated_reglu__decode.s.ref").read().split("; @launch")[0]

def f2u(x):
    return struct.unpack("<I", struct.pack("<f", x))[0]

WS_EPOCH = 0
WS_QP = 0x10000
WS_FP = 0x40000
WS_CT = 0x80000
WS_P1 = 0x100000
WS_P2 = 0x200000
WS_TS = 0x400000
WS_TT = 0x500000
L_W0 = 0
L_W1 = 16384
L_XN = 32768
L_XR = 34816
L_Q = 36864
L_Z = 37888
L_TAG = 38144
L_RDY = 38160
L_REQ = 38176
L_H = 38400
L_ST = 38464
L_OB = 38592
L_TK = 38656
L_O = 39424
L_WO = 47616
L_END = L_WO + 46 * 1024
PHI = 0x9E3779B9

ROLES = [('X', slice(0, 1)), ('S', slice(1, 5))]

def gen(S=4, N=4, NP=None, NS=24, kvflags="nt", wflags="nt", woflags="nt", outflags="", stflags="sc1", ldflags="sc1",
        atflags="sc0 sc1", sleep1=0, sleep2=0, xinfl=7, pmap="w0 w1 r3^r1 n0 n1 n2 n3 n4 r0 r1 r2", torder="n", reqat="V", ctstride=1280, skip=(), bar0=True, warm=True, l2pf=True, pools=2, early=False, xbar="post", i1bit=15, dbg=None, dmaun=4, layout="E X1 S W X2", qafter=True, wstub=False, lnfirst=False, NW0=8, qdelay=0, qstflags="sc1", qldflags="sc1", ts=False, spin=1 << 20, probe=None):
    R = 2
    KP = 32 - NS
    POOL = 16 // pools * KP
    assert POOL <= 128 and pools in (1, 2) and N <= 4
    if NP is None: NP = N
    SEC = {}
    cur = [None]
    def section(name):
        cur[0] = SEC.setdefault(name, [])
    if probe is not None: ts = True
    def a(s): cur[0].append("    " + s)
    def lab(s): cur[0].append(s + ":")
    NW = 6 if warm else 5
    skn = [0]
    def guard(lines):
        if not warm:
            for x in lines: a(x)
            return
        skn[0] += 1
        a(f"s_cbranch_execz L_g{skn[0]}")
        for x in lines: a(x)
        lab(f"L_g{skn[0]}")
    def stamp(idx):
        if ts:
            a("s_waitcnt lgkmcnt(0)")
            a("s_memrealtime s[70:71]")
            a("s_waitcnt lgkmcnt(0)")
            a(f"s_mov_b32 s{80+idx}, s70")
    pc = [0]
    def dump_stamps(role=None):
        if probe is not None:
            prole, pidx = probe[:2]
            if role == prole:
                pc[0] += 1
                if len(probe) > 2:
                    a(f"s_and_b32 s73, s2, {probe[2]}")
                    a(f"s_cmp_lg_u32 s73, {probe[3]}")
                    a(f"s_cbranch_scc1 L_pe{pc[0]}")
                a(f"s_cmp_eq_u32 s{80+pidx}, 0")
                a(f"s_cbranch_scc1 L_pe{pc[0]}")
                a(f"s_add_u32 s72, s{80+pidx}, 10000")
                lab(f"L_pl{pc[0]}")
                a("s_memrealtime s[70:71]")
                a("s_waitcnt lgkmcnt(0)")
                a("s_sub_u32 s73, s70, s72")
                a("s_cmp_lt_i32 s73, 0")
                a(f"s_cbranch_scc1 L_pl{pc[0]}")
                lab(f"L_pe{pc[0]}")
            return
        if ts:
            a("s_mov_b64 exec, 1")
            a("s_mul_i32 s70, s2, 5")
            a("s_add_u32 s70, s70, s3")
            a("s_lshl_b32 s70, s70, 6")
            a(f"s_add_u32 s70, s70, {WS_TS}")
            a("v_mov_b32 v1, s70")
            a("s_getreg_b32 s95, hwreg(HW_REG_XCC_ID)")
            for q in range(4):
                for i in range(4):
                    a(f"v_mov_b32 v{4+i}, s{80+q*4+i}")
                a(f"global_store_dwordx4 v1, v[4:7], s[26:27] offset:{q*16}")
                a("s_nop 1")
    def tagregs():
        a("s_mov_b32 s56, s33")
        a("s_lshr_b32 s57, s33, 8")
        a("s_lshr_b32 s58, s33, 16")
        a("s_lshr_b32 s59, s33, 24")
        for i in range(4): a(f"s_mov_b32 s{60+i}, {0x07060500 + i:#x}")
    def embed(v, vtag):
        for i in range(4): a(f"v_perm_b32 v{v+i}, v{v+i}, v{vtag}, s{60+i}")
    def check(regs, acc):
        first = True
        for r in regs:
            for i in range(4):
                if first:
                    a(f"v_xor_b32 v{acc}, s{56+i}, v{r+i}"); first = False
                else:
                    a(f"v_bitop3_b32 v{acc}, v{acc}, v{r+i}, s{56+i} bitop3:0xf6")
        a(f"v_and_b32 v{acc}, 0xff, v{acc}")
        a(f"v_cmp_ne_u32 vcc, 0, v{acc}")
    def pollend(name):
        a("s_sub_u32 s40, s40, 1")
        a(f"s_cbranch_scc1 {name}_done")
        a(f"s_cbranch_vccnz {name}")
        lab(f"{name}_done")

    VKO, VVO, VM, VL, VM0, VM1 = 18, 19, 20, 21, 22, 23
    VA, VQ, VO, VS, VR = 24, 32, 36, 44, 60
    VT = VR + 64
    def decode():
        a("s_and_b32 s28, s2, 7")
        a("s_lshr_b32 s29, s2, 3")
        a("s_bfe_u32 s30, s2, 0x30004")
        a("s_lshr_b32 s31, s2, 7")
        a("s_and_b32 s32, s2, 15")
        a("s_and_b32 s34, s2, 127")
        a("s_lshr_b32 s38, s2, 4")
    def srds():
        a("s_mov_b64 s[44:45], s[6:7]"); a("s_brev_b32 s46, 16"); a("s_mov_b32 s47, 0x20000")
        a("s_mov_b64 s[48:49], s[8:9]"); a("s_brev_b32 s50, 16"); a("s_mov_b32 s51, 0x20000")
    def zero_stamps():
        if ts:
            a("s_mov_b32 s80, s70")
            for i in range(1, 16): a(f"s_mov_b32 s{80+i}, 0")
    section("X1")
    cur[0].append(".p2align 8")
    lab("L_xwave")
    a("v_lshlrev_b32 v1, 5, v0")
    a("v_mov_b32 v6, 0")
    a("v_mov_b32 v7, 0")
    a("v_lshlrev_b32 v5, 3, v0")
    a(f"ds_write_b64 v5, v[6:7] offset:{L_Z}")
    a("s_waitcnt lgkmcnt(0)")
    a("global_load_dwordx4 v[8:11], v1, s[4:5]")
    a("global_load_dwordx4 v[12:15], v1, s[4:5] offset:16")
    a("s_load_dword s33, s[26:27], 0")
    a("s_setprio 2")
    zero_stamps()
    decode()
    if NS < 32:
        a(f"s_and_b32 s67, s39, {0x300380 & ~((2 * pools - 1) << 7):#x}")
        a("s_cbranch_scc1 L_nozero")
        a("s_bfe_u32 s36, s39, 0x3000a")
        a("s_bfe_u32 s37, s39, 0x10007")
        a("s_lshl3_add_u32 s36, s37, s36")
        if pools == 2:
            a("s_bfe_u32 s37, s39, 0x10008")
            a("s_lshl1_add_u32 s36, s36, s37")
        a(f"s_mul_i32 s36, s36, {ctstride}")
        a(f"s_add_u32 s36, s36, {WS_CT}")
        a("v_lshl_add_u32 v5, v0, 2, s36")
        a("global_store_dword v5, v6, s[26:27] sc1")
        lab("L_nozero")
    if "X1 X2" not in layout: a("s_branch L_x2")
    if warm and wstub:
        lab("L_wstub")
        a("s_branch L_wwave")

    section("W")
    if warm:
        lab("L_wwave")
        if l2pf:
            a("s_getpc_b64 s[68:69]")
            lab("L_wpc")
            a(f"s_sub_u32 s68, s68, L_wpc-{KN}")
            a("s_subb_u32 s69, s69, 0")
            a("v_lshlrev_b32 v7, 7, v0")
            a("v_add_u32 v8, 8192, v7")
            a("v_min_u32 v8, L_codeend-" + KN + "-4, v8")
            a("global_load_dword v9, v7, s[68:69]")
            a("global_load_dword v9, v8, s[68:69]")
        a("s_waitcnt lgkmcnt(0)")
        a("s_barrier")
        srds()
        for r in [6, 14, VKO, VVO] + list(range(VT, VT + 16)): a(f"v_mov_b32 v{r}, 0")
        a("s_mov_b64 exec, 0")
        a("s_mov_b32 s42, 0")
        a("s_mov_b32 s54, 1")
        a("s_mov_b32 s41, 0")
        a("s_mov_b32 s33, 0")
        a("s_branch L_prek0")

    section("E")
    lab(KN)
    a("s_load_dwordx16 s[4:19], s[0:1], 0")
    a("s_load_dwordx8 s[20:27], s[0:1], 64")
    if ts: a("s_memrealtime s[70:71]")
    a("v_lshrrev_b32 v1, 6, v0")
    a("s_cmpk_ge_u32 s2, 256")
    a("s_cbranch_scc1 L_end")
    a("v_readfirstlane_b32 s3, v1")
    a("v_and_b32 v0, 63, v0")
    a("s_mul_i32 s39, s2, 0x81010")
    a("s_and_b32 s39, s39, 0x301f80")
    a("s_sub_u32 s42, s3, 1")
    a("s_cbranch_scc1 L_xwave")
    if warm:
        a("s_cmp_eq_u32 s3, 5")
        a("s_cbranch_scc1 L_wstub" if wstub else "s_cbranch_scc1 L_wwave")
    pm = [set(x.split("^")) for x in pmap.split()]
    assert len(pm) == 11
    PB = [b for b in range(11, 23) if b != i1bit]
    def mask_of(sym, m=pm): return sum(1 << PB[p] for p in range(11) if sym in m[p])
    def scalar_part(dst, m, srcs):
        a(f"s_lshl_b32 {dst}, s38, 23")
        for pre, (reg, nb) in srcs.items():
            masks = [mask_of(f"{pre}{i}", m) for i in range(nb)]
            if not any(masks): continue
            if masks[0] and all(masks[i] == masks[0] << i for i in range(nb)) and bin(masks[0]).count("1") == 1:
                a(f"s_lshl_b32 s35, {reg}, {masks[0].bit_length()-1}")
                a(f"s_xor_b32 {dst}, {dst}, s35")
                continue
            for i in range(nb):
                if masks[i]:
                    a(f"s_bfe_i32 s35, {reg}, {0x10000 + i:#x}")
                    a(f"s_and_b32 s35, s35, {masks[i]:#x}")
                    a(f"s_xor_b32 {dst}, {dst}, s35")
    def lane_part(vdst, ssrc, m, pre, nb):
        a(f"v_mov_b32 v{vdst}, {ssrc}")
        for i in range(nb):
            mk = mask_of(f"{pre}{i}", m)
            if mk:
                a(f"v_bfe_i32 v7, v0, {i}, 1")
                a(f"v_and_b32 v7, {mk:#x}, v7")
                a(f"v_xor_b32 v{vdst}, v{vdst}, v7")
    def nconst(n):
        c = 0
        for i in range(5):
            if n >> i & 1: c ^= mask_of(f"n{i}")
        return c
    a("s_lshl_b32 s37, s42, 18")
    a("s_or_b32 s36, s39, s37")
    a("v_mul_u32_u24 v4, 0x410, v0")
    a("v_and_b32 v4, 0xe070, v4")
    a("v_or_b32 v4, s36, v4")
    a("s_lshl_b32 m0, s42, 12")
    a("s_mov_b32 s37, 0" if 'wq' in skip else "s_lshl_b32 s37, 1, 16")
    a("s_waitcnt lgkmcnt(0)")
    for i in range(4):
        a(f"global_load_lds_dwordx4 v4, s[10:11] {wflags}")
        if i < 3:
            a("s_addk_i32 m0, 1024")
            a("v_add_u32 v4, s37, v4")
    a("s_and_b32 s34, s2, 127")
    a("s_lshl_b32 s36, s34, 15")
    a("s_lshl_b32 s37, s42, 13")
    a("s_add_u32 s36, s36, s37")
    a(f"s_add_u32 m0, s37, {L_WO}")
    a("v_lshl_add_u32 v9, v0, 4, s36")
    def wo_grp(hh):
        if hh == 1:
            a("s_lshl_b32 s37, s42, 13")
            a(f"s_add_u32 m0, s37, {L_WO + 4096}")
            a("v_add_u32 v9, 4096, v9")
        for i in range(4):
            if "wo" not in skip: a(f"global_load_lds_dwordx4 v9, s[12:13] offset:{i*1024} {woflags}")
    wo_grp(0)
    a("s_branch L_srest")
    def issueK(slot):
        for u in range(4):
            r = VR + slot * 32 + 4 * u
            if i1bit == 11: a(f"buffer_load_dwordx4 v[{r}:{r+3}], v{VKO}, s[44:47], s52 offen offset:{u*1024} {kvflags}")
            else:
                if u == 2: a(f"s_bitset1_b32 s52, {i1bit}")
                a(f"buffer_load_dwordx4 v[{r}:{r+3}], v{VKO}, s[44:47], s52 offen offset:{(u&1)*1024} {kvflags}")
    def issueV(slot):
        for t in (range(4) if i1bit == 11 else (2, 3, 0, 1)):
            r = VR + slot * 32 + 16 + 4 * t
            if i1bit == 11: a(f"buffer_load_dwordx4 v[{r}:{r+3}], v{VVO}, s[48:51], s52 offen offset:{t*1024} {kvflags}")
            else:
                if t == 0: a(f"s_bitset0_b32 s52, {i1bit}")
                a(f"buffer_load_dwordx4 v[{r}:{r+3}], v{VVO}, s[48:51], s52 offen offset:{(t&1)*1024} {kvflags}")
    section("S")
    lab("L_srest")
    a(f"v_lshlrev_b32 v{VVO}, 4, v0")
    if NW0 == 8: wo_grp(1)
    def s_setup():
        zero_stamps()
        if ts: a("v_mov_b32 v13, 0")
        stamp(9)
        decode()
        srds()
        scalar_part("s66", pm, {"w": ("s42", 2), "r": ("s32", 4), "g": ("s38", 4)})
        a("v_lshrrev_b32 v2, 4, v0")
        a("v_and_b32 v3, 3, v0")
        a("v_bfe_u32 v4, v0, 2, 2")
        a("v_lshlrev_b32 v5, 8, v4")
        a("v_lshl_add_u32 v5, v2, 6, v5")
        a(f"v_lshl_add_u32 v{VKO}, v3, 4, v5")
        a("s_mov_b32 s43, s2")
        lane_part(10, "s66", pm, "n", 5)
        a("s_mov_b32 s55, 0")
        for i in range(2):
            a(f"s_bfe_i32 s35, s42, {0x10000 + i:#x}")
            a(f"s_and_b32 s35, s35, {mask_of('w%d' % i):#x}")
            a("s_xor_b32 s55, s55, s35")
        a("s_lshl_b32 s36, s42, 2")
        a("v_mov_b32 v14, s36")
        a("v_mov_b32 v6, 0xffff")
        a("v_mov_b32 v7, 0xffff0000")
        a("v_and_b32 v8, 1, v0")
        a("v_cmp_eq_u32 vcc, 1, v8")
        a("v_and_b32 v8, 2, v0")
        a("s_nop 0")
        a("v_cndmask_b32 v6, v6, v7, vcc")
        a("v_cmp_eq_u32 vcc, 2, v8")
        a(f"v_mov_b32 v{VM}, {f2u(-3.0e38):#x}")
        a(f"v_mov_b32 v{VL}, 0")
        a(f"v_cndmask_b32 v{VM1}, 0, v6, vcc")
        a(f"v_xor_b32 v{VM0}, v{VM1}, v6")
        for i in range(8): a(f"v_mov_b32 v{VO+i}, 0")
        a(f"s_mov_b32 s53, {f2u(math.log2(math.e) / math.sqrt(128.0)):#x}")
        a("s_mov_b32 s54, 1000")
        a(f"s_mov_b32 s41, {S}")
        a("v_mov_b32 v6, 0")
    s_setup()
    a(f"s_mul_i32 s36, s28, {64*3584}")
    a(f"s_mul_i32 s37, s42, {16*3584}")
    a("s_add_u32 s36, s36, s37")
    a("s_lshl_b32 s37, s29, 7")
    a("s_add_u32 s36, s36, s37")
    a("v_lshrrev_b32 v2, 3, v0")
    a("v_and_b32 v3, 7, v0")
    a("v_mul_u32_u24 v2, 3584, v2")
    a("v_lshl_add_u32 v2, v3, 4, v2")
    a("v_add_u32 v2, s36, v2")
    a(f"v_add_u32 v3, {8*3584}, v2")
    a(f"s_mul_i32 s36, s34, {14*1024}")
    a("s_lshl_b32 s37, s42, 12")
    a("s_add_u32 s36, s36, s37")
    a(f"v_add_u32 v4, s36, v{VVO}")
    a(f"s_waitcnt vmcnt({0 if 'wo' in skip else NW0})")
    a("s_barrier")
    stamp(10)
    for hh in range(NW0 // 4, 2):
        a(f"s_waitcnt vmcnt({NP})")
        wo_grp(hh)
    a("s_cmp_ge_u32 s29, 28")
    a("s_cbranch_scc1 L_nogu")
    a("s_lshl_b32 s35, s42, 11")
    a(f"s_add_u32 m0, s35, {L_W1}")
    a(f"s_waitcnt vmcnt({NP})")
    if "ffn" not in skip:
        a(f"global_load_lds_dwordx4 v2, s[16:17] {wflags}")
        a("s_addk_i32 m0, 1024")
        a("s_nop 0")
        a(f"global_load_lds_dwordx4 v3, s[16:17] {wflags}")
        a("s_addk_i32 m0, 7168")
        a("s_nop 0")
        a(f"global_load_lds_dwordx4 v2, s[18:19] {wflags}")
        a("s_addk_i32 m0, 1024")
        a("s_nop 0")
        a(f"global_load_lds_dwordx4 v3, s[18:19] {wflags}")
    lab("L_nogu")
    a("s_lshl_b32 s37, s42, 12")
    a(f"s_add_u32 m0, s37, {L_WO + 32768}")
    a(f"s_waitcnt vmcnt({NP})")
    if "wo" not in skip:
        for i in range(4):
            if i == 2:
                a("s_cmp_eq_u32 s42, 3")
                a("s_cbranch_scc1 L_nowd")
            a(f"global_load_lds_dwordx4 v4, s[20:21] offset:{i*1024} {woflags}")
        lab("L_nowd")
    flagged = False
    for h in range(2 * S):
        a(f"s_waitcnt vmcnt({NP})")
        if h % 2 == 0: a(f"s_xor_b32 s52, s66, {nconst(h // 2):#x}")
        (issueK if h % 2 == 0 else issueV)(h // 2)
        if not flagged and 4 * h >= NP:
            a("s_mov_b64 exec, 1")
            a("v_mov_b32 v15, 1")
            a(f"ds_write_b32 v14, v15 offset:{L_RDY}")
            a("s_mov_b64 exec, -1")
            flagged = True
        if ts and probe is None and h % 2 == 1:
            a("s_memrealtime s[70:71]")
            a("s_waitcnt lgkmcnt(0)")
            a(f"v_writelane_b32 v13, s70, {h // 2 + 1}")
    assert NS >= S + 1 and S - R >= 2 and (2 * S - 1) * 4 >= NP + 4
    stamp(1)
    a(f"s_mov_b32 s40, {spin * 8}")
    lab("L_qflag")
    a(f"ds_read_b64 v[2:3], v6 offset:{L_TAG}")
    a("s_waitcnt lgkmcnt(0)")
    a("v_cmp_eq_u32 vcc, 0, v3")
    a("s_cbranch_vccz L_qflag_done")
    a("s_sleep 1")
    a("s_sub_u32 s40, s40, 1")
    a("s_cbranch_scc0 L_qflag")
    lab("L_qflag_done")
    a(f"ds_read_b128 v[{VQ}:{VQ+3}], v{VKO} offset:{L_Q}")
    a("v_mov_b32 v17, v2")
    a("v_readfirstlane_b32 s33, v2")
    stamp(2)
    a("s_waitcnt lgkmcnt(0)")
    def claim():
        a(f"s_sub_u32 s35, s41, {NS - 1}")
        a("s_mov_b64 exec, 1")
        a("v_mov_b32 v15, s35")
        a(f"ds_write_b32 v14, v15 offset:{L_REQ}")
        a("s_mov_b64 exec, -1")
    def qk(slot):
        K = VR + slot * 32
        for u in range(4):
            a(f"v_mfma_f32_16x16x32_bf16 v[{VS+4*u}:{VS+4*u+3}], v[{K+4*u}:{K+4*u+3}], v[{VQ}:{VQ+3}], 0")
    def softmax():
        for u in range(4):
            a(f"v_mov_b32_dpp v{4+u}, v{VS+4*u} quad_perm:[0,0,0,0] row_mask:0xf bank_mask:0xf")
        for p in range(1, 4):
            for u in range(4):
                a(f"v_add_f32_dpp v{4+u}, v{VS+4*u+p}, v{4+u} quad_perm:[{p},{p},{p},{p}] row_mask:0xf bank_mask:0xf")
        a("v_max3_f32 v1, v4, v5, v6")
        a(f"v_max3_f32 v1, v1, v7, v{VM}")
        a("v_mov_b32 v2, v1")
        a("s_nop 1")
        a("v_permlane16_swap_b32 v1, v2")
        a("s_nop 0")
        a("v_max_f32 v1, v1, v2")
        a("v_mov_b32 v2, v1")
        a("s_nop 1")
        a("v_permlane32_swap_b32 v1, v2")
        a("s_nop 0")
        a("v_max_f32 v1, v1, v2")
        a(f"v_sub_f32 v2, v{VM}, v1")
        a("v_mul_f32 v3, s53, v1")
        a("v_mul_f32 v2, s53, v2")
        a(f"v_mov_b32 v{VM}, v1")
        a("v_exp_f32 v2, v2")
        for i in range(4):
            a(f"v_fma_f32 v{4+i}, v{4+i}, s53, -v3")
        for i in range(4):
            a(f"v_exp_f32 v{4+i}, v{4+i}")
        for g in range(4):
            a(f"v_mov_b32_dpp v8, v2 row_newbcast:{4*g} row_mask:{1<<g:#x} bank_mask:0xf")
        a(f"v_fma_f32 v{VL}, v{VL}, v2, v4")
        a("v_add_f32 v9, v5, v6")
        a(f"v_add_f32 v{VL}, v{VL}, v7")
        a(f"v_add_f32 v{VL}, v{VL}, v9")
        for i in range(4):
            a(f"v_cvt_pk_bf16_f32 v{4+i}, v{4+i}, v{4+i}")
        for i in range(8):
            a(f"v_mul_f32 v{VO+i}, v{VO+i}, v8")
        for i in range(4):
            a(f"v_and_b32 v{VA+2*i}, v{4+i}, v{VM0}")
            a(f"v_and_b32 v{VA+2*i+1}, v{4+i}, v{VM1}")
    def pv(slot):
        V = VR + slot * 32 + 16
        for t in range(4):
            a(f"v_mfma_f32_16x16x16_bf16 v[{VO}:{VO+3}], v[{VA+2*t}:{VA+2*t+1}], v[{V+4*t}:{V+4*t+1}], v[{VO}:{VO+3}]")
            a(f"v_mfma_f32_16x16x16_bf16 v[{VO+4}:{VO+7}], v[{VA+2*t}:{VA+2*t+1}], v[{V+4*t+2}:{V+4*t+3}], v[{VO+4}:{VO+7}]")
    NPRE = S - R
    lab("L_loop")
    snips = []
    def bump(slot):
        a("s_add_u32 s41, s41, 1")
        if NS < 32:
            a(f"s_cmp_lt_u32 s41, {NS}")
            a(f"s_cbranch_scc1 L_nc{slot}")
            claim()
            lab(f"L_nc{slot}")
    for slot in range(R):
        qk(slot)
        a("v_readlane_b32 s52, v10, s41")
        a(f"s_cmp_lt_u32 s54, {R}")
        a(f"s_cbranch_scc1 L_dk{slot}")
        a(f"s_cmp_ge_u32 s41, {NS}")
        a(f"s_cbranch_scc1 L_tk{slot}")
        lab(f"L_gk{slot}")
        a(f"s_waitcnt vmcnt({N})")
        issueK(slot)
        if reqat == "K": bump(slot)
        lab(f"L_rk{slot}")
        sn = [f"L_tk{slot}:"]
        if NS < 32:
            sn += ["    s_lshl_b32 s35, s41, 2", f"    s_add_u32 s35, s35, {L_TK - 4 * NS}", "    v_mov_b32 v15, s35", f"    s_mov_b32 s40, {spin * 8}",
                   f"L_tp{slot}:", "    ds_read_b32 v16, v15", "    s_sub_u32 s40, s40, 1", f"    s_cbranch_scc1 L_tf{slot}", "    s_waitcnt lgkmcnt(0)",
                   "    v_readfirstlane_b32 s35, v16", "    s_nop 1", "    s_cmp_eq_u32 s35, -1", f"    s_cbranch_scc1 L_tp{slot}",
                   "    s_xor_b32 s52, s35, s55", "    s_cmp_lg_u32 s35, -2", f"    s_cbranch_scc1 L_gk{slot}", f"L_tf{slot}:"]
        sn += [f"    s_mov_b32 s54, {R-1}", f"L_dk{slot}:", "    s_nop 4", f"    s_branch L_rk{slot}"]
        snips.append(sn)
        softmax()
        a("s_cmp_eq_u32 s54, 0")
        a(f"s_cbranch_scc0 L_nv{slot}")
        a("s_waitcnt vmcnt(0)")
        lab(f"L_nv{slot}")
        pv(slot)
        a(f"s_cmp_lt_u32 s54, {R}")
        a(f"s_cbranch_scc1 L_dv{slot}")
        a(f"s_waitcnt vmcnt({N})")
        issueV(slot)
        if reqat == "V": bump(slot)
        if ts and probe is None:
            a("s_memrealtime s[70:71]")
            a("s_mov_b32 m0, s41")
            a("s_waitcnt lgkmcnt(0)")
            a("v_writelane_b32 v13, s70, m0")
        a(f"s_cmp_le_u32 s41, {S + NPRE + 1}")
        a(f"s_cbranch_scc1 L_pre{slot}")
        lab(f"L_rv{slot}")
        snips.append([f"L_dv{slot}:", "    s_sub_u32 s54, s54, 1", "    s_cbranch_scc1 L_done", "    s_waitcnt vmcnt(4)", f"    s_branch L_rv{slot}"])
    a("s_branch L_loop")
    for sn in snips: cur[0].extend(sn)
    assert NS > S + NPRE + 1
    T_OW, T_SW, T_OR, T_SR, T_P1S, T_P1L, T_OBW, T_P2S, T_WO, T_H, T_F0, T_XO, T_X = [VT + i for i in (0, 1, 2, 3, 4, 5, 6, 7, 8, 9, 10, 14, 15)]
    VW = VT + 16
    VD = VW + 32
    assert VW + 46 <= VR + 32 * S
    def tail_setup():
        a("v_lshrrev_b32 v3, 4, v0")
        a("v_and_b32 v4, 15, v0")
        a("v_bfe_u32 v5, v0, 2, 2")
        a("s_lshl_b32 s35, s42, 11")
        a(f"v_lshl_add_u32 v{T_OW}, v0, 5, s35")
        a("s_lshl_b32 s36, s42, 3")
        a(f"v_lshl_add_u32 v{T_SW}, v5, 5, s36")
        a("s_lshl_b32 s35, s42, 9")
        a(f"v_lshl_add_u32 v{T_OR}, v0, 3, s35")
        a("s_lshl_b32 s36, s42, 5")
        a(f"v_mov_b32 v{T_SR}, s36")
        a("s_lshl_b32 s35, s43, 12")
        a("s_lshl_b32 s36, s42, 10")
        a("s_add_u32 s36, s35, s36")
        a(f"s_add_u32 s37, s36, {WS_P1}")
        a(f"v_lshl_add_u32 v{T_P1S}, v0, 4, s37")
        a("s_lshl_b32 s36, s38, 16")
        a("s_lshl_b32 s37, s32, 8")
        a("s_add_u32 s36, s36, s37")
        a("s_lshl_b32 s37, s42, 6")
        a("s_add_u32 s36, s36, s37")
        a(f"s_add_u32 s36, s36, {WS_P1}")
        a(f"v_lshl_add_u32 v{T_P1L}, v4, 12, s36")
        a(f"v_lshl_add_u32 v{T_P1L}, v3, 4, v{T_P1L}")
        a("s_lshl_b32 s36, s42, 4")
        a(f"v_lshl_add_u32 v{T_OBW}, v3, 2, s36")
        a("s_lshl_b32 s36, s42, 6")
        a("s_lshl_b32 s37, s43, 3")
        a("s_add_u32 s36, s36, s37")
        a("v_add_u32 v1, s36, v0")
        a("v_and_b32 v1, 255, v1")
        a(f"s_add_u32 s37, s35, {WS_P2}")
        a(f"v_lshl_add_u32 v{T_P2S}, v1, 4, s37")
        a("s_lshl_b32 s36, s42, 8")
        a(f"s_add_u32 s36, s36, {L_WO}")
        a(f"v_lshl_add_u32 v{T_WO}, v0, 2, s36")
        a("s_and_b32 s36, s34, 1")
        a("s_lshl_b32 s36, s36, 2")
        a(f"s_add_u32 s36, s36, {L_H}")
        a(f"v_mov_b32 v{T_H}, s36")
        a("s_lshr_b32 s35, s28, 2")
        a("s_and_b32 s36, s28, 3")
        a("s_lshl_b32 s36, s36, 5")
        a("s_add_u32 s36, s36, s29")
        a("v_and_b32 v2, 1, v0")
        a("v_lshrrev_b32 v3, 1, v0")
        a("s_lshl_b32 s37, s36, 1")
        a("v_lshl_add_u32 v4, v3, 3, s37")
        a("v_add_u32 v4, v4, v2")
        a("v_and_b32 v4, 255, v4")
        a("s_lshl_b32 s37, s35, 19")
        a(f"s_add_u32 s37, s37, {WS_P2}")
        a("v_lshl_add_u32 v4, v4, 4, s37")
        a(f"v_lshl_add_u32 v{T_F0}, v3, 12, v4")
        for k in range(1, 4): a(f"v_add_u32 v{T_F0+k}, {k << 17:#x}, v{T_F0}")
        a("s_lshl_b32 s37, s35, 10")
        a("s_lshl_b32 s36, s36, 3")
        a("s_add_u32 s37, s37, s36")
        a(f"v_lshl_add_u32 v{T_XO}, v2, 2, s37")
        tagregs()
        a("s_mov_b32 s64, 0x05040100")
        a("s_mov_b32 s65, 0x07060302")
    for slot in range(R):
        mine = [k for k in range(NPRE + 1) if k % R == slot]
        lab(f"L_pre{slot}")
        for n, k in enumerate(mine):
            if n < len(mine) - 1:
                a(f"s_cmp_lg_u32 s41, {S + 1 + k}")
                a(f"s_cbranch_scc1 L_pre{slot}_{n+1}")
            lab(f"L_prek{k}")
            if k < NPRE:
                qk(R + k)
                a("s_nop 4")
                softmax()
                a("s_nop 1")
                pv(R + k)
            else:
                tail_setup()
            if warm: a(f"s_cbranch_execz {'L_prek%d' % (k + 1) if k < NPRE else 'L_loop'}")
            a(f"s_branch L_rv{slot}")
            if n < len(mine) - 1: lab(f"L_pre{slot}_{n+1}")

    lab("L_done")
    stamp(3)
    if ts: a("s_mov_b32 s94, s41")
    if ts and probe is None: a(f"v_mov_b32 v{VR}, v13")
    a(f"v_mov_b32 v2, v{VL}")
    a(f"v_mul_f32 v10, s53, v{VM}")
    a("s_nop 0")
    a(f"v_permlane16_swap_b32 v{VL}, v2")
    a("s_nop 0")
    a(f"v_add_f32 v11, v{VL}, v2")
    a("v_mov_b32 v2, v11")
    a(f"ds_write_b128 v{T_OW}, v[{VO}:{VO+3}] offset:{L_O}")
    a(f"ds_write_b128 v{T_OW}, v[{VO+4}:{VO+7}] offset:{L_O+16}")
    a("v_permlane32_swap_b32 v11, v2")
    a("s_nop 0")
    a("v_add_f32 v11, v11, v2")
    a(f"ds_write_b64 v{T_SW}, v[10:11] offset:{L_ST}")
    a("s_waitcnt lgkmcnt(0)")
    guard(["s_barrier"])
    a(f"ds_read_b128 v[8:11], v{T_SR} offset:{L_ST}")
    a(f"ds_read_b128 v[12:15], v{T_SR} offset:{L_ST+16}")
    for w in range(4):
        a(f"ds_read_b64 v[{24+2*w}:{25+2*w}], v{T_OR} offset:{L_O + w*2048}")
    a("v_mov_b32 v39, v17")
    a("s_waitcnt lgkmcnt(4)")
    a("v_max3_f32 v2, v8, v10, v12")
    a("v_max_f32 v2, v2, v14")
    for w in range(4):
        a(f"v_sub_f32 v{8+2*w}, v{8+2*w}, v2")
    for w in range(4):
        a(f"v_exp_f32 v{8+2*w}, v{8+2*w}")
    a("v_mul_f32 v16, v8, v9")
    a("v_fmac_f32 v16, v10, v11")
    a("v_fmac_f32 v16, v12, v13")
    a("v_fmac_f32 v16, v14, v15")
    a("s_waitcnt lgkmcnt(0)")
    a("v_rcp_f32 v5, v16")
    a("v_log_f32 v16, v16")
    a("v_mul_f32 v36, v8, v24")
    a("v_mul_f32 v37, v8, v25")
    for w in range(1, 4):
        a(f"v_fmac_f32 v36, v{8+2*w}, v{24+2*w}")
        a(f"v_fmac_f32 v37, v{8+2*w}, v{25+2*w}")
    a("v_add_f32 v38, v2, v16")
    a("v_mul_f32 v36, v36, v5")
    a("v_mul_f32 v37, v37, v5")
    guard([f"global_store_dwordx4 v{T_P1S}, v[36:39], s[26:27] {stflags}"] + ([] if ts else [f"global_load_dwordx4 v[8:11], v{T_P1L}, s[26:27] {ldflags}"]))
    stamp(4)
    if ts: guard([f"global_load_dwordx4 v[8:11], v{T_P1L}, s[26:27] {ldflags}"])
    a(f"ds_read_b32 v{T_X}, v{T_XO} offset:{L_XR}")
    for i in range(4):
        a(f"ds_read2_b32 v[{24+2*i}:{25+2*i}], v{T_H} offset0:{2*i} offset1:{2*i+1}")
    order = list(range(16, 23)) + list(range(16))
    def rd(r): a(f"ds_read2st64_b32 v[{VW+2*r}:{VW+2*r+1}], v{T_WO} offset0:{8*r} offset1:{8*r+4}")
    def pairup(r):
        a(f"v_perm_b32 v6, v{VW+2*r+1}, v{VW+2*r}, s64")
        a(f"v_perm_b32 v{VW+2*r+1}, v{VW+2*r+1}, v{VW+2*r}, s65")
        a(f"v_mov_b32 v{VW+2*r}, v6")
    DEPTH = 7
    for n, r in enumerate(order):
        rd(r)
        if n >= DEPTH:
            a(f"s_waitcnt lgkmcnt({DEPTH})")
            pairup(order[n - DEPTH])
    for n in range(len(order) - DEPTH, len(order)):
        a(f"s_waitcnt lgkmcnt({len(order) - 1 - n})")
        pairup(order[n])
    a("v_mov_b32 v42, 0")
    a("v_mov_b32 v43, 0")
    for r in range(7):
        a(f"v_dot2_f32_bf16 v42, v{VD+2*r}, v{24+r}, v42")
        a(f"v_dot2_f32_bf16 v43, v{VD+2*r+1}, v{24+r}, v43")
    a("v_mov_b32 v40, 0")
    a("v_mov_b32 v41, 0")
    a("v_mov_b32 v6, 0")
    a(f"s_mov_b32 s40, {spin}")
    a("v_perm_b32 v42, v42, v17, s62")
    a("v_perm_b32 v43, v43, v17, s63")
    a("s_branch L_p1chk")
    lab("L_p1poll")
    if sleep1: a(f"s_sleep {sleep1}")
    a(f"global_load_dwordx4 v[8:11], v{T_P1L}, s[26:27] {ldflags}")
    lab("L_p1chk")
    a("s_waitcnt vmcnt(0)")
    a("v_cmp_ne_u32 vcc, s33, v11")
    pollend("L_p1poll")
    stamp(5)
    a("v_max_f32_dpp v2, v10, v10 row_ror:8 row_mask:0xf bank_mask:0xf")
    a("s_nop 1")
    for r in (4, 2, 1):
        a(f"v_max_f32_dpp v2, v2, v2 row_ror:{r} row_mask:0xf bank_mask:0xf")
        if r > 1: a("s_nop 1")
    a("v_sub_f32 v10, v10, v2")
    a("v_exp_f32 v10, v10")
    a("s_nop 0")
    a("v_mul_f32 v8, v8, v10")
    a("v_mul_f32 v9, v9, v10")
    for r in (8, 4, 2, 1):
        for v in (10, 8, 9):
            a(f"v_add_f32_dpp v{v}, v{v}, v{v} row_ror:{r} row_mask:0xf bank_mask:0xf")
    a("v_rcp_f32 v10, v10")
    a("s_nop 0")
    a("v_mul_f32 v8, v8, v10")
    a("v_mul_f32 v9, v9, v10")
    a("v_cvt_pk_bf16_f32 v8, v8, v9")
    a(f"ds_write_b32 v{T_OBW}, v8 offset:{L_OB}")
    a("s_waitcnt lgkmcnt(0)")
    guard(["s_barrier"])
    for i in range(4):
        a(f"ds_read_b128 v[{VS+4*i}:{VS+4*i+3}], v6 offset:{L_OB + 16*i}")
    for r in range(16):
        if r % 4 == 0:
            a(f"s_waitcnt lgkmcnt({3 - r//4})")
        a(f"v_dot2_f32_bf16 v40, v{VW+2*r}, v{VS+r}, v40")
        a(f"v_dot2_f32_bf16 v41, v{VW+2*r+1}, v{VS+r}, v41")
    a("s_nop 1")
    a("v_perm_b32 v40, v40, v17, s60")
    a("v_perm_b32 v41, v41, v17, s61")
    guard([f"global_store_dwordx4 v{T_P2S}, v[40:43], s[26:27] {stflags}"])
    stamp(6)
    a("s_cmp_lg_u32 s42, 0")
    a("s_cbranch_scc1 L_sexit")
    a(f"s_mov_b32 s40, {spin}")
    lab("L_p2poll")
    if sleep2: a(f"s_sleep {sleep2}")
    guard([f"global_load_dwordx4 v[{24+4*k}:{27+4*k}], v{T_F0+k}, s[26:27] {ldflags}" for k in range(4)])
    a("s_waitcnt vmcnt(0)")
    check([24, 28, 32, 36], 2)
    pollend("L_p2poll")
    stamp(7)
    for i in range(16): a(f"v_and_b32 v{24+i}, 0xffffff00, v{24+i}")
    for i in range(4):
        a(f"v_add_f32 v{24+i}, v{24+i}, v{28+i}")
        a(f"v_add_f32 v{32+i}, v{32+i}, v{36+i}")
    for i in range(4): a(f"v_add_f32 v{8+i}, v{24+i}, v{32+i}")
    for r in (2, 4, 8):
        for i in range(4):
            a(f"v_add_f32_dpp v{8+i}, v{8+i}, v{8+i} row_ror:{r} row_mask:0xf bank_mask:0xf")
    for op in ("v_permlane16_swap_b32", "v_permlane32_swap_b32"):
        for i in range(4): a(f"v_mov_b32 v{12+i}, v{8+i}")
        for i in range(4): a(f"{op} v{8+i}, v{12+i}")
        for i in range(4): a(f"v_add_f32 v{8+i}, v{8+i}, v{12+i}")
    a("v_cvt_pk_bf16_f32 v10, v10, v11")
    a("v_cvt_pk_bf16_f32 v8, v8, v9")
    a("v_and_b32 v11, 0xffff0000, v10")
    a("v_lshlrev_b32 v10, 16, v10")
    a(f"v_mul_f32 v13, {f2u(-math.log2(math.e)):#x}, v11")
    a(f"v_mul_f32 v12, {f2u(-math.log2(math.e)):#x}, v10")
    a("v_exp_f32 v13, v13")
    a("v_exp_f32 v12, v12")
    a("v_and_b32 v9, 0xffff0000, v8")
    a("v_add_f32 v13, 1.0, v13")
    a("v_add_f32 v12, 1.0, v12")
    a("v_rcp_f32 v13, v13")
    a("v_rcp_f32 v12, v12")
    a("v_lshlrev_b32 v8, 16, v8")
    a("v_mul_f32 v11, v11, v13")
    a("v_mul_f32 v10, v10, v12")
    a("v_cvt_pk_bf16_f32 v10, v10, v11")
    a(f"v_lshlrev_b32 v12, 16, v{T_X}")
    a(f"v_and_b32 v13, 0xffff0000, v{T_X}")
    a("v_and_b32 v11, 0xffff0000, v10")
    a("v_lshlrev_b32 v10, 16, v10")
    a("v_mul_f32 v9, v9, v11")
    a("v_mul_f32 v8, v8, v10")
    a("v_cvt_pk_bf16_f32 v8, v8, v9")
    a("v_and_b32 v9, 0xffff0000, v8")
    a("v_lshlrev_b32 v8, 16, v8")
    a("v_add_f32 v9, v9, v13")
    a("v_add_f32 v8, v8, v12")
    a("v_cvt_pk_bf16_f32 v8, v8, v9")
    if warm: a("s_cbranch_execz L_end")
    a("s_mov_b64 exec, 3")
    a(f"global_store_dword v{T_XO}, v8, s[22:23] {outflags}")
    a("s_cmp_lg_u32 s2, 0")
    a("s_cbranch_scc1 L_sexit")
    a("s_mov_b64 exec, 1")
    a(f"global_store_dword v6, v17, s[26:27] {outflags}")
    lab("L_sexit")
    if dbg == "class":
        a("s_getreg_b32 s35, hwreg(HW_REG_XCC_ID)")
        a("s_bfe_u32 s35, s35, 0x10002")
        a("s_lshr_b32 s36, s32, 3")
        a("s_cmp_lg_u32 s35, s36")
        a("s_cbranch_scc1 L_nodbg")
        a("s_mov_b64 exec, 1")
        a("s_lshl_b32 s36, s38, 2")
        a("v_mov_b32 v1, s36")
        a("v_mov_b32 v2, s41")
        a("global_atomic_add v1, v2, s[24:25]")
        lab("L_nodbg")
    if dbg == "ptr":
        a("s_mov_b64 exec, 1")
        a("v_mov_b32 v1, 0")
        for i, r in enumerate((44, 45, 48, 49, 26, 27)):
            a(f"v_mov_b32 v2, s{r}")
            a(f"global_store_dword v1, v2, s[24:25] offset:{4*i}")
    stamp(8)
    if ts and probe is None:
        a("s_mov_b64 exec, -1")
        a("s_lshl_b32 s70, s2, 2")
        a("s_add_u32 s70, s70, s42")
        a("s_lshl_b32 s70, s70, 8")
        a(f"s_add_u32 s70, s70, {WS_TT}")
        a("v_lshl_add_u32 v1, v0, 2, s70")
        a(f"global_store_dword v1, v{VR}, s[26:27]")
    dump_stamps("S")
    lab("L_end")
    a("s_endpgm")

    section("X2")
    lab("L_x2")
    a("v_lshrrev_b32 v46, 4, v0")
    a("v_bfe_u32 v7, v0, 2, 2")
    a("v_and_b32 v5, 3, v0")
    a("v_lshlrev_b32 v44, 10, v46")
    a("v_lshl_add_u32 v44, v7, 7, v44")
    a("v_lshl_add_u32 v44, v5, 3, v44")
    a("v_and_b32 v45, 1, v0")
    a("v_lshlrev_b32 v4, 10, v45")
    a("v_lshl_add_u32 v4, v46, 4, v4")
    a("v_bfe_u32 v47, v0, 1, 3")
    a(f"v_add_u32 v4, {L_XN}, v4")
    a("s_lshr_b32 s35, s39, 20")
    a("s_lshl_b32 s36, s35, 8")
    a("v_add_u32 v5, s36, v4")
    a(f"v_mov_b32 v34, {L_Z}")
    for k in range(4):
        a(f"v_cmp_eq_u32 s[{44+2*k}:{45+2*k}], {k}, v47")
    a("s_nop 0")
    for k in range(4):
        a(f"v_cndmask_b32 v{36+k}, v34, v5, s[{44+2*k}:{45+2*k}]")
    a("s_bfe_u32 s36, s39, 0x3000a")
    a("s_lshl_b32 s36, s36, 14")
    a("s_lshl_b32 s37, s35, 11")
    a("s_add_u32 s36, s36, s37")
    a("s_bfe_u32 s37, s39, 0x30007")
    a("s_lshl_b32 s37, s37, 8")
    a("s_add_u32 s36, s36, s37")
    a(f"s_add_u32 s36, s36, {WS_QP}")
    a("v_lshl_add_u32 v5, v45, 13, s36")
    a("v_lshl_add_u32 v5, v47, 6, v5")
    a("v_lshl_add_u32 v5, v46, 4, v5")
    if ts: a("s_memrealtime s[72:73]")
    if lnfirst is False: a("s_barrier")
    a("s_waitcnt vmcnt(1)")
    if NS < 32:
        a("s_cmp_eq_u32 s67, 0")
        a("s_cbranch_scc1 L_xok")
    a("s_waitcnt vmcnt(0)")
    lab("L_xok")
    stamp(1)
    if ts: a("s_mov_b32 s89, s72")
    a(f"ds_write_b128 v1, v[8:11] offset:{L_XR}")
    a(f"ds_write_b128 v1, v[12:15] offset:{L_XR+16}")
    for i in range(8):
        a(f"v_lshlrev_b32 v{16+2*i}, 16, v{8+i}")
        a(f"v_and_b32 v{17+2*i}, 0xffff0000, v{8+i}")
    def red32(v, t):
        a("s_nop 1")
        for r in (8, 4, 2, 1):
            a(f"v_add_f32_dpp {v}, {v}, {v} row_ror:{r} row_mask:0xf bank_mask:0xf")
            a("s_nop 1")
        a(f"v_mov_b32 {t}, {v}")
        a("s_nop 1")
        a(f"v_permlane16_swap_b32 {v}, {t}")
        a("s_nop 0")
        a(f"v_add_f32 {v}, {v}, {t}")
    a("v_add_f32 v6, v16, v17")
    for i in range(2, 16):
        a(f"v_add_f32 v6, v6, v{16+i}")
    red32("v6", "v7")
    a(f"v_mul_f32 v6, {f2u(1.0/512):#x}, v6")
    a("v_sub_f32 v32, v16, v6")
    a("v_mul_f32 v33, v32, v32")
    for i in range(1, 16):
        a(f"v_sub_f32 v32, v{16+i}, v6")
        a("v_fmac_f32 v33, v32, v32")
    red32("v33", "v7")
    a(f"v_mul_f32 v33, {f2u(1.0/512):#x}, v33")
    a("v_cvt_pk_bf16_f32 v6, v6, v33")
    a("v_and_b32 v33, 0xffff0000, v6")
    a("v_lshlrev_b32 v6, 16, v6")
    a(f"v_add_f32 v33, {f2u(1e-5):#x}, v33")
    a("v_cvt_pk_bf16_f32 v33, v33, v33")
    a("v_lshlrev_b32 v33, 16, v33")
    a("v_sqrt_f32 v33, v33")
    a("s_nop 0")
    a("v_cvt_pk_bf16_f32 v33, v33, v33")
    a("v_lshlrev_b32 v33, 16, v33")
    a("v_rcp_f32 v33, v33")
    for i in range(8):
        a(f"v_sub_f32 v{16+2*i}, v{16+2*i}, v6")
        a(f"v_sub_f32 v{17+2*i}, v{17+2*i}, v6")
        a(f"v_cvt_pk_bf16_f32 v{8+i}, v{16+2*i}, v{17+2*i}")
        a(f"v_lshlrev_b32 v{16+2*i}, 16, v{8+i}")
        a(f"v_and_b32 v{17+2*i}, 0xffff0000, v{8+i}")
        a(f"v_mul_f32 v{16+2*i}, v{16+2*i}, v33")
        a(f"v_mul_f32 v{17+2*i}, v{17+2*i}, v33")
        a(f"v_cvt_pk_bf16_f32 v{8+i}, v{16+2*i}, v{17+2*i}")
    a(f"ds_write_b128 v1, v[8:11] offset:{L_XN}")
    a(f"ds_write_b128 v1, v[12:15] offset:{L_XN+16}")
    def gemv(wbase, xsel):
        for ks in range(4):
            o = (ks & 1) * 32
            for blk in range(4):
                xr, xo = xsel(ks, blk)
                a(f"ds_read_b128 v[{48+o+4*blk}:{51+o+4*blk}], v{xr} offset:{xo}")
                a(f"ds_read_b64_tr_b16 v[{64+o+4*blk}:{65+o+4*blk}], v44 offset:{wbase + ks*4096 + blk*32}")
                a(f"ds_read_b64_tr_b16 v[{66+o+4*blk}:{67+o+4*blk}], v44 offset:{wbase + ks*4096 + blk*32 + 512}")
            for blk in range(4):
                a(f"s_waitcnt lgkmcnt({9-3*blk})")
                c = "0" if (ks == 0 and blk == 0) else "v[8:11]"
                a(f"v_mfma_f32_16x16x32_bf16 v[8:11], v[{64+o+4*blk}:{67+o+4*blk}], v[{48+o+4*blk}:{51+o+4*blk}], {c}")
    a("s_waitcnt lgkmcnt(0)")
    a(f"s_add_u32 s33, s33, {PHI:#x}")
    tagregs()
    a("v_mov_b32 v32, s33")
    a("v_mov_b32 v33, 1")
    if lnfirst: a("s_barrier")
    stamp(2)
    gemv(L_W0, lambda ks, blk: (36 + blk, ks * 64))
    a("s_mov_b32 s36, 0x00ff00ff")
    a("s_mov_b32 s37, 0x00ff00ff")
    a("s_lshl_b32 s39, s30, 14")
    a("s_lshl_b32 s40, s31, 13")
    a("s_add_u32 s39, s39, s40")
    a(f"s_add_u32 s39, s39, {WS_QP + 4096}")
    a("v_lshl_add_u32 v1, v0, 4, s39")
    a(f"s_mov_b32 s40, {0 if 'qwait' in skip else spin}")
    embed(8, 32)
    a("s_mov_b64 exec, s[36:37]")
    a("s_waitcnt vmcnt(0)")
    if "qst" not in skip: a(f"global_store_dwordx4 v5, v[8:11], s[26:27] {qstflags}")
    a("s_mov_b64 exec, -1")
    stamp(3)
    def ffn_part():
        if "ffn" in skip: a("s_branch L_noffn")
        a("s_cmp_ge_u32 s29, 28")
        a("s_cbranch_scc1 L_noffn")
        a("s_lshl_b32 s36, s28, 7")
        a("v_add_u32 v5, s36, v4")
        for k in range(4):
            a(f"v_cndmask_b32 v{36+k}, v34, v5, s[{44+2*k}:{45+2*k}]")
        for k in range(4):
            a(f"v_cmp_eq_u32 s[{44+2*k}:{45+2*k}], {4+k}, v47")
        a("s_nop 0")
        for k in range(4):
            a(f"v_cndmask_b32 v{40+k}, v34, v5, s[{44+2*k}:{45+2*k}]")
        a("s_mul_i32 s36, s28, 7168")
        a("s_lshl_b32 s37, s29, 8")
        a("s_add_u32 s36, s36, s37")
        a(f"s_add_u32 s36, s36, {WS_FP}")
        a("v_bfe_u32 v5, v0, 3, 1")
        a("v_lshl_add_u32 v5, v45, 1, v5")
        a(f"v_mul_u32_u24 v5, {8*7168}, v5")
        a("v_bfe_u32 v2, v0, 1, 2")
        a("v_lshl_add_u32 v2, v2, 6, v5")
        a("v_lshl_add_u32 v2, v46, 4, v2")
        a("v_add_u32 v2, s36, v2")
        a("v_and_b32 v5, 12, v0")
        a(f"s_mov_b32 s39, {spin * 8}")
        lab("L_rdy")
        a(f"ds_read_b32 v6, v5 offset:{L_RDY}")
        a("s_waitcnt lgkmcnt(0)")
        a("v_cmp_eq_u32 vcc, 0, v6")
        a("s_cbranch_vccz L_rdy_done")
        a("s_sleep 1")
        a("s_sub_u32 s39, s39, 1")
        a("s_cbranch_scc0 L_rdy")
        lab("L_rdy_done")
        gemv(L_W1, lambda ks, blk: (36 + (ks >> 1) * 4 + blk, (ks & 1) * 64))
        a("s_nop 7")
        embed(8, 32)
        a("global_store_dwordx4 v2, v[8:11], s[26:27] sc1")
        lab("L_noffn")
        stamp(4)
    if qafter: ffn_part()
    for i in range(qdelay): a("s_sleep 32")
    stamp(7)
    lab("L_qpoll")
    for i in range(8):
        if "qld" not in skip: a(f"global_load_dwordx4 v[{48+4*i}:{51+4*i}], v1, s[26:27] offset:{i*1024-4096} {qldflags}")
    a("s_waitcnt vmcnt(0)")
    check([48 + 4 * i for i in range(8)], 6)
    pollend("L_qpoll")
    for i in range(32):
        a(f"v_and_b32 v{48+i}, 0xffffff00, v{48+i}")
    for i in range(8):
        a(f"v_add_f32 v{48+i}, v{48+i}, v{56+i}")
        a(f"v_add_f32 v{64+i}, v{64+i}, v{72+i}")
    for i in range(8):
        a(f"v_add_f32 v{48+i}, v{48+i}, v{64+i}")
    for i in range(4):
        a(f"v_cvt_pk_bf16_f32 v{48+i}, v{48+2*i}, v{49+2*i}")
    a("v_lshlrev_b32 v1, 3, v0")
    a("v_mov_b32 v6, 0")
    if NS < 32:
        a("v_mov_b32 v7, -1")
        a("v_lshlrev_b32 v5, 2, v0")
        a(f"v_add_u32 v5, {L_TK}, v5")
        for i in range(3): a(f"ds_write_b32 v5, v7 offset:{256*i}")
    a(f"ds_write_b64 v1, v[48:49] offset:{L_Q}")
    a(f"ds_write_b64 v1, v[50:51] offset:{L_Q+512}")
    a("s_waitcnt lgkmcnt(0)")
    a(f"ds_write_b64 v6, v[32:33] offset:{L_TAG}")
    stamp(5)
    a("s_setprio 0")
    if not qafter: ffn_part()
    a("s_mul_i32 s36, s34, 56")
    a("s_andn2_b32 s36, s36, 15")
    a(f"s_mul_i32 s37, s31, {16*7168}")
    a("s_add_u32 s36, s36, s37")
    a(f"s_add_u32 s36, s36, {WS_FP}")
    a("v_lshrrev_b32 v1, 2, v0")
    a("v_mul_u32_u24 v1, 7168, v1")
    a("v_and_b32 v3, 3, v0")
    a("v_lshl_add_u32 v1, v3, 4, v1")
    a("v_add_u32 v1, s36, v1")
    a(f"s_mov_b32 s40, {0 if 'ffn' in skip else spin}")
    lab("L_hpoll")
    if "hld" not in skip: a("global_load_dwordx4 v[8:11], v1, s[26:27] sc1")
    a("s_waitcnt vmcnt(0)")
    check([8], 2)
    pollend("L_hpoll")
    for i in range(4): a(f"v_and_b32 v{8+i}, 0xffffff00, v{8+i}")
    for r in (4, 8):
        for i in range(4):
            a(f"v_add_f32_dpp v{8+i}, v{8+i}, v{8+i} row_ror:{r} row_mask:0xf bank_mask:0xf")
    for i in range(4): a(f"v_mov_b32 v{12+i}, v{8+i}")
    for i in range(4): a(f"v_permlane16_swap_b32 v{8+i}, v{12+i}")
    for i in range(4): a(f"v_add_f32 v{8+i}, v{8+i}, v{12+i}")
    a("v_cvt_pk_bf16_f32 v8, v8, v9")
    a("v_cvt_pk_bf16_f32 v9, v10, v11")
    a("v_mov_b32 v10, v8")
    a("v_mov_b32 v11, v9")
    a("s_nop 1")
    a("v_permlane32_swap_b32 v8, v10")
    a("v_permlane32_swap_b32 v9, v11")
    for p in range(2):
        a(f"v_lshlrev_b32 v12, 16, v{8+p}")
        a(f"v_and_b32 v13, 0xffff0000, v{8+p}")
        a(f"v_lshlrev_b32 v14, 16, v{10+p}")
        a(f"v_and_b32 v15, 0xffff0000, v{10+p}")
        a("v_max_f32 v12, 0, v12")
        a("v_max_f32 v13, 0, v13")
        a("v_mul_f32 v12, v12, v14")
        a("v_mul_f32 v13, v13, v15")
        a(f"v_cvt_pk_bf16_f32 v{16+p}, v12, v13")
    a("v_lshlrev_b32 v3, 3, v3")
    a(f"ds_write_b64 v3, v[16:17] offset:{L_H}")
    a("s_waitcnt vmcnt(0) lgkmcnt(0)")
    stamp(6)
    if NS < 32:
        NR = 16 // pools
        a("s_lshr_b32 s37, s32, 3" if pools == 2 else "s_mov_b32 s37, 0")
        scalar_part("s55", pm, {"g": ("s38", 4)})
        if pools == 2:
            a("s_bfe_i32 s35, s32, 0x10003")
            a(f"s_and_b32 s35, s35, {mask_of('r3'):#x}")
            a("s_xor_b32 s55, s55, s35")
        for hi in range(2):
            a(f"v_add_u32 v1, {64*hi}, v0")
            if torder == "n":
                a(f"v_mul_u32_u24 v2, {(65536 + KP - 1) // KP}, v1")
                a("v_lshrrev_b32 v2, 16, v2")
                a(f"v_mul_u32_u24 v3, {KP}, v2")
                a("v_sub_u32 v3, v1, v3")
            else:
                a(f"v_and_b32 v2, {NR - 1}, v1")
                a(f"v_lshrrev_b32 v3, {NR.bit_length() - 1}, v1")
            a(f"v_add_u32 v3, {NS}, v3")
            a(f"v_mov_b32 v{20+hi}, s55")
            for pre, reg, nb in (("n", 3, 5), ("r", 2, NR.bit_length() - 1)):
                for i in range(nb):
                    a(f"v_bfe_i32 v7, v{reg}, {i}, 1")
                    a(f"v_and_b32 v7, {mask_of(pre + str(i)):#x}, v7")
                    a(f"v_xor_b32 v{20+hi}, v{20+hi}, v7")
        a(f"s_mul_i32 s36, s38, {pools}")
        a("s_add_u32 s36, s36, s37")
        a(f"s_mul_i32 s36, s36, {ctstride}")
        a(f"s_add_u32 s36, s36, {WS_CT}")
        a("s_add_u32 s68, s26, s36")
        a("s_addc_u32 s69, s27, 0")
        a("s_mov_b32 s41, 0")
        a("v_mov_b32 v6, 0")
        a(f"v_mov_b32 v5, {L_TK}")
        a(f"s_mov_b32 s40, {spin * 8}")
        a("s_setprio 1")
        lab("L_disp")
        a(f"ds_read_b128 v[8:11], v6 offset:{L_REQ}")
        a("s_sub_u32 s40, s40, 1")
        a("s_cbranch_scc1 L_disp_done")
        a("s_waitcnt lgkmcnt(0)")
        a("v_max3_u32 v8, v8, v9, v10")
        a("v_max_u32 v8, v8, v11")
        a("v_cmp_lt_u32 vcc, s41, v8")
        a("s_cbranch_vccnz L_serve")
        a("s_sleep 1")
        a("s_branch L_disp")
        lab("L_serve")
        a("s_mov_b32 s67, 1")
        a("s_atomic_add s67, s[68:69], 0 glc")
        a("s_add_u32 s41, s41, 1")
        a("s_waitcnt lgkmcnt(0)")
        a("v_readlane_b32 s36, v20, s67")
        a("v_readlane_b32 s37, v21, s67")
        a("s_bitcmp1_b32 s67, 6")
        a("s_nop 0")
        a("s_cselect_b32 s36, s37, s36")
        a(f"s_cmp_lt_u32 s67, {POOL}")
        a("s_cselect_b32 s36, s36, -2")
        a("v_mov_b32 v7, s36")
        a("ds_write_b32 v5, v7")
        a("v_add_u32 v5, 4, v5")
        a("s_cbranch_scc1 L_disp")
        lab("L_disp_done")
        a("s_waitcnt lgkmcnt(0)")
    a("s_barrier")
    dump_stamps("X")
    a("s_endpgm")

    L = [HEADER.rstrip("\n"), f"; @launch grid=(256,1,1) block=({NW*64},1,1) lds={L_END}",
         '.amdgcn_target "amdgcn-amd-amdhsa--gfx950"', ".text", f".globl {KN}", ".p2align 8", f".type {KN},@function"]
    for name in layout.split(): L.extend(SEC[name])
    L.append("L_codeend:")
    nv = VR + 32 * S
    L.append('.section .rodata,"a"')
    L.append(".p2align 6")
    L.append(f".amdhsa_kernel {KN}")
    L.append(f"  .amdhsa_next_free_vgpr {nv}")
    L.append("  .amdhsa_next_free_sgpr 102")
    L.append(f"  .amdhsa_accum_offset {nv}")
    L.append("  .amdhsa_group_segment_fixed_size 0")
    L.append("  .amdhsa_kernarg_size 96")
    L.append("  .amdhsa_user_sgpr_count 2")
    L.append("  .amdhsa_user_sgpr_kernarg_segment_ptr 1")
    L.append("  .amdhsa_system_sgpr_workgroup_id_x 1")
    L.append("  .amdhsa_float_denorm_mode_32 3")
    L.append(".end_amdhsa_kernel")
    return "\n".join(L) + "\n"

if __name__ == "__main__":
    import json
    cfg = json.loads(sys.argv[1]) if len(sys.argv) > 1 else {}
    sys.stdout.write(gen(**cfg))
```

```python
import struct, sys, math

KN = "recurrent_scan__gqa_block_cached__glu_gated_reglu__decode_kernel"
HEADER = open("recurrent_scan__gqa_block_cached__glu_gated_reglu__decode.s.ref").read().split("; @launch")[0]

def f2u(x):
    return struct.unpack("<I", struct.pack("<f", x))[0]

WS_EPOCH = 0
WS_QP = 0x10000
WS_FP = 0x40000
WS_CT = 0x80000
WS_P1 = 0x100000
WS_P2 = 0x200000
WS_TS = 0x400000
WS_TT = 0x500000
L_SC = 0
L_W0 = 0
L_W1 = 16384
L_XN = 32768
L_XR = 34816
L_Q = 36864
L_Z = 37888
L_TAG = 38144
L_RDY = 38160
L_REQ = 38176
L_H = 38400
L_ST = 38464
L_OB = 38592
L_TK = 38656
L_O = 39424
L_WO = 47616
L_END = L_WO + 46 * 1024
PHI = 0x9E3779B9

ROLES = [('X', slice(0, 1)), ('S', slice(1, 5))]

def gen(RH=9, NA=27, NS=29, mate=False, vtouch=False, barpos=1, NG=8, tlb=2, c64=True, rush=0, reqmin=True, D1=1, D2=1, pf="sc1", pfmask=2, pfat="serve", N=4, fine=1, NP=8, NK=4, fineK=2, NM=4, fineM=4, kvflags="nt", wflags="nt", woflags="nt", outflags="", stflags="sc1", ldflags="sc1",
        atflags="sc0 sc1", sleep1=0, sleep2=0, xinfl=7, pmap="w0 w1 n0^r3 n2 n1 n3 n4 r0 r1 r2 r3", torder="n", reqat="K", ctstride=1280, skip=(), bar0=True, warm=True, l2pf=True, pools=1, early=False, xbar="post", i1bit=15, dbg=None, dmaun=4, layout="E X1 S W X2", qafter=True, wstub=False, lnfirst=False, NW0=8, qdelay=0, hdelay=0, qstflags="sc1", qldflags="sc1", ts=False, spin=1 << 20, probe=None):
    R = 2
    KP = 32 - NS
    POOL = 16 // pools * KP
    assert POOL <= 128 and pools in (1, 2) and N <= 6 and NA % RH == 0 and NA >= 2 * RH and RH >= 8 and NS >= NA + 1 and qafter and NM <= 4
    SEC = {}
    cur = [None]
    def section(name):
        cur[0] = SEC.setdefault(name, [])
    if probe is not None: ts = True
    def a(s): cur[0].append("    " + s)
    def lab(s): cur[0].append(s + ":")
    NW = 6 if warm else 5
    skn = [0]
    def guard(lines):
        if not warm:
            for x in lines: a(x)
            return
        skn[0] += 1
        a(f"s_cbranch_execz L_g{skn[0]}")
        for x in lines: a(x)
        lab(f"L_g{skn[0]}")
    def stamp(idx):
        if ts:
            a("s_waitcnt lgkmcnt(0)")
            a("s_memrealtime s[70:71]")
            a("s_waitcnt lgkmcnt(0)")
            a(f"s_mov_b32 s{80+idx}, s70")
    pc = [0]
    def dump_stamps(role=None):
        if probe is not None:
            prole, pidx = probe[:2]
            if role == prole:
                pc[0] += 1
                if len(probe) > 2:
                    a(f"s_and_b32 s73, s2, {probe[2]}")
                    a(f"s_cmp_lg_u32 s73, {probe[3]}")
                    a(f"s_cbranch_scc1 L_pe{pc[0]}")
                a(f"s_cmp_eq_u32 s{80+pidx}, 0")
                a(f"s_cbranch_scc1 L_pe{pc[0]}")
                a(f"s_add_u32 s72, s{80+pidx}, 10000")
                lab(f"L_pl{pc[0]}")
                a("s_memrealtime s[70:71]")
                a("s_waitcnt lgkmcnt(0)")
                a("s_sub_u32 s73, s70, s72")
                a("s_cmp_lt_i32 s73, 0")
                a(f"s_cbranch_scc1 L_pl{pc[0]}")
                lab(f"L_pe{pc[0]}")
            return
        if ts:
            a("s_mov_b64 exec, 1")
            a("s_mul_i32 s70, s2, 5")
            a("s_add_u32 s70, s70, s3")
            a("s_lshl_b32 s70, s70, 6")
            a(f"s_add_u32 s70, s70, {WS_TS}")
            a("v_mov_b32 v1, s70")
            a("s_getreg_b32 s95, hwreg(HW_REG_XCC_ID)")
            for q in range(4):
                for i in range(4):
                    a(f"v_mov_b32 v{4+i}, s{80+q*4+i}")
                a(f"global_store_dwordx4 v1, v[4:7], s[26:27] offset:{q*16}")
                a("s_nop 1")
    def tagregs():
        a("s_mov_b32 s56, s33")
        a("s_lshr_b32 s57, s33, 8")
        a("s_lshr_b32 s58, s33, 16")
        a("s_lshr_b32 s59, s33, 24")
        for i in range(4): a(f"s_mov_b32 s{60+i}, {0x07060500 + i:#x}")
    def embed(v, vtag):
        for i in range(4): a(f"v_perm_b32 v{v+i}, v{v+i}, v{vtag}, s{60+i}")
    def check(regs, acc):
        first = True
        for r in regs:
            for i in range(4):
                if first:
                    a(f"v_xor_b32 v{acc}, s{56+i}, v{r+i}"); first = False
                else:
                    a(f"v_bitop3_b32 v{acc}, v{acc}, v{r+i}, s{56+i} bitop3:0xf6")
        a(f"v_and_b32 v{acc}, 0xff, v{acc}")
        a(f"v_cmp_ne_u32 vcc, 0, v{acc}")
    def pollend(name):
        a("s_sub_u32 s40, s40, 1")
        a(f"s_cbranch_scc1 {name}_done")
        a(f"s_cbranch_vccnz {name}")
        lab(f"{name}_done")

    VKO, VVO, VM, VL, VM0, VM1 = 18, 19, 20, 21, 22, 23
    VA, VQ, VO, VS, VR = 24, 32, 36, 44, 60
    VT = VR + 16 * RH
    T_OW, T_SW, T_OR, T_SR, T_P1S, T_P1L, T_OBW, T_P2S, T_WO, T_H, T_F0, T_XO, T_X = [VT + i for i in (0, 1, 2, 3, 4, 5, 6, 7, 8, 9, 10, 14, 15)]
    VW = VR + 16
    VD = VW + 32
    VP1 = VR + 64
    VP2 = VR + 80
    assert D1 <= 4 and VP2 + 16 * D2 <= VT
    VB, VSW, VSR = 11, 12, 16
    def decode():
        a("s_and_b32 s28, s2, 7")
        a("s_lshr_b32 s29, s2, 3")
        a("s_bfe_u32 s30, s2, 0x30004")
        a("s_lshr_b32 s31, s2, 7")
        a("s_and_b32 s32, s2, 15")
        a("s_and_b32 s34, s2, 127")
        a("s_lshr_b32 s38, s2, 4")
    def srds():
        a("s_mov_b64 s[44:45], s[6:7]"); a("s_brev_b32 s46, 16"); a("s_mov_b32 s47, 0x20000")
        a("s_mov_b64 s[48:49], s[8:9]"); a("s_brev_b32 s50, 16"); a("s_mov_b32 s51, 0x20000")
        a("s_mov_b64 s[72:73], s[6:7]"); a("s_brev_b32 s74, 16"); a("s_mov_b32 s75, 0x20000")
    def zero_stamps():
        if ts:
            a("s_mov_b32 s80, s70")
            for i in range(1, 16): a(f"s_mov_b32 s{80+i}, 0")
    section("X1")
    cur[0].append(".p2align 8")
    lab("L_xwave")
    a("v_lshlrev_b32 v1, 5, v0")
    a("v_mov_b32 v6, 0")
    a("v_mov_b32 v7, 0")
    a("v_lshlrev_b32 v5, 3, v0")
    a(f"ds_write_b64 v5, v[6:7] offset:{L_Z}")
    a("s_waitcnt lgkmcnt(0)")
    a("global_load_dwordx4 v[8:11], v1, s[4:5]")
    a("global_load_dwordx4 v[12:15], v1, s[4:5] offset:16")
    a("s_load_dword s33, s[26:27], 0")
    a("s_setprio 2")
    zero_stamps()
    decode()
    if NS < 32:
        a(f"s_and_b32 s67, s39, {0x300380 & ~((2 * pools - 1) << 7):#x}")
        a("s_cbranch_scc1 L_nozero")
        a("s_bfe_u32 s36, s39, 0x3000a")
        a("s_bfe_u32 s37, s39, 0x10007")
        a("s_lshl3_add_u32 s36, s37, s36")
        if pools == 2:
            a("s_bfe_u32 s37, s39, 0x10008")
            a("s_lshl1_add_u32 s36, s36, s37")
        a(f"s_mul_i32 s36, s36, {ctstride}")
        a(f"s_add_u32 s36, s36, {WS_CT}")
        a("v_lshl_add_u32 v5, v0, 2, s36")
        a("global_store_dword v5, v6, s[26:27] sc1")
        lab("L_nozero")
    if "X1 X2" not in layout: a("s_branch L_x2")
    if warm and wstub:
        lab("L_wstub")
        a("s_branch L_wwave")

    section("W")
    if warm:
        lab("L_wwave")
        if l2pf:
            a("s_getpc_b64 s[68:69]")
            lab("L_wpc")
            a(f"s_sub_u32 s68, s68, L_wpc-{KN}")
            a("s_subb_u32 s69, s69, 0")
            a("v_lshlrev_b32 v7, 7, v0")
            a("v_add_u32 v8, 8192, v7")
            a("v_min_u32 v8, L_codeend-" + KN + "-4, v8")
            a("global_load_dword v9, v7, s[68:69]")
            a("global_load_dword v9, v8, s[68:69]")
        a("s_waitcnt lgkmcnt(0)")
        if tlb:
            a("s_and_b32 s28, s2, 7")
            a("s_and_b32 s34, s2, 127")
            a("v_mov_b32 v2, 0")
            a("s_mov_b64 exec, 1")
            a(f"s_mul_i32 s36, s28, {64*3584}")
            a("v_mov_b32 v3, s36")
            a(f"global_load_dword v9, v3, s[16:17] {wflags}")
            a(f"global_load_dword v9, v3, s[18:19] {wflags}")
            a(f"s_mul_i32 s36, s34, {14*1024}")
            a("v_mov_b32 v3, s36")
            a(f"global_load_dword v9, v3, s[20:21] {wflags}")
            a("s_lshl_b32 s36, s2, 19")
            a("v_mov_b32 v3, s36")
            a(f"global_load_dword v9, v3, s[6:7] {kvflags}")
            a(f"global_load_dword v9, v3, s[8:9] {kvflags}")
            a(f"global_load_dword v9, v2, s[26:27] offset:1024 {kvflags}")
            if tlb > 1:
                a("s_lshl_b32 s36, s2, 12")
                a(f"s_add_u32 s36, s36, {WS_P1}")
                a("v_mov_b32 v3, s36")
                a(f"global_load_dword v9, v3, s[26:27] {kvflags}")
                a(f"v_add_u32 v3, {WS_P2 - WS_P1}, v3")
                a(f"global_load_dword v9, v3, s[26:27] {kvflags}")
                a("v_xor_b32 v3, 0x80000, v3")
                a(f"global_load_dword v9, v3, s[26:27] {kvflags}")
            if tlb > 2:
                a(f"global_load_dword v9, v2, s[22:23] {kvflags}")
            a("s_mov_b64 exec, -1")
        a("s_barrier")
        srds()
        for r in [6, 14, VKO, VVO, VB] + list(range(VT, VT + 16)): a(f"v_mov_b32 v{r}, 0")
        a("s_mov_b64 exec, 0")
        a("s_mov_b32 s42, 0")
        a("s_mov_b32 s54, 1")
        a("s_mov_b32 s41, 0")
        a("s_mov_b32 s33, 0")
        a("s_mov_b32 s29, 0")
        a("s_mov_b32 s76, 0")
        a("s_mov_b32 s77, 0")
        a("s_mov_b64 s[96:97], 0")
        a("s_mov_b64 s[98:99], 0")
        a("s_branch L_kloop")

    section("E")
    lab(KN)
    a("s_load_dwordx16 s[4:19], s[0:1], 0")
    a("s_load_dwordx8 s[20:27], s[0:1], 64")
    if ts: a("s_memrealtime s[70:71]")
    a("v_lshrrev_b32 v1, 6, v0")
    a("s_cmpk_ge_u32 s2, 256")
    a("s_cbranch_scc1 L_end")
    a("v_readfirstlane_b32 s3, v1")
    a("v_and_b32 v0, 63, v0")
    a("s_mul_i32 s39, s2, 0x81010")
    a("s_and_b32 s39, s39, 0x301f80")
    a("s_sub_u32 s42, s3, 1")
    a("s_cbranch_scc1 L_xwave")
    if warm:
        a("s_cmp_eq_u32 s3, 5")
        a("s_cbranch_scc1 L_wstub" if wstub else "s_cbranch_scc1 L_wwave")
    pm = [set(x.split("^")) for x in pmap.split()]
    assert len(pm) == 11
    PB = [b for b in range(11, 23) if b != i1bit]
    def mask_of(sym, m=pm): return sum(1 << PB[p] for p in range(11) if sym in m[p])
    def scalar_part(dst, m, srcs):
        a(f"s_lshl_b32 {dst}, s38, 23")
        for pre, (reg, nb) in srcs.items():
            masks = [mask_of(f"{pre}{i}", m) for i in range(nb)]
            if not any(masks): continue
            if masks[0] and all(masks[i] == masks[0] << i for i in range(nb)) and bin(masks[0]).count("1") == 1:
                a(f"s_lshl_b32 s35, {reg}, {masks[0].bit_length()-1}")
                a(f"s_xor_b32 {dst}, {dst}, s35")
                continue
            for i in range(nb):
                if masks[i]:
                    a(f"s_bfe_i32 s35, {reg}, {0x10000 + i:#x}")
                    a(f"s_and_b32 s35, s35, {masks[i]:#x}")
                    a(f"s_xor_b32 {dst}, {dst}, s35")
    def lane_part(vdst, ssrc, m, pre, nb):
        a(f"v_mov_b32 v{vdst}, {ssrc}")
        for i in range(nb):
            mk = mask_of(f"{pre}{i}", m)
            if mk:
                a(f"v_bfe_i32 v7, v0, {i}, 1")
                a(f"v_and_b32 v7, {mk:#x}, v7")
                a(f"v_xor_b32 v{vdst}, v{vdst}, v7")
    def nconst(n):
        c = 0
        for i in range(5):
            if n >> i & 1: c ^= mask_of(f"n{i}")
        return c
    a("s_lshl_b32 s37, s42, 18")
    a("s_or_b32 s36, s39, s37")
    a("v_mul_u32_u24 v4, 0x410, v0")
    a("v_and_b32 v4, 0xe070, v4")
    a("v_or_b32 v4, s36, v4")
    a("s_lshl_b32 m0, s42, 12")
    a("s_mov_b32 s37, 0" if 'wq' in skip else "s_lshl_b32 s37, 1, 16")
    a("s_waitcnt lgkmcnt(0)")
    for i in range(4):
        a(f"global_load_lds_dwordx4 v4, s[10:11] {wflags}")
        if i < 3:
            a("s_addk_i32 m0, 1024")
            a("v_add_u32 v4, s37, v4")
    a("s_and_b32 s34, s2, 127")
    a("s_lshl_b32 s36, s34, 15")
    a("s_lshl_b32 s37, s42, 13")
    a("s_add_u32 s36, s36, s37")
    a(f"s_add_u32 m0, s37, {L_WO}")
    a("v_lshl_add_u32 v9, v0, 4, s36")
    def wo_grp(hh):
        if hh == 1:
            a("s_lshl_b32 s37, s42, 13")
            a(f"s_add_u32 m0, s37, {L_WO + 4096}")
            a("v_add_u32 v9, 4096, v9")
        for i in range(4):
            if "wo" not in skip: a(f"global_load_lds_dwordx4 v9, s[12:13] offset:{i*1024} {woflags}")
    wo_grp(0)
    a("s_branch L_srest")
    assert i1bit != 11
    def tstamp():
        if ts and probe is None:
            a("s_memrealtime s[70:71]")
            a("s_add_u32 s79, s79, 1")
            a("s_lshr_b32 m0, s79, 1")
            a("s_waitcnt lgkmcnt(0)")
            a("v_writelane_b32 v13, s70, m0")
    def issue(reg, voff, srd, down=False, n=None, fn=None, mid=None, fill=None, skipto=None):
        n = N if n is None else n
        fn = fine if fn is None else fn
        seq = (2, 3, 0, 1) if down else (0, 1, 2, 3)
        if mate: seq = (2, 0, 3, 1) if down else (0, 2, 1, 3)
        for k, u in enumerate(seq):
            if k and (u >> 1) != (seq[k-1] >> 1): a(f"s_bitset{u >> 1}_b32 s52, {i1bit}")
            if k % fn == 0: a(f"s_waitcnt vmcnt({n})")
            if k == 0 and mid: lab(mid)
            a(f"buffer_load_dwordx4 v[{reg+4*u}:{reg+4*u+3}], v{voff}, {srd}, s52 offen offset:{(u&1)*1024} {kvflags}")
        tstamp()
    def issueK(slot): issue(VR + slot * 32, VKO, "s[44:47]", n=NM, fn=fineM, mid=f"L_gkr{slot}")
    def issueV(slot): issue(VR + slot * 32 + 16, VVO, "s[48:51]", down=True, n=NM, fn=fineM, mid=f"L_gvr{slot}")
    assert not rush or fineM == 4
    assert NM + fineM <= 8 and N + fine <= 8
    rest = list(range(2, RH))
    PERM = [0 if p == (RH - 1) // 2 else 1 if p == RH - 1 else rest.pop(0) for p in range(RH)]
    assert sorted(PERM) == list(range(RH))
    section("S")
    lab("L_srest")
    a(f"v_lshlrev_b32 v{VVO}, 4, v0")
    if NW0 == 8: wo_grp(1)
    def tail_setup():
        a("v_lshrrev_b32 v3, 4, v0")
        a("v_and_b32 v4, 15, v0")
        a("v_bfe_u32 v5, v0, 2, 2")
        a("s_lshl_b32 s35, s42, 11")
        a(f"v_lshl_add_u32 v{T_OW}, v0, 5, s35")
        a("s_lshl_b32 s36, s42, 3")
        a(f"v_lshl_add_u32 v{T_SW}, v5, 5, s36")
        a("s_lshl_b32 s35, s42, 9")
        a(f"v_lshl_add_u32 v{T_OR}, v0, 3, s35")
        a("s_lshl_b32 s36, s42, 5")
        a(f"v_mov_b32 v{T_SR}, s36")
        a("s_lshl_b32 s35, s43, 12")
        a("s_lshl_b32 s36, s42, 10")
        a("s_add_u32 s36, s35, s36")
        a(f"s_add_u32 s37, s36, {WS_P1}")
        a(f"v_lshl_add_u32 v{T_P1S}, v0, 4, s37")
        a("s_lshl_b32 s36, s38, 16")
        a("s_lshl_b32 s37, s32, 8")
        a("s_add_u32 s36, s36, s37")
        a("s_lshl_b32 s37, s42, 6")
        a("s_add_u32 s36, s36, s37")
        a(f"s_add_u32 s36, s36, {WS_P1}")
        a(f"v_lshl_add_u32 v{T_P1L}, v4, 12, s36")
        a(f"v_lshl_add_u32 v{T_P1L}, v3, 4, v{T_P1L}")
        a("s_lshl_b32 s36, s42, 4")
        a(f"v_lshl_add_u32 v{T_OBW}, v3, 2, s36")
        a("s_lshl_b32 s36, s42, 6")
        a("s_lshl_b32 s37, s43, 3")
        a("s_add_u32 s36, s36, s37")
        a("v_add_u32 v1, s36, v0")
        a("v_and_b32 v1, 255, v1")
        a(f"s_add_u32 s37, s35, {WS_P2}")
        a(f"v_lshl_add_u32 v{T_P2S}, v1, 4, s37")
        a("s_lshl_b32 s36, s42, 8")
        a(f"s_add_u32 s36, s36, {L_WO}")
        a(f"v_lshl_add_u32 v{T_WO}, v0, 2, s36")
        a("s_and_b32 s36, s34, 1")
        a("s_lshl_b32 s36, s36, 2")
        a(f"s_add_u32 s36, s36, {L_H}")
        a(f"v_mov_b32 v{T_H}, s36")
        if not c64:
            a("s_lshr_b32 s35, s28, 2")
            a("s_and_b32 s36, s28, 3")
            a("s_lshl_b32 s36, s36, 5")
            a("s_add_u32 s36, s36, s29")
            a("v_and_b32 v2, 1, v0")
            a("v_lshrrev_b32 v3, 1, v0")
            a("s_lshl_b32 s37, s36, 1")
            a("v_lshl_add_u32 v4, v3, 3, s37")
            a("v_add_u32 v4, v4, v2")
            a("v_and_b32 v4, 255, v4")
            a("s_lshl_b32 s37, s35, 19")
            a(f"s_add_u32 s37, s37, {WS_P2}")
            a("v_lshl_add_u32 v4, v4, 4, s37")
            a(f"v_lshl_add_u32 v{T_F0}, v3, 12, v4")
            for k in range(1, 4): a(f"v_add_u32 v{T_F0+k}, {k << 17:#x}, v{T_F0}")
            a("s_lshl_b32 s37, s35, 10")
            a("s_lshl_b32 s36, s36, 3")
            a("s_add_u32 s37, s37, s36")
            a(f"v_lshl_add_u32 v{T_XO}, v2, 2, s37")
        else:
            a("s_lshr_b32 s35, s28, 2")
            a("s_and_b32 s36, s28, 3")
            a("s_lshl_b32 s36, s36, 3")
            a("s_lshr_b32 s37, s29, 2")
            a("s_add_u32 s36, s36, s37")
            a("v_and_b32 v2, 7, v0")
            a("v_lshrrev_b32 v3, 3, v0")
            a("s_lshl2_add_u32 s37, s35, s42")
            a("s_lshl_b32 s37, s37, 17")
            a(f"s_add_u32 s37, s37, {WS_P2}")
            a("v_lshl_add_u32 v5, v2, 4, s37")
            for k in range(4):
                a(f"v_add_u32 v1, {8*k}, v3")
                a("v_add_u32 v4, s36, v1")
                a("v_and_b32 v4, 31, v4")
                a("v_lshl_add_u32 v4, v4, 7, v5")
                a(f"v_lshl_add_u32 v{T_F0+k}, v1, 12, v4")
            a("s_lshl_b32 s37, s35, 10")
            a("s_lshl_b32 s36, s36, 5")
            a("s_add_u32 s37, s37, s36")
            a(f"v_lshl_add_u32 v{T_XO}, v2, 2, s37")
        a("s_mov_b32 s64, 0x05040100")
        a("s_mov_b32 s65, 0x07060302")
    def s_setup():
        zero_stamps()
        if ts:
            a("v_mov_b32 v13, 0")
            a("s_mov_b32 s79, 1")
        stamp(9)
        decode()
        srds()
        scalar_part("s66", pm, {"w": ("s42", 2), "r": ("s32", 4), "g": ("s38", 4)})
        a("v_lshrrev_b32 v2, 4, v0")
        a("v_and_b32 v3, 3, v0")
        a("v_bfe_u32 v4, v0, 2, 2")
        a("v_lshlrev_b32 v5, 8, v4")
        a("v_lshl_add_u32 v5, v2, 6, v5")
        a(f"v_lshl_add_u32 v{VKO}, v3, 4, v5")
        a("s_mov_b32 s43, s2")
        lane_part(10, "s66", pm, "n", 5)
        a("s_mov_b32 s55, 0")
        for i in range(2):
            a(f"s_bfe_i32 s35, s42, {0x10000 + i:#x}")
            a(f"s_and_b32 s35, s35, {mask_of('w%d' % i):#x}")
            a("s_xor_b32 s55, s55, s35")
        a("s_lshl_b32 s36, s42, 2")
        a("v_mov_b32 v14, s36")
        a("v_mov_b32 v6, 0xffff")
        a("v_mov_b32 v7, 0xffff0000")
        a("v_and_b32 v8, 1, v0")
        a("v_cmp_eq_u32 vcc, 1, v8")
        a("v_and_b32 v8, 2, v0")
        a("s_nop 0")
        a("v_cndmask_b32 v6, v6, v7, vcc")
        a("v_cmp_eq_u32 vcc, 2, v8")
        a(f"v_mov_b32 v{VM}, {f2u(-3.0e38):#x}")
        a(f"v_mov_b32 v{VL}, 0")
        a(f"v_cndmask_b32 v{VM1}, 0, v6, vcc")
        a(f"v_xor_b32 v{VM0}, v{VM1}, v6")
        for i in range(8): a(f"v_mov_b32 v{VO+i}, 0")
        a(f"s_mov_b32 s53, {f2u(math.log2(math.e) / math.sqrt(128.0)):#x}")
        a("s_mov_b32 s54, 1000")
        a(f"s_mov_b32 s41, {RH}")
        a(f"s_mov_b32 s76, {NA // RH - 1}")
        a(f"s_mov_b32 s77, {NA // RH - 1}")
        a("s_mov_b64 s[96:97], -1")
        a("s_mov_b32 s98, 0x11111111")
        a("s_mov_b32 s99, 0x11111111")
        a(f"v_mov_b32 v{VB}, v{VKO}")
        a(f"s_mul_i32 s36, s42, {NA * 256}")
        a(f"v_lshl_add_u32 v{VSR}, v0, 2, s36")
        a(f"v_and_b32 v{VSW}, -16, v{VSR}")
        tail_setup()
        a("v_mov_b32 v6, 0")
    s_setup()
    a(f"s_mul_i32 s36, s28, {64*3584}")
    a(f"s_mul_i32 s37, s42, {16*3584}")
    a("s_add_u32 s36, s36, s37")
    a("s_lshl_b32 s37, s29, 7")
    a("s_add_u32 s36, s36, s37")
    a("v_lshrrev_b32 v2, 3, v0")
    a("v_and_b32 v3, 7, v0")
    a("v_mul_u32_u24 v2, 3584, v2")
    a("v_lshl_add_u32 v2, v3, 4, v2")
    a("v_add_u32 v2, s36, v2")
    a(f"v_add_u32 v3, {8*3584}, v2")
    a(f"s_mul_i32 s36, s34, {14*1024}")
    a("s_lshl_b32 s37, s42, 12")
    a("s_add_u32 s36, s36, s37")
    a(f"v_add_u32 v4, s36, v{VVO}")
    a(f"s_waitcnt vmcnt({0 if 'wo' in skip else NW0})")
    if NG is None: NG = NP
    def bar0(pos):
        if pos == barpos:
            a("s_barrier")
            stamp(10)
    bar0(0)
    for hh in range(NW0 // 4, 2):
        a(f"s_waitcnt vmcnt({NP})")
        wo_grp(hh)
    a("s_cmp_ge_u32 s29, 28")
    a("s_cbranch_scc1 L_nogu")
    a("s_lshl_b32 s35, s42, 11")
    a(f"s_add_u32 m0, s35, {L_W1}")
    a(f"s_waitcnt vmcnt({NG})")
    if "ffn" not in skip:
        a(f"global_load_lds_dwordx4 v2, s[16:17] {wflags}")
        a("s_addk_i32 m0, 1024")
        a("s_nop 0")
        a(f"global_load_lds_dwordx4 v3, s[16:17] {wflags}")
        a("s_addk_i32 m0, 7168")
        a("s_nop 0")
        a(f"global_load_lds_dwordx4 v2, s[18:19] {wflags}")
        a("s_addk_i32 m0, 1024")
        a("s_nop 0")
        a(f"global_load_lds_dwordx4 v3, s[18:19] {wflags}")
    lab("L_nogu")
    bar0(1)
    a("s_lshl_b32 s37, s42, 12")
    a(f"s_add_u32 m0, s37, {L_WO + 32768}")
    a(f"s_waitcnt vmcnt({NG})")
    if "wo" not in skip:
        for i in range(4):
            if i == 2:
                a("s_cmp_eq_u32 s42, 3")
                a("s_cbranch_scc1 L_nowd")
            a(f"global_load_lds_dwordx4 v4, s[20:21] offset:{i*1024} {woflags}")
        lab("L_nowd")
    bar0(2)
    for p in range(RH):
        a(f"s_xor_b32 s52, s66, {nconst(p):#x}")
        if p == 0: issue(VR + PERM[p] * 16, VKO, "s[44:47]", n=NP, fn=4)
        else: issue(VR + PERM[p] * 16, VKO, "s[44:47]", n=NK, fn=fineK)
        if p == 2 and vtouch:
            a("s_cmp_lg_u32 s42, 0")
            a("s_cbranch_scc1 L_novt")
            a("s_mov_b64 exec, 1")
            a(f"buffer_load_dword v8, v6, s[48:51], s66 offen {kvflags}")
            a("s_mov_b64 exec, -1")
            lab("L_novt")
        if p == (1 if NK <= 4 else 2):
            a("s_mov_b64 exec, 1")
            a("v_mov_b32 v15, 1")
            a(f"ds_write_b32 v14, v15 offset:{L_RDY}")
            a("s_mov_b64 exec, -1")
    stamp(1)
    a(f"s_mov_b32 s40, {spin * 8}")
    lab("L_qflag")
    a(f"ds_read_b64 v[2:3], v6 offset:{L_TAG}")
    a("s_waitcnt lgkmcnt(0)")
    a("v_cmp_eq_u32 vcc, 0, v3")
    a("s_cbranch_vccz L_qflag_done")
    a("s_sleep 1")
    a("s_sub_u32 s40, s40, 1")
    a("s_cbranch_scc0 L_qflag")
    lab("L_qflag_done")
    a(f"ds_read_b128 v[{VQ}:{VQ+3}], v{VKO} offset:{L_Q}")
    a("v_mov_b32 v17, v2")
    a("v_readfirstlane_b32 s33, v2")
    stamp(2)
    a("s_nop 1")
    tagregs()
    a("s_waitcnt lgkmcnt(0)")
    def claim(first=False):
        a("s_mov_b32 s35, 1" if first else f"s_sub_u32 s35, s41, {NS - 1}")
        a("s_mov_b64 exec, 1")
        a("v_mov_b32 v15, s35")
        a(f"ds_write_b32 v14, v15 offset:{L_REQ}")
        a("s_mov_b64 exec, -1")
    def qk(slot):
        K = VR + slot * 32
        for u in range(4):
            a(f"v_mfma_f32_16x16x32_bf16 v[{VS+4*u}:{VS+4*u+3}], v[{K+4*u}:{K+4*u+3}], v[{VQ}:{VQ+3}], 0")
    def softmax():
        for u in range(4):
            a(f"v_mov_b32_dpp v{4+u}, v{VS+4*u} quad_perm:[0,0,0,0] row_mask:0xf bank_mask:0xf")
        for p in range(1, 4):
            for u in range(4):
                a(f"v_add_f32_dpp v{4+u}, v{VS+4*u+p}, v{4+u} quad_perm:[{p},{p},{p},{p}] row_mask:0xf bank_mask:0xf")
        a("v_max3_f32 v1, v4, v5, v6")
        a(f"v_max3_f32 v1, v1, v7, v{VM}")
        a("v_mov_b32 v2, v1")
        a("s_nop 1")
        a("v_permlane16_swap_b32 v1, v2")
        a("s_nop 0")
        a("v_max_f32 v1, v1, v2")
        a("v_mov_b32 v2, v1")
        a("s_nop 1")
        a("v_permlane32_swap_b32 v1, v2")
        a("s_nop 0")
        a("v_max_f32 v1, v1, v2")
        a(f"v_sub_f32 v2, v{VM}, v1")
        a("v_mul_f32 v3, s53, v1")
        a("v_mul_f32 v2, s53, v2")
        a(f"v_mov_b32 v{VM}, v1")
        a("v_exp_f32 v2, v2")
        for i in range(4):
            a(f"v_fma_f32 v{4+i}, v{4+i}, s53, -v3")
        for i in range(4):
            a(f"v_exp_f32 v{4+i}, v{4+i}")
        for g in range(4):
            a(f"v_mov_b32_dpp v8, v2 row_newbcast:{4*g} row_mask:{1<<g:#x} bank_mask:0xf")
        a(f"v_fma_f32 v{VL}, v{VL}, v2, v4")
        a("v_add_f32 v9, v5, v6")
        a(f"v_add_f32 v{VL}, v{VL}, v7")
        a(f"v_add_f32 v{VL}, v{VL}, v9")
        for i in range(4):
            a(f"v_cvt_pk_bf16_f32 v{4+i}, v{4+i}, v{4+i}")
        for i in range(8):
            a(f"v_mul_f32 v{VO+i}, v{VO+i}, v8")
        for i in range(4):
            a(f"v_and_b32 v{VA+2*i}, v{4+i}, v{VM0}")
            a(f"v_and_b32 v{VA+2*i+1}, v{4+i}, v{VM1}")
    def pv(slot):
        V = VR + slot * 32 + 16
        for t in range(4):
            a(f"v_mfma_f32_16x16x16_bf16 v[{VO}:{VO+3}], v[{VA+2*t}:{VA+2*t+1}], v[{V+4*t}:{V+4*t+1}], v[{VO}:{VO+3}]")
            a(f"v_mfma_f32_16x16x16_bf16 v[{VO+4}:{VO+7}], v[{VA+2*t}:{VA+2*t+1}], v[{V+4*t+2}:{V+4*t+3}], v[{VO+4}:{VO+7}]")
    def guarded(f):
        if not warm: return f()
        skn[0] += 1
        n = skn[0]
        a(f"s_cbranch_execz L_g{n}")
        f()
        lab(f"L_g{n}")
    lab("L_kloop")
    a("s_cmp_lg_u32 s76, 0")
    a("s_cbranch_scc1 L_k0")
    a("s_mov_b64 s[72:73], s[8:9]")
    a(f"v_mov_b32 v{VB}, v{VVO}")
    a("s_mov_b32 s41, 0")
    lab("L_k0")
    for p in range(RH):
        K = VR + PERM[p] * 16
        for u in range(4):
            a(f"v_mfma_f32_16x16x32_bf16 v[{VS+4*u}:{VS+4*u+3}], v[{K+4*u}:{K+4*u+3}], v[{VQ}:{VQ+3}], 0")
        a("v_readlane_b32 s52, v10, s41")
        a("s_add_u32 s41, s41, 1")
        a("s_nop 2")
        for u in range(4):
            a(f"v_add_f32_dpp v{4+u}, v{VS+4*u+1}, v{VS+4*u} quad_perm:[1,1,1,1] row_mask:0xf bank_mask:0xf")
        for q_ in (2, 3):
            for u in range(4):
                a(f"v_add_f32_dpp v{4+u}, v{VS+4*u+q_}, v{4+u} quad_perm:[{q_},{q_},{q_},{q_}] row_mask:0xf bank_mask:0xf")
        a("s_mov_b64 exec, s[98:99]")
        a(f"v_max3_f32 v{VM}, v4, v5, v{VM}")
        a(f"ds_write_b128 v{VSW}, v[4:7] offset:{L_SC + p*256}")
        a(f"v_max3_f32 v{VM}, v6, v7, v{VM}")
        a("s_mov_b64 exec, s[96:97]")
        guarded(lambda: issue(K, VB, "s[72:75]"))
    a(f"v_add_u32 v{VSW}, {RH*256}, v{VSW}")
    a("s_sub_u32 s76, s76, 1")
    a("s_cbranch_scc0 L_kloop")
    a(f"ds_read_b32 v9, v{VSR} offset:{L_SC}")
    a(f"v_mov_b32_dpp v1, v{VM} quad_perm:[0,0,0,0] row_mask:0xf bank_mask:0xf")
    a(f"v_mov_b32_dpp v2, v{VM} quad_perm:[0,0,0,0] row_mask:0xf bank_mask:0xf")
    a("s_nop 1")
    a("v_permlane16_swap_b32 v1, v2")
    a("s_nop 0")
    a("v_max_f32 v1, v1, v2")
    a("v_mov_b32 v2, v1")
    a("s_nop 1")
    a("v_permlane32_swap_b32 v1, v2")
    a("s_mov_b32 s78, 1")
    a(f"v_max_f32 v{VM}, v1, v2")
    a(f"v_mul_f32 v3, s53, v{VM}")
    lab("L_vloop")
    a("s_cmp_lg_u32 s77, 0")
    a("s_cbranch_scc1 L_v0")
    a("s_mov_b64 s[72:73], s[6:7]")
    a(f"v_mov_b32 v{VB}, v{VKO}")
    a("s_mov_b32 s78, 0")
    lab("L_v0")
    for p in range(RH):
        sl = PERM[p]
        V = VR + sl * 16
        a("v_readlane_b32 s52, v10, s41")
        a("s_waitcnt lgkmcnt(0)")
        a("v_fma_f32 v4, v9, s53, -v3")
        a(f"ds_read_b32 v9, v{VSR} offset:{L_SC + (p+1)*256}")
        a("v_exp_f32 v4, v4")
        a("s_add_u32 s41, s41, 1" if sl == 1 else "s_add_u32 s41, s41, s78")
        a("v_cvt_pk_bf16_f32 v5, v4, v4")
        a(f"v_add_f32 v{VL}, v{VL}, v4")
        a("s_nop 0")
        for t in range(4):
            a(f"v_and_b32_dpp v{VA+2*t}, v5, v{VM0} quad_perm:[{t},{t},{t},{t}] row_mask:0xf bank_mask:0xf")
            a(f"v_and_b32_dpp v{VA+2*t+1}, v5, v{VM1} quad_perm:[{t},{t},{t},{t}] row_mask:0xf bank_mask:0xf")
        if p == RH - 1:
            a("s_cmp_lg_u32 s77, 0")
            a("s_cbranch_scc1 L_vw")
            a("s_waitcnt vmcnt(4)")
            lab("L_vw")
        for t in range(4):
            a(f"v_mfma_f32_16x16x16_bf16 v[{VO}:{VO+3}], v[{VA+2*t}:{VA+2*t+1}], v[{V+4*t}:{V+4*t+1}], v[{VO}:{VO+3}]")
            a(f"v_mfma_f32_16x16x16_bf16 v[{VO+4}:{VO+7}], v[{VA+2*t}:{VA+2*t+1}], v[{V+4*t+2}:{V+4*t+3}], v[{VO+4}:{VO+7}]")
        if sl >= 2:
            a("s_cmp_eq_u32 s77, 0")
            a(f"s_cbranch_scc1 L_vs{p}")
            issue(V, VVO, "s[48:51]")
            lab(f"L_vs{p}")
        elif sl == 0:
            guarded(lambda: issue(V, VB, "s[72:75]"))
        else:
            guarded(lambda: issue(V, VVO, "s[48:51]"))
        if sl == (1 if reqat == "V" else 0) and NS == NA + 1 and NS < 32:
            a("s_cmp_lg_u32 s77, 0")
            a("s_cbranch_scc1 L_vnc")
            guarded(lambda: claim(first=True))
            lab("L_vnc")
    a(f"v_add_u32 v{VSR}, {RH*256}, v{VSR}")
    a("s_sub_u32 s77, s77, 1")
    a("s_cbranch_scc0 L_vloop")
    a(f"v_add_f32_dpp v{VL}, v{VL}, v{VL} quad_perm:[1,0,3,2] row_mask:0xf bank_mask:0xf")
    a("s_waitcnt lgkmcnt(0)")
    a("s_nop 0")
    a(f"v_add_f32_dpp v{VL}, v{VL}, v{VL} quad_perm:[2,3,0,1] row_mask:0xf bank_mask:0xf")
    if warm:
        a("s_cbranch_execnz L_loop")
        a("s_mov_b32 s41, 63")
    lab("L_loop")
    snips = []
    def bump(slot):
        a("s_add_u32 s41, s41, 1")
        if NS < 32:
            a(f"s_cmp_lt_u32 s41, {NS}")
            a(f"s_cbranch_scc1 L_nc{slot}")
            claim()
            lab(f"L_nc{slot}")
    for slot in range(R):
        oth = 1 - slot
        a("v_readlane_b32 s52, v10, s41")
        a(f"s_cmp_ge_u32 s41, {NS}")
        a(f"s_cbranch_scc1 L_tk{slot}")
        a("s_nop 1")
        lab(f"L_gk{slot}")
        issueK(oth)
        if reqat == "K": bump(slot)
        lab(f"L_rk{slot}")
        sn = [f"L_tk{slot}:"]
        if warm: sn += [f"    s_cbranch_execz L_rk{slot}"]
        if NS < 32:
            sn += ["    s_lshl_b32 s35, s41, 2", f"    s_add_u32 s35, s35, {L_TK - 4 * NS}", "    v_mov_b32 v15, s35", f"    s_mov_b32 s40, {spin * 8}",
                   f"L_tp{slot}:", "    ds_read_b32 v16, v15", "    s_sub_u32 s40, s40, 1", f"    s_cbranch_scc1 L_tf{slot}", "    s_waitcnt lgkmcnt(0)",
                   "    v_readfirstlane_b32 s35, v16", "    s_nop 1", "    s_cmp_eq_u32 s35, -1", f"    s_cbranch_scc1 L_tp{slot}",
                   "    s_xor_b32 s52, s35, s55", "    s_cmp_lg_u32 s35, -2", f"    s_cbranch_scc1 L_gk{slot}", f"L_tf{slot}:"]
        sn += ["    s_mov_b32 s54, 0", "    s_waitcnt vmcnt(4)", f"    s_branch L_rk{slot}"]
        snips.append(sn)
        qk(slot)
        a("s_nop 4")
        softmax()
        a("s_cmp_lt_u32 s54, 2")
        a(f"s_cbranch_scc1 L_dv{slot}")
        issueV(oth)
        if reqat == "V": bump(slot)
        lab(f"L_rv{slot}")
        pv(slot)
        a("s_sub_u32 s54, s54, 1")
        a("s_cbranch_scc1 L_done")
        snips.append([f"L_dv{slot}:", "    s_waitcnt vmcnt(0)", f"    s_branch L_rv{slot}"])
    a("s_branch L_loop")
    for sn in snips: cur[0].extend(sn)
    lab("L_done")
    stamp(3)
    if ts: a("s_mov_b32 s94, s41")
    if ts and probe is None: a(f"v_mov_b32 v{VR}, v13")
    def poll1(k): return f"global_load_dwordx4 v[{VP1+4*k}:{VP1+4*k+3}], v{T_P1L}, s[26:27] {ldflags}"
    def poll2(k): return [f"global_load_dwordx4 v[{VP2+16*k+4*i}:{VP2+16*k+4*i+3}], v{T_F0+i}, s[26:27] {ldflags}" for i in range(4)]
    a(f"v_mov_b32 v2, v{VL}")
    a(f"v_mul_f32 v10, s53, v{VM}")
    a("s_nop 0")
    a(f"v_permlane16_swap_b32 v{VL}, v2")
    a("s_nop 0")
    a(f"v_add_f32 v11, v{VL}, v2")
    a("v_mov_b32 v2, v11")
    a(f"ds_write_b128 v{T_OW}, v[{VO}:{VO+3}] offset:{L_O}")
    a(f"ds_write_b128 v{T_OW}, v[{VO+4}:{VO+7}] offset:{L_O+16}")
    a("v_permlane32_swap_b32 v11, v2")
    a("s_nop 0")
    a("v_add_f32 v11, v11, v2")
    a(f"ds_write_b64 v{T_SW}, v[10:11] offset:{L_ST}")
    a("s_waitcnt lgkmcnt(0)")
    guard(["s_barrier"])
    a(f"ds_read_b128 v[8:11], v{T_SR} offset:{L_ST}")
    a(f"ds_read_b128 v[12:15], v{T_SR} offset:{L_ST+16}")
    for w in range(4):
        a(f"ds_read_b64 v[{24+2*w}:{25+2*w}], v{T_OR} offset:{L_O + w*2048}")
    a("v_mov_b32 v39, v17")
    a("s_waitcnt lgkmcnt(4)")
    a("v_max3_f32 v2, v8, v10, v12")
    a("v_max_f32 v2, v2, v14")
    for w in range(4):
        a(f"v_sub_f32 v{8+2*w}, v{8+2*w}, v2")
    for w in range(4):
        a(f"v_exp_f32 v{8+2*w}, v{8+2*w}")
    a("v_mul_f32 v16, v8, v9")
    a("v_fmac_f32 v16, v10, v11")
    a("v_fmac_f32 v16, v12, v13")
    a("v_fmac_f32 v16, v14, v15")
    a("s_waitcnt lgkmcnt(0)")
    a("v_rcp_f32 v5, v16")
    a("v_log_f32 v16, v16")
    a("v_mul_f32 v36, v8, v24")
    a("v_mul_f32 v37, v8, v25")
    for w in range(1, 4):
        a(f"v_fmac_f32 v36, v{8+2*w}, v{24+2*w}")
        a(f"v_fmac_f32 v37, v{8+2*w}, v{25+2*w}")
    a("v_add_f32 v38, v2, v16")
    a("v_mul_f32 v36, v36, v5")
    a("v_mul_f32 v37, v37, v5")
    if "halfP1" in skip:
        a("s_cmp_ge_u32 s42, 2")
        a("s_cbranch_scc1 L_hp1")
    guard([f"global_store_dwordx4 v{T_P1S}, v[36:39], s[26:27] {stflags}"] + ([] if ts else [poll1(0)]))
    if "halfP1" in skip:
        lab("L_hp1")
        a(f"v_and_b32 v{T_P1L}, 0xfffff7ff, v{T_P1L}")
    stamp(4)
    if ts: guard([poll1(0)])
    a(f"ds_read_b32 v{T_X}, v{T_XO} offset:{L_XR}")
    for i in range(4):
        a(f"ds_read2_b32 v[{24+2*i}:{25+2*i}], v{T_H} offset0:{2*i} offset1:{2*i+1}")
    order = list(range(16, 23)) + list(range(16))
    def rd(r): a(f"ds_read2st64_b32 v[{VW+2*r}:{VW+2*r+1}], v{T_WO} offset0:{8*r} offset1:{8*r+4}")
    def pairup(r):
        a(f"v_perm_b32 v6, v{VW+2*r+1}, v{VW+2*r}, s64")
        a(f"v_perm_b32 v{VW+2*r+1}, v{VW+2*r+1}, v{VW+2*r}, s65")
        a(f"v_mov_b32 v{VW+2*r}, v6")
    DEPTH = 7
    for n, r in enumerate(order):
        rd(r)
        if n >= DEPTH:
            a(f"s_waitcnt lgkmcnt({DEPTH})")
            pairup(order[n - DEPTH])
        if D1 == 4 and n == 12: guard([poll1(1)])
        if D1 == 4 and n == 22: guard([poll1(2)])
        if D1 == 3 and n == 17: guard([poll1(1)])
    for n in range(len(order) - DEPTH, len(order)):
        a(f"s_waitcnt lgkmcnt({len(order) - 1 - n})")
        pairup(order[n])
    a("v_mov_b32 v42, 0")
    a("v_mov_b32 v43, 0")
    for r in range(7):
        a(f"v_dot2_f32_bf16 v42, v{VD+2*r}, v{24+r}, v42")
        a(f"v_dot2_f32_bf16 v43, v{VD+2*r+1}, v{24+r}, v43")
    a("v_mov_b32 v40, 0")
    a("v_mov_b32 v41, 0")
    a("v_mov_b32 v6, 0")
    a(f"s_mov_b32 s40, {spin}")
    a("v_perm_b32 v42, v42, v17, s62")
    a("v_perm_b32 v43, v43, v17, s63")
    stamp(11)
    stubs = []
    if D1 == 1: a("s_branch L_p1chk")
    lab("L_p1poll")
    for k in range(D1):
        guard([poll1((k + D1 - 1) % D1)])
        if D1 == 1: lab("L_p1chk")
        a(f"s_waitcnt vmcnt({D1 - 1})")
        a(f"v_cmp_ne_u32 vcc, s33, v{VP1+4*k+3}")
        if ts: a("s_sub_u32 s40, s40, 1")
        a(f"s_cbranch_vccz L_p1ok{k}")
        if sleep1: a(f"s_sleep {sleep1}")
        st = [f"L_p1ok{k}:", f"    v_mov_b32 v10, v{VP1+4*k+2}", f"    v_mov_b32 v8, v{VP1+4*k}", f"    v_mov_b32 v9, v{VP1+4*k+1}"]
        stubs.append(st + (["    s_branch L_p1done"] if k else []))
    a("s_sub_u32 s40, s40, 1")
    a("s_cmp_gt_i32 s40, 0")
    a("s_cbranch_scc1 L_p1poll")
    for st in reversed(stubs): cur[0].extend(st)
    lab("L_p1done")
    stamp(5)
    if ts: a(f"s_sub_u32 s92, {spin}, s40")
    a("v_max_f32_dpp v2, v10, v10 row_ror:8 row_mask:0xf bank_mask:0xf")
    a("s_nop 1")
    for r in (4, 2, 1):
        a(f"v_max_f32_dpp v2, v2, v2 row_ror:{r} row_mask:0xf bank_mask:0xf")
        if r > 1: a("s_nop 1")
    a("v_sub_f32 v10, v10, v2")
    a("v_exp_f32 v10, v10")
    a("s_nop 0")
    a("v_mul_f32 v8, v8, v10")
    a("v_mul_f32 v9, v9, v10")
    for r in (8, 4, 2, 1):
        for v in (10, 8, 9):
            a(f"v_add_f32_dpp v{v}, v{v}, v{v} row_ror:{r} row_mask:0xf bank_mask:0xf")
    a("v_rcp_f32 v10, v10")
    a("s_nop 0")
    a("v_mul_f32 v8, v8, v10")
    a("v_mul_f32 v9, v9, v10")
    a("v_cvt_pk_bf16_f32 v8, v8, v9")
    a(f"ds_write_b32 v{T_OBW}, v8 offset:{L_OB}")
    a("s_waitcnt lgkmcnt(0)")
    guard(["s_barrier"])
    for i in range(4):
        a(f"ds_read_b128 v[{VS+4*i}:{VS+4*i+3}], v6 offset:{L_OB + 16*i}")
    for r in range(16):
        if r % 4 == 0:
            a(f"s_waitcnt lgkmcnt({3 - r//4})")
        a(f"v_dot2_f32_bf16 v40, v{VW+2*r}, v{VS+r}, v40")
        a(f"v_dot2_f32_bf16 v41, v{VW+2*r+1}, v{VS+r}, v41")
    a("s_nop 1")
    a("v_perm_b32 v40, v40, v17, s60")
    a("v_perm_b32 v41, v41, v17, s61")
    if "halfP2" in skip:
        a("s_cmp_ge_u32 s42, 2")
        a("s_cbranch_scc1 L_hp2")
    guard([f"global_store_dwordx4 v{T_P2S}, v[40:43], s[26:27] {stflags}"])
    if "halfP2" in skip:
        lab("L_hp2")
        a("s_and_b32 s35, s28, 2")
        a("s_cbranch_scc1 L_sexit")
    stamp(6)
    if c64:
        a("s_and_b32 s35, s29, 3")
        a("s_cbranch_scc1 L_sexit")
        a("v_and_b32 v3, 7, v0")
        a("v_lshlrev_b32 v3, 4, v3")
        a("s_lshl_b32 s35, s42, 7")
        a("v_lshrrev_b32 v4, 4, v0")
        a("v_lshl_add_u32 v4, v4, 2, v3")
        a("v_add_u32 v4, s35, v4")
        a("s_mov_b32 s66, 0xffffff00")
    else:
        a("s_cmp_lg_u32 s42, 0")
        a("s_cbranch_scc1 L_sexit")
    a(f"s_mov_b32 s40, {spin}")
    assert c64
    for k in range(D2 - 1):
        guard(poll2(k))
        if sleep2: a(f"s_sleep {sleep2}")
    stubs = []
    lab("L_p2poll")
    for k in range(D2):
        guard(poll2((k + D2 - 1) % D2))
        a(f"s_waitcnt vmcnt({4 * (D2 - 1)})")
        check([VP2 + 16 * k + 4 * i for i in range(4)], 2)
        if ts: a("s_sub_u32 s40, s40, 1")
        a(f"s_cbranch_vccz L_p2ok{k}")
        if sleep2: a(f"s_sleep {sleep2}")
        st = [f"L_p2ok{k}:"] + [f"    v_and_b32 v{24+i}, s66, v{VP2+16*k+i}" for i in range(16)]
        stubs.append(st + (["    s_branch L_p2done"] if k else []))
    a("s_sub_u32 s40, s40, 1")
    a("s_cmp_gt_i32 s40, 0")
    a("s_cbranch_scc1 L_p2poll")
    for st in reversed(stubs): cur[0].extend(st)
    lab("L_p2done")
    stamp(7)
    if ts: a(f"s_sub_u32 s93, {spin}, s40")
    for i in (0, 2):
        a(f"v_pk_add_f32 v[{24+i}:{25+i}], v[{24+i}:{25+i}], v[{28+i}:{29+i}]")
        a(f"v_pk_add_f32 v[{32+i}:{33+i}], v[{32+i}:{33+i}], v[{36+i}:{37+i}]")
    for i in (0, 2): a(f"v_pk_add_f32 v[{8+i}:{9+i}], v[{24+i}:{25+i}], v[{32+i}:{33+i}]")
    a("s_nop 1")
    a("v_permlane32_swap_b32 v8, v10")
    a("v_permlane32_swap_b32 v9, v11")
    a("s_nop 0")
    a("v_add_f32 v8, v8, v10")
    a("v_add_f32 v9, v9, v11")
    a("s_nop 1")
    a("v_permlane16_swap_b32 v8, v9")
    a("s_nop 0")
    a("v_add_f32 v8, v8, v9")
    a("s_nop 1")
    a("v_add_f32_dpp v8, v8, v8 row_ror:8 row_mask:0xf bank_mask:0xf")
    a(f"ds_write_b32 v4, v8 offset:{L_O}")
    a("s_waitcnt lgkmcnt(0)")
    guard(["s_barrier"])
    a("s_cmp_lg_u32 s42, 0")
    a("s_cbranch_scc1 L_sexit")
    for w in range(4): a(f"ds_read_b128 v[{24+4*w}:{27+4*w}], v3 offset:{L_O + 128*w}")
    a("s_waitcnt lgkmcnt(2)")
    for i in (0, 2): a(f"v_pk_add_f32 v[{24+i}:{25+i}], v[{24+i}:{25+i}], v[{28+i}:{29+i}]")
    a("s_waitcnt lgkmcnt(0)")
    for i in (2, 0): a(f"v_pk_add_f32 v[{32+i}:{33+i}], v[{32+i}:{33+i}], v[{36+i}:{37+i}]")
    for i in (2, 0): a(f"v_pk_add_f32 v[{8+i}:{9+i}], v[{24+i}:{25+i}], v[{32+i}:{33+i}]")
    a("v_cvt_pk_bf16_f32 v10, v10, v11")
    a("v_cvt_pk_bf16_f32 v8, v8, v9")
    a("v_and_b32 v11, 0xffff0000, v10")
    a("v_lshlrev_b32 v10, 16, v10")
    a(f"v_mul_f32 v13, {f2u(-math.log2(math.e)):#x}, v11")
    a(f"v_mul_f32 v12, {f2u(-math.log2(math.e)):#x}, v10")
    a("v_exp_f32 v13, v13")
    a("v_exp_f32 v12, v12")
    a("v_and_b32 v9, 0xffff0000, v8")
    a("v_add_f32 v13, 1.0, v13")
    a("v_add_f32 v12, 1.0, v12")
    a("v_rcp_f32 v13, v13")
    a("v_rcp_f32 v12, v12")
    a("v_lshlrev_b32 v8, 16, v8")
    a("v_mul_f32 v11, v11, v13")
    a("v_mul_f32 v10, v10, v12")
    a("v_cvt_pk_bf16_f32 v10, v10, v11")
    a(f"v_lshlrev_b32 v12, 16, v{T_X}")
    a(f"v_and_b32 v13, 0xffff0000, v{T_X}")
    a("v_and_b32 v11, 0xffff0000, v10")
    a("v_lshlrev_b32 v10, 16, v10")
    a("v_mul_f32 v9, v9, v11")
    a("v_mul_f32 v8, v8, v10")
    a("v_cvt_pk_bf16_f32 v8, v8, v9")
    a("v_and_b32 v9, 0xffff0000, v8")
    a("v_lshlrev_b32 v8, 16, v8")
    a("v_add_f32 v9, v9, v13")
    a("v_add_f32 v8, v8, v12")
    a("v_cvt_pk_bf16_f32 v8, v8, v9")
    if warm: a("s_cbranch_execz L_end")
    a("s_mov_b64 exec, 0xff" if c64 else "s_mov_b64 exec, 3")
    a(f"global_store_dword v{T_XO}, v8, s[22:23] {outflags}")
    a("s_cmp_lg_u32 s2, 0")
    a("s_cbranch_scc1 L_sexit")
    a("s_mov_b64 exec, 1")
    a(f"global_store_dword v6, v17, s[26:27] {outflags}")
    lab("L_sexit")
    if dbg == "class":
        a("s_getreg_b32 s35, hwreg(HW_REG_XCC_ID)")
        a("s_bfe_u32 s35, s35, 0x10002")
        a("s_lshr_b32 s36, s32, 3")
        a("s_cmp_lg_u32 s35, s36")
        a("s_cbranch_scc1 L_nodbg")
        a("s_mov_b64 exec, 1")
        a("s_lshl_b32 s36, s38, 2")
        a("v_mov_b32 v1, s36")
        a("v_mov_b32 v2, s41")
        a("global_atomic_add v1, v2, s[24:25]")
        lab("L_nodbg")
    if dbg == "ptr":
        a("s_mov_b64 exec, 1")
        a("v_mov_b32 v1, 0")
        for i, r in enumerate((44, 45, 48, 49, 26, 27)):
            a(f"v_mov_b32 v2, s{r}")
            a(f"global_store_dword v1, v2, s[24:25] offset:{4*i}")
    stamp(8)
    if ts and probe is None:
        a("s_mov_b64 exec, -1")
        a("s_lshl_b32 s70, s2, 2")
        a("s_add_u32 s70, s70, s42")
        a("s_lshl_b32 s70, s70, 8")
        a(f"s_add_u32 s70, s70, {WS_TT}")
        a("v_lshl_add_u32 v1, v0, 2, s70")
        a(f"global_store_dword v1, v{VR}, s[26:27]")
    dump_stamps("S")
    lab("L_end")
    a("s_endpgm")

    section("X2")
    lab("L_x2")
    a("v_lshrrev_b32 v46, 4, v0")
    a("v_bfe_u32 v7, v0, 2, 2")
    a("v_and_b32 v5, 3, v0")
    a("v_lshlrev_b32 v44, 10, v46")
    a("v_lshl_add_u32 v44, v7, 7, v44")
    a("v_lshl_add_u32 v44, v5, 3, v44")
    a("v_and_b32 v45, 1, v0")
    a("v_lshlrev_b32 v4, 10, v45")
    a("v_lshl_add_u32 v4, v46, 4, v4")
    a("v_bfe_u32 v47, v0, 1, 3")
    a(f"v_add_u32 v4, {L_XN}, v4")
    a("s_lshr_b32 s35, s39, 20")
    a("s_lshl_b32 s36, s35, 8")
    a("v_add_u32 v5, s36, v4")
    a(f"v_mov_b32 v34, {L_Z}")
    for k in range(4):
        a(f"v_cmp_eq_u32 s[{44+2*k}:{45+2*k}], {k}, v47")
    a("s_nop 0")
    for k in range(4):
        a(f"v_cndmask_b32 v{36+k}, v34, v5, s[{44+2*k}:{45+2*k}]")
    a("s_bfe_u32 s36, s39, 0x3000a")
    a("s_lshl_b32 s36, s36, 14")
    a("s_lshl_b32 s37, s35, 11")
    a("s_add_u32 s36, s36, s37")
    a("s_bfe_u32 s37, s39, 0x30007")
    a("s_lshl_b32 s37, s37, 8")
    a("s_add_u32 s36, s36, s37")
    a(f"s_add_u32 s36, s36, {WS_QP}")
    a("v_lshl_add_u32 v5, v45, 13, s36")
    a("v_lshl_add_u32 v5, v47, 6, v5")
    a("v_lshl_add_u32 v5, v46, 4, v5")
    if ts: a("s_memrealtime s[72:73]")
    if lnfirst is False: a("s_barrier")
    a("s_waitcnt vmcnt(1)")
    if NS < 32:
        a("s_cmp_eq_u32 s67, 0")
        a("s_cbranch_scc1 L_xok")
    a("s_waitcnt vmcnt(0)")
    lab("L_xok")
    stamp(1)
    if ts: a("s_mov_b32 s89, s72")
    a(f"ds_write_b128 v1, v[8:11] offset:{L_XR}")
    a(f"ds_write_b128 v1, v[12:15] offset:{L_XR+16}")
    for i in range(8):
        a(f"v_lshlrev_b32 v{16+2*i}, 16, v{8+i}")
        a(f"v_and_b32 v{17+2*i}, 0xffff0000, v{8+i}")
    def red32(v, t):
        a("s_nop 1")
        for r in (8, 4, 2, 1):
            a(f"v_add_f32_dpp {v}, {v}, {v} row_ror:{r} row_mask:0xf bank_mask:0xf")
            a("s_nop 1")
        a(f"v_mov_b32 {t}, {v}")
        a("s_nop 1")
        a(f"v_permlane16_swap_b32 {v}, {t}")
        a("s_nop 0")
        a(f"v_add_f32 {v}, {v}, {t}")
    a("v_add_f32 v6, v16, v17")
    for i in range(2, 16):
        a(f"v_add_f32 v6, v6, v{16+i}")
    red32("v6", "v7")
    a(f"v_mul_f32 v6, {f2u(1.0/512):#x}, v6")
    a("v_sub_f32 v32, v16, v6")
    a("v_mul_f32 v33, v32, v32")
    for i in range(1, 16):
        a(f"v_sub_f32 v32, v{16+i}, v6")
        a("v_fmac_f32 v33, v32, v32")
    red32("v33", "v7")
    a(f"v_mul_f32 v33, {f2u(1.0/512):#x}, v33")
    a("v_cvt_pk_bf16_f32 v6, v6, v33")
    a("v_and_b32 v33, 0xffff0000, v6")
    a("v_lshlrev_b32 v6, 16, v6")
    a(f"v_add_f32 v33, {f2u(1e-5):#x}, v33")
    a("v_cvt_pk_bf16_f32 v33, v33, v33")
    a("v_lshlrev_b32 v33, 16, v33")
    a("v_sqrt_f32 v33, v33")
    a("s_nop 0")
    a("v_cvt_pk_bf16_f32 v33, v33, v33")
    a("v_lshlrev_b32 v33, 16, v33")
    a("v_rcp_f32 v33, v33")
    for i in range(8):
        a(f"v_sub_f32 v{16+2*i}, v{16+2*i}, v6")
        a(f"v_sub_f32 v{17+2*i}, v{17+2*i}, v6")
        a(f"v_cvt_pk_bf16_f32 v{8+i}, v{16+2*i}, v{17+2*i}")
        a(f"v_lshlrev_b32 v{16+2*i}, 16, v{8+i}")
        a(f"v_and_b32 v{17+2*i}, 0xffff0000, v{8+i}")
        a(f"v_mul_f32 v{16+2*i}, v{16+2*i}, v33")
        a(f"v_mul_f32 v{17+2*i}, v{17+2*i}, v33")
        a(f"v_cvt_pk_bf16_f32 v{8+i}, v{16+2*i}, v{17+2*i}")
    a(f"ds_write_b128 v1, v[8:11] offset:{L_XN}")
    a(f"ds_write_b128 v1, v[12:15] offset:{L_XN+16}")
    def gemv(wbase, xsel):
        for ks in range(4):
            o = (ks & 1) * 32
            for blk in range(4):
                xr, xo = xsel(ks, blk)
                a(f"ds_read_b128 v[{48+o+4*blk}:{51+o+4*blk}], v{xr} offset:{xo}")
                a(f"ds_read_b64_tr_b16 v[{64+o+4*blk}:{65+o+4*blk}], v44 offset:{wbase + ks*4096 + blk*32}")
                a(f"ds_read_b64_tr_b16 v[{66+o+4*blk}:{67+o+4*blk}], v44 offset:{wbase + ks*4096 + blk*32 + 512}")
            for blk in range(4):
                a(f"s_waitcnt lgkmcnt({9-3*blk})")
                c = "0" if (ks == 0 and blk == 0) else "v[8:11]"
                a(f"v_mfma_f32_16x16x32_bf16 v[8:11], v[{64+o+4*blk}:{67+o+4*blk}], v[{48+o+4*blk}:{51+o+4*blk}], {c}")
    a("s_waitcnt lgkmcnt(0)")
    a(f"s_add_u32 s33, s33, {PHI:#x}")
    tagregs()
    a("v_mov_b32 v32, s33")
    a("v_mov_b32 v33, 1")
    if lnfirst: a("s_barrier")
    stamp(2)
    gemv(L_W0, lambda ks, blk: (36 + blk, ks * 64))
    a("s_mov_b32 s36, 0x00ff00ff")
    a("s_mov_b32 s37, 0x00ff00ff")
    a("s_lshl_b32 s39, s30, 14")
    a("s_lshl_b32 s40, s31, 13")
    a("s_add_u32 s39, s39, s40")
    a(f"s_add_u32 s39, s39, {WS_QP + 4096}")
    a("v_lshl_add_u32 v1, v0, 4, s39")
    a(f"s_mov_b32 s40, {0 if 'qwait' in skip else spin}")
    embed(8, 32)
    a("s_mov_b64 exec, s[36:37]")
    a("s_waitcnt vmcnt(0)")
    if "qst" not in skip: a(f"global_store_dwordx4 v5, v[8:11], s[26:27] {qstflags}")
    a("s_mov_b64 exec, -1")
    stamp(3)
    def ffn_part():
        if "ffn" in skip: a("s_branch L_noffn")
        a("s_cmp_ge_u32 s29, 28")
        a("s_cbranch_scc1 L_noffn")
        a("s_lshl_b32 s36, s28, 7")
        a("v_add_u32 v5, s36, v4")
        for k in range(4):
            a(f"v_cndmask_b32 v{36+k}, v34, v5, s[{44+2*k}:{45+2*k}]")
        for k in range(4):
            a(f"v_cmp_eq_u32 s[{44+2*k}:{45+2*k}], {4+k}, v47")
        a("s_nop 0")
        for k in range(4):
            a(f"v_cndmask_b32 v{40+k}, v34, v5, s[{44+2*k}:{45+2*k}]")
        a("s_mul_i32 s36, s28, 7168")
        a("s_lshl_b32 s37, s29, 8")
        a("s_add_u32 s36, s36, s37")
        a(f"s_add_u32 s36, s36, {WS_FP}")
        a("v_bfe_u32 v5, v0, 3, 1")
        a("v_lshl_add_u32 v5, v45, 1, v5")
        a(f"v_mul_u32_u24 v5, {8*7168}, v5")
        a("v_bfe_u32 v2, v0, 1, 2")
        a("v_lshl_add_u32 v2, v2, 6, v5")
        a("v_lshl_add_u32 v2, v46, 4, v2")
        a("v_add_u32 v2, s36, v2")
        a("v_and_b32 v5, 12, v0")
        a(f"s_mov_b32 s39, {spin * 8}")
        lab("L_rdy")
        a(f"ds_read_b32 v6, v5 offset:{L_RDY}")
        a("s_waitcnt lgkmcnt(0)")
        a("v_cmp_eq_u32 vcc, 0, v6")
        a("s_cbranch_vccz L_rdy_done")
        a("s_sleep 1")
        a("s_sub_u32 s39, s39, 1")
        a("s_cbranch_scc0 L_rdy")
        lab("L_rdy_done")
        gemv(L_W1, lambda ks, blk: (36 + (ks >> 1) * 4 + blk, (ks & 1) * 64))
        a("s_nop 7")
        embed(8, 32)
        if "fst" not in skip: a(f"global_store_dwordx4 v2, v[8:11], s[26:27] {qstflags}")
        lab("L_noffn")
        stamp(4)
    if qafter: ffn_part()
    for i in range(qdelay): a("s_sleep 32")
    stamp(7)
    lab("L_qpoll")
    for i in range(8):
        if "qld" not in skip: a(f"global_load_dwordx4 v[{48+4*i}:{51+4*i}], v1, s[26:27] offset:{i*1024-4096} {qldflags}")
    a("s_waitcnt vmcnt(0)")
    check([48 + 4 * i for i in range(8)], 6)
    pollend("L_qpoll")
    for i in range(32):
        a(f"v_and_b32 v{48+i}, 0xffffff00, v{48+i}")
    for i in range(8):
        a(f"v_add_f32 v{48+i}, v{48+i}, v{56+i}")
        a(f"v_add_f32 v{64+i}, v{64+i}, v{72+i}")
    for i in range(8):
        a(f"v_add_f32 v{48+i}, v{48+i}, v{64+i}")
    for i in range(4):
        a(f"v_cvt_pk_bf16_f32 v{48+i}, v{48+2*i}, v{49+2*i}")
    a("v_lshlrev_b32 v1, 3, v0")
    a("v_mov_b32 v6, 0")
    if NS < 32:
        a("v_mov_b32 v7, -1")
        a("v_lshlrev_b32 v5, 2, v0")
        a(f"v_add_u32 v5, {L_TK}, v5")
        for i in range(3): a(f"ds_write_b32 v5, v7 offset:{256*i}")
    a(f"ds_write_b64 v1, v[48:49] offset:{L_Q}")
    a(f"ds_write_b64 v1, v[50:51] offset:{L_Q+512}")
    a("s_waitcnt lgkmcnt(0)")
    a(f"ds_write_b64 v6, v[32:33] offset:{L_TAG}")
    stamp(5)
    a("s_setprio 0")
    if not qafter: ffn_part()
    a("s_mul_i32 s36, s34, 56")
    a("s_andn2_b32 s36, s36, 15")
    a(f"s_mul_i32 s37, s31, {16*7168}")
    a("s_add_u32 s36, s36, s37")
    a(f"s_add_u32 s36, s36, {WS_FP}")
    a("v_lshrrev_b32 v1, 2, v0")
    a("v_mul_u32_u24 v1, 7168, v1")
    a("v_and_b32 v3, 3, v0")
    a("v_lshl_add_u32 v1, v3, 4, v1")
    a("v_add_u32 v1, s36, v1")
    a(f"s_mov_b32 s40, {0 if ('ffn' in skip or 'hwait' in skip) else spin}")
    for i in range(hdelay): a("s_sleep 32")
    lab("L_hpoll")
    if "hld" not in skip: a("global_load_dwordx4 v[8:11], v1, s[26:27] sc1")
    a("s_waitcnt vmcnt(0)")
    check([8], 2)
    pollend("L_hpoll")
    for i in range(4): a(f"v_and_b32 v{8+i}, 0xffffff00, v{8+i}")
    for r in (4, 8):
        for i in range(4):
            a(f"v_add_f32_dpp v{8+i}, v{8+i}, v{8+i} row_ror:{r} row_mask:0xf bank_mask:0xf")
    for i in range(4): a(f"v_mov_b32 v{12+i}, v{8+i}")
    for i in range(4): a(f"v_permlane16_swap_b32 v{8+i}, v{12+i}")
    for i in range(4): a(f"v_add_f32 v{8+i}, v{8+i}, v{12+i}")
    a("v_cvt_pk_bf16_f32 v8, v8, v9")
    a("v_cvt_pk_bf16_f32 v9, v10, v11")
    a("v_mov_b32 v10, v8")
    a("v_mov_b32 v11, v9")
    a("s_nop 1")
    a("v_permlane32_swap_b32 v8, v10")
    a("v_permlane32_swap_b32 v9, v11")
    for p in range(2):
        a(f"v_lshlrev_b32 v12, 16, v{8+p}")
        a(f"v_and_b32 v13, 0xffff0000, v{8+p}")
        a(f"v_lshlrev_b32 v14, 16, v{10+p}")
        a(f"v_and_b32 v15, 0xffff0000, v{10+p}")
        a("v_max_f32 v12, 0, v12")
        a("v_max_f32 v13, 0, v13")
        a("v_mul_f32 v12, v12, v14")
        a("v_mul_f32 v13, v13, v15")
        a(f"v_cvt_pk_bf16_f32 v{16+p}, v12, v13")
    a("v_lshlrev_b32 v3, 3, v3")
    a(f"ds_write_b64 v3, v[16:17] offset:{L_H}")
    a("s_waitcnt vmcnt(0) lgkmcnt(0)")
    stamp(6)
    if NS < 32:
        NR = 16 // pools
        a("s_lshr_b32 s37, s32, 3" if pools == 2 else "s_mov_b32 s37, 0")
        scalar_part("s55", pm, {"g": ("s38", 4)})
        if pools == 2:
            a("s_bfe_i32 s35, s32, 0x10003")
            a(f"s_and_b32 s35, s35, {mask_of('r3'):#x}")
            a("s_xor_b32 s55, s55, s35")
        for hi in range(2):
            a(f"v_add_u32 v1, {64*hi}, v0")
            if torder == "n":
                a(f"v_mul_u32_u24 v2, {(65536 + KP - 1) // KP}, v1")
                a("v_lshrrev_b32 v2, 16, v2")
                a(f"v_mul_u32_u24 v3, {KP}, v2")
                a("v_sub_u32 v3, v1, v3")
            else:
                a(f"v_and_b32 v2, {NR - 1}, v1")
                a(f"v_lshrrev_b32 v3, {NR.bit_length() - 1}, v1")
            a(f"v_add_u32 v3, {NS}, v3")
            a(f"v_mov_b32 v{20+hi}, s55")
            for pre, reg, nb in (("n", 3, 5), ("r", 2, NR.bit_length() - 1)):
                for i in range(nb):
                    a(f"v_bfe_i32 v7, v{reg}, {i}, 1")
                    a(f"v_and_b32 v7, {mask_of(pre + str(i)):#x}, v7")
                    a(f"v_xor_b32 v{20+hi}, v{20+hi}, v7")
        a(f"s_mul_i32 s36, s38, {pools}")
        a("s_add_u32 s36, s36, s37")
        a(f"s_mul_i32 s36, s36, {ctstride}")
        a(f"s_add_u32 s36, s36, {WS_CT}")
        a("s_add_u32 s68, s26, s36")
        a("s_addc_u32 s69, s27, 0")
        if pf is not None:
            a("v_bfe_u32 v1, v0, 1, 4")
            a("v_and_b32 v2, 1, v0")
            a("s_lshl_b32 s36, s38, 16")
            a("s_lshl_b32 s37, s32, 8")
            a("s_add_u32 s36, s36, s37")
            a(f"s_add_u32 s36, s36, {WS_P1}")
            a("v_lshl_add_u32 v22, v1, 12, s36")
            a("v_lshl_add_u32 v22, v2, 7, v22")
            a("v_and_b32 v1, 31, v0")
            a("s_and_b32 s36, s28, 3")
            a("s_lshl_b32 s36, s36, 3")
            a("s_lshr_b32 s37, s29, 2")
            a("s_add_u32 s36, s36, s37")
            a("v_add_u32 v2, s36, v1")
            a("v_and_b32 v2, 31, v2")
            a("s_lshr_b32 s36, s28, 2")
            a("s_lshl_b32 s36, s36, 2")
            a("s_and_b32 s37, s29, 3")
            a("s_add_u32 s36, s36, s37")
            a("s_lshl_b32 s36, s36, 17")
            a(f"s_add_u32 s36, s36, {WS_P2}")
            a("v_lshl_add_u32 v3, v1, 12, s36")
            a("v_lshl_add_u32 v3, v2, 7, v3")
            a("v_cmp_lt_u32 vcc, 31, v0")
            a("s_nop 1")
            a("v_cndmask_b32 v22, v22, v3, vcc")
        def prefetch():
            if pfmask != 3: a(f"s_mov_b32 exec_{'hi' if pfmask == 1 else 'lo'}, 0")
            a(f"global_load_dword v23, v22, s[26:27] {pf}")
            a("s_mov_b64 exec, -1")
        if pf is not None and pfat == "early": prefetch()
        a("s_mov_b32 s41, 0")
        a("v_mov_b32 v6, 0")
        a(f"v_mov_b32 v5, {L_TK}")
        a(f"s_mov_b32 s40, {spin * 8}")
        a("s_setprio 1")
        lab("L_disp")
        a(f"ds_read_b128 v[8:11], v6 offset:{L_REQ}")
        a("s_sub_u32 s40, s40, 1")
        a("s_cbranch_scc1 L_disp_done")
        a("s_waitcnt lgkmcnt(0)")
        a(f"v_{'min' if reqmin else 'max'}3_u32 v8, v8, v9, v10")
        a(f"v_{'min' if reqmin else 'max'}_u32 v8, v8, v11")
        a("v_cmp_lt_u32 vcc, s41, v8")
        a("s_cbranch_vccnz L_serve")
        a("s_sleep 1")
        a("s_branch L_disp")
        lab("L_serve")
        a("s_mov_b32 s67, 1")
        a("s_atomic_add s67, s[68:69], 0 glc")
        if pf is not None and pfat == "serve":
            a("s_cmp_lg_u32 s41, 0")
            a("s_cbranch_scc1 L_nopf")
            prefetch()
            lab("L_nopf")
        a("s_add_u32 s41, s41, 1")
        a("s_waitcnt lgkmcnt(0)")
        a("v_readlane_b32 s36, v20, s67")
        a("v_readlane_b32 s37, v21, s67")
        a("s_bitcmp1_b32 s67, 6")
        a("s_nop 0")
        a("s_cselect_b32 s36, s37, s36")
        if rush:
            a(f"s_cmp_ge_u32 s67, {max(0, POOL - rush)}")
            a("s_cselect_b32 s37, 1, 0")
            a("s_or_b32 s36, s36, s37")
        a(f"s_cmp_lt_u32 s67, {POOL}")
        a("s_cselect_b32 s36, s36, -2")
        a("v_mov_b32 v7, s36")
        a("ds_write_b32 v5, v7")
        a("v_add_u32 v5, 4, v5")
        a("s_cbranch_scc1 L_disp")
        lab("L_disp_done")
        a("s_waitcnt lgkmcnt(0)")
    a("s_barrier")
    dump_stamps("X")
    a("s_endpgm")

    L = [HEADER.rstrip("\n"), f"; @launch grid=(256,1,1) block=({NW*64},1,1) lds={L_END}",
         '.amdgcn_target "amdgcn-amd-amdhsa--gfx950"', ".text", f".globl {KN}", ".p2align 8", f".type {KN},@function"]
    for name in layout.split(): L.extend(SEC[name])
    L.append("L_codeend:")
    nv = VT + 16
    L.append('.section .rodata,"a"')
    L.append(".p2align 6")
    L.append(f".amdhsa_kernel {KN}")
    L.append(f"  .amdhsa_next_free_vgpr {nv}")
    L.append("  .amdhsa_next_free_sgpr 102")
    L.append(f"  .amdhsa_accum_offset {nv}")
    L.append("  .amdhsa_group_segment_fixed_size 0")
    L.append("  .amdhsa_kernarg_size 96")
    L.append("  .amdhsa_user_sgpr_count 2")
    L.append("  .amdhsa_user_sgpr_kernarg_segment_ptr 1")
    L.append("  .amdhsa_system_sgpr_workgroup_id_x 1")
    L.append("  .amdhsa_float_denorm_mode_32 3")
    L.append(".end_amdhsa_kernel")
    return "\n".join(L) + "\n"

if __name__ == "__main__":
    import json
    cfg = json.loads(sys.argv[1]) if len(sys.argv) > 1 else {}
    sys.stdout.write(gen(**cfg))
```

```python
import struct, sys, math

KN = "recurrent_scan__gqa_block_cached__glu_gated_reglu__decode_kernel"
HEADER = open("recurrent_scan__gqa_block_cached__glu_gated_reglu__decode.s.ref").read().split("; @launch")[0]

def f2u(x):
    return struct.unpack("<I", struct.pack("<f", x))[0]

WS_EPOCH = 0
WS_QP = 0x10000
WS_FP = 0x40000
WS_CT = 0x80000
WS_P1 = 0x100000
WS_P2 = 0x200000
WS_TS = 0x400000
WS_TT = 0x500000
L_SC = 0
L_W0 = 0
L_W1 = 16384
L_XN = 32768
L_XR = 34816
L_Q = 36864
L_Z = 37888
L_TAG = 38144
L_RDY = 38160
L_REQ = 38176
L_H = 38400
L_ST = 38464
L_OB = 38592
L_TK = 38656
L_O = 39424
L_WO = 47616
L_END = L_WO + 46 * 1024
PHI = 0x9E3779B9

ROLES = [('X', slice(0, 1)), ('S', slice(1, 5))]

def gen(RH=9, NA=27, NS=29, mate=False, vtouch=False, barpos=1, NG=8, tlb=2, c64=True, rush=0, reqmin=True, D1=1, D2=1, pf="sc1", pfmask=2, pfat="serve", N=4, fine=1, NP=8, NK=4, fineK=2, NM=4, fineM=4, kvflags="nt", wflags="nt", woflags="nt", outflags="", stflags="sc1", ldflags="sc1",
        atflags="sc0 sc1", sleep1=0, sleep2=0, xinfl=7, pmap="w0 w1 n0^r3 n2 n1 n3 n4 r0 r1 r2 r3", torder="n", reqat="K", ctstride=1280, skip=(), bar0=True, warm=True, l2pf=True, pools=1, early=False, xbar="post", i1bit=15, dbg=None, dmaun=4, layout="E X1 S W X2", qafter=True, wstub=False, lnfirst=False, NW0=8, qdelay=0, hdelay=0, qstflags="sc1", qldflags="sc1", ts=False, spin=1 << 20, probe=None):
    R = 2
    KP = 32 - NS
    POOL = 16 // pools * KP
    assert POOL <= 128 and pools in (1, 2) and N <= 6 and NA % RH == 0 and NA >= 2 * RH and RH >= 8 and NS >= NA + 1 and qafter and NM <= 4
    SEC = {}
    cur = [None]
    def section(name):
        cur[0] = SEC.setdefault(name, [])
    if probe is not None: ts = True
    def a(s): cur[0].append("    " + s)
    def lab(s): cur[0].append(s + ":")
    NW = 6 if warm else 5
    skn = [0]
    def guard(lines):
        if not warm:
            for x in lines: a(x)
            return
        skn[0] += 1
        a(f"s_cbranch_execz L_g{skn[0]}")
        for x in lines: a(x)
        lab(f"L_g{skn[0]}")
    def stamp(idx):
        if ts:
            a("s_waitcnt lgkmcnt(0)")
            a("s_memrealtime s[70:71]")
            a("s_waitcnt lgkmcnt(0)")
            a(f"s_mov_b32 s{80+idx}, s70")
    pc = [0]
    def dump_stamps(role=None):
        if probe is not None:
            prole, pidx = probe[:2]
            if role == prole:
                pc[0] += 1
                if len(probe) > 2:
                    a(f"s_and_b32 s73, s2, {probe[2]}")
                    a(f"s_cmp_lg_u32 s73, {probe[3]}")
                    a(f"s_cbranch_scc1 L_pe{pc[0]}")
                a(f"s_cmp_eq_u32 s{80+pidx}, 0")
                a(f"s_cbranch_scc1 L_pe{pc[0]}")
                a(f"s_add_u32 s72, s{80+pidx}, 10000")
                lab(f"L_pl{pc[0]}")
                a("s_memrealtime s[70:71]")
                a("s_waitcnt lgkmcnt(0)")
                a("s_sub_u32 s73, s70, s72")
                a("s_cmp_lt_i32 s73, 0")
                a(f"s_cbranch_scc1 L_pl{pc[0]}")
                lab(f"L_pe{pc[0]}")
            return
        if ts:
            a("s_mov_b64 exec, 1")
            a("s_mul_i32 s70, s2, 5")
            a("s_add_u32 s70, s70, s3")
            a("s_lshl_b32 s70, s70, 6")
            a(f"s_add_u32 s70, s70, {WS_TS}")
            a("v_mov_b32 v1, s70")
            a("s_getreg_b32 s95, hwreg(HW_REG_XCC_ID)")
            for q in range(4):
                for i in range(4):
                    a(f"v_mov_b32 v{4+i}, s{80+q*4+i}")
                a(f"global_store_dwordx4 v1, v[4:7], s[26:27] offset:{q*16}")
                a("s_nop 1")
    def tagregs():
        a("s_mov_b32 s56, s33")
        a("s_lshr_b32 s57, s33, 8")
        a("s_lshr_b32 s58, s33, 16")
        a("s_lshr_b32 s59, s33, 24")
        for i in range(4): a(f"s_mov_b32 s{60+i}, {0x07060500 + i:#x}")
    def embed(v, vtag):
        for i in range(4): a(f"v_perm_b32 v{v+i}, v{v+i}, v{vtag}, s{60+i}")
    def check(regs, acc):
        first = True
        for r in regs:
            for i in range(4):
                if first:
                    a(f"v_xor_b32 v{acc}, s{56+i}, v{r+i}"); first = False
                else:
                    a(f"v_bitop3_b32 v{acc}, v{acc}, v{r+i}, s{56+i} bitop3:0xf6")
        a(f"v_and_b32 v{acc}, 0xff, v{acc}")
        a(f"v_cmp_ne_u32 vcc, 0, v{acc}")
    def pollend(name):
        a("s_sub_u32 s40, s40, 1")
        a(f"s_cbranch_scc1 {name}_done")
        a(f"s_cbranch_vccnz {name}")
        lab(f"{name}_done")

    VKO, VVO, VM, VL, VM0, VM1 = 18, 19, 20, 21, 22, 23
    VA, VQ, VO, VS, VR = 24, 32, 36, 44, 60
    VT = VR + 16 * RH
    T_OW, T_SW, T_OR, T_SR, T_P1S, T_P1L, T_OBW, T_P2S, T_WO, T_H, T_F0, T_XO, T_X = [VT + i for i in (0, 1, 2, 3, 4, 5, 6, 7, 8, 9, 10, 14, 15)]
    VW = VR + 16
    VD = VW + 32
    VP1 = VR + 64
    VP2 = VR + 80
    assert D1 <= 4 and VP2 + 16 * D2 <= VT
    VB, VSW, VSR = 11, 12, 16
    def decode():
        a("s_and_b32 s28, s2, 7")
        a("s_lshr_b32 s29, s2, 3")
        a("s_bfe_u32 s30, s2, 0x30004")
        a("s_lshr_b32 s31, s2, 7")
        a("s_and_b32 s32, s2, 15")
        a("s_and_b32 s34, s2, 127")
        a("s_lshr_b32 s38, s2, 4")
    def srds():
        a("s_mov_b64 s[44:45], s[6:7]"); a("s_brev_b32 s46, 16"); a("s_mov_b32 s47, 0x20000")
        a("s_mov_b64 s[48:49], s[8:9]"); a("s_brev_b32 s50, 16"); a("s_mov_b32 s51, 0x20000")
        a("s_mov_b64 s[72:73], s[6:7]"); a("s_brev_b32 s74, 16"); a("s_mov_b32 s75, 0x20000")
    def zero_stamps():
        if ts:
            a("s_mov_b32 s80, s70")
            for i in range(1, 16): a(f"s_mov_b32 s{80+i}, 0")
    section("X1")
    cur[0].append(".p2align 8")
    lab("L_xwave")
    a("v_lshlrev_b32 v1, 5, v0")
    a("v_mov_b32 v6, 0")
    a("v_mov_b32 v7, 0")
    a("v_lshlrev_b32 v5, 3, v0")
    a(f"ds_write_b64 v5, v[6:7] offset:{L_Z}")
    a("s_waitcnt lgkmcnt(0)")
    a("global_load_dwordx4 v[8:11], v1, s[4:5]")
    a("global_load_dwordx4 v[12:15], v1, s[4:5] offset:16")
    a("s_load_dword s33, s[26:27], 0")
    a("s_setprio 2")
    zero_stamps()
    decode()
    if NS < 32:
        a(f"s_and_b32 s67, s39, {0x300380 & ~((2 * pools - 1) << 7):#x}")
        a("s_cbranch_scc1 L_nozero")
        a("s_bfe_u32 s36, s39, 0x3000a")
        a("s_bfe_u32 s37, s39, 0x10007")
        a("s_lshl3_add_u32 s36, s37, s36")
        if pools == 2:
            a("s_bfe_u32 s37, s39, 0x10008")
            a("s_lshl1_add_u32 s36, s36, s37")
        a(f"s_mul_i32 s36, s36, {ctstride}")
        a(f"s_add_u32 s36, s36, {WS_CT}")
        a("v_lshl_add_u32 v5, v0, 2, s36")
        a("global_store_dword v5, v6, s[26:27] sc1")
        lab("L_nozero")
    if "X1 X2" not in layout: a("s_branch L_x2")
    if warm and wstub:
        lab("L_wstub")
        a("s_branch L_wwave")

    section("W")
    if warm:
        lab("L_wwave")
        if l2pf:
            a("s_getpc_b64 s[68:69]")
            lab("L_wpc")
            a(f"s_sub_u32 s68, s68, L_wpc-{KN}")
            a("s_subb_u32 s69, s69, 0")
            a("v_lshlrev_b32 v7, 7, v0")
            a("v_add_u32 v8, 8192, v7")
            a("v_min_u32 v8, L_codeend-" + KN + "-4, v8")
            a("global_load_dword v9, v7, s[68:69]")
            a("global_load_dword v9, v8, s[68:69]")
        a("s_waitcnt lgkmcnt(0)")
        if tlb:
            a("s_and_b32 s28, s2, 7")
            a("s_and_b32 s34, s2, 127")
            a("v_mov_b32 v2, 0")
            a("s_mov_b64 exec, 1")
            a(f"s_mul_i32 s36, s28, {64*3584}")
            a("v_mov_b32 v3, s36")
            a(f"global_load_dword v9, v3, s[16:17] {wflags}")
            a(f"global_load_dword v9, v3, s[18:19] {wflags}")
            a(f"s_mul_i32 s36, s34, {14*1024}")
            a("v_mov_b32 v3, s36")
            a(f"global_load_dword v9, v3, s[20:21] {wflags}")
            a("s_lshl_b32 s36, s2, 19")
            a("v_mov_b32 v3, s36")
            a(f"global_load_dword v9, v3, s[6:7] {kvflags}")
            a(f"global_load_dword v9, v3, s[8:9] {kvflags}")
            a(f"global_load_dword v9, v2, s[26:27] offset:1024 {kvflags}")
            if tlb > 1:
                a("s_lshl_b32 s36, s2, 12")
                a(f"s_add_u32 s36, s36, {WS_P1}")
                a("v_mov_b32 v3, s36")
                a(f"global_load_dword v9, v3, s[26:27] {kvflags}")
                a(f"v_add_u32 v3, {WS_P2 - WS_P1}, v3")
                a(f"global_load_dword v9, v3, s[26:27] {kvflags}")
                a("v_xor_b32 v3, 0x80000, v3")
                a(f"global_load_dword v9, v3, s[26:27] {kvflags}")
            if tlb > 2:
                a(f"global_load_dword v9, v2, s[22:23] {kvflags}")
            a("s_mov_b64 exec, -1")
        a("s_barrier")
        srds()
        for r in [6, 14, VKO, VVO, VB] + list(range(VT, VT + 16)): a(f"v_mov_b32 v{r}, 0")
        a("s_mov_b64 exec, 0")
        a("s_mov_b32 s42, 0")
        a("s_mov_b32 s54, 1")
        a("s_mov_b32 s41, 0")
        a("s_mov_b32 s33, 0")
        a("s_mov_b32 s29, 0")
        a("s_mov_b32 s76, 0")
        a("s_mov_b32 s77, 0")
        a("s_mov_b64 s[96:97], 0")
        a("s_mov_b64 s[98:99], 0")
        a("s_branch L_kloop")

    section("E")
    lab(KN)
    a("s_load_dwordx16 s[4:19], s[0:1], 0")
    a("s_load_dwordx8 s[20:27], s[0:1], 64")
    if ts: a("s_memrealtime s[70:71]")
    a("v_lshrrev_b32 v1, 6, v0")
    a("s_cmpk_ge_u32 s2, 256")
    a("s_cbranch_scc1 L_end")
    a("v_readfirstlane_b32 s3, v1")
    a("v_and_b32 v0, 63, v0")
    a("s_mul_i32 s39, s2, 0x81010")
    a("s_and_b32 s39, s39, 0x301f80")
    a("s_sub_u32 s42, s3, 1")
    a("s_cbranch_scc1 L_xwave")
    if warm:
        a("s_cmp_eq_u32 s3, 5")
        a("s_cbranch_scc1 L_wstub" if wstub else "s_cbranch_scc1 L_wwave")
    pm = [set(x.split("^")) for x in pmap.split()]
    assert len(pm) == 11
    PB = [b for b in range(11, 23) if b != i1bit]
    def mask_of(sym, m=pm): return sum(1 << PB[p] for p in range(11) if sym in m[p])
    def scalar_part(dst, m, srcs):
        a(f"s_lshl_b32 {dst}, s38, 23")
        for pre, (reg, nb) in srcs.items():
            masks = [mask_of(f"{pre}{i}", m) for i in range(nb)]
            if not any(masks): continue
            if masks[0] and all(masks[i] == masks[0] << i for i in range(nb)) and bin(masks[0]).count("1") == 1:
                a(f"s_lshl_b32 s35, {reg}, {masks[0].bit_length()-1}")
                a(f"s_xor_b32 {dst}, {dst}, s35")
                continue
            for i in range(nb):
                if masks[i]:
                    a(f"s_bfe_i32 s35, {reg}, {0x10000 + i:#x}")
                    a(f"s_and_b32 s35, s35, {masks[i]:#x}")
                    a(f"s_xor_b32 {dst}, {dst}, s35")
    def lane_part(vdst, ssrc, m, pre, nb):
        a(f"v_mov_b32 v{vdst}, {ssrc}")
        for i in range(nb):
            mk = mask_of(f"{pre}{i}", m)
            if mk:
                a(f"v_bfe_i32 v7, v0, {i}, 1")
                a(f"v_and_b32 v7, {mk:#x}, v7")
                a(f"v_xor_b32 v{vdst}, v{vdst}, v7")
    def nconst(n):
        c = 0
        for i in range(5):
            if n >> i & 1: c ^= mask_of(f"n{i}")
        return c
    a("s_lshl_b32 s37, s42, 18")
    a("s_or_b32 s36, s39, s37")
    a("v_mul_u32_u24 v4, 0x410, v0")
    a("v_and_b32 v4, 0xe070, v4")
    a("v_or_b32 v4, s36, v4")
    a("s_lshl_b32 m0, s42, 12")
    a("s_mov_b32 s37, 0" if 'wq' in skip else "s_lshl_b32 s37, 1, 16")
    a("s_waitcnt lgkmcnt(0)")
    if ts: a("s_memrealtime s[68:69]")
    for i in range(4):
        a(f"global_load_lds_dwordx4 v4, s[10:11] {wflags}")
        if i < 3:
            a("s_addk_i32 m0, 1024")
            a("v_add_u32 v4, s37, v4")
    a("s_and_b32 s34, s2, 127")
    a("s_lshl_b32 s36, s34, 15")
    a("s_lshl_b32 s37, s42, 13")
    a("s_add_u32 s36, s36, s37")
    a(f"s_add_u32 m0, s37, {L_WO}")
    a("v_lshl_add_u32 v9, v0, 4, s36")
    def wo_grp(hh):
        if hh == 1:
            a("s_lshl_b32 s37, s42, 13")
            a(f"s_add_u32 m0, s37, {L_WO + 4096}")
            a("v_add_u32 v9, 4096, v9")
        for i in range(4):
            if "wo" not in skip: a(f"global_load_lds_dwordx4 v9, s[12:13] offset:{i*1024} {woflags}")
    wo_grp(0)
    a("s_branch L_srest")
    assert i1bit != 11
    def tstamp():
        if ts and probe is None:
            a("s_memrealtime s[70:71]")
            a("s_add_u32 s79, s79, 1")
            a("s_lshr_b32 m0, s79, 1")
            a("s_waitcnt lgkmcnt(0)")
            a("v_writelane_b32 v13, s70, m0")
    def issue(reg, voff, srd, down=False, n=None, fn=None, mid=None, fill=None, skipto=None):
        n = N if n is None else n
        fn = fine if fn is None else fn
        seq = (2, 3, 0, 1) if down else (0, 1, 2, 3)
        if mate: seq = (2, 0, 3, 1) if down else (0, 2, 1, 3)
        for k, u in enumerate(seq):
            if k and (u >> 1) != (seq[k-1] >> 1): a(f"s_bitset{u >> 1}_b32 s52, {i1bit}")
            if k % fn == 0: a(f"s_waitcnt vmcnt({n})")
            if k == 0 and mid: lab(mid)
            a(f"buffer_load_dwordx4 v[{reg+4*u}:{reg+4*u+3}], v{voff}, {srd}, s52 offen offset:{(u&1)*1024} {kvflags}")
        tstamp()
    def issueK(slot): issue(VR + slot * 32, VKO, "s[44:47]", n=NM, fn=fineM, mid=f"L_gkr{slot}")
    def issueV(slot): issue(VR + slot * 32 + 16, VVO, "s[48:51]", down=True, n=NM, fn=fineM, mid=f"L_gvr{slot}")
    assert not rush or fineM == 4
    assert NM + fineM <= 8 and N + fine <= 8
    rest = list(range(2, RH))
    PERM = [0 if p == (RH - 1) // 2 else 1 if p == RH - 1 else rest.pop(0) for p in range(RH)]
    assert sorted(PERM) == list(range(RH))
    section("S")
    lab("L_srest")
    if ts: a("s_memrealtime s[100:101]")
    a(f"v_lshlrev_b32 v{VVO}, 4, v0")
    if NW0 == 8: wo_grp(1)
    def tail_setup():
        a("v_lshrrev_b32 v3, 4, v0")
        a("v_and_b32 v4, 15, v0")
        a("v_bfe_u32 v5, v0, 2, 2")
        a("s_lshl_b32 s35, s42, 11")
        a(f"v_lshl_add_u32 v{T_OW}, v0, 5, s35")
        a("s_lshl_b32 s36, s42, 3")
        a(f"v_lshl_add_u32 v{T_SW}, v5, 5, s36")
        a("s_lshl_b32 s35, s42, 9")
        a(f"v_lshl_add_u32 v{T_OR}, v0, 3, s35")
        a("s_lshl_b32 s36, s42, 5")
        a(f"v_mov_b32 v{T_SR}, s36")
        a("s_lshl_b32 s35, s43, 12")
        a("s_lshl_b32 s36, s42, 10")
        a("s_add_u32 s36, s35, s36")
        a(f"s_add_u32 s37, s36, {WS_P1}")
        a(f"v_lshl_add_u32 v{T_P1S}, v0, 4, s37")
        a("s_lshl_b32 s36, s38, 16")
        a("s_lshl_b32 s37, s32, 8")
        a("s_add_u32 s36, s36, s37")
        a("s_lshl_b32 s37, s42, 6")
        a("s_add_u32 s36, s36, s37")
        a(f"s_add_u32 s36, s36, {WS_P1}")
        a(f"v_lshl_add_u32 v{T_P1L}, v4, 12, s36")
        a(f"v_lshl_add_u32 v{T_P1L}, v3, 4, v{T_P1L}")
        a("s_lshl_b32 s36, s42, 4")
        a(f"v_lshl_add_u32 v{T_OBW}, v3, 2, s36")
        a("s_lshl_b32 s36, s42, 6")
        a("s_lshl_b32 s37, s43, 3")
        a("s_add_u32 s36, s36, s37")
        a("v_add_u32 v1, s36, v0")
        a("v_and_b32 v1, 255, v1")
        a(f"s_add_u32 s37, s35, {WS_P2}")
        a(f"v_lshl_add_u32 v{T_P2S}, v1, 4, s37")
        a("s_lshl_b32 s36, s42, 8")
        a(f"s_add_u32 s36, s36, {L_WO}")
        a(f"v_lshl_add_u32 v{T_WO}, v0, 2, s36")
        a("s_and_b32 s36, s34, 1")
        a("s_lshl_b32 s36, s36, 2")
        a(f"s_add_u32 s36, s36, {L_H}")
        a(f"v_mov_b32 v{T_H}, s36")
        if not c64:
            a("s_lshr_b32 s35, s28, 2")
            a("s_and_b32 s36, s28, 3")
            a("s_lshl_b32 s36, s36, 5")
            a("s_add_u32 s36, s36, s29")
            a("v_and_b32 v2, 1, v0")
            a("v_lshrrev_b32 v3, 1, v0")
            a("s_lshl_b32 s37, s36, 1")
            a("v_lshl_add_u32 v4, v3, 3, s37")
            a("v_add_u32 v4, v4, v2")
            a("v_and_b32 v4, 255, v4")
            a("s_lshl_b32 s37, s35, 19")
            a(f"s_add_u32 s37, s37, {WS_P2}")
            a("v_lshl_add_u32 v4, v4, 4, s37")
            a(f"v_lshl_add_u32 v{T_F0}, v3, 12, v4")
            for k in range(1, 4): a(f"v_add_u32 v{T_F0+k}, {k << 17:#x}, v{T_F0}")
            a("s_lshl_b32 s37, s35, 10")
            a("s_lshl_b32 s36, s36, 3")
            a("s_add_u32 s37, s37, s36")
            a(f"v_lshl_add_u32 v{T_XO}, v2, 2, s37")
        else:
            a("s_lshr_b32 s35, s28, 2")
            a("s_and_b32 s36, s28, 3")
            a("s_lshl_b32 s36, s36, 3")
            a("s_lshr_b32 s37, s29, 2")
            a("s_add_u32 s36, s36, s37")
            a("v_and_b32 v2, 7, v0")
            a("v_lshrrev_b32 v3, 3, v0")
            a("s_lshl2_add_u32 s37, s35, s42")
            a("s_lshl_b32 s37, s37, 17")
            a(f"s_add_u32 s37, s37, {WS_P2}")
            a("v_lshl_add_u32 v5, v2, 4, s37")
            for k in range(4):
                a(f"v_add_u32 v1, {8*k}, v3")
                a("v_add_u32 v4, s36, v1")
                a("v_and_b32 v4, 31, v4")
                a("v_lshl_add_u32 v4, v4, 7, v5")
                a(f"v_lshl_add_u32 v{T_F0+k}, v1, 12, v4")
            a("s_lshl_b32 s37, s35, 10")
            a("s_lshl_b32 s36, s36, 5")
            a("s_add_u32 s37, s37, s36")
            a(f"v_lshl_add_u32 v{T_XO}, v2, 2, s37")
        a("s_mov_b32 s64, 0x05040100")
        a("s_mov_b32 s65, 0x07060302")
    def s_setup():
        zero_stamps()
        if ts:
            a("v_mov_b32 v13, 0")
            a("s_mov_b32 s79, 1")
        stamp(9)
        if probe is not None:
            a("s_mov_b32 s92, s68")
            a("s_mov_b32 s93, s100")
        decode()
        srds()
        scalar_part("s66", pm, {"w": ("s42", 2), "r": ("s32", 4), "g": ("s38", 4)})
        a("v_lshrrev_b32 v2, 4, v0")
        a("v_and_b32 v3, 3, v0")
        a("v_bfe_u32 v4, v0, 2, 2")
        a("v_lshlrev_b32 v5, 8, v4")
        a("v_lshl_add_u32 v5, v2, 6, v5")
        a(f"v_lshl_add_u32 v{VKO}, v3, 4, v5")
        a("s_mov_b32 s43, s2")
        lane_part(10, "s66", pm, "n", 5)
        a("s_mov_b32 s55, 0")
        for i in range(2):
            a(f"s_bfe_i32 s35, s42, {0x10000 + i:#x}")
            a(f"s_and_b32 s35, s35, {mask_of('w%d' % i):#x}")
            a("s_xor_b32 s55, s55, s35")
        a("s_lshl_b32 s36, s42, 2")
        a("v_mov_b32 v14, s36")
        a("v_mov_b32 v6, 0xffff")
        a("v_mov_b32 v7, 0xffff0000")
        a("v_and_b32 v8, 1, v0")
        a("v_cmp_eq_u32 vcc, 1, v8")
        a("v_and_b32 v8, 2, v0")
        a("s_nop 0")
        a("v_cndmask_b32 v6, v6, v7, vcc")
        a("v_cmp_eq_u32 vcc, 2, v8")
        a(f"v_mov_b32 v{VM}, {f2u(-3.0e38):#x}")
        a(f"v_mov_b32 v{VL}, 0")
        a(f"v_cndmask_b32 v{VM1}, 0, v6, vcc")
        a(f"v_xor_b32 v{VM0}, v{VM1}, v6")
        for i in range(8): a(f"v_mov_b32 v{VO+i}, 0")
        a(f"s_mov_b32 s53, {f2u(math.log2(math.e) / math.sqrt(128.0)):#x}")
        a("s_mov_b32 s54, 1000")
        a(f"s_mov_b32 s41, {RH}")
        a(f"s_mov_b32 s76, {NA // RH - 1}")
        a(f"s_mov_b32 s77, {NA // RH - 1}")
        a("s_mov_b64 s[96:97], -1")
        a("s_mov_b32 s98, 0x11111111")
        a("s_mov_b32 s99, 0x11111111")
        a(f"v_mov_b32 v{VB}, v{VKO}")
        a(f"s_mul_i32 s36, s42, {NA * 256}")
        a(f"v_lshl_add_u32 v{VSR}, v0, 2, s36")
        a(f"v_and_b32 v{VSW}, -16, v{VSR}")
        tail_setup()
        a("v_mov_b32 v6, 0")
    s_setup()
    a(f"s_mul_i32 s36, s28, {64*3584}")
    a(f"s_mul_i32 s37, s42, {16*3584}")
    a("s_add_u32 s36, s36, s37")
    a("s_lshl_b32 s37, s29, 7")
    a("s_add_u32 s36, s36, s37")
    a("v_lshrrev_b32 v2, 3, v0")
    a("v_and_b32 v3, 7, v0")
    a("v_mul_u32_u24 v2, 3584, v2")
    a("v_lshl_add_u32 v2, v3, 4, v2")
    a("v_add_u32 v2, s36, v2")
    a(f"v_add_u32 v3, {8*3584}, v2")
    a(f"s_mul_i32 s36, s34, {14*1024}")
    a("s_lshl_b32 s37, s42, 12")
    a("s_add_u32 s36, s36, s37")
    a(f"v_add_u32 v4, s36, v{VVO}")
    a(f"s_waitcnt vmcnt({0 if 'wo' in skip else NW0})")
    if probe is not None: stamp(11)
    if NG is None: NG = NP
    def bar0(pos):
        if pos == barpos:
            a("s_barrier")
            stamp(10)
    bar0(0)
    for hh in range(NW0 // 4, 2):
        a(f"s_waitcnt vmcnt({NP})")
        wo_grp(hh)
    a("s_cmp_ge_u32 s29, 28")
    a("s_cbranch_scc1 L_nogu")
    a("s_lshl_b32 s35, s42, 11")
    a(f"s_add_u32 m0, s35, {L_W1}")
    a(f"s_waitcnt vmcnt({NG})")
    if "ffn" not in skip:
        a(f"global_load_lds_dwordx4 v2, s[16:17] {wflags}")
        a("s_addk_i32 m0, 1024")
        a("s_nop 0")
        a(f"global_load_lds_dwordx4 v3, s[16:17] {wflags}")
        a("s_addk_i32 m0, 7168")
        a("s_nop 0")
        a(f"global_load_lds_dwordx4 v2, s[18:19] {wflags}")
        a("s_addk_i32 m0, 1024")
        a("s_nop 0")
        a(f"global_load_lds_dwordx4 v3, s[18:19] {wflags}")
    lab("L_nogu")
    bar0(1)
    a("s_lshl_b32 s37, s42, 12")
    a(f"s_add_u32 m0, s37, {L_WO + 32768}")
    a(f"s_waitcnt vmcnt({NG})")
    if "wo" not in skip:
        for i in range(4):
            if i == 2:
                a("s_cmp_eq_u32 s42, 3")
                a("s_cbranch_scc1 L_nowd")
            a(f"global_load_lds_dwordx4 v4, s[20:21] offset:{i*1024} {woflags}")
        lab("L_nowd")
    bar0(2)
    for p in range(RH):
        a(f"s_xor_b32 s52, s66, {nconst(p):#x}")
        if p == 0: issue(VR + PERM[p] * 16, VKO, "s[44:47]", n=NP, fn=4)
        else: issue(VR + PERM[p] * 16, VKO, "s[44:47]", n=NK, fn=fineK)
        if p == 2 and vtouch:
            a("s_cmp_lg_u32 s42, 0")
            a("s_cbranch_scc1 L_novt")
            a("s_mov_b64 exec, 1")
            a(f"buffer_load_dword v8, v6, s[48:51], s66 offen {kvflags}")
            a("s_mov_b64 exec, -1")
            lab("L_novt")
        if p == (1 if NK <= 4 else 2):
            a("s_mov_b64 exec, 1")
            a("v_mov_b32 v15, 1")
            a(f"ds_write_b32 v14, v15 offset:{L_RDY}")
            a("s_mov_b64 exec, -1")
    stamp(1)
    a(f"s_mov_b32 s40, {spin * 8}")
    lab("L_qflag")
    a(f"ds_read_b64 v[2:3], v6 offset:{L_TAG}")
    a("s_waitcnt lgkmcnt(0)")
    a("v_cmp_eq_u32 vcc, 0, v3")
    a("s_cbranch_vccz L_qflag_done")
    a("s_sleep 1")
    a("s_sub_u32 s40, s40, 1")
    a("s_cbranch_scc0 L_qflag")
    lab("L_qflag_done")
    a(f"ds_read_b128 v[{VQ}:{VQ+3}], v{VKO} offset:{L_Q}")
    a("v_mov_b32 v17, v2")
    a("v_readfirstlane_b32 s33, v2")
    stamp(2)
    a("s_nop 1")
    tagregs()
    a("s_waitcnt lgkmcnt(0)")
    def claim(first=False):
        a("s_mov_b32 s35, 1" if first else f"s_sub_u32 s35, s41, {NS - 1}")
        a("s_mov_b64 exec, 1")
        a("v_mov_b32 v15, s35")
        a(f"ds_write_b32 v14, v15 offset:{L_REQ}")
        a("s_mov_b64 exec, -1")
    def qk(slot):
        K = VR + slot * 32
        for u in range(4):
            a(f"v_mfma_f32_16x16x32_bf16 v[{VS+4*u}:{VS+4*u+3}], v[{K+4*u}:{K+4*u+3}], v[{VQ}:{VQ+3}], 0")
    def softmax():
        for u in range(4):
            a(f"v_mov_b32_dpp v{4+u}, v{VS+4*u} quad_perm:[0,0,0,0] row_mask:0xf bank_mask:0xf")
        for p in range(1, 4):
            for u in range(4):
                a(f"v_add_f32_dpp v{4+u}, v{VS+4*u+p}, v{4+u} quad_perm:[{p},{p},{p},{p}] row_mask:0xf bank_mask:0xf")
        a("v_max3_f32 v1, v4, v5, v6")
        a(f"v_max3_f32 v1, v1, v7, v{VM}")
        a("v_mov_b32 v2, v1")
        a("s_nop 1")
        a("v_permlane16_swap_b32 v1, v2")
        a("s_nop 0")
        a("v_max_f32 v1, v1, v2")
        a("v_mov_b32 v2, v1")
        a("s_nop 1")
        a("v_permlane32_swap_b32 v1, v2")
        a("s_nop 0")
        a("v_max_f32 v1, v1, v2")
        a(f"v_sub_f32 v2, v{VM}, v1")
        a("v_mul_f32 v3, s53, v1")
        a("v_mul_f32 v2, s53, v2")
        a(f"v_mov_b32 v{VM}, v1")
        a("v_exp_f32 v2, v2")
        for i in range(4):
            a(f"v_fma_f32 v{4+i}, v{4+i}, s53, -v3")
        for i in range(4):
            a(f"v_exp_f32 v{4+i}, v{4+i}")
        for g in range(4):
            a(f"v_mov_b32_dpp v8, v2 row_newbcast:{4*g} row_mask:{1<<g:#x} bank_mask:0xf")
        a(f"v_fma_f32 v{VL}, v{VL}, v2, v4")
        a("v_add_f32 v9, v5, v6")
        a(f"v_add_f32 v{VL}, v{VL}, v7")
        a(f"v_add_f32 v{VL}, v{VL}, v9")
        for i in range(4):
            a(f"v_cvt_pk_bf16_f32 v{4+i}, v{4+i}, v{4+i}")
        for i in range(8):
            a(f"v_mul_f32 v{VO+i}, v{VO+i}, v8")
        for i in range(4):
            a(f"v_and_b32 v{VA+2*i}, v{4+i}, v{VM0}")
            a(f"v_and_b32 v{VA+2*i+1}, v{4+i}, v{VM1}")
    def pv(slot):
        V = VR + slot * 32 + 16
        for t in range(4):
            a(f"v_mfma_f32_16x16x16_bf16 v[{VO}:{VO+3}], v[{VA+2*t}:{VA+2*t+1}], v[{V+4*t}:{V+4*t+1}], v[{VO}:{VO+3}]")
            a(f"v_mfma_f32_16x16x16_bf16 v[{VO+4}:{VO+7}], v[{VA+2*t}:{VA+2*t+1}], v[{V+4*t+2}:{V+4*t+3}], v[{VO+4}:{VO+7}]")
    def guarded(f):
        if not warm: return f()
        skn[0] += 1
        n = skn[0]
        a(f"s_cbranch_execz L_g{n}")
        f()
        lab(f"L_g{n}")
    lab("L_kloop")
    a("s_cmp_lg_u32 s76, 0")
    a("s_cbranch_scc1 L_k0")
    a("s_mov_b64 s[72:73], s[8:9]")
    a(f"v_mov_b32 v{VB}, v{VVO}")
    a("s_mov_b32 s41, 0")
    lab("L_k0")
    for p in range(RH):
        K = VR + PERM[p] * 16
        for u in range(4):
            a(f"v_mfma_f32_16x16x32_bf16 v[{VS+4*u}:{VS+4*u+3}], v[{K+4*u}:{K+4*u+3}], v[{VQ}:{VQ+3}], 0")
        a("v_readlane_b32 s52, v10, s41")
        a("s_add_u32 s41, s41, 1")
        a("s_nop 2")
        for u in range(4):
            a(f"v_add_f32_dpp v{4+u}, v{VS+4*u+1}, v{VS+4*u} quad_perm:[1,1,1,1] row_mask:0xf bank_mask:0xf")
        for q_ in (2, 3):
            for u in range(4):
                a(f"v_add_f32_dpp v{4+u}, v{VS+4*u+q_}, v{4+u} quad_perm:[{q_},{q_},{q_},{q_}] row_mask:0xf bank_mask:0xf")
        a("s_mov_b64 exec, s[98:99]")
        a(f"v_max3_f32 v{VM}, v4, v5, v{VM}")
        a(f"ds_write_b128 v{VSW}, v[4:7] offset:{L_SC + p*256}")
        a(f"v_max3_f32 v{VM}, v6, v7, v{VM}")
        a("s_mov_b64 exec, s[96:97]")
        guarded(lambda: issue(K, VB, "s[72:75]"))
    a(f"v_add_u32 v{VSW}, {RH*256}, v{VSW}")
    a("s_sub_u32 s76, s76, 1")
    a("s_cbranch_scc0 L_kloop")
    a(f"ds_read_b32 v9, v{VSR} offset:{L_SC}")
    a(f"v_mov_b32_dpp v1, v{VM} quad_perm:[0,0,0,0] row_mask:0xf bank_mask:0xf")
    a(f"v_mov_b32_dpp v2, v{VM} quad_perm:[0,0,0,0] row_mask:0xf bank_mask:0xf")
    a("s_nop 1")
    a("v_permlane16_swap_b32 v1, v2")
    a("s_nop 0")
    a("v_max_f32 v1, v1, v2")
    a("v_mov_b32 v2, v1")
    a("s_nop 1")
    a("v_permlane32_swap_b32 v1, v2")
    a("s_mov_b32 s78, 1")
    a(f"v_max_f32 v{VM}, v1, v2")
    a(f"v_mul_f32 v3, s53, v{VM}")
    lab("L_vloop")
    a("s_cmp_lg_u32 s77, 0")
    a("s_cbranch_scc1 L_v0")
    a("s_mov_b64 s[72:73], s[6:7]")
    a(f"v_mov_b32 v{VB}, v{VKO}")
    a("s_mov_b32 s78, 0")
    lab("L_v0")
    for p in range(RH):
        sl = PERM[p]
        V = VR + sl * 16
        a("v_readlane_b32 s52, v10, s41")
        a("s_waitcnt lgkmcnt(0)")
        a("v_fma_f32 v4, v9, s53, -v3")
        a(f"ds_read_b32 v9, v{VSR} offset:{L_SC + (p+1)*256}")
        a("v_exp_f32 v4, v4")
        a("s_add_u32 s41, s41, 1" if sl == 1 else "s_add_u32 s41, s41, s78")
        a("v_cvt_pk_bf16_f32 v5, v4, v4")
        a(f"v_add_f32 v{VL}, v{VL}, v4")
        a("s_nop 0")
        for t in range(4):
            a(f"v_and_b32_dpp v{VA+2*t}, v5, v{VM0} quad_perm:[{t},{t},{t},{t}] row_mask:0xf bank_mask:0xf")
            a(f"v_and_b32_dpp v{VA+2*t+1}, v5, v{VM1} quad_perm:[{t},{t},{t},{t}] row_mask:0xf bank_mask:0xf")
        if p == RH - 1:
            a("s_cmp_lg_u32 s77, 0")
            a("s_cbranch_scc1 L_vw")
            a("s_waitcnt vmcnt(4)")
            lab("L_vw")
        for t in range(4):
            a(f"v_mfma_f32_16x16x16_bf16 v[{VO}:{VO+3}], v[{VA+2*t}:{VA+2*t+1}], v[{V+4*t}:{V+4*t+1}], v[{VO}:{VO+3}]")
            a(f"v_mfma_f32_16x16x16_bf16 v[{VO+4}:{VO+7}], v[{VA+2*t}:{VA+2*t+1}], v[{V+4*t+2}:{V+4*t+3}], v[{VO+4}:{VO+7}]")
        if sl >= 2:
            a("s_cmp_eq_u32 s77, 0")
            a(f"s_cbranch_scc1 L_vs{p}")
            issue(V, VVO, "s[48:51]")
            lab(f"L_vs{p}")
        elif sl == 0:
            guarded(lambda: issue(V, VB, "s[72:75]"))
        else:
            guarded(lambda: issue(V, VVO, "s[48:51]"))
        if sl == (1 if reqat == "V" else 0) and NS == NA + 1 and NS < 32:
            a("s_cmp_lg_u32 s77, 0")
            a("s_cbranch_scc1 L_vnc")
            guarded(lambda: claim(first=True))
            lab("L_vnc")
    a(f"v_add_u32 v{VSR}, {RH*256}, v{VSR}")
    a("s_sub_u32 s77, s77, 1")
    a("s_cbranch_scc0 L_vloop")
    a(f"v_add_f32_dpp v{VL}, v{VL}, v{VL} quad_perm:[1,0,3,2] row_mask:0xf bank_mask:0xf")
    a("s_waitcnt lgkmcnt(0)")
    a("s_nop 0")
    a(f"v_add_f32_dpp v{VL}, v{VL}, v{VL} quad_perm:[2,3,0,1] row_mask:0xf bank_mask:0xf")
    if warm:
        a("s_cbranch_execnz L_loop")
        a("s_mov_b32 s41, 63")
    lab("L_loop")
    snips = []
    def bump(slot):
        a("s_add_u32 s41, s41, 1")
        if NS < 32:
            a(f"s_cmp_lt_u32 s41, {NS}")
            a(f"s_cbranch_scc1 L_nc{slot}")
            claim()
            lab(f"L_nc{slot}")
    for slot in range(R):
        oth = 1 - slot
        a("v_readlane_b32 s52, v10, s41")
        a(f"s_cmp_ge_u32 s41, {NS}")
        a(f"s_cbranch_scc1 L_tk{slot}")
        a("s_nop 1")
        lab(f"L_gk{slot}")
        issueK(oth)
        if reqat == "K": bump(slot)
        lab(f"L_rk{slot}")
        sn = [f"L_tk{slot}:"]
        if warm: sn += [f"    s_cbranch_execz L_rk{slot}"]
        if NS < 32:
            sn += ["    s_lshl_b32 s35, s41, 2", f"    s_add_u32 s35, s35, {L_TK - 4 * NS}", "    v_mov_b32 v15, s35", f"    s_mov_b32 s40, {spin * 8}",
                   f"L_tp{slot}:", "    ds_read_b32 v16, v15", "    s_sub_u32 s40, s40, 1", f"    s_cbranch_scc1 L_tf{slot}", "    s_waitcnt lgkmcnt(0)",
                   "    v_readfirstlane_b32 s35, v16", "    s_nop 1", "    s_cmp_eq_u32 s35, -1", f"    s_cbranch_scc1 L_tp{slot}",
                   "    s_xor_b32 s52, s35, s55", "    s_cmp_lg_u32 s35, -2", f"    s_cbranch_scc1 L_gk{slot}", f"L_tf{slot}:"]
        sn += ["    s_mov_b32 s54, 0", "    s_waitcnt vmcnt(4)", f"    s_branch L_rk{slot}"]
        snips.append(sn)
        qk(slot)
        a("s_nop 4")
        softmax()
        a("s_cmp_lt_u32 s54, 2")
        a(f"s_cbranch_scc1 L_dv{slot}")
        issueV(oth)
        if reqat == "V": bump(slot)
        lab(f"L_rv{slot}")
        pv(slot)
        a("s_sub_u32 s54, s54, 1")
        a("s_cbranch_scc1 L_done")
        snips.append([f"L_dv{slot}:", "    s_waitcnt vmcnt(0)", f"    s_branch L_rv{slot}"])
    a("s_branch L_loop")
    for sn in snips: cur[0].extend(sn)
    lab("L_done")
    stamp(3)
    if ts: a("s_mov_b32 s94, s41")
    if ts and probe is None: a(f"v_mov_b32 v{VR}, v13")
    def poll1(k): return f"global_load_dwordx4 v[{VP1+4*k}:{VP1+4*k+3}], v{T_P1L}, s[26:27] {ldflags}"
    def poll2(k): return [f"global_load_dwordx4 v[{VP2+16*k+4*i}:{VP2+16*k+4*i+3}], v{T_F0+i}, s[26:27] {ldflags}" for i in range(4)]
    a(f"v_mov_b32 v2, v{VL}")
    a(f"v_mul_f32 v10, s53, v{VM}")
    a("s_nop 0")
    a(f"v_permlane16_swap_b32 v{VL}, v2")
    a("s_nop 0")
    a(f"v_add_f32 v11, v{VL}, v2")
    a("v_mov_b32 v2, v11")
    a(f"ds_write_b128 v{T_OW}, v[{VO}:{VO+3}] offset:{L_O}")
    a(f"ds_write_b128 v{T_OW}, v[{VO+4}:{VO+7}] offset:{L_O+16}")
    a("v_permlane32_swap_b32 v11, v2")
    a("s_nop 0")
    a("v_add_f32 v11, v11, v2")
    a(f"ds_write_b64 v{T_SW}, v[10:11] offset:{L_ST}")
    a("s_waitcnt lgkmcnt(0)")
    guard(["s_barrier"])
    a(f"ds_read_b128 v[8:11], v{T_SR} offset:{L_ST}")
    a(f"ds_read_b128 v[12:15], v{T_SR} offset:{L_ST+16}")
    for w in range(4):
        a(f"ds_read_b64 v[{24+2*w}:{25+2*w}], v{T_OR} offset:{L_O + w*2048}")
    a("v_mov_b32 v39, v17")
    a("s_waitcnt lgkmcnt(4)")
    a("v_max3_f32 v2, v8, v10, v12")
    a("v_max_f32 v2, v2, v14")
    for w in range(4):
        a(f"v_sub_f32 v{8+2*w}, v{8+2*w}, v2")
    for w in range(4):
        a(f"v_exp_f32 v{8+2*w}, v{8+2*w}")
    a("v_mul_f32 v16, v8, v9")
    a("v_fmac_f32 v16, v10, v11")
    a("v_fmac_f32 v16, v12, v13")
    a("v_fmac_f32 v16, v14, v15")
    a("s_waitcnt lgkmcnt(0)")
    a("v_rcp_f32 v5, v16")
    a("v_log_f32 v16, v16")
    a("v_mul_f32 v36, v8, v24")
    a("v_mul_f32 v37, v8, v25")
    for w in range(1, 4):
        a(f"v_fmac_f32 v36, v{8+2*w}, v{24+2*w}")
        a(f"v_fmac_f32 v37, v{8+2*w}, v{25+2*w}")
    a("v_add_f32 v38, v2, v16")
    a("v_mul_f32 v36, v36, v5")
    a("v_mul_f32 v37, v37, v5")
    if "halfP1" in skip:
        a("s_cmp_ge_u32 s42, 2")
        a("s_cbranch_scc1 L_hp1")
    guard([f"global_store_dwordx4 v{T_P1S}, v[36:39], s[26:27] {stflags}"] + ([] if ts else [poll1(0)]))
    if "halfP1" in skip:
        lab("L_hp1")
        a(f"v_and_b32 v{T_P1L}, 0xfffff7ff, v{T_P1L}")
    stamp(4)
    if ts: guard([poll1(0)])
    a(f"ds_read_b32 v{T_X}, v{T_XO} offset:{L_XR}")
    for i in range(4):
        a(f"ds_read2_b32 v[{24+2*i}:{25+2*i}], v{T_H} offset0:{2*i} offset1:{2*i+1}")
    order = list(range(16, 23)) + list(range(16))
    def rd(r): a(f"ds_read2st64_b32 v[{VW+2*r}:{VW+2*r+1}], v{T_WO} offset0:{8*r} offset1:{8*r+4}")
    def pairup(r):
        a(f"v_perm_b32 v6, v{VW+2*r+1}, v{VW+2*r}, s64")
        a(f"v_perm_b32 v{VW+2*r+1}, v{VW+2*r+1}, v{VW+2*r}, s65")
        a(f"v_mov_b32 v{VW+2*r}, v6")
    DEPTH = 7
    for n, r in enumerate(order):
        rd(r)
        if n >= DEPTH:
            a(f"s_waitcnt lgkmcnt({DEPTH})")
            pairup(order[n - DEPTH])
        if D1 == 4 and n == 12: guard([poll1(1)])
        if D1 == 4 and n == 22: guard([poll1(2)])
        if D1 == 3 and n == 17: guard([poll1(1)])
    for n in range(len(order) - DEPTH, len(order)):
        a(f"s_waitcnt lgkmcnt({len(order) - 1 - n})")
        pairup(order[n])
    a("v_mov_b32 v42, 0")
    a("v_mov_b32 v43, 0")
    for r in range(7):
        a(f"v_dot2_f32_bf16 v42, v{VD+2*r}, v{24+r}, v42")
        a(f"v_dot2_f32_bf16 v43, v{VD+2*r+1}, v{24+r}, v43")
    a("v_mov_b32 v40, 0")
    a("v_mov_b32 v41, 0")
    a("v_mov_b32 v6, 0")
    a(f"s_mov_b32 s40, {spin}")
    a("v_perm_b32 v42, v42, v17, s62")
    a("v_perm_b32 v43, v43, v17, s63")
    if probe is None: stamp(11)
    stubs = []
    if D1 == 1: a("s_branch L_p1chk")
    lab("L_p1poll")
    for k in range(D1):
        guard([poll1((k + D1 - 1) % D1)])
        if D1 == 1: lab("L_p1chk")
        a(f"s_waitcnt vmcnt({D1 - 1})")
        a(f"v_cmp_ne_u32 vcc, s33, v{VP1+4*k+3}")
        if ts: a("s_sub_u32 s40, s40, 1")
        a(f"s_cbranch_vccz L_p1ok{k}")
        if sleep1: a(f"s_sleep {sleep1}")
        st = [f"L_p1ok{k}:", f"    v_mov_b32 v10, v{VP1+4*k+2}", f"    v_mov_b32 v8, v{VP1+4*k}", f"    v_mov_b32 v9, v{VP1+4*k+1}"]
        stubs.append(st + (["    s_branch L_p1done"] if k else []))
    a("s_sub_u32 s40, s40, 1")
    a("s_cmp_gt_i32 s40, 0")
    a("s_cbranch_scc1 L_p1poll")
    for st in reversed(stubs): cur[0].extend(st)
    lab("L_p1done")
    stamp(5)
    if ts and probe is None: a(f"s_sub_u32 s92, {spin}, s40")
    a("v_max_f32_dpp v2, v10, v10 row_ror:8 row_mask:0xf bank_mask:0xf")
    a("s_nop 1")
    for r in (4, 2, 1):
        a(f"v_max_f32_dpp v2, v2, v2 row_ror:{r} row_mask:0xf bank_mask:0xf")
        if r > 1: a("s_nop 1")
    a("v_sub_f32 v10, v10, v2")
    a("v_exp_f32 v10, v10")
    a("s_nop 0")
    a("v_mul_f32 v8, v8, v10")
    a("v_mul_f32 v9, v9, v10")
    for r in (8, 4, 2, 1):
        for v in (10, 8, 9):
            a(f"v_add_f32_dpp v{v}, v{v}, v{v} row_ror:{r} row_mask:0xf bank_mask:0xf")
    a("v_rcp_f32 v10, v10")
    a("s_nop 0")
    a("v_mul_f32 v8, v8, v10")
    a("v_mul_f32 v9, v9, v10")
    a("v_cvt_pk_bf16_f32 v8, v8, v9")
    a(f"ds_write_b32 v{T_OBW}, v8 offset:{L_OB}")
    a("s_waitcnt lgkmcnt(0)")
    guard(["s_barrier"])
    for i in range(4):
        a(f"ds_read_b128 v[{VS+4*i}:{VS+4*i+3}], v6 offset:{L_OB + 16*i}")
    for r in range(16):
        if r % 4 == 0:
            a(f"s_waitcnt lgkmcnt({3 - r//4})")
        a(f"v_dot2_f32_bf16 v40, v{VW+2*r}, v{VS+r}, v40")
        a(f"v_dot2_f32_bf16 v41, v{VW+2*r+1}, v{VS+r}, v41")
    a("s_nop 1")
    a("v_perm_b32 v40, v40, v17, s60")
    a("v_perm_b32 v41, v41, v17, s61")
    if "halfP2" in skip:
        a("s_cmp_ge_u32 s42, 2")
        a("s_cbranch_scc1 L_hp2")
    guard([f"global_store_dwordx4 v{T_P2S}, v[40:43], s[26:27] {stflags}"])
    if "halfP2" in skip:
        lab("L_hp2")
        a("s_and_b32 s35, s28, 2")
        a("s_cbranch_scc1 L_sexit")
    stamp(6)
    if c64:
        a("s_and_b32 s35, s29, 3")
        a("s_cbranch_scc1 L_sexit")
        a("v_and_b32 v3, 7, v0")
        a("v_lshlrev_b32 v3, 4, v3")
        a("s_lshl_b32 s35, s42, 7")
        a("v_lshrrev_b32 v4, 4, v0")
        a("v_lshl_add_u32 v4, v4, 2, v3")
        a("v_add_u32 v4, s35, v4")
        a("s_mov_b32 s66, 0xffffff00")
    else:
        a("s_cmp_lg_u32 s42, 0")
        a("s_cbranch_scc1 L_sexit")
    a(f"s_mov_b32 s40, {spin}")
    assert c64
    for k in range(D2 - 1):
        guard(poll2(k))
        if sleep2: a(f"s_sleep {sleep2}")
    stubs = []
    lab("L_p2poll")
    for k in range(D2):
        guard(poll2((k + D2 - 1) % D2))
        a(f"s_waitcnt vmcnt({4 * (D2 - 1)})")
        check([VP2 + 16 * k + 4 * i for i in range(4)], 2)
        if ts: a("s_sub_u32 s40, s40, 1")
        a(f"s_cbranch_vccz L_p2ok{k}")
        if sleep2: a(f"s_sleep {sleep2}")
        st = [f"L_p2ok{k}:"] + [f"    v_and_b32 v{24+i}, s66, v{VP2+16*k+i}" for i in range(16)]
        stubs.append(st + (["    s_branch L_p2done"] if k else []))
    a("s_sub_u32 s40, s40, 1")
    a("s_cmp_gt_i32 s40, 0")
    a("s_cbranch_scc1 L_p2poll")
    for st in reversed(stubs): cur[0].extend(st)
    lab("L_p2done")
    stamp(7)
    if ts and probe is None: a(f"s_sub_u32 s93, {spin}, s40")
    for i in (0, 2):
        a(f"v_pk_add_f32 v[{24+i}:{25+i}], v[{24+i}:{25+i}], v[{28+i}:{29+i}]")
        a(f"v_pk_add_f32 v[{32+i}:{33+i}], v[{32+i}:{33+i}], v[{36+i}:{37+i}]")
    for i in (0, 2): a(f"v_pk_add_f32 v[{8+i}:{9+i}], v[{24+i}:{25+i}], v[{32+i}:{33+i}]")
    a("s_nop 1")
    a("v_permlane32_swap_b32 v8, v10")
    a("v_permlane32_swap_b32 v9, v11")
    a("s_nop 0")
    a("v_add_f32 v8, v8, v10")
    a("v_add_f32 v9, v9, v11")
    a("s_nop 1")
    a("v_permlane16_swap_b32 v8, v9")
    a("s_nop 0")
    a("v_add_f32 v8, v8, v9")
    a("s_nop 1")
    a("v_add_f32_dpp v8, v8, v8 row_ror:8 row_mask:0xf bank_mask:0xf")
    a(f"ds_write_b32 v4, v8 offset:{L_O}")
    a("s_waitcnt lgkmcnt(0)")
    guard(["s_barrier"])
    a("s_cmp_lg_u32 s42, 0")
    a("s_cbranch_scc1 L_sexit")
    for w in range(4): a(f"ds_read_b128 v[{24+4*w}:{27+4*w}], v3 offset:{L_O + 128*w}")
    a("s_waitcnt lgkmcnt(2)")
    for i in (0, 2): a(f"v_pk_add_f32 v[{24+i}:{25+i}], v[{24+i}:{25+i}], v[{28+i}:{29+i}]")
    a("s_waitcnt lgkmcnt(0)")
    for i in (2, 0): a(f"v_pk_add_f32 v[{32+i}:{33+i}], v[{32+i}:{33+i}], v[{36+i}:{37+i}]")
    for i in (2, 0): a(f"v_pk_add_f32 v[{8+i}:{9+i}], v[{24+i}:{25+i}], v[{32+i}:{33+i}]")
    a("v_cvt_pk_bf16_f32 v10, v10, v11")
    a("v_cvt_pk_bf16_f32 v8, v8, v9")
    a("v_and_b32 v11, 0xffff0000, v10")
    a("v_lshlrev_b32 v10, 16, v10")
    a(f"v_mul_f32 v13, {f2u(-math.log2(math.e)):#x}, v11")
    a(f"v_mul_f32 v12, {f2u(-math.log2(math.e)):#x}, v10")
    a("v_exp_f32 v13, v13")
    a("v_exp_f32 v12, v12")
    a("v_and_b32 v9, 0xffff0000, v8")
    a("v_add_f32 v13, 1.0, v13")
    a("v_add_f32 v12, 1.0, v12")
    a("v_rcp_f32 v13, v13")
    a("v_rcp_f32 v12, v12")
    a("v_lshlrev_b32 v8, 16, v8")
    a("v_mul_f32 v11, v11, v13")
    a("v_mul_f32 v10, v10, v12")
    a("v_cvt_pk_bf16_f32 v10, v10, v11")
    a(f"v_lshlrev_b32 v12, 16, v{T_X}")
    a(f"v_and_b32 v13, 0xffff0000, v{T_X}")
    a("v_and_b32 v11, 0xffff0000, v10")
    a("v_lshlrev_b32 v10, 16, v10")
    a("v_mul_f32 v9, v9, v11")
    a("v_mul_f32 v8, v8, v10")
    a("v_cvt_pk_bf16_f32 v8, v8, v9")
    a("v_and_b32 v9, 0xffff0000, v8")
    a("v_lshlrev_b32 v8, 16, v8")
    a("v_add_f32 v9, v9, v13")
    a("v_add_f32 v8, v8, v12")
    a("v_cvt_pk_bf16_f32 v8, v8, v9")
    if warm: a("s_cbranch_execz L_end")
    a("s_mov_b64 exec, 0xff" if c64 else "s_mov_b64 exec, 3")
    a(f"global_store_dword v{T_XO}, v8, s[22:23] {outflags}")
    a("s_cmp_lg_u32 s2, 0")
    a("s_cbranch_scc1 L_sexit")
    a("s_mov_b64 exec, 1")
    a(f"global_store_dword v6, v17, s[26:27] {outflags}")
    lab("L_sexit")
    if dbg == "class":
        a("s_getreg_b32 s35, hwreg(HW_REG_XCC_ID)")
        a("s_bfe_u32 s35, s35, 0x10002")
        a("s_lshr_b32 s36, s32, 3")
        a("s_cmp_lg_u32 s35, s36")
        a("s_cbranch_scc1 L_nodbg")
        a("s_mov_b64 exec, 1")
        a("s_lshl_b32 s36, s38, 2")
        a("v_mov_b32 v1, s36")
        a("v_mov_b32 v2, s41")
        a("global_atomic_add v1, v2, s[24:25]")
        lab("L_nodbg")
    if dbg == "ptr":
        a("s_mov_b64 exec, 1")
        a("v_mov_b32 v1, 0")
        for i, r in enumerate((44, 45, 48, 49, 26, 27)):
            a(f"v_mov_b32 v2, s{r}")
            a(f"global_store_dword v1, v2, s[24:25] offset:{4*i}")
    stamp(8)
    if ts and probe is None:
        a("s_mov_b64 exec, -1")
        a("s_lshl_b32 s70, s2, 2")
        a("s_add_u32 s70, s70, s42")
        a("s_lshl_b32 s70, s70, 8")
        a(f"s_add_u32 s70, s70, {WS_TT}")
        a("v_lshl_add_u32 v1, v0, 2, s70")
        a(f"global_store_dword v1, v{VR}, s[26:27]")
    dump_stamps("S")
    lab("L_end")
    a("s_endpgm")

    section("X2")
    lab("L_x2")
    a("v_lshrrev_b32 v46, 4, v0")
    a("v_bfe_u32 v7, v0, 2, 2")
    a("v_and_b32 v5, 3, v0")
    a("v_lshlrev_b32 v44, 10, v46")
    a("v_lshl_add_u32 v44, v7, 7, v44")
    a("v_lshl_add_u32 v44, v5, 3, v44")
    a("v_and_b32 v45, 1, v0")
    a("v_lshlrev_b32 v4, 10, v45")
    a("v_lshl_add_u32 v4, v46, 4, v4")
    a("v_bfe_u32 v47, v0, 1, 3")
    a(f"v_add_u32 v4, {L_XN}, v4")
    a("s_lshr_b32 s35, s39, 20")
    a("s_lshl_b32 s36, s35, 8")
    a("v_add_u32 v5, s36, v4")
    a(f"v_mov_b32 v34, {L_Z}")
    for k in range(4):
        a(f"v_cmp_eq_u32 s[{44+2*k}:{45+2*k}], {k}, v47")
    a("s_nop 0")
    for k in range(4):
        a(f"v_cndmask_b32 v{36+k}, v34, v5, s[{44+2*k}:{45+2*k}]")
    a("s_bfe_u32 s36, s39, 0x3000a")
    a("s_lshl_b32 s36, s36, 14")
    a("s_lshl_b32 s37, s35, 11")
    a("s_add_u32 s36, s36, s37")
    a("s_bfe_u32 s37, s39, 0x30007")
    a("s_lshl_b32 s37, s37, 8")
    a("s_add_u32 s36, s36, s37")
    a(f"s_add_u32 s36, s36, {WS_QP}")
    a("v_lshl_add_u32 v5, v45, 13, s36")
    a("v_lshl_add_u32 v5, v47, 6, v5")
    a("v_lshl_add_u32 v5, v46, 4, v5")
    if ts: a("s_memrealtime s[72:73]")
    if lnfirst is False: a("s_barrier")
    a("s_waitcnt vmcnt(1)")
    if NS < 32:
        a("s_cmp_eq_u32 s67, 0")
        a("s_cbranch_scc1 L_xok")
    a("s_waitcnt vmcnt(0)")
    lab("L_xok")
    stamp(1)
    if ts: a("s_mov_b32 s89, s72")
    a(f"ds_write_b128 v1, v[8:11] offset:{L_XR}")
    a(f"ds_write_b128 v1, v[12:15] offset:{L_XR+16}")
    for i in range(8):
        a(f"v_lshlrev_b32 v{16+2*i}, 16, v{8+i}")
        a(f"v_and_b32 v{17+2*i}, 0xffff0000, v{8+i}")
    def red32(v, t):
        a("s_nop 1")
        for r in (8, 4, 2, 1):
            a(f"v_add_f32_dpp {v}, {v}, {v} row_ror:{r} row_mask:0xf bank_mask:0xf")
            a("s_nop 1")
        a(f"v_mov_b32 {t}, {v}")
        a("s_nop 1")
        a(f"v_permlane16_swap_b32 {v}, {t}")
        a("s_nop 0")
        a(f"v_add_f32 {v}, {v}, {t}")
    a("v_add_f32 v6, v16, v17")
    for i in range(2, 16):
        a(f"v_add_f32 v6, v6, v{16+i}")
    red32("v6", "v7")
    a(f"v_mul_f32 v6, {f2u(1.0/512):#x}, v6")
    a("v_sub_f32 v32, v16, v6")
    a("v_mul_f32 v33, v32, v32")
    for i in range(1, 16):
        a(f"v_sub_f32 v32, v{16+i}, v6")
        a("v_fmac_f32 v33, v32, v32")
    red32("v33", "v7")
    a(f"v_mul_f32 v33, {f2u(1.0/512):#x}, v33")
    a("v_cvt_pk_bf16_f32 v6, v6, v33")
    a("v_and_b32 v33, 0xffff0000, v6")
    a("v_lshlrev_b32 v6, 16, v6")
    a(f"v_add_f32 v33, {f2u(1e-5):#x}, v33")
    a("v_cvt_pk_bf16_f32 v33, v33, v33")
    a("v_lshlrev_b32 v33, 16, v33")
    a("v_sqrt_f32 v33, v33")
    a("s_nop 0")
    a("v_cvt_pk_bf16_f32 v33, v33, v33")
    a("v_lshlrev_b32 v33, 16, v33")
    a("v_rcp_f32 v33, v33")
    for i in range(8):
        a(f"v_sub_f32 v{16+2*i}, v{16+2*i}, v6")
        a(f"v_sub_f32 v{17+2*i}, v{17+2*i}, v6")
        a(f"v_cvt_pk_bf16_f32 v{8+i}, v{16+2*i}, v{17+2*i}")
        a(f"v_lshlrev_b32 v{16+2*i}, 16, v{8+i}")
        a(f"v_and_b32 v{17+2*i}, 0xffff0000, v{8+i}")
        a(f"v_mul_f32 v{16+2*i}, v{16+2*i}, v33")
        a(f"v_mul_f32 v{17+2*i}, v{17+2*i}, v33")
        a(f"v_cvt_pk_bf16_f32 v{8+i}, v{16+2*i}, v{17+2*i}")
    a(f"ds_write_b128 v1, v[8:11] offset:{L_XN}")
    a(f"ds_write_b128 v1, v[12:15] offset:{L_XN+16}")
    def gemv(wbase, xsel):
        for ks in range(4):
            o = (ks & 1) * 32
            for blk in range(4):
                xr, xo = xsel(ks, blk)
                a(f"ds_read_b128 v[{48+o+4*blk}:{51+o+4*blk}], v{xr} offset:{xo}")
                a(f"ds_read_b64_tr_b16 v[{64+o+4*blk}:{65+o+4*blk}], v44 offset:{wbase + ks*4096 + blk*32}")
                a(f"ds_read_b64_tr_b16 v[{66+o+4*blk}:{67+o+4*blk}], v44 offset:{wbase + ks*4096 + blk*32 + 512}")
            for blk in range(4):
                a(f"s_waitcnt lgkmcnt({9-3*blk})")
                c = "0" if (ks == 0 and blk == 0) else "v[8:11]"
                a(f"v_mfma_f32_16x16x32_bf16 v[8:11], v[{64+o+4*blk}:{67+o+4*blk}], v[{48+o+4*blk}:{51+o+4*blk}], {c}")
    a("s_waitcnt lgkmcnt(0)")
    a(f"s_add_u32 s33, s33, {PHI:#x}")
    tagregs()
    a("v_mov_b32 v32, s33")
    a("v_mov_b32 v33, 1")
    if lnfirst: a("s_barrier")
    stamp(2)
    gemv(L_W0, lambda ks, blk: (36 + blk, ks * 64))
    a("s_mov_b32 s36, 0x00ff00ff")
    a("s_mov_b32 s37, 0x00ff00ff")
    a("s_lshl_b32 s39, s30, 14")
    a("s_lshl_b32 s40, s31, 13")
    a("s_add_u32 s39, s39, s40")
    a(f"s_add_u32 s39, s39, {WS_QP + 4096}")
    a("v_lshl_add_u32 v1, v0, 4, s39")
    a(f"s_mov_b32 s40, {0 if 'qwait' in skip else spin}")
    embed(8, 32)
    a("s_mov_b64 exec, s[36:37]")
    a("s_waitcnt vmcnt(0)")
    if "qst" not in skip: a(f"global_store_dwordx4 v5, v[8:11], s[26:27] {qstflags}")
    a("s_mov_b64 exec, -1")
    stamp(3)
    def ffn_part():
        if "ffn" in skip: a("s_branch L_noffn")
        a("s_cmp_ge_u32 s29, 28")
        a("s_cbranch_scc1 L_noffn")
        a("s_lshl_b32 s36, s28, 7")
        a("v_add_u32 v5, s36, v4")
        for k in range(4):
            a(f"v_cndmask_b32 v{36+k}, v34, v5, s[{44+2*k}:{45+2*k}]")
        for k in range(4):
            a(f"v_cmp_eq_u32 s[{44+2*k}:{45+2*k}], {4+k}, v47")
        a("s_nop 0")
        for k in range(4):
            a(f"v_cndmask_b32 v{40+k}, v34, v5, s[{44+2*k}:{45+2*k}]")
        a("s_mul_i32 s36, s28, 7168")
        a("s_lshl_b32 s37, s29, 8")
        a("s_add_u32 s36, s36, s37")
        a(f"s_add_u32 s36, s36, {WS_FP}")
        a("v_bfe_u32 v5, v0, 3, 1")
        a("v_lshl_add_u32 v5, v45, 1, v5")
        a(f"v_mul_u32_u24 v5, {8*7168}, v5")
        a("v_bfe_u32 v2, v0, 1, 2")
        a("v_lshl_add_u32 v2, v2, 6, v5")
        a("v_lshl_add_u32 v2, v46, 4, v2")
        a("v_add_u32 v2, s36, v2")
        a("v_and_b32 v5, 12, v0")
        a(f"s_mov_b32 s39, {spin * 8}")
        lab("L_rdy")
        a(f"ds_read_b32 v6, v5 offset:{L_RDY}")
        a("s_waitcnt lgkmcnt(0)")
        a("v_cmp_eq_u32 vcc, 0, v6")
        a("s_cbranch_vccz L_rdy_done")
        a("s_sleep 1")
        a("s_sub_u32 s39, s39, 1")
        a("s_cbranch_scc0 L_rdy")
        lab("L_rdy_done")
        gemv(L_W1, lambda ks, blk: (36 + (ks >> 1) * 4 + blk, (ks & 1) * 64))
        a("s_nop 7")
        embed(8, 32)
        if "fst" not in skip: a(f"global_store_dwordx4 v2, v[8:11], s[26:27] {qstflags}")
        lab("L_noffn")
        stamp(4)
    if qafter: ffn_part()
    for i in range(qdelay): a("s_sleep 32")
    stamp(7)
    lab("L_qpoll")
    for i in range(8):
        if "qld" not in skip: a(f"global_load_dwordx4 v[{48+4*i}:{51+4*i}], v1, s[26:27] offset:{i*1024-4096} {qldflags}")
    a("s_waitcnt vmcnt(0)")
    check([48 + 4 * i for i in range(8)], 6)
    pollend("L_qpoll")
    for i in range(32):
        a(f"v_and_b32 v{48+i}, 0xffffff00, v{48+i}")
    for i in range(8):
        a(f"v_add_f32 v{48+i}, v{48+i}, v{56+i}")
        a(f"v_add_f32 v{64+i}, v{64+i}, v{72+i}")
    for i in range(8):
        a(f"v_add_f32 v{48+i}, v{48+i}, v{64+i}")
    for i in range(4):
        a(f"v_cvt_pk_bf16_f32 v{48+i}, v{48+2*i}, v{49+2*i}")
    a("v_lshlrev_b32 v1, 3, v0")
    a("v_mov_b32 v6, 0")
    if NS < 32:
        a("v_mov_b32 v7, -1")
        a("v_lshlrev_b32 v5, 2, v0")
        a(f"v_add_u32 v5, {L_TK}, v5")
        for i in range(3): a(f"ds_write_b32 v5, v7 offset:{256*i}")
    a(f"ds_write_b64 v1, v[48:49] offset:{L_Q}")
    a(f"ds_write_b64 v1, v[50:51] offset:{L_Q+512}")
    a("s_waitcnt lgkmcnt(0)")
    a(f"ds_write_b64 v6, v[32:33] offset:{L_TAG}")
    stamp(5)
    a("s_setprio 0")
    if not qafter: ffn_part()
    a("s_mul_i32 s36, s34, 56")
    a("s_andn2_b32 s36, s36, 15")
    a(f"s_mul_i32 s37, s31, {16*7168}")
    a("s_add_u32 s36, s36, s37")
    a(f"s_add_u32 s36, s36, {WS_FP}")
    a("v_lshrrev_b32 v1, 2, v0")
    a("v_mul_u32_u24 v1, 7168, v1")
    a("v_and_b32 v3, 3, v0")
    a("v_lshl_add_u32 v1, v3, 4, v1")
    a("v_add_u32 v1, s36, v1")
    a(f"s_mov_b32 s40, {0 if ('ffn' in skip or 'hwait' in skip) else spin}")
    for i in range(hdelay): a("s_sleep 32")
    lab("L_hpoll")
    if "hld" not in skip: a("global_load_dwordx4 v[8:11], v1, s[26:27] sc1")
    a("s_waitcnt vmcnt(0)")
    check([8], 2)
    pollend("L_hpoll")
    for i in range(4): a(f"v_and_b32 v{8+i}, 0xffffff00, v{8+i}")
    for r in (4, 8):
        for i in range(4):
            a(f"v_add_f32_dpp v{8+i}, v{8+i}, v{8+i} row_ror:{r} row_mask:0xf bank_mask:0xf")
    for i in range(4): a(f"v_mov_b32 v{12+i}, v{8+i}")
    for i in range(4): a(f"v_permlane16_swap_b32 v{8+i}, v{12+i}")
    for i in range(4): a(f"v_add_f32 v{8+i}, v{8+i}, v{12+i}")
    a("v_cvt_pk_bf16_f32 v8, v8, v9")
    a("v_cvt_pk_bf16_f32 v9, v10, v11")
    a("v_mov_b32 v10, v8")
    a("v_mov_b32 v11, v9")
    a("s_nop 1")
    a("v_permlane32_swap_b32 v8, v10")
    a("v_permlane32_swap_b32 v9, v11")
    for p in range(2):
        a(f"v_lshlrev_b32 v12, 16, v{8+p}")
        a(f"v_and_b32 v13, 0xffff0000, v{8+p}")
        a(f"v_lshlrev_b32 v14, 16, v{10+p}")
        a(f"v_and_b32 v15, 0xffff0000, v{10+p}")
        a("v_max_f32 v12, 0, v12")
        a("v_max_f32 v13, 0, v13")
        a("v_mul_f32 v12, v12, v14")
        a("v_mul_f32 v13, v13, v15")
        a(f"v_cvt_pk_bf16_f32 v{16+p}, v12, v13")
    a("v_lshlrev_b32 v3, 3, v3")
    a(f"ds_write_b64 v3, v[16:17] offset:{L_H}")
    a("s_waitcnt vmcnt(0) lgkmcnt(0)")
    stamp(6)
    if NS < 32:
        NR = 16 // pools
        a("s_lshr_b32 s37, s32, 3" if pools == 2 else "s_mov_b32 s37, 0")
        scalar_part("s55", pm, {"g": ("s38", 4)})
        if pools == 2:
            a("s_bfe_i32 s35, s32, 0x10003")
            a(f"s_and_b32 s35, s35, {mask_of('r3'):#x}")
            a("s_xor_b32 s55, s55, s35")
        for hi in range(2):
            a(f"v_add_u32 v1, {64*hi}, v0")
            if torder == "n":
                a(f"v_mul_u32_u24 v2, {(65536 + KP - 1) // KP}, v1")
                a("v_lshrrev_b32 v2, 16, v2")
                a(f"v_mul_u32_u24 v3, {KP}, v2")
                a("v_sub_u32 v3, v1, v3")
            else:
                a(f"v_and_b32 v2, {NR - 1}, v1")
                a(f"v_lshrrev_b32 v3, {NR.bit_length() - 1}, v1")
            a(f"v_add_u32 v3, {NS}, v3")
            a(f"v_mov_b32 v{20+hi}, s55")
            for pre, reg, nb in (("n", 3, 5), ("r", 2, NR.bit_length() - 1)):
                for i in range(nb):
                    a(f"v_bfe_i32 v7, v{reg}, {i}, 1")
                    a(f"v_and_b32 v7, {mask_of(pre + str(i)):#x}, v7")
                    a(f"v_xor_b32 v{20+hi}, v{20+hi}, v7")
        a(f"s_mul_i32 s36, s38, {pools}")
        a("s_add_u32 s36, s36, s37")
        a(f"s_mul_i32 s36, s36, {ctstride}")
        a(f"s_add_u32 s36, s36, {WS_CT}")
        a("s_add_u32 s68, s26, s36")
        a("s_addc_u32 s69, s27, 0")
        if pf is not None:
            a("v_bfe_u32 v1, v0, 1, 4")
            a("v_and_b32 v2, 1, v0")
            a("s_lshl_b32 s36, s38, 16")
            a("s_lshl_b32 s37, s32, 8")
            a("s_add_u32 s36, s36, s37")
            a(f"s_add_u32 s36, s36, {WS_P1}")
            a("v_lshl_add_u32 v22, v1, 12, s36")
            a("v_lshl_add_u32 v22, v2, 7, v22")
            a("v_and_b32 v1, 31, v0")
            a("s_and_b32 s36, s28, 3")
            a("s_lshl_b32 s36, s36, 3")
            a("s_lshr_b32 s37, s29, 2")
            a("s_add_u32 s36, s36, s37")
            a("v_add_u32 v2, s36, v1")
            a("v_and_b32 v2, 31, v2")
            a("s_lshr_b32 s36, s28, 2")
            a("s_lshl_b32 s36, s36, 2")
            a("s_and_b32 s37, s29, 3")
            a("s_add_u32 s36, s36, s37")
            a("s_lshl_b32 s36, s36, 17")
            a(f"s_add_u32 s36, s36, {WS_P2}")
            a("v_lshl_add_u32 v3, v1, 12, s36")
            a("v_lshl_add_u32 v3, v2, 7, v3")
            a("v_cmp_lt_u32 vcc, 31, v0")
            a("s_nop 1")
            a("v_cndmask_b32 v22, v22, v3, vcc")
        def prefetch():
            if pfmask != 3: a(f"s_mov_b32 exec_{'hi' if pfmask == 1 else 'lo'}, 0")
            a(f"global_load_dword v23, v22, s[26:27] {pf}")
            a("s_mov_b64 exec, -1")
        if pf is not None and pfat == "early": prefetch()
        a("s_mov_b32 s41, 0")
        a("v_mov_b32 v6, 0")
        a(f"v_mov_b32 v5, {L_TK}")
        a(f"s_mov_b32 s40, {spin * 8}")
        a("s_setprio 1")
        lab("L_disp")
        a(f"ds_read_b128 v[8:11], v6 offset:{L_REQ}")
        a("s_sub_u32 s40, s40, 1")
        a("s_cbranch_scc1 L_disp_done")
        a("s_waitcnt lgkmcnt(0)")
        a(f"v_{'min' if reqmin else 'max'}3_u32 v8, v8, v9, v10")
        a(f"v_{'min' if reqmin else 'max'}_u32 v8, v8, v11")
        a("v_cmp_lt_u32 vcc, s41, v8")
        a("s_cbranch_vccnz L_serve")
        a("s_sleep 1")
        a("s_branch L_disp")
        lab("L_serve")
        a("s_mov_b32 s67, 1")
        a("s_atomic_add s67, s[68:69], 0 glc")
        if pf is not None and pfat == "serve":
            a("s_cmp_lg_u32 s41, 0")
            a("s_cbranch_scc1 L_nopf")
            prefetch()
            lab("L_nopf")
        a("s_add_u32 s41, s41, 1")
        a("s_waitcnt lgkmcnt(0)")
        a("v_readlane_b32 s36, v20, s67")
        a("v_readlane_b32 s37, v21, s67")
        a("s_bitcmp1_b32 s67, 6")
        a("s_nop 0")
        a("s_cselect_b32 s36, s37, s36")
        if rush:
            a(f"s_cmp_ge_u32 s67, {max(0, POOL - rush)}")
            a("s_cselect_b32 s37, 1, 0")
            a("s_or_b32 s36, s36, s37")
        a(f"s_cmp_lt_u32 s67, {POOL}")
        a("s_cselect_b32 s36, s36, -2")
        a("v_mov_b32 v7, s36")
        a("ds_write_b32 v5, v7")
        a("v_add_u32 v5, 4, v5")
        a("s_cbranch_scc1 L_disp")
        lab("L_disp_done")
        a("s_waitcnt lgkmcnt(0)")
    a("s_barrier")
    dump_stamps("X")
    a("s_endpgm")

    L = [HEADER.rstrip("\n"), f"; @launch grid=(256,1,1) block=({NW*64},1,1) lds={L_END}",
         '.amdgcn_target "amdgcn-amd-amdhsa--gfx950"', ".text", f".globl {KN}", ".p2align 8", f".type {KN},@function"]
    for name in layout.split(): L.extend(SEC[name])
    L.append("L_codeend:")
    nv = VT + 16
    L.append('.section .rodata,"a"')
    L.append(".p2align 6")
    L.append(f".amdhsa_kernel {KN}")
    L.append(f"  .amdhsa_next_free_vgpr {nv}")
    L.append("  .amdhsa_next_free_sgpr 102")
    L.append(f"  .amdhsa_accum_offset {nv}")
    L.append("  .amdhsa_group_segment_fixed_size 0")
    L.append("  .amdhsa_kernarg_size 96")
    L.append("  .amdhsa_user_sgpr_count 2")
    L.append("  .amdhsa_user_sgpr_kernarg_segment_ptr 1")
    L.append("  .amdhsa_system_sgpr_workgroup_id_x 1")
    L.append("  .amdhsa_float_denorm_mode_32 3")
    L.append(".end_amdhsa_kernel")
    return "\n".join(L) + "\n"

if __name__ == "__main__":
    import json
    cfg = json.loads(sys.argv[1]) if len(sys.argv) > 1 else {}
    sys.stdout.write(gen(**cfg))
```

```python
import struct, sys, math

KN = "recurrent_scan__gqa_block_cached__glu_gated_reglu__decode_kernel"
HEADER = open("recurrent_scan__gqa_block_cached__glu_gated_reglu__decode.s.ref").read().split("; @launch")[0]

def f2u(x):
    return struct.unpack("<I", struct.pack("<f", x))[0]

WS_EPOCH = 0
WS_QP = 0x10000
WS_FP = 0x40000
WS_CT = 0x80000
WS_P1 = 0x100000
WS_P2 = 0x200000
WS_TS = 0x400000
WS_TT = 0x500000
L_SC = 0
L_W0 = 0
L_W1 = 16384
L_XN = 32768
L_XR = 34816
L_Q = 36864
L_Z = 37888
L_TAG = 38144
L_RDY = 38160
L_REQ = 38176
L_H = 38400
L_ST = 38464
L_OB = 38592
L_TK = 38656
L_O = 39424
L_END = 47616
PHI = 0x9E3779B9

ROLES = [('X', slice(0, 1)), ('S', slice(1, 5))]

def gen(RH=9, NA=27, NS=29, mate=False, vtouch=False, barpos=1, NG=8, tlb=2, c64=True, rush=0, reqmin=True, nC=0, nA=8, D1=1, D2=1, pf="sc1", pfmask=2, pfat="fail", N=4, fine=1, NP=8, NK=4, fineK=2, NM=4, fineM=4, kvflags="nt", wflags="nt", woflags="", outflags="", stflags="sc1", ldflags="sc1",
        atflags="sc0 sc1", sleep1=0, sleep2=0, xinfl=7, pmap="w0 w1 n0^r3 n2 n1 n3 n4 r0 r1 r2 r3", torder="n", reqat="K", ctstride=1280, skip=(), bar0=True, warm=True, l2pf=True, pools=1, early=True, xbar="post", i1bit=15, dbg=None, dmaun=4, layout="E X1 S W X2", qafter=True, wstub=False, lnfirst=False, NW0=8, qdelay=0, hdelay=0, qstflags="sc1", qldflags="sc1", ts=False, spin=1 << 20, probe=None):
    R = 2
    KP = 32 - NS
    POOL = 16 // pools * KP
    assert POOL <= 128 and pools in (1, 2) and N <= 6 and NA % RH == 0 and NA >= 2 * RH and RH >= 8 and NS >= NA + 1 and qafter and NM <= 4
    SEC = {}
    cur = [None]
    def section(name):
        cur[0] = SEC.setdefault(name, [])
    if probe is not None: ts = True
    def a(s): cur[0].append("    " + s)
    def lab(s): cur[0].append(s + ":")
    NW = 6 if warm else 5
    skn = [0]
    def guard(lines):
        if not warm:
            for x in lines: a(x)
            return
        skn[0] += 1
        a(f"s_cbranch_execz L_g{skn[0]}")
        for x in lines: a(x)
        lab(f"L_g{skn[0]}")
    def stamp(idx):
        if ts:
            a("s_waitcnt lgkmcnt(0)")
            a("s_memrealtime s[70:71]")
            a("s_waitcnt lgkmcnt(0)")
            a(f"s_mov_b32 s{80+idx}, s70")
    pc = [0]
    def dump_stamps(role=None):
        if probe is not None:
            prole, pidx = probe[:2]
            if role == prole:
                pc[0] += 1
                if len(probe) > 2:
                    a(f"s_and_b32 s73, s2, {probe[2]}")
                    a(f"s_cmp_lg_u32 s73, {probe[3]}")
                    a(f"s_cbranch_scc1 L_pe{pc[0]}")
                a(f"s_cmp_eq_u32 s{80+pidx}, 0")
                a(f"s_cbranch_scc1 L_pe{pc[0]}")
                a(f"s_add_u32 s72, s{80+pidx}, 10000")
                lab(f"L_pl{pc[0]}")
                a("s_memrealtime s[70:71]")
                a("s_waitcnt lgkmcnt(0)")
                a("s_sub_u32 s73, s70, s72")
                a("s_cmp_lt_i32 s73, 0")
                a(f"s_cbranch_scc1 L_pl{pc[0]}")
                lab(f"L_pe{pc[0]}")
            return
        if ts:
            a("s_mov_b64 exec, 1")
            a("s_mul_i32 s70, s2, 5")
            a("s_add_u32 s70, s70, s3")
            a("s_lshl_b32 s70, s70, 6")
            a(f"s_add_u32 s70, s70, {WS_TS}")
            a("v_mov_b32 v1, s70")
            a("s_getreg_b32 s95, hwreg(HW_REG_XCC_ID)")
            for q in range(4):
                for i in range(4):
                    a(f"v_mov_b32 v{4+i}, s{80+q*4+i}")
                a(f"global_store_dwordx4 v1, v[4:7], s[26:27] offset:{q*16}")
                a("s_nop 1")
    def tagregs():
        a("s_mov_b32 s56, s33")
        a("s_lshr_b32 s57, s33, 8")
        a("s_lshr_b32 s58, s33, 16")
        a("s_lshr_b32 s59, s33, 24")
        for i in range(4): a(f"s_mov_b32 s{60+i}, {0x07060500 + i:#x}")
    def embed(v, vtag):
        for i in range(4): a(f"v_perm_b32 v{v+i}, v{v+i}, v{vtag}, s{60+i}")
    def check(regs, acc):
        first = True
        for r in regs:
            for i in range(4):
                if first:
                    a(f"v_xor_b32 v{acc}, s{56+i}, v{r+i}"); first = False
                else:
                    a(f"v_bitop3_b32 v{acc}, v{acc}, v{r+i}, s{56+i} bitop3:0xf6")
        a(f"v_and_b32 v{acc}, 0xff, v{acc}")
        a(f"v_cmp_ne_u32 vcc, 0, v{acc}")
    def pollend(name):
        a("s_sub_u32 s40, s40, 1")
        a(f"s_cbranch_scc1 {name}_done")
        a(f"s_cbranch_vccnz {name}")
        lab(f"{name}_done")

    VKO, VVO, VM, VL, VM0, VM1 = 18, 19, 20, 21, 22, 23
    VA, VQ, VO, VS, VR = 24, 32, 36, 44, 60
    VT = VR + 16 * RH
    T_OW, T_SW, T_OR, T_SR, T_P1S, T_P1L, T_OBW, T_P2S, T_WO, T_H, T_F0, T_XO, T_X = [VT + i for i in (0, 1, 2, 3, 4, 5, 6, 7, 8, 9, 10, 14, 15)]
    T_D0, T_D1, T_OBR = VT + 16, VT + 17, VT + 18
    RD, RW = VR + 64, VR + 80
    PD, PW = VR + 4, VR + 20
    VP1, VP2 = VR + 112, VR + 116
    assert D1 == 1 and D2 == 1 and VP2 + 16 <= VT
    VB, VSW, VSR = 11, 12, 16
    def decode():
        a("s_and_b32 s28, s2, 7")
        a("s_lshr_b32 s29, s2, 3")
        a("s_bfe_u32 s30, s2, 0x30004")
        a("s_lshr_b32 s31, s2, 7")
        a("s_and_b32 s32, s2, 15")
        a("s_and_b32 s34, s2, 127")
        a("s_lshr_b32 s38, s2, 4")
    def srds():
        a("s_mov_b64 s[44:45], s[6:7]"); a("s_brev_b32 s46, 16"); a("s_mov_b32 s47, 0x20000")
        a("s_mov_b64 s[48:49], s[8:9]"); a("s_brev_b32 s50, 16"); a("s_mov_b32 s51, 0x20000")
        a("s_mov_b64 s[72:73], s[6:7]"); a("s_brev_b32 s74, 16"); a("s_mov_b32 s75, 0x20000")
    def zero_stamps():
        if ts:
            a("s_mov_b32 s80, s70")
            for i in range(1, 16): a(f"s_mov_b32 s{80+i}, 0")
    section("X1")
    cur[0].append(".p2align 8")
    lab("L_xwave")
    a("v_lshlrev_b32 v1, 5, v0")
    a("v_mov_b32 v6, 0")
    a("v_mov_b32 v7, 0")
    a("v_lshlrev_b32 v5, 3, v0")
    a(f"ds_write_b64 v5, v[6:7] offset:{L_Z}")
    a("s_waitcnt lgkmcnt(0)")
    a("global_load_dwordx4 v[8:11], v1, s[4:5]")
    a("global_load_dwordx4 v[12:15], v1, s[4:5] offset:16")
    a("s_load_dword s33, s[26:27], 0")
    a("s_setprio 2")
    zero_stamps()
    decode()
    if NS < 32:
        a(f"s_and_b32 s67, s39, {0x300380 & ~((2 * pools - 1) << 7):#x}")
        a("s_cbranch_scc1 L_nozero")
        a("s_bfe_u32 s36, s39, 0x3000a")
        a("s_bfe_u32 s37, s39, 0x10007")
        a("s_lshl3_add_u32 s36, s37, s36")
        if pools == 2:
            a("s_bfe_u32 s37, s39, 0x10008")
            a("s_lshl1_add_u32 s36, s36, s37")
        a(f"s_mul_i32 s36, s36, {ctstride}")
        a(f"s_add_u32 s36, s36, {WS_CT}")
        a("v_lshl_add_u32 v5, v0, 2, s36")
        a("global_store_dword v5, v6, s[26:27] sc1")
        lab("L_nozero")
    if "X1 X2" not in layout: a("s_branch L_x2")
    if warm and wstub:
        lab("L_wstub")
        a("s_branch L_wwave")

    section("W")
    if warm:
        lab("L_wwave")
        if l2pf:
            a("s_getpc_b64 s[68:69]")
            lab("L_wpc")
            a(f"s_sub_u32 s68, s68, L_wpc-{KN}")
            a("s_subb_u32 s69, s69, 0")
            a("v_lshlrev_b32 v7, 7, v0")
            a("v_add_u32 v8, 8192, v7")
            a("v_min_u32 v8, L_codeend-" + KN + "-4, v8")
            a("global_load_dword v9, v7, s[68:69]")
            a("global_load_dword v9, v8, s[68:69]")
        a("s_waitcnt lgkmcnt(0)")
        if tlb:
            a("s_and_b32 s28, s2, 7")
            a("s_and_b32 s34, s2, 127")
            a("v_mov_b32 v2, 0")
            a("s_mov_b64 exec, 1")
            a(f"s_mul_i32 s36, s28, {64*3584}")
            a("v_mov_b32 v3, s36")
            a(f"global_load_dword v9, v3, s[16:17] {wflags}")
            a(f"global_load_dword v9, v3, s[18:19] {wflags}")
            a(f"s_mul_i32 s36, s34, {14*1024}")
            a("v_mov_b32 v3, s36")
            a(f"global_load_dword v9, v3, s[20:21] {wflags}")
            a("s_lshl_b32 s36, s34, 15")
            a("v_mov_b32 v3, s36")
            a(f"global_load_dword v9, v3, s[12:13] {wflags}")
            a("s_lshl_b32 s36, s2, 19")
            a("v_mov_b32 v3, s36")
            a(f"global_load_dword v9, v3, s[6:7] {kvflags}")
            a(f"global_load_dword v9, v3, s[8:9] {kvflags}")
            a(f"global_load_dword v9, v2, s[26:27] offset:1024 {kvflags}")
            if tlb > 1:
                a("s_lshl_b32 s36, s2, 12")
                a(f"s_add_u32 s36, s36, {WS_P1}")
                a("v_mov_b32 v3, s36")
                a(f"global_load_dword v9, v3, s[26:27] {kvflags}")
                a(f"v_add_u32 v3, {WS_P2 - WS_P1}, v3")
                a(f"global_load_dword v9, v3, s[26:27] {kvflags}")
                a("v_xor_b32 v3, 0x80000, v3")
                a(f"global_load_dword v9, v3, s[26:27] {kvflags}")
            if tlb > 2:
                a(f"global_load_dword v9, v2, s[22:23] {kvflags}")
            a("s_mov_b64 exec, -1")
        a("s_barrier")
        srds()
        for r in [6, 14, VKO, VVO, VB] + list(range(VT, VT + 20)): a(f"v_mov_b32 v{r}, 0")
        a("s_mov_b64 exec, 0")
        a("s_mov_b32 s42, 0")
        a("s_mov_b32 s54, 1")
        a("s_mov_b32 s41, 0")
        a("s_mov_b32 s33, 0")
        a("s_mov_b32 s29, 0")
        a("s_mov_b32 s76, 0")
        a("s_mov_b32 s77, 0")
        a("s_mov_b64 s[96:97], 0")
        a("s_mov_b64 s[98:99], 0")
        a("s_branch L_kloop")

    section("E")
    lab(KN)
    a("s_load_dwordx16 s[4:19], s[0:1], 0")
    a("s_load_dwordx8 s[20:27], s[0:1], 64")
    if ts: a("s_memrealtime s[70:71]")
    a("v_lshrrev_b32 v1, 6, v0")
    a("s_cmpk_ge_u32 s2, 256")
    a("s_cbranch_scc1 L_end")
    a("v_readfirstlane_b32 s3, v1")
    a("v_and_b32 v0, 63, v0")
    a("s_mul_i32 s39, s2, 0x81010")
    a("s_and_b32 s39, s39, 0x301f80")
    a("s_sub_u32 s42, s3, 1")
    a("s_cbranch_scc1 L_xwave")
    if warm:
        a("s_cmp_eq_u32 s3, 5")
        a("s_cbranch_scc1 L_wstub" if wstub else "s_cbranch_scc1 L_wwave")
    pm = [set(x.split("^")) for x in pmap.split()]
    assert len(pm) == 11
    PB = [b for b in range(11, 23) if b != i1bit]
    def mask_of(sym, m=pm): return sum(1 << PB[p] for p in range(11) if sym in m[p])
    def scalar_part(dst, m, srcs):
        a(f"s_lshl_b32 {dst}, s38, 23")
        for pre, (reg, nb) in srcs.items():
            masks = [mask_of(f"{pre}{i}", m) for i in range(nb)]
            if not any(masks): continue
            if masks[0] and all(masks[i] == masks[0] << i for i in range(nb)) and bin(masks[0]).count("1") == 1:
                a(f"s_lshl_b32 s35, {reg}, {masks[0].bit_length()-1}")
                a(f"s_xor_b32 {dst}, {dst}, s35")
                continue
            for i in range(nb):
                if masks[i]:
                    a(f"s_bfe_i32 s35, {reg}, {0x10000 + i:#x}")
                    a(f"s_and_b32 s35, s35, {masks[i]:#x}")
                    a(f"s_xor_b32 {dst}, {dst}, s35")
    def lane_part(vdst, ssrc, m, pre, nb):
        a(f"v_mov_b32 v{vdst}, {ssrc}")
        for i in range(nb):
            mk = mask_of(f"{pre}{i}", m)
            if mk:
                a(f"v_bfe_i32 v7, v0, {i}, 1")
                a(f"v_and_b32 v7, {mk:#x}, v7")
                a(f"v_xor_b32 v{vdst}, v{vdst}, v7")
    def nconst(n):
        c = 0
        for i in range(5):
            if n >> i & 1: c ^= mask_of(f"n{i}")
        return c
    a("s_lshl_b32 s37, s42, 18")
    a("s_or_b32 s36, s39, s37")
    a("v_mul_u32_u24 v4, 0x410, v0")
    a("v_and_b32 v4, 0xe070, v4")
    a("v_or_b32 v4, s36, v4")
    a("s_lshl_b32 m0, s42, 12")
    a("s_mov_b32 s37, 0" if 'wq' in skip else "s_lshl_b32 s37, 1, 16")
    a("s_waitcnt lgkmcnt(0)")
    if ts: a("s_memrealtime s[68:69]")
    for i in range(4):
        a(f"global_load_lds_dwordx4 v4, s[10:11] {wflags}")
        if i < 3:
            a("s_addk_i32 m0, 1024")
            a("v_add_u32 v4, s37, v4")
    a("s_branch L_srest")
    assert i1bit != 11
    def tstamp():
        if ts and probe is None:
            a("s_memrealtime s[70:71]")
            a("s_add_u32 s79, s79, 1")
            a("s_lshr_b32 m0, s79, 1")
            a("s_waitcnt lgkmcnt(0)")
            a("v_writelane_b32 v13, s70, m0")
    def issue(reg, voff, srd, down=False, n=None, fn=None, mid=None, fill=None, skipto=None):
        n = N if n is None else n
        fn = fine if fn is None else fn
        seq = (2, 3, 0, 1) if down else (0, 1, 2, 3)
        if mate: seq = (2, 0, 3, 1) if down else (0, 2, 1, 3)
        for k, u in enumerate(seq):
            if k and (u >> 1) != (seq[k-1] >> 1): a(f"s_bitset{u >> 1}_b32 s52, {i1bit}")
            if k % fn == 0: a(f"s_waitcnt vmcnt({n})")
            if k == 0 and mid: lab(mid)
            a(f"buffer_load_dwordx4 v[{reg+4*u}:{reg+4*u+3}], v{voff}, {srd}, s52 offen offset:{(u&1)*1024} {kvflags}")
        tstamp()
    def issueK(slot): issue(VR + slot * 32, VKO, "s[44:47]", n=NM, fn=fineM, mid=f"L_gkr{slot}")
    def issueV(slot): issue(VR + slot * 32 + 16, VVO, "s[48:51]", down=True, n=NM, fn=fineM, mid=f"L_gvr{slot}")
    assert not rush or fineM == 4
    assert NM + fineM <= 8 and N + fine <= 8
    rest = list(range(2, RH))
    PERM = [0 if p == (RH - 1) // 2 else 1 if p == RH - 1 else rest.pop(0) for p in range(RH)]
    assert sorted(PERM) == list(range(RH))
    section("S")
    lab("L_srest")
    if ts: a("s_memrealtime s[100:101]")
    a(f"v_lshlrev_b32 v{VVO}, 4, v0")
    def tail_setup():
        a("v_lshrrev_b32 v3, 4, v0")
        a("v_and_b32 v4, 15, v0")
        a("v_bfe_u32 v5, v0, 2, 2")
        a("s_lshl_b32 s35, s42, 11")
        a(f"v_lshl_add_u32 v{T_OW}, v0, 5, s35")
        a("s_lshl_b32 s36, s42, 3")
        a(f"v_lshl_add_u32 v{T_SW}, v5, 5, s36")
        a("s_lshl_b32 s35, s42, 9")
        a(f"v_lshl_add_u32 v{T_OR}, v0, 3, s35")
        a("s_lshl_b32 s36, s42, 5")
        a(f"v_mov_b32 v{T_SR}, s36")
        a("s_lshl_b32 s35, s43, 12")
        a("s_lshl_b32 s36, s42, 10")
        a("s_add_u32 s36, s35, s36")
        a(f"s_add_u32 s37, s36, {WS_P1}")
        a(f"v_lshl_add_u32 v{T_P1S}, v0, 4, s37")
        a("s_lshl_b32 s36, s38, 16")
        a("s_lshl_b32 s37, s32, 8")
        a("s_add_u32 s36, s36, s37")
        a("s_lshl_b32 s37, s42, 6")
        a("s_add_u32 s36, s36, s37")
        a(f"s_add_u32 s36, s36, {WS_P1}")
        a(f"v_lshl_add_u32 v{T_P1L}, v4, 12, s36")
        a(f"v_lshl_add_u32 v{T_P1L}, v3, 4, v{T_P1L}")
        a("s_lshl_b32 s36, s42, 4")
        a(f"v_lshl_add_u32 v{T_OBW}, v3, 2, s36")
        a("s_lshl_b32 s36, s42, 6")
        a("s_lshl_b32 s37, s43, 3")
        a("s_add_u32 s36, s36, s37")
        a("v_lshl_add_u32 v1, v4, 2, v3")
        a("v_add_u32 v1, s36, v1")
        a("v_and_b32 v1, 255, v1")
        a(f"s_add_u32 s37, s35, {WS_P2}")
        a(f"v_lshl_add_u32 v{T_P2S}, v1, 4, s37")
        a("s_lshl_b32 s36, s42, 8")
        a("v_lshl_add_u32 v1, v4, 4, s36")
        a("s_lshl_b32 s36, s34, 15")
        a("s_add_u32 s36, s36, 4096")
        a("v_lshl_add_u32 v2, v3, 13, s36")
        a(f"v_add_u32 v{T_WO}, v1, v2")
        a(f"s_mul_i32 s36, s34, {14*1024}")
        a("v_add_u32 v1, s36, v1")
        a("s_and_b32 s36, s34, 1")
        a("v_lshlrev_b32 v2, 1, v3")
        a("v_subrev_u32 v2, s36, v2")
        a("v_max_i32 v5, 0, v2")
        a(f"v_lshl_add_u32 v{T_D0}, v5, 11, v1")
        a("v_add_u32 v2, 1, v2")
        a("v_min_i32 v5, 6, v2")
        a(f"v_lshl_add_u32 v{T_D1}, v5, 11, v1")
        a(f"v_lshlrev_b32 v{T_H}, 3, v3")
        a(f"v_lshlrev_b32 v{T_OBR}, 4, v3")
        if not c64:
            a("s_lshr_b32 s35, s28, 2")
            a("s_and_b32 s36, s28, 3")
            a("s_lshl_b32 s36, s36, 5")
            a("s_add_u32 s36, s36, s29")
            a("v_and_b32 v2, 1, v0")
            a("v_lshrrev_b32 v3, 1, v0")
            a("s_lshl_b32 s37, s36, 1")
            a("v_lshl_add_u32 v4, v3, 3, s37")
            a("v_add_u32 v4, v4, v2")
            a("v_and_b32 v4, 255, v4")
            a("s_lshl_b32 s37, s35, 19")
            a(f"s_add_u32 s37, s37, {WS_P2}")
            a("v_lshl_add_u32 v4, v4, 4, s37")
            a(f"v_lshl_add_u32 v{T_F0}, v3, 12, v4")
            for k in range(1, 4): a(f"v_add_u32 v{T_F0+k}, {k << 17:#x}, v{T_F0}")
            a("s_lshl_b32 s37, s35, 10")
            a("s_lshl_b32 s36, s36, 3")
            a("s_add_u32 s37, s37, s36")
            a(f"v_lshl_add_u32 v{T_XO}, v2, 2, s37")
        else:
            a("s_lshr_b32 s35, s28, 2")
            a("s_and_b32 s36, s28, 3")
            a("s_lshl_b32 s36, s36, 3")
            a("s_lshr_b32 s37, s29, 2")
            a("s_add_u32 s36, s36, s37")
            a("v_and_b32 v2, 7, v0")
            a("v_lshrrev_b32 v3, 3, v0")
            a("s_lshl2_add_u32 s37, s35, s42")
            a("s_lshl_b32 s37, s37, 17")
            a(f"s_add_u32 s37, s37, {WS_P2}")
            a("v_lshl_add_u32 v5, v2, 4, s37")
            for k in range(4):
                a(f"v_add_u32 v1, {8*k}, v3")
                a("v_add_u32 v4, s36, v1")
                a("v_and_b32 v4, 31, v4")
                a("v_lshl_add_u32 v4, v4, 7, v5")
                a(f"v_lshl_add_u32 v{T_F0+k}, v1, 12, v4")
            a("s_lshl_b32 s37, s35, 10")
            a("s_lshl_b32 s36, s36, 5")
            a("s_add_u32 s37, s37, s36")
            a(f"v_lshl_add_u32 v{T_XO}, v2, 2, s37")
        a("s_mov_b32 s64, 0x05040100")
        a("s_mov_b32 s65, 0x07060302")
    def s_setup():
        zero_stamps()
        if ts:
            a("v_mov_b32 v13, 0")
            a("s_mov_b32 s79, 1")
        stamp(9)
        if probe is not None:
            a("s_mov_b32 s92, s68")
            a("s_mov_b32 s93, s100")
        decode()
        srds()
        scalar_part("s66", pm, {"w": ("s42", 2), "r": ("s32", 4), "g": ("s38", 4)})
        a("v_lshrrev_b32 v2, 4, v0")
        a("v_and_b32 v3, 3, v0")
        a("v_bfe_u32 v4, v0, 2, 2")
        a("v_lshlrev_b32 v5, 8, v4")
        a("v_lshl_add_u32 v5, v2, 6, v5")
        a(f"v_lshl_add_u32 v{VKO}, v3, 4, v5")
        if early:
            a("s_mov_b32 s52, s66")
            issue(VR + PERM[0] * 16, VKO, "s[44:47]", n=NP, fn=4)
        a("s_mov_b32 s43, s2")
        lane_part(10, "s66", pm, "n", 5)
        a("s_mov_b32 s55, 0")
        for i in range(2):
            a(f"s_bfe_i32 s35, s42, {0x10000 + i:#x}")
            a(f"s_and_b32 s35, s35, {mask_of('w%d' % i):#x}")
            a("s_xor_b32 s55, s55, s35")
        a("s_lshl_b32 s36, s42, 2")
        a("v_mov_b32 v14, s36")
        a("v_mov_b32 v6, 0xffff")
        a("v_mov_b32 v7, 0xffff0000")
        a("v_and_b32 v8, 1, v0")
        a("v_cmp_eq_u32 vcc, 1, v8")
        a("v_and_b32 v8, 2, v0")
        a("s_nop 0")
        a("v_cndmask_b32 v6, v6, v7, vcc")
        a("v_cmp_eq_u32 vcc, 2, v8")
        a(f"v_mov_b32 v{VM}, {f2u(-3.0e38):#x}")
        a(f"v_mov_b32 v{VL}, 0")
        a(f"v_cndmask_b32 v{VM1}, 0, v6, vcc")
        a(f"v_xor_b32 v{VM0}, v{VM1}, v6")
        for i in range(8): a(f"v_mov_b32 v{VO+i}, 0")
        a(f"s_mov_b32 s53, {f2u(math.log2(math.e) / math.sqrt(128.0)):#x}")
        a("s_mov_b32 s54, 1000")
        a(f"s_mov_b32 s41, {RH}")
        a(f"s_mov_b32 s76, {NA // RH - 1}")
        a(f"s_mov_b32 s77, {NA // RH - 1}")
        a("s_mov_b64 s[96:97], -1")
        a("s_mov_b32 s98, 0x11111111")
        a("s_mov_b32 s99, 0x11111111")
        a(f"v_mov_b32 v{VB}, v{VKO}")
        a(f"s_mul_i32 s36, s42, {NA * 256}")
        a(f"v_lshl_add_u32 v{VSR}, v0, 2, s36")
        a(f"v_and_b32 v{VSW}, -16, v{VSR}")
        tail_setup()
        a("v_mov_b32 v6, 0")
    a("s_cmpk_ge_u32 s2, 224")
    a("s_cbranch_scc1 L_nogu")
    a("s_and_b32 s36, s2, 7")
    a("s_lshl2_add_u32 s36, s36, s42")
    a(f"s_mul_i32 s36, s36, {16*3584}")
    a("s_andn2_b32 s37, s2, 7")
    a("s_lshl4_add_u32 s36, s37, s36")
    a("v_lshrrev_b32 v2, 3, v0")
    a("v_and_b32 v3, 7, v0")
    a("v_mul_u32_u24 v2, 3584, v2")
    a("v_lshl_add_u32 v2, v3, 4, v2")
    a("s_lshl_b32 s35, s42, 11")
    a(f"s_add_u32 m0, s35, {L_W1}")
    a("v_add_u32 v2, s36, v2")
    if "ffn" not in skip:
        a(f"global_load_lds_dwordx4 v2, s[16:17] {wflags}")
        a("s_addk_i32 m0, 1024")
        a(f"v_add_u32 v3, {8*3584}, v2")
        a(f"global_load_lds_dwordx4 v3, s[16:17] {wflags}")
        a("s_addk_i32 m0, 7168")
        a("s_nop 0")
        a(f"global_load_lds_dwordx4 v2, s[18:19] {wflags}")
        a("s_addk_i32 m0, 1024")
        a("s_nop 0")
        a(f"global_load_lds_dwordx4 v3, s[18:19] {wflags}")
    lab("L_nogu")
    s_setup()
    for p in range(RH):
        a(f"s_xor_b32 s52, s66, {nconst(p):#x}")
        if p == 0:
            if not early: issue(VR + PERM[p] * 16, VKO, "s[44:47]", n=NP, fn=4)
        else: issue(VR + PERM[p] * 16, VKO, "s[44:47]", n=NK, fn=fineK)
        if p == 0:
            a("s_waitcnt vmcnt(8)")
            a("s_cmpk_lt_u32 s2, 224")
            a("s_cbranch_scc1 L_wqok")
            a("s_waitcnt vmcnt(4)")
            lab("L_wqok")
            if probe is not None: stamp(11)
            a("s_barrier")
            stamp(10)
        if p == 2 and vtouch:
            a("s_cmp_lg_u32 s42, 0")
            a("s_cbranch_scc1 L_novt")
            a("s_mov_b64 exec, 1")
            a(f"buffer_load_dword v8, v6, s[48:51], s66 offen {kvflags}")
            a("s_mov_b64 exec, -1")
            lab("L_novt")
        if p == (1 if NK <= 4 else 2):
            a("s_mov_b64 exec, 1")
            a("v_mov_b32 v15, 1")
            a(f"ds_write_b32 v14, v15 offset:{L_RDY}")
            a("s_mov_b64 exec, -1")
    stamp(1)
    a(f"s_mov_b32 s40, {spin * 8}")
    lab("L_qflag")
    a(f"ds_read_b64 v[2:3], v6 offset:{L_TAG}")
    a("s_waitcnt lgkmcnt(0)")
    a("v_cmp_eq_u32 vcc, 0, v3")
    a("s_cbranch_vccz L_qflag_done")
    a("s_sleep 1")
    a("s_sub_u32 s40, s40, 1")
    a("s_cbranch_scc0 L_qflag")
    lab("L_qflag_done")
    a(f"ds_read_b128 v[{VQ}:{VQ+3}], v{VKO} offset:{L_Q}")
    a("v_mov_b32 v17, v2")
    a("v_readfirstlane_b32 s33, v2")
    stamp(2)
    a("s_nop 1")
    tagregs()
    a("s_waitcnt lgkmcnt(0)")
    def claim(first=False):
        a("s_mov_b32 s35, 1" if first else f"s_sub_u32 s35, s41, {NS - 1}")
        a("s_mov_b64 exec, 1")
        a("v_mov_b32 v15, s35")
        a(f"ds_write_b32 v14, v15 offset:{L_REQ}")
        a("s_mov_b64 exec, -1")
    def qk(slot):
        K = VR + slot * 32
        for u in range(4):
            a(f"v_mfma_f32_16x16x32_bf16 v[{VS+4*u}:{VS+4*u+3}], v[{K+4*u}:{K+4*u+3}], v[{VQ}:{VQ+3}], 0")
    def softmax():
        for u in range(4):
            a(f"v_mov_b32_dpp v{4+u}, v{VS+4*u} quad_perm:[0,0,0,0] row_mask:0xf bank_mask:0xf")
        for p in range(1, 4):
            for u in range(4):
                a(f"v_add_f32_dpp v{4+u}, v{VS+4*u+p}, v{4+u} quad_perm:[{p},{p},{p},{p}] row_mask:0xf bank_mask:0xf")
        a("v_max3_f32 v1, v4, v5, v6")
        a(f"v_max3_f32 v1, v1, v7, v{VM}")
        a("v_mov_b32 v2, v1")
        a("s_nop 1")
        a("v_permlane16_swap_b32 v1, v2")
        a("s_nop 0")
        a("v_max_f32 v1, v1, v2")
        a("v_mov_b32 v2, v1")
        a("s_nop 1")
        a("v_permlane32_swap_b32 v1, v2")
        a("s_nop 0")
        a("v_max_f32 v1, v1, v2")
        a(f"v_sub_f32 v2, v{VM}, v1")
        a("v_mul_f32 v3, s53, v1")
        a("v_mul_f32 v2, s53, v2")
        a(f"v_mov_b32 v{VM}, v1")
        a("v_exp_f32 v2, v2")
        for i in range(4):
            a(f"v_fma_f32 v{4+i}, v{4+i}, s53, -v3")
        for i in range(4):
            a(f"v_exp_f32 v{4+i}, v{4+i}")
        for g in range(4):
            a(f"v_mov_b32_dpp v8, v2 row_newbcast:{4*g} row_mask:{1<<g:#x} bank_mask:0xf")
        a(f"v_fma_f32 v{VL}, v{VL}, v2, v4")
        a("v_add_f32 v9, v5, v6")
        a(f"v_add_f32 v{VL}, v{VL}, v7")
        a(f"v_add_f32 v{VL}, v{VL}, v9")
        for i in range(4):
            a(f"v_cvt_pk_bf16_f32 v{4+i}, v{4+i}, v{4+i}")
        for i in range(8):
            a(f"v_mul_f32 v{VO+i}, v{VO+i}, v8")
        for i in range(4):
            a(f"v_and_b32 v{VA+2*i}, v{4+i}, v{VM0}")
            a(f"v_and_b32 v{VA+2*i+1}, v{4+i}, v{VM1}")
    def pv(slot):
        V = VR + slot * 32 + 16
        for t in range(4):
            a(f"v_mfma_f32_16x16x16_bf16 v[{VO}:{VO+3}], v[{VA+2*t}:{VA+2*t+1}], v[{V+4*t}:{V+4*t+1}], v[{VO}:{VO+3}]")
            a(f"v_mfma_f32_16x16x16_bf16 v[{VO+4}:{VO+7}], v[{VA+2*t}:{VA+2*t+1}], v[{V+4*t+2}:{V+4*t+3}], v[{VO+4}:{VO+7}]")
    def guarded(f):
        if not warm: return f()
        skn[0] += 1
        n = skn[0]
        a(f"s_cbranch_execz L_g{n}")
        f()
        lab(f"L_g{n}")
    lab("L_kloop")
    a("s_cmp_lg_u32 s76, 0")
    a("s_cbranch_scc1 L_k0")
    a("s_mov_b64 s[72:73], s[8:9]")
    a(f"v_mov_b32 v{VB}, v{VVO}")
    a("s_mov_b32 s41, 0")
    lab("L_k0")
    for p in range(RH):
        K = VR + PERM[p] * 16
        for u in range(4):
            a(f"v_mfma_f32_16x16x32_bf16 v[{VS+4*u}:{VS+4*u+3}], v[{K+4*u}:{K+4*u+3}], v[{VQ}:{VQ+3}], 0")
        a("v_readlane_b32 s52, v10, s41")
        a("s_add_u32 s41, s41, 1")
        a("s_nop 2")
        for u in range(4):
            a(f"v_add_f32_dpp v{4+u}, v{VS+4*u+1}, v{VS+4*u} quad_perm:[1,1,1,1] row_mask:0xf bank_mask:0xf")
        for q_ in (2, 3):
            for u in range(4):
                a(f"v_add_f32_dpp v{4+u}, v{VS+4*u+q_}, v{4+u} quad_perm:[{q_},{q_},{q_},{q_}] row_mask:0xf bank_mask:0xf")
        a("s_mov_b64 exec, s[98:99]")
        a(f"v_max3_f32 v{VM}, v4, v5, v{VM}")
        a(f"ds_write_b128 v{VSW}, v[4:7] offset:{L_SC + p*256}")
        a(f"v_max3_f32 v{VM}, v6, v7, v{VM}")
        a("s_mov_b64 exec, s[96:97]")
        guarded(lambda: issue(K, VB, "s[72:75]"))
    a(f"v_add_u32 v{VSW}, {RH*256}, v{VSW}")
    a("s_sub_u32 s76, s76, 1")
    a("s_cbranch_scc0 L_kloop")
    a(f"ds_read_b32 v9, v{VSR} offset:{L_SC}")
    a(f"v_mov_b32_dpp v1, v{VM} quad_perm:[0,0,0,0] row_mask:0xf bank_mask:0xf")
    a(f"v_mov_b32_dpp v2, v{VM} quad_perm:[0,0,0,0] row_mask:0xf bank_mask:0xf")
    a("s_nop 1")
    a("v_permlane16_swap_b32 v1, v2")
    a("s_nop 0")
    a("v_max_f32 v1, v1, v2")
    a("v_mov_b32 v2, v1")
    a("s_nop 1")
    a("v_permlane32_swap_b32 v1, v2")
    a("s_mov_b32 s78, 1")
    a(f"v_max_f32 v{VM}, v1, v2")
    a(f"v_mul_f32 v3, s53, v{VM}")
    lab("L_vloop")
    a("s_cmp_lg_u32 s77, 0")
    a("s_cbranch_scc1 L_v0")
    a("s_mov_b64 s[72:73], s[6:7]")
    a(f"v_mov_b32 v{VB}, v{VKO}")
    a("s_mov_b32 s78, 0")
    lab("L_v0")
    for p in range(RH):
        sl = PERM[p]
        V = VR + sl * 16
        a("v_readlane_b32 s52, v10, s41")
        a("s_waitcnt lgkmcnt(0)")
        a("v_fma_f32 v4, v9, s53, -v3")
        a(f"ds_read_b32 v9, v{VSR} offset:{L_SC + (p+1)*256}")
        a("v_exp_f32 v4, v4")
        a("s_add_u32 s41, s41, 1" if sl == 1 else "s_add_u32 s41, s41, s78")
        a("v_cvt_pk_bf16_f32 v5, v4, v4")
        a(f"v_add_f32 v{VL}, v{VL}, v4")
        a("s_nop 0")
        for t in range(4):
            a(f"v_and_b32_dpp v{VA+2*t}, v5, v{VM0} quad_perm:[{t},{t},{t},{t}] row_mask:0xf bank_mask:0xf")
            a(f"v_and_b32_dpp v{VA+2*t+1}, v5, v{VM1} quad_perm:[{t},{t},{t},{t}] row_mask:0xf bank_mask:0xf")
        if p == RH - 1:
            a("s_cmp_lg_u32 s77, 0")
            a("s_cbranch_scc1 L_vw")
            a("s_waitcnt vmcnt(4)")
            lab("L_vw")
        for t in range(4):
            a(f"v_mfma_f32_16x16x16_bf16 v[{VO}:{VO+3}], v[{VA+2*t}:{VA+2*t+1}], v[{V+4*t}:{V+4*t+1}], v[{VO}:{VO+3}]")
            a(f"v_mfma_f32_16x16x16_bf16 v[{VO+4}:{VO+7}], v[{VA+2*t}:{VA+2*t+1}], v[{V+4*t+2}:{V+4*t+3}], v[{VO+4}:{VO+7}]")
        if sl >= 2:
            a("s_cmp_eq_u32 s77, 0")
            a(f"s_cbranch_scc1 L_vs{p}")
            issue(V, VVO, "s[48:51]")
            lab(f"L_vs{p}")
        elif sl == 0:
            guarded(lambda: issue(V, VB, "s[72:75]"))
        else:
            guarded(lambda: issue(V, VVO, "s[48:51]"))
        if sl == (1 if reqat == "V" else 0) and NS == NA + 1 and NS < 32:
            a("s_cmp_lg_u32 s77, 0")
            a("s_cbranch_scc1 L_vnc")
            guarded(lambda: claim(first=True))
            lab("L_vnc")
    a(f"v_add_u32 v{VSR}, {RH*256}, v{VSR}")
    a("s_sub_u32 s77, s77, 1")
    a("s_cbranch_scc0 L_vloop")
    a(f"v_add_f32_dpp v{VL}, v{VL}, v{VL} quad_perm:[1,0,3,2] row_mask:0xf bank_mask:0xf")
    a("s_waitcnt lgkmcnt(0)")
    a("s_nop 0")
    a(f"v_add_f32_dpp v{VL}, v{VL}, v{VL} quad_perm:[2,3,0,1] row_mask:0xf bank_mask:0xf")
    if warm:
        a("s_cbranch_execnz L_loop")
        a("s_mov_b32 s41, 63")
    lab("L_loop")
    snips = []
    def bump(slot):
        a("s_add_u32 s41, s41, 1")
        if NS < 32:
            a(f"s_cmp_lt_u32 s41, {NS}")
            a(f"s_cbranch_scc1 L_nc{slot}")
            claim()
            lab(f"L_nc{slot}")
    WL = [f"global_load_dwordx4 v[{RD+4*i}:{RD+4*i+3}], v{T_D0 + i//2}, s[20:21] offset:{(i&1)*1024} {woflags}" for i in range(4)]
    WL += [f"global_load_dwordx4 v[{RW+4*i}:{RW+4*i+3}], v{T_WO}, s[12:13] offset:{i*1024-4096} {woflags}" for i in range(8)]
    assert nC <= nA <= 12
    for slot in range(R):
        oth = 1 - slot
        a("v_readlane_b32 s52, v10, s41")
        a(f"s_cmp_ge_u32 s41, {NS}")
        a(f"s_cbranch_scc1 L_tk{slot}")
        a("s_nop 1")
        lab(f"L_gk{slot}")
        issueK(oth)
        if reqat == "K": bump(slot)
        lab(f"L_rk{slot}")
        sn = [f"L_tk{slot}:"]
        if warm: sn += [f"    s_cbranch_execz L_rk{slot}"]
        if NS < 32:
            sn += ["    s_lshl_b32 s35, s41, 2", f"    s_add_u32 s35, s35, {L_TK - 4 * NS}", "    v_mov_b32 v15, s35", f"    s_mov_b32 s40, {spin * 8}",
                   f"L_tp{slot}:", "    ds_read_b32 v16, v15", "    s_sub_u32 s40, s40, 1", f"    s_cbranch_scc1 L_tf{slot}", "    s_waitcnt lgkmcnt(0)",
                   "    v_readfirstlane_b32 s35, v16", "    s_nop 1", "    s_cmp_eq_u32 s35, -1", f"    s_cbranch_scc1 L_tp{slot}",
                   "    s_xor_b32 s52, s35, s55", "    s_cmp_lg_u32 s35, -2", f"    s_cbranch_scc1 L_gk{slot}", f"L_tf{slot}:"]
        sn += ["    s_mov_b32 s54, 0"] + ["    " + x for x in WL[:nC]] + [f"    s_waitcnt vmcnt({4+nC})", f"    s_branch L_rk{slot}"]
        snips.append(sn)
        qk(slot)
        a("s_nop 4")
        softmax()
        a("s_cmp_lt_u32 s54, 2")
        a(f"s_cbranch_scc1 L_dv{slot}")
        issueV(oth)
        if reqat == "V": bump(slot)
        lab(f"L_rv{slot}")
        pv(slot)
        a("s_sub_u32 s54, s54, 1")
        a("s_cbranch_scc1 L_done")
        snips.append([f"L_dv{slot}:"] + ([f"    s_cbranch_execz L_rv{slot}"] if warm else []) + ["    " + x for x in WL[nC:nA]] + [f"    s_waitcnt vmcnt({nA})", f"    s_branch L_rv{slot}"])
    a("s_branch L_loop")
    for sn in snips: cur[0].extend(sn)
    lab("L_done")
    stamp(3)
    if ts: a("s_mov_b32 s94, s41")
    if ts and probe is None: a(f"v_mov_b32 v{VR}, v13")
    def poll1(k): return f"global_load_dwordx4 v[{VP1+4*k}:{VP1+4*k+3}], v{T_P1L}, s[26:27] {ldflags}"
    def poll2(k): return [f"global_load_dwordx4 v[{VP2+16*k+4*i}:{VP2+16*k+4*i+3}], v{T_F0+i}, s[26:27] {ldflags}" for i in range(4)]
    a(f"v_mov_b32 v2, v{VL}")
    a(f"v_mul_f32 v10, s53, v{VM}")
    a("s_nop 0")
    a(f"v_permlane16_swap_b32 v{VL}, v2")
    a("s_nop 0")
    a(f"v_add_f32 v11, v{VL}, v2")
    a("v_mov_b32 v2, v11")
    a(f"ds_write_b128 v{T_OW}, v[{VO}:{VO+3}] offset:{L_O}")
    a(f"ds_write_b128 v{T_OW}, v[{VO+4}:{VO+7}] offset:{L_O+16}")
    a("v_permlane32_swap_b32 v11, v2")
    a("s_nop 0")
    a("v_add_f32 v11, v11, v2")
    a(f"ds_write_b64 v{T_SW}, v[10:11] offset:{L_ST}")
    a("s_waitcnt lgkmcnt(0)")
    guard(["s_barrier"])
    a(f"ds_read_b128 v[8:11], v{T_SR} offset:{L_ST}")
    a(f"ds_read_b128 v[12:15], v{T_SR} offset:{L_ST+16}")
    for w in range(4):
        a(f"ds_read_b64 v[{24+2*w}:{25+2*w}], v{T_OR} offset:{L_O + w*2048}")
    a("v_mov_b32 v39, v17")
    a("s_waitcnt lgkmcnt(4)")
    a("v_max3_f32 v2, v8, v10, v12")
    a("v_max_f32 v2, v2, v14")
    for w in range(4):
        a(f"v_sub_f32 v{8+2*w}, v{8+2*w}, v2")
    for w in range(4):
        a(f"v_exp_f32 v{8+2*w}, v{8+2*w}")
    a("v_mul_f32 v16, v8, v9")
    a("v_fmac_f32 v16, v10, v11")
    a("v_fmac_f32 v16, v12, v13")
    a("v_fmac_f32 v16, v14, v15")
    a("s_waitcnt lgkmcnt(0)")
    a("v_rcp_f32 v5, v16")
    a("v_log_f32 v16, v16")
    a("v_mul_f32 v36, v8, v24")
    a("v_mul_f32 v37, v8, v25")
    for w in range(1, 4):
        a(f"v_fmac_f32 v36, v{8+2*w}, v{24+2*w}")
        a(f"v_fmac_f32 v37, v{8+2*w}, v{25+2*w}")
    a("v_add_f32 v38, v2, v16")
    a("v_mul_f32 v36, v36, v5")
    a("v_mul_f32 v37, v37, v5")
    if "halfP1" in skip:
        a("s_cmp_ge_u32 s42, 2")
        a("s_cbranch_scc1 L_hp1")
    guard([f"global_store_dwordx4 v{T_P1S}, v[36:39], s[26:27] {stflags}"] + ([] if ts else WL[nA:] + [poll1(0)]))
    if "halfP1" in skip:
        lab("L_hp1")
        a(f"v_and_b32 v{T_P1L}, 0xfffff7ff, v{T_P1L}")
    stamp(4)
    if ts: guard(WL[nA:] + [poll1(0)])
    a(f"ds_read_b32 v{T_X}, v{T_XO} offset:{L_XR}")
    a(f"ds_read_b64 v[24:25], v{T_H} offset:{L_H}")
    def younger(k):
        return (11 - k) + (1 if k < nA else 0) + 1
    def pairup(raw, dst, p):
        for d in range(4):
            a(f"v_perm_b32 v{dst+8*p+2*d}, v{raw+8*p+4+d}, v{raw+8*p+d}, s64")
            a(f"v_perm_b32 v{dst+8*p+2*d+1}, v{raw+8*p+4+d}, v{raw+8*p+d}, s65")
    def dots(pairs, vec, npairs):
        for p in range(npairs):
            for c in range(8):
                a(f"v_dot2_f32_bf16 v{VS+c}, v{pairs+8*p+c}, v{vec+p}, {'0' if p == 0 else 'v%d' % (VS+c)}")
    def fold(dst):
        for k in range(4): a(f"v_permlane32_swap_b32 v{VS+k}, v{VS+4+k}")
        for k in range(4): a(f"v_add_f32 v{VS+k}, v{VS+k}, v{VS+4+k}")
        a("s_nop 0")
        for k in range(2): a(f"v_permlane16_swap_b32 v{VS+k}, v{VS+2+k}")
        for k in range(2): a(f"v_add_f32 v{dst+k}, v{VS+k}, v{VS+2+k}")
    a(f"s_waitcnt vmcnt({younger(3)})")
    for p in range(2): pairup(RD, PD, p)
    a("s_waitcnt lgkmcnt(0)")
    dots(PD, 24, 2)
    fold(42)
    a("v_perm_b32 v42, v42, v17, s62")
    a("v_perm_b32 v43, v43, v17, s63")
    for p in range(4):
        a(f"s_waitcnt vmcnt({younger(4 + 2*p + 1)})")
        pairup(RW, PW, p)
    a("v_mov_b32 v6, 0")
    a(f"s_mov_b32 s40, {spin}")
    if probe is None: stamp(11)
    stubs = []
    if D1 == 1: a("s_branch L_p1chk")
    lab("L_p1poll")
    for k in range(D1):
        guard([poll1((k + D1 - 1) % D1)])
        if D1 == 1: lab("L_p1chk")
        a(f"s_waitcnt vmcnt({D1 - 1})")
        a(f"v_cmp_ne_u32 vcc, s33, v{VP1+4*k+3}")
        if ts: a("s_sub_u32 s40, s40, 1")
        a(f"s_cbranch_vccz L_p1ok{k}")
        if sleep1: a(f"s_sleep {sleep1}")
        st = [f"L_p1ok{k}:", f"    v_mov_b32 v10, v{VP1+4*k+2}", f"    v_mov_b32 v8, v{VP1+4*k}", f"    v_mov_b32 v9, v{VP1+4*k+1}"]
        stubs.append(st + (["    s_branch L_p1done"] if k else []))
    a("s_sub_u32 s40, s40, 1")
    a("s_cmp_gt_i32 s40, 0")
    a("s_cbranch_scc1 L_p1poll")
    for st in reversed(stubs): cur[0].extend(st)
    lab("L_p1done")
    stamp(5)
    if ts and probe is None: a(f"s_sub_u32 s92, {spin}, s40")
    a("v_max_f32_dpp v2, v10, v10 row_ror:8 row_mask:0xf bank_mask:0xf")
    a("s_nop 1")
    for r in (4, 2, 1):
        a(f"v_max_f32_dpp v2, v2, v2 row_ror:{r} row_mask:0xf bank_mask:0xf")
        if r > 1: a("s_nop 1")
    a("v_sub_f32 v10, v10, v2")
    a("v_exp_f32 v10, v10")
    a("s_nop 0")
    a("v_mul_f32 v8, v8, v10")
    a("v_mul_f32 v9, v9, v10")
    for r in (8, 4, 2, 1):
        for v in (10, 8, 9):
            a(f"v_add_f32_dpp v{v}, v{v}, v{v} row_ror:{r} row_mask:0xf bank_mask:0xf")
    a("v_rcp_f32 v10, v10")
    a("s_nop 0")
    a("v_mul_f32 v8, v8, v10")
    a("v_mul_f32 v9, v9, v10")
    a("v_cvt_pk_bf16_f32 v8, v8, v9")
    a(f"ds_write_b32 v{T_OBW}, v8 offset:{L_OB}")
    a("s_waitcnt lgkmcnt(0)")
    guard(["s_barrier"])
    a(f"ds_read_b128 v[24:27], v{T_OBR} offset:{L_OB}")
    a("s_waitcnt lgkmcnt(0)")
    dots(PW, 24, 4)
    fold(40)
    a("v_perm_b32 v40, v40, v17, s60")
    a("v_perm_b32 v41, v41, v17, s61")
    if "halfP2" in skip:
        a("s_cmp_ge_u32 s42, 2")
        a("s_cbranch_scc1 L_hp2")
    guard([f"global_store_dwordx4 v{T_P2S}, v[40:43], s[26:27] {stflags}"])
    if "halfP2" in skip:
        lab("L_hp2")
        a("s_and_b32 s35, s28, 2")
        a("s_cbranch_scc1 L_sexit")
    stamp(6)
    if c64:
        a("s_and_b32 s35, s29, 3")
        a("s_cbranch_scc1 L_sexit")
        a("v_and_b32 v3, 7, v0")
        a("v_lshlrev_b32 v3, 4, v3")
        a("s_lshl_b32 s35, s42, 7")
        a("v_lshrrev_b32 v4, 4, v0")
        a("v_lshl_add_u32 v4, v4, 2, v3")
        a("v_add_u32 v4, s35, v4")
        a("s_mov_b32 s66, 0xffffff00")
    else:
        a("s_cmp_lg_u32 s42, 0")
        a("s_cbranch_scc1 L_sexit")
    a(f"s_mov_b32 s40, {spin}")
    assert c64
    for k in range(D2 - 1):
        guard(poll2(k))
        if sleep2: a(f"s_sleep {sleep2}")
    stubs = []
    lab("L_p2poll")
    for k in range(D2):
        guard(poll2((k + D2 - 1) % D2))
        a(f"s_waitcnt vmcnt({4 * (D2 - 1)})")
        check([VP2 + 16 * k + 4 * i for i in range(4)], 2)
        if ts: a("s_sub_u32 s40, s40, 1")
        a(f"s_cbranch_vccz L_p2ok{k}")
        if sleep2: a(f"s_sleep {sleep2}")
        st = [f"L_p2ok{k}:"] + [f"    v_and_b32 v{24+i}, s66, v{VP2+16*k+i}" for i in range(16)]
        stubs.append(st + (["    s_branch L_p2done"] if k else []))
    a("s_sub_u32 s40, s40, 1")
    a("s_cmp_gt_i32 s40, 0")
    a("s_cbranch_scc1 L_p2poll")
    for st in reversed(stubs): cur[0].extend(st)
    lab("L_p2done")
    stamp(7)
    if ts and probe is None: a(f"s_sub_u32 s93, {spin}, s40")
    for i in (0, 2):
        a(f"v_pk_add_f32 v[{24+i}:{25+i}], v[{24+i}:{25+i}], v[{28+i}:{29+i}]")
        a(f"v_pk_add_f32 v[{32+i}:{33+i}], v[{32+i}:{33+i}], v[{36+i}:{37+i}]")
    for i in (0, 2): a(f"v_pk_add_f32 v[{8+i}:{9+i}], v[{24+i}:{25+i}], v[{32+i}:{33+i}]")
    a("s_nop 1")
    a("v_permlane32_swap_b32 v8, v10")
    a("v_permlane32_swap_b32 v9, v11")
    a("s_nop 0")
    a("v_add_f32 v8, v8, v10")
    a("v_add_f32 v9, v9, v11")
    a("s_nop 1")
    a("v_permlane16_swap_b32 v8, v9")
    a("s_nop 0")
    a("v_add_f32 v8, v8, v9")
    a("s_nop 1")
    a("v_add_f32_dpp v8, v8, v8 row_ror:8 row_mask:0xf bank_mask:0xf")
    a(f"ds_write_b32 v4, v8 offset:{L_O}")
    a("s_waitcnt lgkmcnt(0)")
    guard(["s_barrier"])
    a("s_cmp_lg_u32 s42, 0")
    a("s_cbranch_scc1 L_sexit")
    for w in range(4): a(f"ds_read_b128 v[{24+4*w}:{27+4*w}], v3 offset:{L_O + 128*w}")
    a("s_waitcnt lgkmcnt(2)")
    for i in (0, 2): a(f"v_pk_add_f32 v[{24+i}:{25+i}], v[{24+i}:{25+i}], v[{28+i}:{29+i}]")
    a("s_waitcnt lgkmcnt(0)")
    for i in (2, 0): a(f"v_pk_add_f32 v[{32+i}:{33+i}], v[{32+i}:{33+i}], v[{36+i}:{37+i}]")
    for i in (2, 0): a(f"v_pk_add_f32 v[{8+i}:{9+i}], v[{24+i}:{25+i}], v[{32+i}:{33+i}]")
    a("v_cvt_pk_bf16_f32 v10, v10, v11")
    a("v_cvt_pk_bf16_f32 v8, v8, v9")
    a("v_and_b32 v11, 0xffff0000, v10")
    a("v_lshlrev_b32 v10, 16, v10")
    a(f"v_mul_f32 v13, {f2u(-math.log2(math.e)):#x}, v11")
    a(f"v_mul_f32 v12, {f2u(-math.log2(math.e)):#x}, v10")
    a("v_exp_f32 v13, v13")
    a("v_exp_f32 v12, v12")
    a("v_and_b32 v9, 0xffff0000, v8")
    a("v_add_f32 v13, 1.0, v13")
    a("v_add_f32 v12, 1.0, v12")
    a("v_rcp_f32 v13, v13")
    a("v_rcp_f32 v12, v12")
    a("v_lshlrev_b32 v8, 16, v8")
    a("v_mul_f32 v11, v11, v13")
    a("v_mul_f32 v10, v10, v12")
    a("v_cvt_pk_bf16_f32 v10, v10, v11")
    a(f"v_lshlrev_b32 v12, 16, v{T_X}")
    a(f"v_and_b32 v13, 0xffff0000, v{T_X}")
    a("v_and_b32 v11, 0xffff0000, v10")
    a("v_lshlrev_b32 v10, 16, v10")
    a("v_mul_f32 v9, v9, v11")
    a("v_mul_f32 v8, v8, v10")
    a("v_cvt_pk_bf16_f32 v8, v8, v9")
    a("v_and_b32 v9, 0xffff0000, v8")
    a("v_lshlrev_b32 v8, 16, v8")
    a("v_add_f32 v9, v9, v13")
    a("v_add_f32 v8, v8, v12")
    a("v_cvt_pk_bf16_f32 v8, v8, v9")
    if warm: a("s_cbranch_execz L_end")
    a("s_mov_b64 exec, 0xff" if c64 else "s_mov_b64 exec, 3")
    a(f"global_store_dword v{T_XO}, v8, s[22:23] {outflags}")
    a("s_cmp_lg_u32 s2, 0")
    a("s_cbranch_scc1 L_sexit")
    a("s_mov_b64 exec, 1")
    a(f"global_store_dword v6, v17, s[26:27] {outflags}")
    lab("L_sexit")
    if dbg == "class":
        a("s_getreg_b32 s35, hwreg(HW_REG_XCC_ID)")
        a("s_bfe_u32 s35, s35, 0x10002")
        a("s_lshr_b32 s36, s32, 3")
        a("s_cmp_lg_u32 s35, s36")
        a("s_cbranch_scc1 L_nodbg")
        a("s_mov_b64 exec, 1")
        a("s_lshl_b32 s36, s38, 2")
        a("v_mov_b32 v1, s36")
        a("v_mov_b32 v2, s41")
        a("global_atomic_add v1, v2, s[24:25]")
        lab("L_nodbg")
    if dbg == "ptr":
        a("s_mov_b64 exec, 1")
        a("v_mov_b32 v1, 0")
        for i, r in enumerate((44, 45, 48, 49, 26, 27)):
            a(f"v_mov_b32 v2, s{r}")
            a(f"global_store_dword v1, v2, s[24:25] offset:{4*i}")
    stamp(8)
    if ts and probe is None:
        a("s_mov_b64 exec, -1")
        a("s_lshl_b32 s70, s2, 2")
        a("s_add_u32 s70, s70, s42")
        a("s_lshl_b32 s70, s70, 8")
        a(f"s_add_u32 s70, s70, {WS_TT}")
        a("v_lshl_add_u32 v1, v0, 2, s70")
        a(f"global_store_dword v1, v{VR}, s[26:27]")
    dump_stamps("S")
    lab("L_end")
    a("s_endpgm")

    section("X2")
    lab("L_x2")
    a("v_lshrrev_b32 v46, 4, v0")
    a("v_bfe_u32 v7, v0, 2, 2")
    a("v_and_b32 v5, 3, v0")
    a("v_lshlrev_b32 v44, 10, v46")
    a("v_lshl_add_u32 v44, v7, 7, v44")
    a("v_lshl_add_u32 v44, v5, 3, v44")
    a("v_and_b32 v45, 1, v0")
    a("v_lshlrev_b32 v4, 10, v45")
    a("v_lshl_add_u32 v4, v46, 4, v4")
    a("v_bfe_u32 v47, v0, 1, 3")
    a(f"v_add_u32 v4, {L_XN}, v4")
    a("s_lshr_b32 s35, s39, 20")
    a("s_lshl_b32 s36, s35, 8")
    a("v_add_u32 v5, s36, v4")
    a(f"v_mov_b32 v34, {L_Z}")
    for k in range(4):
        a(f"v_cmp_eq_u32 s[{44+2*k}:{45+2*k}], {k}, v47")
    a("s_nop 0")
    for k in range(4):
        a(f"v_cndmask_b32 v{36+k}, v34, v5, s[{44+2*k}:{45+2*k}]")
    a("s_bfe_u32 s36, s39, 0x3000a")
    a("s_lshl_b32 s36, s36, 14")
    a("s_lshl_b32 s37, s35, 11")
    a("s_add_u32 s36, s36, s37")
    a("s_bfe_u32 s37, s39, 0x30007")
    a("s_lshl_b32 s37, s37, 8")
    a("s_add_u32 s36, s36, s37")
    a(f"s_add_u32 s36, s36, {WS_QP}")
    a("v_lshl_add_u32 v5, v45, 13, s36")
    a("v_lshl_add_u32 v5, v47, 6, v5")
    a("v_lshl_add_u32 v5, v46, 4, v5")
    if ts: a("s_memrealtime s[72:73]")
    if lnfirst is False: a("s_barrier")
    a("s_waitcnt vmcnt(1)")
    if NS < 32:
        a("s_cmp_eq_u32 s67, 0")
        a("s_cbranch_scc1 L_xok")
    a("s_waitcnt vmcnt(0)")
    lab("L_xok")
    stamp(1)
    if ts: a("s_mov_b32 s89, s72")
    a(f"ds_write_b128 v1, v[8:11] offset:{L_XR}")
    a(f"ds_write_b128 v1, v[12:15] offset:{L_XR+16}")
    for i in range(8):
        a(f"v_lshlrev_b32 v{16+2*i}, 16, v{8+i}")
        a(f"v_and_b32 v{17+2*i}, 0xffff0000, v{8+i}")
    def red32(v, t):
        a("s_nop 1")
        for r in (8, 4, 2, 1):
            a(f"v_add_f32_dpp {v}, {v}, {v} row_ror:{r} row_mask:0xf bank_mask:0xf")
            a("s_nop 1")
        a(f"v_mov_b32 {t}, {v}")
        a("s_nop 1")
        a(f"v_permlane16_swap_b32 {v}, {t}")
        a("s_nop 0")
        a(f"v_add_f32 {v}, {v}, {t}")
    a("v_add_f32 v6, v16, v17")
    for i in range(2, 16):
        a(f"v_add_f32 v6, v6, v{16+i}")
    red32("v6", "v7")
    a(f"v_mul_f32 v6, {f2u(1.0/512):#x}, v6")
    a("v_sub_f32 v32, v16, v6")
    a("v_mul_f32 v33, v32, v32")
    for i in range(1, 16):
        a(f"v_sub_f32 v32, v{16+i}, v6")
        a("v_fmac_f32 v33, v32, v32")
    red32("v33", "v7")
    a(f"v_mul_f32 v33, {f2u(1.0/512):#x}, v33")
    a("v_cvt_pk_bf16_f32 v6, v6, v33")
    a("v_and_b32 v33, 0xffff0000, v6")
    a("v_lshlrev_b32 v6, 16, v6")
    a(f"v_add_f32 v33, {f2u(1e-5):#x}, v33")
    a("v_cvt_pk_bf16_f32 v33, v33, v33")
    a("v_lshlrev_b32 v33, 16, v33")
    a("v_sqrt_f32 v33, v33")
    a("s_nop 0")
    a("v_cvt_pk_bf16_f32 v33, v33, v33")
    a("v_lshlrev_b32 v33, 16, v33")
    a("v_rcp_f32 v33, v33")
    for i in range(8):
        a(f"v_sub_f32 v{16+2*i}, v{16+2*i}, v6")
        a(f"v_sub_f32 v{17+2*i}, v{17+2*i}, v6")
        a(f"v_cvt_pk_bf16_f32 v{8+i}, v{16+2*i}, v{17+2*i}")
        a(f"v_lshlrev_b32 v{16+2*i}, 16, v{8+i}")
        a(f"v_and_b32 v{17+2*i}, 0xffff0000, v{8+i}")
        a(f"v_mul_f32 v{16+2*i}, v{16+2*i}, v33")
        a(f"v_mul_f32 v{17+2*i}, v{17+2*i}, v33")
        a(f"v_cvt_pk_bf16_f32 v{8+i}, v{16+2*i}, v{17+2*i}")
    a(f"ds_write_b128 v1, v[8:11] offset:{L_XN}")
    a(f"ds_write_b128 v1, v[12:15] offset:{L_XN+16}")
    def gemv(wbase, xsel):
        for ks in range(4):
            o = (ks & 1) * 32
            for blk in range(4):
                xr, xo = xsel(ks, blk)
                a(f"ds_read_b128 v[{48+o+4*blk}:{51+o+4*blk}], v{xr} offset:{xo}")
                a(f"ds_read_b64_tr_b16 v[{64+o+4*blk}:{65+o+4*blk}], v44 offset:{wbase + ks*4096 + blk*32}")
                a(f"ds_read_b64_tr_b16 v[{66+o+4*blk}:{67+o+4*blk}], v44 offset:{wbase + ks*4096 + blk*32 + 512}")
            for blk in range(4):
                a(f"s_waitcnt lgkmcnt({9-3*blk})")
                c = "0" if (ks == 0 and blk == 0) else "v[8:11]"
                a(f"v_mfma_f32_16x16x32_bf16 v[8:11], v[{64+o+4*blk}:{67+o+4*blk}], v[{48+o+4*blk}:{51+o+4*blk}], {c}")
    a("s_waitcnt lgkmcnt(0)")
    a(f"s_add_u32 s33, s33, {PHI:#x}")
    tagregs()
    a("v_mov_b32 v32, s33")
    a("v_mov_b32 v33, 1")
    if lnfirst: a("s_barrier")
    stamp(2)
    gemv(L_W0, lambda ks, blk: (36 + blk, ks * 64))
    a("s_mov_b32 s36, 0x00ff00ff")
    a("s_mov_b32 s37, 0x00ff00ff")
    a("s_lshl_b32 s39, s30, 14")
    a("s_lshl_b32 s40, s31, 13")
    a("s_add_u32 s39, s39, s40")
    a(f"s_add_u32 s39, s39, {WS_QP + 4096}")
    a("v_lshl_add_u32 v1, v0, 4, s39")
    a(f"s_mov_b32 s40, {0 if 'qwait' in skip else spin}")
    embed(8, 32)
    a("s_mov_b64 exec, s[36:37]")
    a("s_waitcnt vmcnt(0)")
    if "qst" not in skip: a(f"global_store_dwordx4 v5, v[8:11], s[26:27] {qstflags}")
    a("s_mov_b64 exec, -1")
    stamp(3)
    def ffn_part():
        if "ffn" in skip: a("s_branch L_noffn")
        a("s_cmp_ge_u32 s29, 28")
        a("s_cbranch_scc1 L_noffn")
        a("s_lshl_b32 s36, s28, 7")
        a("v_add_u32 v5, s36, v4")
        for k in range(4):
            a(f"v_cndmask_b32 v{36+k}, v34, v5, s[{44+2*k}:{45+2*k}]")
        for k in range(4):
            a(f"v_cmp_eq_u32 s[{44+2*k}:{45+2*k}], {4+k}, v47")
        a("s_nop 0")
        for k in range(4):
            a(f"v_cndmask_b32 v{40+k}, v34, v5, s[{44+2*k}:{45+2*k}]")
        a("s_mul_i32 s36, s28, 7168")
        a("s_lshl_b32 s37, s29, 8")
        a("s_add_u32 s36, s36, s37")
        a(f"s_add_u32 s36, s36, {WS_FP}")
        a("v_bfe_u32 v5, v0, 3, 1")
        a("v_lshl_add_u32 v5, v45, 1, v5")
        a(f"v_mul_u32_u24 v5, {8*7168}, v5")
        a("v_bfe_u32 v2, v0, 1, 2")
        a("v_lshl_add_u32 v2, v2, 6, v5")
        a("v_lshl_add_u32 v2, v46, 4, v2")
        a("v_add_u32 v2, s36, v2")
        a("v_and_b32 v5, 12, v0")
        a(f"s_mov_b32 s39, {spin * 8}")
        lab("L_rdy")
        a(f"ds_read_b32 v6, v5 offset:{L_RDY}")
        a("s_waitcnt lgkmcnt(0)")
        a("v_cmp_eq_u32 vcc, 0, v6")
        a("s_cbranch_vccz L_rdy_done")
        a("s_sleep 1")
        a("s_sub_u32 s39, s39, 1")
        a("s_cbranch_scc0 L_rdy")
        lab("L_rdy_done")
        gemv(L_W1, lambda ks, blk: (36 + (ks >> 1) * 4 + blk, (ks & 1) * 64))
        a("s_nop 7")
        embed(8, 32)
        if "fst" not in skip: a(f"global_store_dwordx4 v2, v[8:11], s[26:27] {qstflags}")
        lab("L_noffn")
        stamp(4)
    if qafter: ffn_part()
    if qdelay: a(f"s_sleep {qdelay}")
    stamp(7)
    lab("L_qpoll")
    for i in range(8):
        if "qld" not in skip: a(f"global_load_dwordx4 v[{48+4*i}:{51+4*i}], v1, s[26:27] offset:{i*1024-4096} {qldflags}")
    a("s_waitcnt vmcnt(0)")
    check([48 + 4 * i for i in range(8)], 6)
    pollend("L_qpoll")
    for i in range(32):
        a(f"v_and_b32 v{48+i}, 0xffffff00, v{48+i}")
    for i in range(8):
        a(f"v_add_f32 v{48+i}, v{48+i}, v{56+i}")
        a(f"v_add_f32 v{64+i}, v{64+i}, v{72+i}")
    for i in range(8):
        a(f"v_add_f32 v{48+i}, v{48+i}, v{64+i}")
    for i in range(4):
        a(f"v_cvt_pk_bf16_f32 v{48+i}, v{48+2*i}, v{49+2*i}")
    a("v_lshlrev_b32 v1, 3, v0")
    a("v_mov_b32 v6, 0")
    if NS < 32:
        a("v_mov_b32 v7, -1")
        a("v_lshlrev_b32 v5, 2, v0")
        a(f"v_add_u32 v5, {L_TK}, v5")
        for i in range(3): a(f"ds_write_b32 v5, v7 offset:{256*i}")
    a(f"ds_write_b64 v1, v[48:49] offset:{L_Q}")
    a(f"ds_write_b64 v1, v[50:51] offset:{L_Q+512}")
    a("s_waitcnt lgkmcnt(0)")
    a(f"ds_write_b64 v6, v[32:33] offset:{L_TAG}")
    stamp(5)
    a("s_setprio 0")
    if not qafter: ffn_part()
    a("s_mul_i32 s36, s34, 56")
    a("s_andn2_b32 s36, s36, 15")
    a(f"s_mul_i32 s37, s31, {16*7168}")
    a("s_add_u32 s36, s36, s37")
    a(f"s_add_u32 s36, s36, {WS_FP}")
    a("v_lshrrev_b32 v1, 2, v0")
    a("v_mul_u32_u24 v1, 7168, v1")
    a("v_and_b32 v3, 3, v0")
    a("v_lshl_add_u32 v1, v3, 4, v1")
    a("v_add_u32 v1, s36, v1")
    a(f"s_mov_b32 s40, {0 if ('ffn' in skip or 'hwait' in skip) else spin}")
    if hdelay: a(f"s_sleep {hdelay}")
    lab("L_hpoll")
    if "hld" not in skip: a("global_load_dwordx4 v[8:11], v1, s[26:27] sc1")
    a("s_waitcnt vmcnt(0)")
    check([8], 2)
    pollend("L_hpoll")
    for i in range(4): a(f"v_and_b32 v{8+i}, 0xffffff00, v{8+i}")
    for r in (4, 8):
        for i in range(4):
            a(f"v_add_f32_dpp v{8+i}, v{8+i}, v{8+i} row_ror:{r} row_mask:0xf bank_mask:0xf")
    for i in range(4): a(f"v_mov_b32 v{12+i}, v{8+i}")
    for i in range(4): a(f"v_permlane16_swap_b32 v{8+i}, v{12+i}")
    for i in range(4): a(f"v_add_f32 v{8+i}, v{8+i}, v{12+i}")
    a("v_cvt_pk_bf16_f32 v8, v8, v9")
    a("v_cvt_pk_bf16_f32 v9, v10, v11")
    a("v_mov_b32 v10, v8")
    a("v_mov_b32 v11, v9")
    a("s_nop 1")
    a("v_permlane32_swap_b32 v8, v10")
    a("v_permlane32_swap_b32 v9, v11")
    for p in range(2):
        a(f"v_lshlrev_b32 v12, 16, v{8+p}")
        a(f"v_and_b32 v13, 0xffff0000, v{8+p}")
        a(f"v_lshlrev_b32 v14, 16, v{10+p}")
        a(f"v_and_b32 v15, 0xffff0000, v{10+p}")
        a("v_max_f32 v12, 0, v12")
        a("v_max_f32 v13, 0, v13")
        a("v_mul_f32 v12, v12, v14")
        a("v_mul_f32 v13, v13, v15")
        a(f"v_cvt_pk_bf16_f32 v{16+p}, v12, v13")
    a("v_lshlrev_b32 v3, 3, v3")
    a(f"ds_write_b64 v3, v[16:17] offset:{L_H}")
    a("s_bitcmp1_b32 s34, 0")
    a("s_cselect_b32 s36, 0, 28")
    a("v_mov_b32 v3, s36")
    a("v_mov_b32 v12, 0")
    a(f"ds_write_b32 v3, v12 offset:{L_H}")
    a("s_waitcnt vmcnt(0) lgkmcnt(0)")
    stamp(6)
    if NS < 32:
        NR = 16 // pools
        a("s_lshr_b32 s37, s32, 3" if pools == 2 else "s_mov_b32 s37, 0")
        scalar_part("s55", pm, {"g": ("s38", 4)})
        if pools == 2:
            a("s_bfe_i32 s35, s32, 0x10003")
            a(f"s_and_b32 s35, s35, {mask_of('r3'):#x}")
            a("s_xor_b32 s55, s55, s35")
        for hi in range(2):
            a(f"v_add_u32 v1, {64*hi}, v0")
            if torder == "n":
                a(f"v_mul_u32_u24 v2, {(65536 + KP - 1) // KP}, v1")
                a("v_lshrrev_b32 v2, 16, v2")
                a(f"v_mul_u32_u24 v3, {KP}, v2")
                a("v_sub_u32 v3, v1, v3")
            else:
                a(f"v_and_b32 v2, {NR - 1}, v1")
                a(f"v_lshrrev_b32 v3, {NR.bit_length() - 1}, v1")
            a(f"v_add_u32 v3, {NS}, v3")
            a(f"v_mov_b32 v{20+hi}, s55")
            for pre, reg, nb in (("n", 3, 5), ("r", 2, NR.bit_length() - 1)):
                for i in range(nb):
                    a(f"v_bfe_i32 v7, v{reg}, {i}, 1")
                    a(f"v_and_b32 v7, {mask_of(pre + str(i)):#x}, v7")
                    a(f"v_xor_b32 v{20+hi}, v{20+hi}, v7")
        a(f"s_mul_i32 s36, s38, {pools}")
        a("s_add_u32 s36, s36, s37")
        a(f"s_mul_i32 s36, s36, {ctstride}")
        a(f"s_add_u32 s36, s36, {WS_CT}")
        a("s_add_u32 s68, s26, s36")
        a("s_addc_u32 s69, s27, 0")
        if pf is not None:
            a("v_bfe_u32 v1, v0, 1, 4")
            a("v_and_b32 v2, 1, v0")
            a("s_lshl_b32 s36, s38, 16")
            a("s_lshl_b32 s37, s32, 8")
            a("s_add_u32 s36, s36, s37")
            a(f"s_add_u32 s36, s36, {WS_P1}")
            a("v_lshl_add_u32 v22, v1, 12, s36")
            a("v_lshl_add_u32 v22, v2, 7, v22")
            a("v_and_b32 v1, 31, v0")
            a("s_and_b32 s36, s28, 3")
            a("s_lshl_b32 s36, s36, 3")
            a("s_lshr_b32 s37, s29, 2")
            a("s_add_u32 s36, s36, s37")
            a("v_add_u32 v2, s36, v1")
            a("v_and_b32 v2, 31, v2")
            a("s_lshr_b32 s36, s28, 2")
            a("s_lshl_b32 s36, s36, 2")
            a("s_and_b32 s37, s29, 3")
            a("s_add_u32 s36, s36, s37")
            a("s_lshl_b32 s36, s36, 17")
            a(f"s_add_u32 s36, s36, {WS_P2}")
            a("v_lshl_add_u32 v3, v1, 12, s36")
            a("v_lshl_add_u32 v3, v2, 7, v3")
            a("v_cmp_lt_u32 vcc, 31, v0")
            a("s_nop 1")
            a("v_cndmask_b32 v22, v22, v3, vcc")
        def prefetch():
            if pfmask != 3: a(f"s_mov_b32 exec_{'hi' if pfmask == 1 else 'lo'}, 0")
            a(f"global_load_dword v23, v22, s[26:27] {pf}")
            a("s_mov_b64 exec, -1")
        if pf is not None and pfat == "early": prefetch()
        a("s_mov_b32 s41, 0")
        a("v_mov_b32 v6, 0")
        a(f"v_mov_b32 v5, {L_TK}")
        a(f"s_mov_b32 s40, {spin * 8}")
        a("s_setprio 1")
        lab("L_disp")
        a(f"ds_read_b128 v[8:11], v6 offset:{L_REQ}")
        a("s_sub_u32 s40, s40, 1")
        a("s_cbranch_scc1 L_disp_done")
        a("s_waitcnt lgkmcnt(0)")
        a(f"v_{'min' if reqmin else 'max'}3_u32 v8, v8, v9, v10")
        a(f"v_{'min' if reqmin else 'max'}_u32 v8, v8, v11")
        a("v_cmp_lt_u32 vcc, s41, v8")
        a("s_cbranch_vccnz L_serve")
        a("s_sleep 1")
        a("s_branch L_disp")
        lab("L_serve")
        a("s_mov_b32 s67, 1")
        a("s_atomic_add s67, s[68:69], 0 glc")
        if pf is not None and pfat == "serve":
            a("s_cmp_lg_u32 s41, 0")
            a("s_cbranch_scc1 L_nopf")
            prefetch()
            lab("L_nopf")
        a("s_add_u32 s41, s41, 1")
        a("s_waitcnt lgkmcnt(0)")
        a("v_readlane_b32 s36, v20, s67")
        a("v_readlane_b32 s37, v21, s67")
        a("s_bitcmp1_b32 s67, 6")
        a("s_nop 0")
        a("s_cselect_b32 s36, s37, s36")
        if rush:
            a(f"s_cmp_ge_u32 s67, {max(0, POOL - rush)}")
            a("s_cselect_b32 s37, 1, 0")
            a("s_or_b32 s36, s36, s37")
        a(f"s_cmp_lt_u32 s67, {POOL}")
        a("s_cselect_b32 s36, s36, -2")
        a("v_mov_b32 v7, s36")
        a("ds_write_b32 v5, v7")
        a("v_add_u32 v5, 4, v5")
        a("s_cbranch_scc1 L_disp")
        lab("L_disp_done")
        if pf is not None and pfat == "fail": prefetch()
        a("s_waitcnt lgkmcnt(0)")
    a("s_barrier")
    dump_stamps("X")
    a("s_endpgm")

    L = [HEADER.rstrip("\n"), f"; @launch grid=(256,1,1) block=({NW*64},1,1) lds={L_END}",
         '.amdgcn_target "amdgcn-amd-amdhsa--gfx950"', ".text", f".globl {KN}", ".p2align 8", f".type {KN},@function"]
    for name in layout.split(): L.extend(SEC[name])
    L.append("L_codeend:")
    nv = VT + 20
    L.append('.section .rodata,"a"')
    L.append(".p2align 6")
    L.append(f".amdhsa_kernel {KN}")
    L.append(f"  .amdhsa_next_free_vgpr {nv}")
    L.append("  .amdhsa_next_free_sgpr 102")
    L.append(f"  .amdhsa_accum_offset {nv}")
    L.append("  .amdhsa_group_segment_fixed_size 0")
    L.append("  .amdhsa_kernarg_size 96")
    L.append("  .amdhsa_user_sgpr_count 2")
    L.append("  .amdhsa_user_sgpr_kernarg_segment_ptr 1")
    L.append("  .amdhsa_system_sgpr_workgroup_id_x 1")
    L.append("  .amdhsa_float_denorm_mode_32 3")
    L.append(".end_amdhsa_kernel")
    return "\n".join(L) + "\n"

if __name__ == "__main__":
    import json
    cfg = json.loads(sys.argv[1]) if len(sys.argv) > 1 else {}
    sys.stdout.write(gen(**cfg))
```

```python
import struct, sys, math

KN = "recurrent_scan__gqa_block_cached__glu_gated_reglu__decode_kernel"
HEADER = open("recurrent_scan__gqa_block_cached__glu_gated_reglu__decode.s.ref").read().split("; @launch")[0]

def f2u(x):
    return struct.unpack("<I", struct.pack("<f", x))[0]

WS_EPOCH = 0
WS_QP = 0x10000
WS_FP = 0x40000
WS_CT = 0x80000
WS_P1 = 0x100000
WS_P2 = 0x200000
WS_TS = 0x400000
WS_TT = 0x500000
L_SC = 0
L_W0 = 0
L_W1 = 16384
L_XN = 32768
L_XR = 34816
L_Q = 36864
L_Z = 37888
L_TAG = 38144
L_RDY = 38160
L_REQ = 38176
L_H = 38400
L_ST = 38464
L_OB = 38592
L_TK = 38656
L_O = 39424
L_END = 47616
PHI = 0x9E3779B9

ROLES = [('X', slice(0, 1)), ('S', slice(1, 5))]

def gen(RH=9, NA=27, NS=29, mate=False, vtouch=False, barpos=1, NG=8, tlb=2, c64=True, rush=0, reqmin=True, outwarm=False, ksplit=False, nC=0, nA=8, D1=1, D2=1, pf="sc1", pfmask=2, pfat="fail", N=4, fine=1, NP=8, NK=4, fineK=2, NM=4, fineM=4, kvflags="nt", wflags="nt", woflags="", outflags="", stflags="sc1", ldflags="sc1",
        atflags="sc0 sc1", sleep1=0, sleep2=0, xinfl=7, pmap="w0 w1 n0^r3 n2 n1 n3 n4 r0 r1 r2 r3", torder="n", reqat="K", ctstride=1280, skip=(), bar0=True, warm=True, l2pf=True, pools=1, early=True, xbar="post", i1bit=15, dbg=None, dmaun=4, layout="E X1 S W X2", qafter=True, wstub=False, lnfirst=False, NW0=8, qdelay=0, hdelay=0, qstflags="sc1", qldflags="sc1", ts=False, spin=1 << 20, probe=None):
    R = 2
    KP = 32 - NS
    POOL = 16 // pools * KP
    assert POOL <= 128 and pools in (1, 2) and N <= 6 and NA % RH == 0 and NA >= 2 * RH and RH >= 8 and NS >= NA + 1 and qafter and NM <= 4
    SEC = {}
    cur = [None]
    def section(name):
        cur[0] = SEC.setdefault(name, [])
    if probe is not None: ts = True
    def a(s): cur[0].append("    " + s)
    def lab(s): cur[0].append(s + ":")
    NW = 6 if warm else 5
    skn = [0]
    def guard(lines):
        if not warm:
            for x in lines: a(x)
            return
        skn[0] += 1
        a(f"s_cbranch_execz L_g{skn[0]}")
        for x in lines: a(x)
        lab(f"L_g{skn[0]}")
    def stamp(idx):
        if ts:
            a("s_waitcnt lgkmcnt(0)")
            a("s_memrealtime s[70:71]")
            a("s_waitcnt lgkmcnt(0)")
            a(f"s_mov_b32 s{80+idx}, s70")
    pc = [0]
    def dump_stamps(role=None):
        if probe is not None:
            prole, pidx = probe[:2]
            if role == prole:
                pc[0] += 1
                if len(probe) > 2:
                    a(f"s_and_b32 s73, s2, {probe[2]}")
                    a(f"s_cmp_lg_u32 s73, {probe[3]}")
                    a(f"s_cbranch_scc1 L_pe{pc[0]}")
                a(f"s_cmp_eq_u32 s{80+pidx}, 0")
                a(f"s_cbranch_scc1 L_pe{pc[0]}")
                if len(probe) > 4:
                    a(f"s_sub_u32 s72, s{80+pidx}, s{80+probe[4]}")
                    a("s_lshl_b32 s72, s72, 4")
                    a("s_add_u32 s72, s72, s80")
                    a("s_add_u32 s72, s72, 10000")
                else:
                    a(f"s_add_u32 s72, s{80+pidx}, 10000")
                lab(f"L_pl{pc[0]}")
                a("s_memrealtime s[70:71]")
                a("s_waitcnt lgkmcnt(0)")
                a("s_sub_u32 s73, s70, s72")
                a("s_cmp_lt_i32 s73, 0")
                a(f"s_cbranch_scc1 L_pl{pc[0]}")
                lab(f"L_pe{pc[0]}")
            return
        if ts:
            a("s_mov_b64 exec, 1")
            a("s_mul_i32 s70, s2, 5")
            a("s_add_u32 s70, s70, s3")
            a("s_lshl_b32 s70, s70, 6")
            a(f"s_add_u32 s70, s70, {WS_TS}")
            a("v_mov_b32 v1, s70")
            a("s_getreg_b32 s95, hwreg(HW_REG_XCC_ID)")
            for q in range(4):
                for i in range(4):
                    a(f"v_mov_b32 v{4+i}, s{80+q*4+i}")
                a(f"global_store_dwordx4 v1, v[4:7], s[26:27] offset:{q*16}")
                a("s_nop 1")
    def tagregs():
        a("s_mov_b32 s56, s33")
        a("s_lshr_b32 s57, s33, 8")
        a("s_lshr_b32 s58, s33, 16")
        a("s_lshr_b32 s59, s33, 24")
        for i in range(4): a(f"s_mov_b32 s{60+i}, {0x07060500 + i:#x}")
    def embed(v, vtag):
        for i in range(4): a(f"v_perm_b32 v{v+i}, v{v+i}, v{vtag}, s{60+i}")
    def check(regs, acc):
        first = True
        for r in regs:
            for i in range(4):
                if first:
                    a(f"v_xor_b32 v{acc}, s{56+i}, v{r+i}"); first = False
                else:
                    a(f"v_bitop3_b32 v{acc}, v{acc}, v{r+i}, s{56+i} bitop3:0xf6")
        a(f"v_and_b32 v{acc}, 0xff, v{acc}")
        a(f"v_cmp_ne_u32 vcc, 0, v{acc}")
    def pollend(name):
        a("s_sub_u32 s40, s40, 1")
        a(f"s_cbranch_scc1 {name}_done")
        a(f"s_cbranch_vccnz {name}")
        lab(f"{name}_done")

    VKO, VVO, VM, VL, VM0, VM1 = 18, 19, 20, 21, 22, 23
    VA, VQ, VO, VS, VR = 24, 32, 36, 44, 60
    VT = VR + 16 * RH
    T_OW, T_SW, T_OR, T_SR, T_P1S, T_P1L, T_OBW, T_P2S, T_WO, T_H, T_F0, T_XO, T_X = [VT + i for i in (0, 1, 2, 3, 4, 5, 6, 7, 8, 9, 10, 14, 15)]
    T_D0, T_D1, T_OBR = VT + 16, VT + 17, VT + 18
    RD, RW = VR + 64, VR + 80
    PD, PW = VR + 4, VR + 20
    VP1, VP2 = VR + 112, VR + 116
    assert D1 == 1 and D2 == 1 and VP2 + 16 <= VT
    VB, VSW, VSR = 11, 12, 16
    def decode():
        a("s_and_b32 s28, s2, 7")
        a("s_lshr_b32 s29, s2, 3")
        a("s_bfe_u32 s30, s2, 0x30004")
        a("s_lshr_b32 s31, s2, 7")
        a("s_and_b32 s32, s2, 15")
        a("s_and_b32 s34, s2, 127")
        a("s_lshr_b32 s38, s2, 4")
    def srds():
        a("s_mov_b64 s[44:45], s[6:7]"); a("s_brev_b32 s46, 16"); a("s_mov_b32 s47, 0x20000")
        a("s_mov_b64 s[48:49], s[8:9]"); a("s_brev_b32 s50, 16"); a("s_mov_b32 s51, 0x20000")
        a("s_mov_b64 s[72:73], s[6:7]"); a("s_brev_b32 s74, 16"); a("s_mov_b32 s75, 0x20000")
    def zero_stamps():
        if ts:
            a("s_mov_b32 s80, s70")
            for i in range(1, 16): a(f"s_mov_b32 s{80+i}, 0")
    section("X1")
    cur[0].append(".p2align 8")
    lab("L_xwave")
    if ksplit: a("s_load_dwordx8 s[20:27], s[0:1], 64")
    a("v_lshlrev_b32 v1, 5, v0")
    a("v_mov_b32 v6, 0")
    a("v_mov_b32 v7, 0")
    a("v_lshlrev_b32 v5, 3, v0")
    a(f"ds_write_b64 v5, v[6:7] offset:{L_Z}")
    a("s_waitcnt lgkmcnt(0)")
    a("global_load_dwordx4 v[8:11], v1, s[4:5]")
    a("global_load_dwordx4 v[12:15], v1, s[4:5] offset:16")
    a("s_load_dword s33, s[26:27], 0")
    a("s_setprio 2")
    zero_stamps()
    decode()
    if NS < 32:
        a(f"s_and_b32 s67, s39, {0x300380 & ~((2 * pools - 1) << 7):#x}")
        a("s_cbranch_scc1 L_nozero")
        a("s_bfe_u32 s36, s39, 0x3000a")
        a("s_bfe_u32 s37, s39, 0x10007")
        a("s_lshl3_add_u32 s36, s37, s36")
        if pools == 2:
            a("s_bfe_u32 s37, s39, 0x10008")
            a("s_lshl1_add_u32 s36, s36, s37")
        a(f"s_mul_i32 s36, s36, {ctstride}")
        a(f"s_add_u32 s36, s36, {WS_CT}")
        a("v_lshl_add_u32 v5, v0, 2, s36")
        a("global_store_dword v5, v6, s[26:27] sc1")
        lab("L_nozero")
    if "X1 X2" not in layout: a("s_branch L_x2")
    if warm and wstub:
        lab("L_wstub")
        a("s_branch L_wwave")

    section("W")
    if warm:
        lab("L_wwave")
        if ksplit: a("s_load_dwordx8 s[20:27], s[0:1], 64")
        if l2pf:
            a("s_getpc_b64 s[68:69]")
            lab("L_wpc")
            a(f"s_sub_u32 s68, s68, L_wpc-{KN}")
            a("s_subb_u32 s69, s69, 0")
            a("v_lshlrev_b32 v7, 7, v0")
            a("v_add_u32 v8, 8192, v7")
            a("v_min_u32 v8, L_codeend-" + KN + "-4, v8")
            a("global_load_dword v9, v7, s[68:69]")
            a("global_load_dword v9, v8, s[68:69]")
        a("s_waitcnt lgkmcnt(0)")
        if tlb:
            a("s_and_b32 s28, s2, 7")
            a("s_and_b32 s34, s2, 127")
            a("v_mov_b32 v2, 0")
            a("s_mov_b64 exec, 1")
            a(f"s_mul_i32 s36, s28, {64*3584}")
            a("v_mov_b32 v3, s36")
            a(f"global_load_dword v9, v3, s[16:17] {wflags}")
            a(f"global_load_dword v9, v3, s[18:19] {wflags}")
            a(f"s_mul_i32 s36, s34, {14*1024}")
            a("v_mov_b32 v3, s36")
            a(f"global_load_dword v9, v3, s[20:21] {wflags}")
            a("s_lshl_b32 s36, s34, 15")
            a("v_mov_b32 v3, s36")
            a(f"global_load_dword v9, v3, s[12:13] {wflags}")
            a("s_lshl_b32 s36, s2, 19")
            a("v_mov_b32 v3, s36")
            a(f"global_load_dword v9, v3, s[6:7] {kvflags}")
            a(f"global_load_dword v9, v3, s[8:9] {kvflags}")
            a(f"global_load_dword v9, v2, s[26:27] offset:1024 {kvflags}")
            if tlb > 1:
                a("s_lshl_b32 s36, s2, 12")
                a(f"s_add_u32 s36, s36, {WS_P1}")
                a("v_mov_b32 v3, s36")
                a(f"global_load_dword v9, v3, s[26:27] {kvflags}")
                a(f"v_add_u32 v3, {WS_P2 - WS_P1}, v3")
                a(f"global_load_dword v9, v3, s[26:27] {kvflags}")
                a("v_xor_b32 v3, 0x80000, v3")
                a(f"global_load_dword v9, v3, s[26:27] {kvflags}")
            if tlb > 2:
                a(f"global_load_dword v9, v2, s[22:23] {kvflags}")
            a("s_mov_b64 exec, -1")
        a("s_barrier")
        srds()
        for r in [6, 14, VKO, VVO, VB] + list(range(VT, VT + 20)): a(f"v_mov_b32 v{r}, 0")
        a("s_mov_b64 exec, 0")
        a("s_mov_b32 s42, 0")
        a("s_mov_b32 s54, 1")
        a("s_mov_b32 s41, 0")
        a("s_mov_b32 s33, 0")
        a("s_mov_b32 s29, 0")
        a("s_mov_b32 s76, 0")
        a("s_mov_b32 s77, 0")
        a("s_mov_b64 s[96:97], 0")
        a("s_mov_b64 s[98:99], 0")
        a("s_branch L_kloop")

    section("E")
    lab(KN)
    a("s_load_dwordx16 s[4:19], s[0:1], 0")
    if not ksplit: a("s_load_dwordx8 s[20:27], s[0:1], 64")
    if ts: a("s_memrealtime s[70:71]")
    a("v_lshrrev_b32 v1, 6, v0")
    a("s_cmpk_ge_u32 s2, 256")
    a("s_cbranch_scc1 L_end")
    a("v_readfirstlane_b32 s3, v1")
    a("v_and_b32 v0, 63, v0")
    a("s_mul_i32 s39, s2, 0x81010")
    a("s_and_b32 s39, s39, 0x301f80")
    a("s_sub_u32 s42, s3, 1")
    a("s_cbranch_scc1 L_xwave")
    if warm:
        a("s_cmp_eq_u32 s3, 5")
        a("s_cbranch_scc1 L_wstub" if wstub else "s_cbranch_scc1 L_wwave")
    pm = [set(x.split("^")) for x in pmap.split()]
    assert len(pm) == 11
    PB = [b for b in range(11, 23) if b != i1bit]
    def mask_of(sym, m=pm): return sum(1 << PB[p] for p in range(11) if sym in m[p])
    def scalar_part(dst, m, srcs):
        a(f"s_lshl_b32 {dst}, s38, 23")
        for pre, (reg, nb) in srcs.items():
            masks = [mask_of(f"{pre}{i}", m) for i in range(nb)]
            if not any(masks): continue
            if masks[0] and all(masks[i] == masks[0] << i for i in range(nb)) and bin(masks[0]).count("1") == 1:
                a(f"s_lshl_b32 s35, {reg}, {masks[0].bit_length()-1}")
                a(f"s_xor_b32 {dst}, {dst}, s35")
                continue
            for i in range(nb):
                if masks[i]:
                    a(f"s_bfe_i32 s35, {reg}, {0x10000 + i:#x}")
                    a(f"s_and_b32 s35, s35, {masks[i]:#x}")
                    a(f"s_xor_b32 {dst}, {dst}, s35")
    def lane_part(vdst, ssrc, m, pre, nb):
        a(f"v_mov_b32 v{vdst}, {ssrc}")
        for i in range(nb):
            mk = mask_of(f"{pre}{i}", m)
            if mk:
                a(f"v_bfe_i32 v7, v0, {i}, 1")
                a(f"v_and_b32 v7, {mk:#x}, v7")
                a(f"v_xor_b32 v{vdst}, v{vdst}, v7")
    def nconst(n):
        c = 0
        for i in range(5):
            if n >> i & 1: c ^= mask_of(f"n{i}")
        return c
    a("s_lshl_b32 s37, s42, 18")
    a("s_or_b32 s36, s39, s37")
    a("v_mul_u32_u24 v4, 0x410, v0")
    a("v_and_b32 v4, 0xe070, v4")
    a("v_or_b32 v4, s36, v4")
    a("s_lshl_b32 m0, s42, 12")
    a("s_mov_b32 s37, 0" if 'wq' in skip else "s_lshl_b32 s37, 1, 16")
    a("s_waitcnt lgkmcnt(0)")
    if ts: a("s_memrealtime s[68:69]")
    for i in range(4):
        a(f"global_load_lds_dwordx4 v4, s[10:11] {wflags}")
        if i < 3:
            a("s_addk_i32 m0, 1024")
            a("v_add_u32 v4, s37, v4")
    a("s_branch L_srest")
    assert i1bit != 11
    def tstamp():
        if ts and probe is None:
            a("s_memrealtime s[70:71]")
            a("s_add_u32 s79, s79, 1")
            a("s_lshr_b32 m0, s79, 1")
            a("s_waitcnt lgkmcnt(0)")
            a("v_writelane_b32 v13, s70, m0")
    def issue(reg, voff, srd, down=False, n=None, fn=None, mid=None, fill=None, skipto=None):
        n = N if n is None else n
        fn = fine if fn is None else fn
        seq = (2, 3, 0, 1) if down else (0, 1, 2, 3)
        if mate: seq = (2, 0, 3, 1) if down else (0, 2, 1, 3)
        for k, u in enumerate(seq):
            if k and (u >> 1) != (seq[k-1] >> 1): a(f"s_bitset{u >> 1}_b32 s52, {i1bit}")
            if k % fn == 0: a(f"s_waitcnt vmcnt({n})")
            if k == 0 and mid: lab(mid)
            a(f"buffer_load_dwordx4 v[{reg+4*u}:{reg+4*u+3}], v{voff}, {srd}, s52 offen offset:{(u&1)*1024} {kvflags}")
        tstamp()
    def issueK(slot): issue(VR + slot * 32, VKO, "s[44:47]", n=NM, fn=fineM, mid=f"L_gkr{slot}")
    def issueV(slot): issue(VR + slot * 32 + 16, VVO, "s[48:51]", down=True, n=NM, fn=fineM, mid=f"L_gvr{slot}")
    assert not rush or fineM == 4
    assert NM + fineM <= 8 and N + fine <= 8
    rest = list(range(2, RH))
    PERM = [0 if p == (RH - 1) // 2 else 1 if p == RH - 1 else rest.pop(0) for p in range(RH)]
    assert sorted(PERM) == list(range(RH))
    section("S")
    lab("L_srest")
    if ksplit: a("s_load_dwordx8 s[20:27], s[0:1], 64")
    if ts: a("s_memrealtime s[100:101]")
    a(f"v_lshlrev_b32 v{VVO}, 4, v0")
    def tail_setup():
        a("v_lshrrev_b32 v3, 4, v0")
        a("v_and_b32 v4, 15, v0")
        a("v_bfe_u32 v5, v0, 2, 2")
        a("s_lshl_b32 s35, s42, 11")
        a(f"v_lshl_add_u32 v{T_OW}, v0, 5, s35")
        a("s_lshl_b32 s36, s42, 3")
        a(f"v_lshl_add_u32 v{T_SW}, v5, 5, s36")
        a("s_lshl_b32 s35, s42, 9")
        a(f"v_lshl_add_u32 v{T_OR}, v0, 3, s35")
        a("s_lshl_b32 s36, s42, 5")
        a(f"v_mov_b32 v{T_SR}, s36")
        a("s_lshl_b32 s35, s43, 12")
        a("s_lshl_b32 s36, s42, 10")
        a("s_add_u32 s36, s35, s36")
        a(f"s_add_u32 s37, s36, {WS_P1}")
        a(f"v_lshl_add_u32 v{T_P1S}, v0, 4, s37")
        a("s_lshl_b32 s36, s38, 16")
        a("s_lshl_b32 s37, s32, 8")
        a("s_add_u32 s36, s36, s37")
        a("s_lshl_b32 s37, s42, 6")
        a("s_add_u32 s36, s36, s37")
        a(f"s_add_u32 s36, s36, {WS_P1}")
        a(f"v_lshl_add_u32 v{T_P1L}, v4, 12, s36")
        a(f"v_lshl_add_u32 v{T_P1L}, v3, 4, v{T_P1L}")
        a("s_lshl_b32 s36, s42, 4")
        a(f"v_lshl_add_u32 v{T_OBW}, v3, 2, s36")
        a("s_lshl_b32 s36, s42, 6")
        a("s_lshl_b32 s37, s43, 3")
        a("s_add_u32 s36, s36, s37")
        a("v_lshl_add_u32 v1, v4, 2, v3")
        a("v_add_u32 v1, s36, v1")
        a("v_and_b32 v1, 255, v1")
        a(f"s_add_u32 s37, s35, {WS_P2}")
        a(f"v_lshl_add_u32 v{T_P2S}, v1, 4, s37")
        a("s_lshl_b32 s36, s42, 8")
        a("v_lshl_add_u32 v1, v4, 4, s36")
        a("s_lshl_b32 s36, s34, 15")
        a("s_add_u32 s36, s36, 4096")
        a("v_lshl_add_u32 v2, v3, 13, s36")
        a(f"v_add_u32 v{T_WO}, v1, v2")
        a(f"s_mul_i32 s36, s34, {14*1024}")
        a("v_add_u32 v1, s36, v1")
        a("s_and_b32 s36, s34, 1")
        a("v_lshlrev_b32 v2, 1, v3")
        a("v_subrev_u32 v2, s36, v2")
        a("v_max_i32 v5, 0, v2")
        a(f"v_lshl_add_u32 v{T_D0}, v5, 11, v1")
        a("v_add_u32 v2, 1, v2")
        a("v_min_i32 v5, 6, v2")
        a(f"v_lshl_add_u32 v{T_D1}, v5, 11, v1")
        a(f"v_lshlrev_b32 v{T_H}, 3, v3")
        a(f"v_lshlrev_b32 v{T_OBR}, 4, v3")
        if not c64:
            a("s_lshr_b32 s35, s28, 2")
            a("s_and_b32 s36, s28, 3")
            a("s_lshl_b32 s36, s36, 5")
            a("s_add_u32 s36, s36, s29")
            a("v_and_b32 v2, 1, v0")
            a("v_lshrrev_b32 v3, 1, v0")
            a("s_lshl_b32 s37, s36, 1")
            a("v_lshl_add_u32 v4, v3, 3, s37")
            a("v_add_u32 v4, v4, v2")
            a("v_and_b32 v4, 255, v4")
            a("s_lshl_b32 s37, s35, 19")
            a(f"s_add_u32 s37, s37, {WS_P2}")
            a("v_lshl_add_u32 v4, v4, 4, s37")
            a(f"v_lshl_add_u32 v{T_F0}, v3, 12, v4")
            for k in range(1, 4): a(f"v_add_u32 v{T_F0+k}, {k << 17:#x}, v{T_F0}")
            a("s_lshl_b32 s37, s35, 10")
            a("s_lshl_b32 s36, s36, 3")
            a("s_add_u32 s37, s37, s36")
            a(f"v_lshl_add_u32 v{T_XO}, v2, 2, s37")
        else:
            a("s_lshr_b32 s35, s28, 2")
            a("s_and_b32 s36, s28, 3")
            a("s_lshl_b32 s36, s36, 3")
            a("s_lshr_b32 s37, s29, 2")
            a("s_add_u32 s36, s36, s37")
            a("v_and_b32 v2, 7, v0")
            a("v_lshrrev_b32 v3, 3, v0")
            a("s_lshl2_add_u32 s37, s35, s42")
            a("s_lshl_b32 s37, s37, 17")
            a(f"s_add_u32 s37, s37, {WS_P2}")
            a("v_lshl_add_u32 v5, v2, 4, s37")
            for k in range(4):
                a(f"v_add_u32 v1, {8*k}, v3")
                a("v_add_u32 v4, s36, v1")
                a("v_and_b32 v4, 31, v4")
                a("v_lshl_add_u32 v4, v4, 7, v5")
                a(f"v_lshl_add_u32 v{T_F0+k}, v1, 12, v4")
            a("s_lshl_b32 s37, s35, 10")
            a("s_lshl_b32 s36, s36, 5")
            a("s_add_u32 s37, s37, s36")
            a(f"v_lshl_add_u32 v{T_XO}, v2, 2, s37")
        if outwarm:
            a("s_and_b32 s35, s29, 3")
            a("s_or_b32 s35, s35, s42")
            a("s_cbranch_scc1 L_now")
            a("s_mov_b64 exec, 0xff")
            a(f"global_store_dword v{T_XO}, v2, s[22:23] {outflags}")
            a("s_mov_b64 exec, -1")
            lab("L_now")
        a("s_mov_b32 s64, 0x05040100")
        a("s_mov_b32 s65, 0x07060302")
    def s_setup():
        zero_stamps()
        if ts:
            a("v_mov_b32 v13, 0")
            a("s_mov_b32 s79, 1")
        stamp(9)
        if probe is not None:
            a("s_mov_b32 s92, s68")
            a("s_mov_b32 s93, s100")
        decode()
        srds()
        scalar_part("s66", pm, {"w": ("s42", 2), "r": ("s32", 4), "g": ("s38", 4)})
        a("v_lshrrev_b32 v2, 4, v0")
        a("v_and_b32 v3, 3, v0")
        a("v_bfe_u32 v4, v0, 2, 2")
        a("v_lshlrev_b32 v5, 8, v4")
        a("v_lshl_add_u32 v5, v2, 6, v5")
        a(f"v_lshl_add_u32 v{VKO}, v3, 4, v5")
        if early:
            a("s_mov_b32 s52, s66")
            issue(VR + PERM[0] * 16, VKO, "s[44:47]", n=NP, fn=4)
        a("s_mov_b32 s43, s2")
        lane_part(10, "s66", pm, "n", 5)
        a("s_mov_b32 s55, 0")
        for i in range(2):
            a(f"s_bfe_i32 s35, s42, {0x10000 + i:#x}")
            a(f"s_and_b32 s35, s35, {mask_of('w%d' % i):#x}")
            a("s_xor_b32 s55, s55, s35")
        a("s_lshl_b32 s36, s42, 2")
        a("v_mov_b32 v14, s36")
        a("v_mov_b32 v6, 0xffff")
        a("v_mov_b32 v7, 0xffff0000")
        a("v_and_b32 v8, 1, v0")
        a("v_cmp_eq_u32 vcc, 1, v8")
        a("v_and_b32 v8, 2, v0")
        a("s_nop 0")
        a("v_cndmask_b32 v6, v6, v7, vcc")
        a("v_cmp_eq_u32 vcc, 2, v8")
        a(f"v_mov_b32 v{VM}, {f2u(-3.0e38):#x}")
        a(f"v_mov_b32 v{VL}, 0")
        a(f"v_cndmask_b32 v{VM1}, 0, v6, vcc")
        a(f"v_xor_b32 v{VM0}, v{VM1}, v6")
        for i in range(8): a(f"v_mov_b32 v{VO+i}, 0")
        a(f"s_mov_b32 s53, {f2u(math.log2(math.e) / math.sqrt(128.0)):#x}")
        a("s_mov_b32 s54, 1000")
        a(f"s_mov_b32 s41, {RH}")
        a(f"s_mov_b32 s76, {NA // RH - 1}")
        a(f"s_mov_b32 s77, {NA // RH - 1}")
        a("s_mov_b64 s[96:97], -1")
        a("s_mov_b32 s98, 0x11111111")
        a("s_mov_b32 s99, 0x11111111")
        a(f"v_mov_b32 v{VB}, v{VKO}")
        a(f"s_mul_i32 s36, s42, {NA * 256}")
        a(f"v_lshl_add_u32 v{VSR}, v0, 2, s36")
        a(f"v_and_b32 v{VSW}, -16, v{VSR}")
        if ksplit: a("s_waitcnt lgkmcnt(0)")
        tail_setup()
        a("v_mov_b32 v6, 0")
    a("s_cmpk_ge_u32 s2, 224")
    a("s_cbranch_scc1 L_nogu")
    a("s_and_b32 s36, s2, 7")
    a("s_lshl2_add_u32 s36, s36, s42")
    a(f"s_mul_i32 s36, s36, {16*3584}")
    a("s_andn2_b32 s37, s2, 7")
    a("s_lshl4_add_u32 s36, s37, s36")
    a("v_lshrrev_b32 v2, 3, v0")
    a("v_and_b32 v3, 7, v0")
    a("v_mul_u32_u24 v2, 3584, v2")
    a("v_lshl_add_u32 v2, v3, 4, v2")
    a("s_lshl_b32 s35, s42, 11")
    a(f"s_add_u32 m0, s35, {L_W1}")
    a("v_add_u32 v2, s36, v2")
    if "ffn" not in skip:
        a(f"global_load_lds_dwordx4 v2, s[16:17] {wflags}")
        a("s_addk_i32 m0, 1024")
        a(f"v_add_u32 v3, {8*3584}, v2")
        a(f"global_load_lds_dwordx4 v3, s[16:17] {wflags}")
        a("s_addk_i32 m0, 7168")
        a("s_nop 0")
        a(f"global_load_lds_dwordx4 v2, s[18:19] {wflags}")
        a("s_addk_i32 m0, 1024")
        a("s_nop 0")
        a(f"global_load_lds_dwordx4 v3, s[18:19] {wflags}")
    lab("L_nogu")
    s_setup()
    for p in range(RH):
        a(f"s_xor_b32 s52, s66, {nconst(p):#x}")
        if p == 0:
            if not early: issue(VR + PERM[p] * 16, VKO, "s[44:47]", n=NP, fn=4)
        else: issue(VR + PERM[p] * 16, VKO, "s[44:47]", n=NK, fn=fineK)
        if p == 0:
            a("s_waitcnt vmcnt(8)")
            a("s_cmpk_lt_u32 s2, 224")
            a("s_cbranch_scc1 L_wqok")
            a("s_waitcnt vmcnt(4)")
            lab("L_wqok")
            if probe is not None: stamp(11)
            a("s_barrier")
            stamp(10)
        if p == 2 and vtouch:
            a("s_cmp_lg_u32 s42, 0")
            a("s_cbranch_scc1 L_novt")
            a("s_mov_b64 exec, 1")
            a(f"buffer_load_dword v8, v6, s[48:51], s66 offen {kvflags}")
            a("s_mov_b64 exec, -1")
            lab("L_novt")
        if p == (1 if NK <= 4 else 2):
            a("s_mov_b64 exec, 1")
            a("v_mov_b32 v15, 1")
            a(f"ds_write_b32 v14, v15 offset:{L_RDY}")
            a("s_mov_b64 exec, -1")
    stamp(1)
    a(f"s_mov_b32 s40, {spin * 8}")
    lab("L_qflag")
    a(f"ds_read_b64 v[2:3], v6 offset:{L_TAG}")
    a("s_waitcnt lgkmcnt(0)")
    a("v_cmp_eq_u32 vcc, 0, v3")
    a("s_cbranch_vccz L_qflag_done")
    a("s_sleep 1")
    a("s_sub_u32 s40, s40, 1")
    a("s_cbranch_scc0 L_qflag")
    lab("L_qflag_done")
    a(f"ds_read_b128 v[{VQ}:{VQ+3}], v{VKO} offset:{L_Q}")
    a("v_mov_b32 v17, v2")
    a("v_readfirstlane_b32 s33, v2")
    stamp(2)
    a("s_nop 1")
    tagregs()
    a("s_waitcnt lgkmcnt(0)")
    def claim(first=False):
        a("s_mov_b32 s35, 1" if first else f"s_sub_u32 s35, s41, {NS - 1}")
        a("s_mov_b64 exec, 1")
        a("v_mov_b32 v15, s35")
        a(f"ds_write_b32 v14, v15 offset:{L_REQ}")
        a("s_mov_b64 exec, -1")
    def qk(slot):
        K = VR + slot * 32
        for u in range(4):
            a(f"v_mfma_f32_16x16x32_bf16 v[{VS+4*u}:{VS+4*u+3}], v[{K+4*u}:{K+4*u+3}], v[{VQ}:{VQ+3}], 0")
    def softmax():
        for u in range(4):
            a(f"v_mov_b32_dpp v{4+u}, v{VS+4*u} quad_perm:[0,0,0,0] row_mask:0xf bank_mask:0xf")
        for p in range(1, 4):
            for u in range(4):
                a(f"v_add_f32_dpp v{4+u}, v{VS+4*u+p}, v{4+u} quad_perm:[{p},{p},{p},{p}] row_mask:0xf bank_mask:0xf")
        a("v_max3_f32 v1, v4, v5, v6")
        a(f"v_max3_f32 v1, v1, v7, v{VM}")
        a("v_mov_b32 v2, v1")
        a("s_nop 1")
        a("v_permlane16_swap_b32 v1, v2")
        a("s_nop 0")
        a("v_max_f32 v1, v1, v2")
        a("v_mov_b32 v2, v1")
        a("s_nop 1")
        a("v_permlane32_swap_b32 v1, v2")
        a("s_nop 0")
        a("v_max_f32 v1, v1, v2")
        a(f"v_sub_f32 v2, v{VM}, v1")
        a("v_mul_f32 v3, s53, v1")
        a("v_mul_f32 v2, s53, v2")
        a(f"v_mov_b32 v{VM}, v1")
        a("v_exp_f32 v2, v2")
        for i in range(4):
            a(f"v_fma_f32 v{4+i}, v{4+i}, s53, -v3")
        for i in range(4):
            a(f"v_exp_f32 v{4+i}, v{4+i}")
        for g in range(4):
            a(f"v_mov_b32_dpp v8, v2 row_newbcast:{4*g} row_mask:{1<<g:#x} bank_mask:0xf")
        a(f"v_fma_f32 v{VL}, v{VL}, v2, v4")
        a("v_add_f32 v9, v5, v6")
        a(f"v_add_f32 v{VL}, v{VL}, v7")
        a(f"v_add_f32 v{VL}, v{VL}, v9")
        for i in range(4):
            a(f"v_cvt_pk_bf16_f32 v{4+i}, v{4+i}, v{4+i}")
        for i in range(8):
            a(f"v_mul_f32 v{VO+i}, v{VO+i}, v8")
        for i in range(4):
            a(f"v_and_b32 v{VA+2*i}, v{4+i}, v{VM0}")
            a(f"v_and_b32 v{VA+2*i+1}, v{4+i}, v{VM1}")
    def pv(slot):
        V = VR + slot * 32 + 16
        for t in range(4):
            a(f"v_mfma_f32_16x16x16_bf16 v[{VO}:{VO+3}], v[{VA+2*t}:{VA+2*t+1}], v[{V+4*t}:{V+4*t+1}], v[{VO}:{VO+3}]")
            a(f"v_mfma_f32_16x16x16_bf16 v[{VO+4}:{VO+7}], v[{VA+2*t}:{VA+2*t+1}], v[{V+4*t+2}:{V+4*t+3}], v[{VO+4}:{VO+7}]")
    def guarded(f):
        if not warm: return f()
        skn[0] += 1
        n = skn[0]
        a(f"s_cbranch_execz L_g{n}")
        f()
        lab(f"L_g{n}")
    lab("L_kloop")
    a("s_cmp_lg_u32 s76, 0")
    a("s_cbranch_scc1 L_k0")
    a("s_mov_b64 s[72:73], s[8:9]")
    a(f"v_mov_b32 v{VB}, v{VVO}")
    a("s_mov_b32 s41, 0")
    lab("L_k0")
    for p in range(RH):
        K = VR + PERM[p] * 16
        for u in range(4):
            a(f"v_mfma_f32_16x16x32_bf16 v[{VS+4*u}:{VS+4*u+3}], v[{K+4*u}:{K+4*u+3}], v[{VQ}:{VQ+3}], 0")
        a("v_readlane_b32 s52, v10, s41")
        a("s_add_u32 s41, s41, 1")
        a("s_nop 2")
        for u in range(4):
            a(f"v_add_f32_dpp v{4+u}, v{VS+4*u+1}, v{VS+4*u} quad_perm:[1,1,1,1] row_mask:0xf bank_mask:0xf")
        for q_ in (2, 3):
            for u in range(4):
                a(f"v_add_f32_dpp v{4+u}, v{VS+4*u+q_}, v{4+u} quad_perm:[{q_},{q_},{q_},{q_}] row_mask:0xf bank_mask:0xf")
        a("s_mov_b64 exec, s[98:99]")
        a(f"v_max3_f32 v{VM}, v4, v5, v{VM}")
        a(f"ds_write_b128 v{VSW}, v[4:7] offset:{L_SC + p*256}")
        a(f"v_max3_f32 v{VM}, v6, v7, v{VM}")
        a("s_mov_b64 exec, s[96:97]")
        guarded(lambda: issue(K, VB, "s[72:75]"))
    a(f"v_add_u32 v{VSW}, {RH*256}, v{VSW}")
    a("s_sub_u32 s76, s76, 1")
    a("s_cbranch_scc0 L_kloop")
    a(f"ds_read_b32 v9, v{VSR} offset:{L_SC}")
    a(f"v_mov_b32_dpp v1, v{VM} quad_perm:[0,0,0,0] row_mask:0xf bank_mask:0xf")
    a(f"v_mov_b32_dpp v2, v{VM} quad_perm:[0,0,0,0] row_mask:0xf bank_mask:0xf")
    a("s_nop 1")
    a("v_permlane16_swap_b32 v1, v2")
    a("s_nop 0")
    a("v_max_f32 v1, v1, v2")
    a("v_mov_b32 v2, v1")
    a("s_nop 1")
    a("v_permlane32_swap_b32 v1, v2")
    a("s_mov_b32 s78, 1")
    a(f"v_max_f32 v{VM}, v1, v2")
    a(f"v_mul_f32 v3, s53, v{VM}")
    lab("L_vloop")
    a("s_cmp_lg_u32 s77, 0")
    a("s_cbranch_scc1 L_v0")
    a("s_mov_b64 s[72:73], s[6:7]")
    a(f"v_mov_b32 v{VB}, v{VKO}")
    a("s_mov_b32 s78, 0")
    lab("L_v0")
    for p in range(RH):
        sl = PERM[p]
        V = VR + sl * 16
        a("v_readlane_b32 s52, v10, s41")
        a("s_waitcnt lgkmcnt(0)")
        a("v_fma_f32 v4, v9, s53, -v3")
        a(f"ds_read_b32 v9, v{VSR} offset:{L_SC + (p+1)*256}")
        a("v_exp_f32 v4, v4")
        a("s_add_u32 s41, s41, 1" if sl == 1 else "s_add_u32 s41, s41, s78")
        a("v_cvt_pk_bf16_f32 v5, v4, v4")
        a(f"v_add_f32 v{VL}, v{VL}, v4")
        a("s_nop 0")
        for t in range(4):
            a(f"v_and_b32_dpp v{VA+2*t}, v5, v{VM0} quad_perm:[{t},{t},{t},{t}] row_mask:0xf bank_mask:0xf")
            a(f"v_and_b32_dpp v{VA+2*t+1}, v5, v{VM1} quad_perm:[{t},{t},{t},{t}] row_mask:0xf bank_mask:0xf")
        if p == RH - 1:
            a("s_cmp_lg_u32 s77, 0")
            a("s_cbranch_scc1 L_vw")
            a("s_waitcnt vmcnt(4)")
            lab("L_vw")
        for t in range(4):
            a(f"v_mfma_f32_16x16x16_bf16 v[{VO}:{VO+3}], v[{VA+2*t}:{VA+2*t+1}], v[{V+4*t}:{V+4*t+1}], v[{VO}:{VO+3}]")
            a(f"v_mfma_f32_16x16x16_bf16 v[{VO+4}:{VO+7}], v[{VA+2*t}:{VA+2*t+1}], v[{V+4*t+2}:{V+4*t+3}], v[{VO+4}:{VO+7}]")
        if sl >= 2:
            a("s_cmp_eq_u32 s77, 0")
            a(f"s_cbranch_scc1 L_vs{p}")
            issue(V, VVO, "s[48:51]")
            lab(f"L_vs{p}")
        elif sl == 0:
            guarded(lambda: issue(V, VB, "s[72:75]"))
        else:
            guarded(lambda: issue(V, VVO, "s[48:51]"))
        if sl == (1 if reqat == "V" else 0) and NS == NA + 1 and NS < 32:
            a("s_cmp_lg_u32 s77, 0")
            a("s_cbranch_scc1 L_vnc")
            guarded(lambda: claim(first=True))
            lab("L_vnc")
    a(f"v_add_u32 v{VSR}, {RH*256}, v{VSR}")
    a("s_sub_u32 s77, s77, 1")
    a("s_cbranch_scc0 L_vloop")
    a(f"v_add_f32_dpp v{VL}, v{VL}, v{VL} quad_perm:[1,0,3,2] row_mask:0xf bank_mask:0xf")
    a("s_waitcnt lgkmcnt(0)")
    a("s_nop 0")
    a(f"v_add_f32_dpp v{VL}, v{VL}, v{VL} quad_perm:[2,3,0,1] row_mask:0xf bank_mask:0xf")
    if warm:
        a("s_cbranch_execnz L_loop")
        a("s_mov_b32 s41, 63")
    lab("L_loop")
    snips = []
    def bump(slot):
        a("s_add_u32 s41, s41, 1")
        if NS < 32:
            a(f"s_cmp_lt_u32 s41, {NS}")
            a(f"s_cbranch_scc1 L_nc{slot}")
            claim()
            lab(f"L_nc{slot}")
    WL = [f"global_load_dwordx4 v[{RD+4*i}:{RD+4*i+3}], v{T_D0 + i//2}, s[20:21] offset:{(i&1)*1024} {woflags}" for i in range(4)]
    WL += [f"global_load_dwordx4 v[{RW+4*i}:{RW+4*i+3}], v{T_WO}, s[12:13] offset:{i*1024-4096} {woflags}" for i in range(8)]
    assert nC <= nA <= 12
    for slot in range(R):
        oth = 1 - slot
        a("v_readlane_b32 s52, v10, s41")
        a(f"s_cmp_ge_u32 s41, {NS}")
        a(f"s_cbranch_scc1 L_tk{slot}")
        a("s_nop 1")
        lab(f"L_gk{slot}")
        issueK(oth)
        if reqat == "K": bump(slot)
        lab(f"L_rk{slot}")
        sn = [f"L_tk{slot}:"]
        if warm: sn += [f"    s_cbranch_execz L_rk{slot}"]
        if NS < 32:
            sn += ["    s_lshl_b32 s35, s41, 2", f"    s_add_u32 s35, s35, {L_TK - 4 * NS}", "    v_mov_b32 v15, s35", f"    s_mov_b32 s40, {spin * 8}",
                   f"L_tp{slot}:", "    ds_read_b32 v16, v15", "    s_sub_u32 s40, s40, 1", f"    s_cbranch_scc1 L_tf{slot}", "    s_waitcnt lgkmcnt(0)",
                   "    v_readfirstlane_b32 s35, v16", "    s_nop 1", "    s_cmp_eq_u32 s35, -1", f"    s_cbranch_scc1 L_tp{slot}",
                   "    s_xor_b32 s52, s35, s55", "    s_cmp_lg_u32 s35, -2", f"    s_cbranch_scc1 L_gk{slot}", f"L_tf{slot}:"]
        sn += ["    s_mov_b32 s54, 0"] + ["    " + x for x in WL[:nC]] + [f"    s_waitcnt vmcnt({4+nC})", f"    s_branch L_rk{slot}"]
        snips.append(sn)
        qk(slot)
        a("s_nop 4")
        softmax()
        a("s_cmp_lt_u32 s54, 2")
        a(f"s_cbranch_scc1 L_dv{slot}")
        issueV(oth)
        if reqat == "V": bump(slot)
        lab(f"L_rv{slot}")
        pv(slot)
        a("s_sub_u32 s54, s54, 1")
        a("s_cbranch_scc1 L_done")
        snips.append([f"L_dv{slot}:"] + ([f"    s_cbranch_execz L_rv{slot}"] if warm else []) + ["    " + x for x in WL[nC:nA]] + [f"    s_waitcnt vmcnt({nA})", f"    s_branch L_rv{slot}"])
    a("s_branch L_loop")
    for sn in snips: cur[0].extend(sn)
    lab("L_done")
    stamp(3)
    if ts and probe is None: a("s_mov_b32 s94, s41")
    if ts and probe is None: a(f"v_mov_b32 v{VR}, v13")
    def poll1(k): return f"global_load_dwordx4 v[{VP1+4*k}:{VP1+4*k+3}], v{T_P1L}, s[26:27] {ldflags}"
    def poll2(k): return [f"global_load_dwordx4 v[{VP2+16*k+4*i}:{VP2+16*k+4*i+3}], v{T_F0+i}, s[26:27] {ldflags}" for i in range(4)]
    a(f"v_mov_b32 v2, v{VL}")
    a(f"v_mul_f32 v10, s53, v{VM}")
    a("s_nop 0")
    a(f"v_permlane16_swap_b32 v{VL}, v2")
    a("s_nop 0")
    a(f"v_add_f32 v11, v{VL}, v2")
    a("v_mov_b32 v2, v11")
    a(f"ds_write_b128 v{T_OW}, v[{VO}:{VO+3}] offset:{L_O}")
    a(f"ds_write_b128 v{T_OW}, v[{VO+4}:{VO+7}] offset:{L_O+16}")
    a("v_permlane32_swap_b32 v11, v2")
    a("s_nop 0")
    a("v_add_f32 v11, v11, v2")
    a(f"ds_write_b64 v{T_SW}, v[10:11] offset:{L_ST}")
    a("s_waitcnt lgkmcnt(0)")
    guard(["s_barrier"])
    a(f"ds_read_b128 v[8:11], v{T_SR} offset:{L_ST}")
    a(f"ds_read_b128 v[12:15], v{T_SR} offset:{L_ST+16}")
    for w in range(4):
        a(f"ds_read_b64 v[{24+2*w}:{25+2*w}], v{T_OR} offset:{L_O + w*2048}")
    a("v_mov_b32 v39, v17")
    a("s_waitcnt lgkmcnt(4)")
    a("v_max3_f32 v2, v8, v10, v12")
    a("v_max_f32 v2, v2, v14")
    for w in range(4):
        a(f"v_sub_f32 v{8+2*w}, v{8+2*w}, v2")
    for w in range(4):
        a(f"v_exp_f32 v{8+2*w}, v{8+2*w}")
    a("v_mul_f32 v16, v8, v9")
    a("v_fmac_f32 v16, v10, v11")
    a("v_fmac_f32 v16, v12, v13")
    a("v_fmac_f32 v16, v14, v15")
    a("s_waitcnt lgkmcnt(0)")
    a("v_rcp_f32 v5, v16")
    a("v_log_f32 v16, v16")
    a("v_mul_f32 v36, v8, v24")
    a("v_mul_f32 v37, v8, v25")
    for w in range(1, 4):
        a(f"v_fmac_f32 v36, v{8+2*w}, v{24+2*w}")
        a(f"v_fmac_f32 v37, v{8+2*w}, v{25+2*w}")
    a("v_add_f32 v38, v2, v16")
    a("v_mul_f32 v36, v36, v5")
    a("v_mul_f32 v37, v37, v5")
    if "halfP1" in skip:
        a("s_cmp_ge_u32 s42, 2")
        a("s_cbranch_scc1 L_hp1")
    guard([f"global_store_dwordx4 v{T_P1S}, v[36:39], s[26:27] {stflags}"] + ([] if ts else WL[nA:] + [poll1(0)]))
    if "halfP1" in skip:
        lab("L_hp1")
        a(f"v_and_b32 v{T_P1L}, 0xfffff7ff, v{T_P1L}")
    stamp(4)
    if ts: guard(WL[nA:] + [poll1(0)])
    a(f"ds_read_b32 v{T_X}, v{T_XO} offset:{L_XR}")
    a(f"ds_read_b64 v[24:25], v{T_H} offset:{L_H}")
    def younger(k):
        return (11 - k) + (1 if k < nA else 0) + 1
    def pairup(raw, dst, p):
        for d in range(4):
            a(f"v_perm_b32 v{dst+8*p+2*d}, v{raw+8*p+4+d}, v{raw+8*p+d}, s64")
            a(f"v_perm_b32 v{dst+8*p+2*d+1}, v{raw+8*p+4+d}, v{raw+8*p+d}, s65")
    def dots(pairs, vec, npairs):
        for p in range(npairs):
            for c in range(8):
                a(f"v_dot2_f32_bf16 v{VS+c}, v{pairs+8*p+c}, v{vec+p}, {'0' if p == 0 else 'v%d' % (VS+c)}")
    def fold(dst):
        for k in range(4): a(f"v_permlane32_swap_b32 v{VS+k}, v{VS+4+k}")
        for k in range(4): a(f"v_add_f32 v{VS+k}, v{VS+k}, v{VS+4+k}")
        a("s_nop 0")
        for k in range(2): a(f"v_permlane16_swap_b32 v{VS+k}, v{VS+2+k}")
        for k in range(2): a(f"v_add_f32 v{dst+k}, v{VS+k}, v{VS+2+k}")
    a(f"s_waitcnt vmcnt({younger(3)})")
    for p in range(2): pairup(RD, PD, p)
    a("s_waitcnt lgkmcnt(0)")
    dots(PD, 24, 2)
    fold(42)
    a("v_perm_b32 v42, v42, v17, s62")
    a("v_perm_b32 v43, v43, v17, s63")
    for p in range(4):
        a(f"s_waitcnt vmcnt({younger(4 + 2*p + 1)})")
        pairup(RW, PW, p)
    a("v_mov_b32 v6, 0")
    a(f"s_mov_b32 s40, {spin}")
    if probe is None: stamp(11)
    stubs = []
    if D1 == 1: a("s_branch L_p1chk")
    lab("L_p1poll")
    for k in range(D1):
        guard([poll1((k + D1 - 1) % D1)])
        if D1 == 1: lab("L_p1chk")
        a(f"s_waitcnt vmcnt({D1 - 1})")
        a(f"v_cmp_ne_u32 vcc, s33, v{VP1+4*k+3}")
        if ts: a("s_sub_u32 s40, s40, 1")
        a(f"s_cbranch_vccz L_p1ok{k}")
        if sleep1: a(f"s_sleep {sleep1}")
        st = [f"L_p1ok{k}:", f"    v_mov_b32 v10, v{VP1+4*k+2}", f"    v_mov_b32 v8, v{VP1+4*k}", f"    v_mov_b32 v9, v{VP1+4*k+1}"]
        stubs.append(st + (["    s_branch L_p1done"] if k else []))
    a("s_sub_u32 s40, s40, 1")
    a("s_cmp_gt_i32 s40, 0")
    a("s_cbranch_scc1 L_p1poll")
    for st in reversed(stubs): cur[0].extend(st)
    lab("L_p1done")
    stamp(5)
    if ts and probe is None: a(f"s_sub_u32 s92, {spin}, s40")
    a("v_max_f32_dpp v2, v10, v10 row_ror:8 row_mask:0xf bank_mask:0xf")
    a("s_nop 1")
    for r in (4, 2, 1):
        a(f"v_max_f32_dpp v2, v2, v2 row_ror:{r} row_mask:0xf bank_mask:0xf")
        if r > 1: a("s_nop 1")
    a("v_sub_f32 v10, v10, v2")
    a("v_exp_f32 v10, v10")
    a("s_nop 0")
    a("v_mul_f32 v8, v8, v10")
    a("v_mul_f32 v9, v9, v10")
    for r in (8, 4, 2, 1):
        for v in (10, 8, 9):
            a(f"v_add_f32_dpp v{v}, v{v}, v{v} row_ror:{r} row_mask:0xf bank_mask:0xf")
    a("v_rcp_f32 v10, v10")
    a("s_nop 0")
    a("v_mul_f32 v8, v8, v10")
    a("v_mul_f32 v9, v9, v10")
    a("v_cvt_pk_bf16_f32 v8, v8, v9")
    a(f"ds_write_b32 v{T_OBW}, v8 offset:{L_OB}")
    a("s_waitcnt lgkmcnt(0)")
    guard(["s_barrier"])
    a(f"ds_read_b128 v[24:27], v{T_OBR} offset:{L_OB}")
    a("s_waitcnt lgkmcnt(0)")
    dots(PW, 24, 4)
    fold(40)
    a("v_perm_b32 v40, v40, v17, s60")
    a("v_perm_b32 v41, v41, v17, s61")
    if "halfP2" in skip:
        a("s_cmp_ge_u32 s42, 2")
        a("s_cbranch_scc1 L_hp2")
    guard([f"global_store_dwordx4 v{T_P2S}, v[40:43], s[26:27] {stflags}"])
    if "halfP2" in skip:
        lab("L_hp2")
        a("s_and_b32 s35, s28, 2")
        a("s_cbranch_scc1 L_sexit")
    stamp(6)
    if c64:
        a("s_and_b32 s35, s29, 3")
        a("s_cbranch_scc1 L_sexit")
        a("v_and_b32 v3, 7, v0")
        a("v_lshlrev_b32 v3, 4, v3")
        a("s_lshl_b32 s35, s42, 7")
        a("v_lshrrev_b32 v4, 4, v0")
        a("v_lshl_add_u32 v4, v4, 2, v3")
        a("v_add_u32 v4, s35, v4")
        a("s_mov_b32 s66, 0xffffff00")
    else:
        a("s_cmp_lg_u32 s42, 0")
        a("s_cbranch_scc1 L_sexit")
    a(f"s_mov_b32 s40, {spin}")
    assert c64
    for k in range(D2 - 1):
        guard(poll2(k))
        if sleep2: a(f"s_sleep {sleep2}")
    stubs = []
    lab("L_p2poll")
    for k in range(D2):
        guard(poll2((k + D2 - 1) % D2))
        a(f"s_waitcnt vmcnt({4 * (D2 - 1)})")
        check([VP2 + 16 * k + 4 * i for i in range(4)], 2)
        if ts: a("s_sub_u32 s40, s40, 1")
        a(f"s_cbranch_vccz L_p2ok{k}")
        if sleep2: a(f"s_sleep {sleep2}")
        st = [f"L_p2ok{k}:"] + [f"    v_and_b32 v{24+i}, s66, v{VP2+16*k+i}" for i in range(16)]
        stubs.append(st + (["    s_branch L_p2done"] if k else []))
    a("s_sub_u32 s40, s40, 1")
    a("s_cmp_gt_i32 s40, 0")
    a("s_cbranch_scc1 L_p2poll")
    for st in reversed(stubs): cur[0].extend(st)
    lab("L_p2done")
    stamp(7)
    if ts and probe is None: a(f"s_sub_u32 s93, {spin}, s40")
    for i in (0, 2):
        a(f"v_pk_add_f32 v[{24+i}:{25+i}], v[{24+i}:{25+i}], v[{28+i}:{29+i}]")
        a(f"v_pk_add_f32 v[{32+i}:{33+i}], v[{32+i}:{33+i}], v[{36+i}:{37+i}]")
    for i in (0, 2): a(f"v_pk_add_f32 v[{8+i}:{9+i}], v[{24+i}:{25+i}], v[{32+i}:{33+i}]")
    a("s_nop 1")
    a("v_permlane32_swap_b32 v8, v10")
    a("v_permlane32_swap_b32 v9, v11")
    a("s_nop 0")
    a("v_add_f32 v8, v8, v10")
    a("v_add_f32 v9, v9, v11")
    a("s_nop 1")
    a("v_permlane16_swap_b32 v8, v9")
    a("s_nop 0")
    a("v_add_f32 v8, v8, v9")
    a("s_nop 1")
    a("v_add_f32_dpp v8, v8, v8 row_ror:8 row_mask:0xf bank_mask:0xf")
    a(f"ds_write_b32 v4, v8 offset:{L_O}")
    a("s_waitcnt lgkmcnt(0)")
    guard(["s_barrier"])
    a("s_cmp_lg_u32 s42, 0")
    a("s_cbranch_scc1 L_sexit")
    for w in range(4): a(f"ds_read_b128 v[{24+4*w}:{27+4*w}], v3 offset:{L_O + 128*w}")
    a("s_waitcnt lgkmcnt(2)")
    for i in (0, 2): a(f"v_pk_add_f32 v[{24+i}:{25+i}], v[{24+i}:{25+i}], v[{28+i}:{29+i}]")
    a("s_waitcnt lgkmcnt(0)")
    for i in (2, 0): a(f"v_pk_add_f32 v[{32+i}:{33+i}], v[{32+i}:{33+i}], v[{36+i}:{37+i}]")
    for i in (2, 0): a(f"v_pk_add_f32 v[{8+i}:{9+i}], v[{24+i}:{25+i}], v[{32+i}:{33+i}]")
    a("v_cvt_pk_bf16_f32 v10, v10, v11")
    a("v_cvt_pk_bf16_f32 v8, v8, v9")
    a("v_and_b32 v11, 0xffff0000, v10")
    a("v_lshlrev_b32 v10, 16, v10")
    a(f"v_mul_f32 v13, {f2u(-math.log2(math.e)):#x}, v11")
    a(f"v_mul_f32 v12, {f2u(-math.log2(math.e)):#x}, v10")
    a("v_exp_f32 v13, v13")
    a("v_exp_f32 v12, v12")
    a("v_and_b32 v9, 0xffff0000, v8")
    a("v_add_f32 v13, 1.0, v13")
    a("v_add_f32 v12, 1.0, v12")
    a("v_rcp_f32 v13, v13")
    a("v_rcp_f32 v12, v12")
    a("v_lshlrev_b32 v8, 16, v8")
    a("v_mul_f32 v11, v11, v13")
    a("v_mul_f32 v10, v10, v12")
    a("v_cvt_pk_bf16_f32 v10, v10, v11")
    a(f"v_lshlrev_b32 v12, 16, v{T_X}")
    a(f"v_and_b32 v13, 0xffff0000, v{T_X}")
    a("v_and_b32 v11, 0xffff0000, v10")
    a("v_lshlrev_b32 v10, 16, v10")
    a("v_mul_f32 v9, v9, v11")
    a("v_mul_f32 v8, v8, v10")
    a("v_cvt_pk_bf16_f32 v8, v8, v9")
    a("v_and_b32 v9, 0xffff0000, v8")
    a("v_lshlrev_b32 v8, 16, v8")
    a("v_add_f32 v9, v9, v13")
    a("v_add_f32 v8, v8, v12")
    a("v_cvt_pk_bf16_f32 v8, v8, v9")
    if warm: a("s_cbranch_execz L_end")
    a("s_mov_b64 exec, 0xff" if c64 else "s_mov_b64 exec, 3")
    if probe is not None: stamp(9)
    a(f"global_store_dword v{T_XO}, v8, s[22:23] {outflags}")
    if probe is not None:
        a("s_waitcnt vmcnt(0)")
        stamp(14)
    a("s_cmp_lg_u32 s2, 0")
    a("s_cbranch_scc1 L_sexit")
    a("s_mov_b64 exec, 1")
    a(f"global_store_dword v6, v17, s[26:27] {outflags}")
    lab("L_sexit")
    if dbg == "class":
        a("s_getreg_b32 s35, hwreg(HW_REG_XCC_ID)")
        a("s_bfe_u32 s35, s35, 0x10002")
        a("s_lshr_b32 s36, s32, 3")
        a("s_cmp_lg_u32 s35, s36")
        a("s_cbranch_scc1 L_nodbg")
        a("s_mov_b64 exec, 1")
        a("s_lshl_b32 s36, s38, 2")
        a("v_mov_b32 v1, s36")
        a("v_mov_b32 v2, s41")
        a("global_atomic_add v1, v2, s[24:25]")
        lab("L_nodbg")
    if dbg == "ptr":
        a("s_mov_b64 exec, 1")
        a("v_mov_b32 v1, 0")
        for i, r in enumerate((44, 45, 48, 49, 26, 27)):
            a(f"v_mov_b32 v2, s{r}")
            a(f"global_store_dword v1, v2, s[24:25] offset:{4*i}")
    stamp(8)
    if ts and probe is None:
        a("s_mov_b64 exec, -1")
        a("s_lshl_b32 s70, s2, 2")
        a("s_add_u32 s70, s70, s42")
        a("s_lshl_b32 s70, s70, 8")
        a(f"s_add_u32 s70, s70, {WS_TT}")
        a("v_lshl_add_u32 v1, v0, 2, s70")
        a(f"global_store_dword v1, v{VR}, s[26:27]")
    dump_stamps("S")
    lab("L_end")
    a("s_endpgm")

    section("X2")
    lab("L_x2")
    a("v_lshrrev_b32 v46, 4, v0")
    a("v_bfe_u32 v7, v0, 2, 2")
    a("v_and_b32 v5, 3, v0")
    a("v_lshlrev_b32 v44, 10, v46")
    a("v_lshl_add_u32 v44, v7, 7, v44")
    a("v_lshl_add_u32 v44, v5, 3, v44")
    a("v_and_b32 v45, 1, v0")
    a("v_lshlrev_b32 v4, 10, v45")
    a("v_lshl_add_u32 v4, v46, 4, v4")
    a("v_bfe_u32 v47, v0, 1, 3")
    a(f"v_add_u32 v4, {L_XN}, v4")
    a("s_lshr_b32 s35, s39, 20")
    a("s_lshl_b32 s36, s35, 8")
    a("v_add_u32 v5, s36, v4")
    a(f"v_mov_b32 v34, {L_Z}")
    for k in range(4):
        a(f"v_cmp_eq_u32 s[{44+2*k}:{45+2*k}], {k}, v47")
    a("s_nop 0")
    for k in range(4):
        a(f"v_cndmask_b32 v{36+k}, v34, v5, s[{44+2*k}:{45+2*k}]")
    a("s_bfe_u32 s36, s39, 0x3000a")
    a("s_lshl_b32 s36, s36, 14")
    a("s_lshl_b32 s37, s35, 11")
    a("s_add_u32 s36, s36, s37")
    a("s_bfe_u32 s37, s39, 0x30007")
    a("s_lshl_b32 s37, s37, 8")
    a("s_add_u32 s36, s36, s37")
    a(f"s_add_u32 s36, s36, {WS_QP}")
    a("v_lshl_add_u32 v5, v45, 13, s36")
    a("v_lshl_add_u32 v5, v47, 6, v5")
    a("v_lshl_add_u32 v5, v46, 4, v5")
    if ts: a("s_memrealtime s[72:73]")
    if lnfirst is False: a("s_barrier")
    a("s_waitcnt vmcnt(1)")
    if NS < 32:
        a("s_cmp_eq_u32 s67, 0")
        a("s_cbranch_scc1 L_xok")
    a("s_waitcnt vmcnt(0)")
    lab("L_xok")
    stamp(1)
    if ts: a("s_mov_b32 s89, s72")
    a(f"ds_write_b128 v1, v[8:11] offset:{L_XR}")
    a(f"ds_write_b128 v1, v[12:15] offset:{L_XR+16}")
    for i in range(8):
        a(f"v_lshlrev_b32 v{16+2*i}, 16, v{8+i}")
        a(f"v_and_b32 v{17+2*i}, 0xffff0000, v{8+i}")
    def red32(v, t):
        a("s_nop 1")
        for r in (8, 4, 2, 1):
            a(f"v_add_f32_dpp {v}, {v}, {v} row_ror:{r} row_mask:0xf bank_mask:0xf")
            a("s_nop 1")
        a(f"v_mov_b32 {t}, {v}")
        a("s_nop 1")
        a(f"v_permlane16_swap_b32 {v}, {t}")
        a("s_nop 0")
        a(f"v_add_f32 {v}, {v}, {t}")
    a("v_add_f32 v6, v16, v17")
    for i in range(2, 16):
        a(f"v_add_f32 v6, v6, v{16+i}")
    red32("v6", "v7")
    a(f"v_mul_f32 v6, {f2u(1.0/512):#x}, v6")
    a("v_sub_f32 v32, v16, v6")
    a("v_mul_f32 v33, v32, v32")
    for i in range(1, 16):
        a(f"v_sub_f32 v32, v{16+i}, v6")
        a("v_fmac_f32 v33, v32, v32")
    red32("v33", "v7")
    a(f"v_mul_f32 v33, {f2u(1.0/512):#x}, v33")
    a("v_cvt_pk_bf16_f32 v6, v6, v33")
    a("v_and_b32 v33, 0xffff0000, v6")
    a("v_lshlrev_b32 v6, 16, v6")
    a(f"v_add_f32 v33, {f2u(1e-5):#x}, v33")
    a("v_cvt_pk_bf16_f32 v33, v33, v33")
    a("v_lshlrev_b32 v33, 16, v33")
    a("v_sqrt_f32 v33, v33")
    a("s_nop 0")
    a("v_cvt_pk_bf16_f32 v33, v33, v33")
    a("v_lshlrev_b32 v33, 16, v33")
    a("v_rcp_f32 v33, v33")
    for i in range(8):
        a(f"v_sub_f32 v{16+2*i}, v{16+2*i}, v6")
        a(f"v_sub_f32 v{17+2*i}, v{17+2*i}, v6")
        a(f"v_cvt_pk_bf16_f32 v{8+i}, v{16+2*i}, v{17+2*i}")
        a(f"v_lshlrev_b32 v{16+2*i}, 16, v{8+i}")
        a(f"v_and_b32 v{17+2*i}, 0xffff0000, v{8+i}")
        a(f"v_mul_f32 v{16+2*i}, v{16+2*i}, v33")
        a(f"v_mul_f32 v{17+2*i}, v{17+2*i}, v33")
        a(f"v_cvt_pk_bf16_f32 v{8+i}, v{16+2*i}, v{17+2*i}")
    a(f"ds_write_b128 v1, v[8:11] offset:{L_XN}")
    a(f"ds_write_b128 v1, v[12:15] offset:{L_XN+16}")
    def gemv(wbase, xsel):
        for ks in range(4):
            o = (ks & 1) * 32
            for blk in range(4):
                xr, xo = xsel(ks, blk)
                a(f"ds_read_b128 v[{48+o+4*blk}:{51+o+4*blk}], v{xr} offset:{xo}")
                a(f"ds_read_b64_tr_b16 v[{64+o+4*blk}:{65+o+4*blk}], v44 offset:{wbase + ks*4096 + blk*32}")
                a(f"ds_read_b64_tr_b16 v[{66+o+4*blk}:{67+o+4*blk}], v44 offset:{wbase + ks*4096 + blk*32 + 512}")
            for blk in range(4):
                a(f"s_waitcnt lgkmcnt({9-3*blk})")
                c = "0" if (ks == 0 and blk == 0) else "v[8:11]"
                a(f"v_mfma_f32_16x16x32_bf16 v[8:11], v[{64+o+4*blk}:{67+o+4*blk}], v[{48+o+4*blk}:{51+o+4*blk}], {c}")
    a("s_waitcnt lgkmcnt(0)")
    a(f"s_add_u32 s33, s33, {PHI:#x}")
    tagregs()
    a("v_mov_b32 v32, s33")
    a("v_mov_b32 v33, 1")
    if lnfirst: a("s_barrier")
    stamp(2)
    gemv(L_W0, lambda ks, blk: (36 + blk, ks * 64))
    a("s_mov_b32 s36, 0x00ff00ff")
    a("s_mov_b32 s37, 0x00ff00ff")
    a("s_lshl_b32 s39, s30, 14")
    a("s_lshl_b32 s40, s31, 13")
    a("s_add_u32 s39, s39, s40")
    a(f"s_add_u32 s39, s39, {WS_QP + 4096}")
    a("v_lshl_add_u32 v1, v0, 4, s39")
    a(f"s_mov_b32 s40, {0 if 'qwait' in skip else spin}")
    embed(8, 32)
    a("s_mov_b64 exec, s[36:37]")
    a("s_waitcnt vmcnt(0)")
    if "qst" not in skip: a(f"global_store_dwordx4 v5, v[8:11], s[26:27] {qstflags}")
    a("s_mov_b64 exec, -1")
    stamp(3)
    def ffn_part():
        if "ffn" in skip: a("s_branch L_noffn")
        a("s_cmp_ge_u32 s29, 28")
        a("s_cbranch_scc1 L_noffn")
        a("s_lshl_b32 s36, s28, 7")
        a("v_add_u32 v5, s36, v4")
        for k in range(4):
            a(f"v_cndmask_b32 v{36+k}, v34, v5, s[{44+2*k}:{45+2*k}]")
        for k in range(4):
            a(f"v_cmp_eq_u32 s[{44+2*k}:{45+2*k}], {4+k}, v47")
        a("s_nop 0")
        for k in range(4):
            a(f"v_cndmask_b32 v{40+k}, v34, v5, s[{44+2*k}:{45+2*k}]")
        a("s_mul_i32 s36, s28, 7168")
        a("s_lshl_b32 s37, s29, 8")
        a("s_add_u32 s36, s36, s37")
        a(f"s_add_u32 s36, s36, {WS_FP}")
        a("v_bfe_u32 v5, v0, 3, 1")
        a("v_lshl_add_u32 v5, v45, 1, v5")
        a(f"v_mul_u32_u24 v5, {8*7168}, v5")
        a("v_bfe_u32 v2, v0, 1, 2")
        a("v_lshl_add_u32 v2, v2, 6, v5")
        a("v_lshl_add_u32 v2, v46, 4, v2")
        a("v_add_u32 v2, s36, v2")
        a("v_and_b32 v5, 12, v0")
        a(f"s_mov_b32 s39, {spin * 8}")
        lab("L_rdy")
        a(f"ds_read_b32 v6, v5 offset:{L_RDY}")
        a("s_waitcnt lgkmcnt(0)")
        a("v_cmp_eq_u32 vcc, 0, v6")
        a("s_cbranch_vccz L_rdy_done")
        a("s_sleep 1")
        a("s_sub_u32 s39, s39, 1")
        a("s_cbranch_scc0 L_rdy")
        lab("L_rdy_done")
        gemv(L_W1, lambda ks, blk: (36 + (ks >> 1) * 4 + blk, (ks & 1) * 64))
        a("s_nop 7")
        embed(8, 32)
        if "fst" not in skip: a(f"global_store_dwordx4 v2, v[8:11], s[26:27] {qstflags}")
        lab("L_noffn")
        stamp(4)
    if qafter: ffn_part()
    if qdelay: a(f"s_sleep {qdelay}")
    stamp(7)
    lab("L_qpoll")
    for i in range(8):
        if "qld" not in skip: a(f"global_load_dwordx4 v[{48+4*i}:{51+4*i}], v1, s[26:27] offset:{i*1024-4096} {qldflags}")
    a("s_waitcnt vmcnt(0)")
    check([48 + 4 * i for i in range(8)], 6)
    pollend("L_qpoll")
    for i in range(32):
        a(f"v_and_b32 v{48+i}, 0xffffff00, v{48+i}")
    for i in range(8):
        a(f"v_add_f32 v{48+i}, v{48+i}, v{56+i}")
        a(f"v_add_f32 v{64+i}, v{64+i}, v{72+i}")
    for i in range(8):
        a(f"v_add_f32 v{48+i}, v{48+i}, v{64+i}")
    for i in range(4):
        a(f"v_cvt_pk_bf16_f32 v{48+i}, v{48+2*i}, v{49+2*i}")
    a("v_lshlrev_b32 v1, 3, v0")
    a("v_mov_b32 v6, 0")
    if NS < 32:
        a("v_mov_b32 v7, -1")
        a("v_lshlrev_b32 v5, 2, v0")
        a(f"v_add_u32 v5, {L_TK}, v5")
        for i in range(3): a(f"ds_write_b32 v5, v7 offset:{256*i}")
    a(f"ds_write_b64 v1, v[48:49] offset:{L_Q}")
    a(f"ds_write_b64 v1, v[50:51] offset:{L_Q+512}")
    a("s_waitcnt lgkmcnt(0)")
    a(f"ds_write_b64 v6, v[32:33] offset:{L_TAG}")
    stamp(5)
    a("s_setprio 0")
    if not qafter: ffn_part()
    a("s_mul_i32 s36, s34, 56")
    a("s_andn2_b32 s36, s36, 15")
    a(f"s_mul_i32 s37, s31, {16*7168}")
    a("s_add_u32 s36, s36, s37")
    a(f"s_add_u32 s36, s36, {WS_FP}")
    a("v_lshrrev_b32 v1, 2, v0")
    a("v_mul_u32_u24 v1, 7168, v1")
    a("v_and_b32 v3, 3, v0")
    a("v_lshl_add_u32 v1, v3, 4, v1")
    a("v_add_u32 v1, s36, v1")
    a(f"s_mov_b32 s40, {0 if ('ffn' in skip or 'hwait' in skip) else spin}")
    if hdelay: a(f"s_sleep {hdelay}")
    lab("L_hpoll")
    if "hld" not in skip: a("global_load_dwordx4 v[8:11], v1, s[26:27] sc1")
    a("s_waitcnt vmcnt(0)")
    check([8], 2)
    pollend("L_hpoll")
    for i in range(4): a(f"v_and_b32 v{8+i}, 0xffffff00, v{8+i}")
    for r in (4, 8):
        for i in range(4):
            a(f"v_add_f32_dpp v{8+i}, v{8+i}, v{8+i} row_ror:{r} row_mask:0xf bank_mask:0xf")
    for i in range(4): a(f"v_mov_b32 v{12+i}, v{8+i}")
    for i in range(4): a(f"v_permlane16_swap_b32 v{8+i}, v{12+i}")
    for i in range(4): a(f"v_add_f32 v{8+i}, v{8+i}, v{12+i}")
    a("v_cvt_pk_bf16_f32 v8, v8, v9")
    a("v_cvt_pk_bf16_f32 v9, v10, v11")
    a("v_mov_b32 v10, v8")
    a("v_mov_b32 v11, v9")
    a("s_nop 1")
    a("v_permlane32_swap_b32 v8, v10")
    a("v_permlane32_swap_b32 v9, v11")
    for p in range(2):
        a(f"v_lshlrev_b32 v12, 16, v{8+p}")
        a(f"v_and_b32 v13, 0xffff0000, v{8+p}")
        a(f"v_lshlrev_b32 v14, 16, v{10+p}")
        a(f"v_and_b32 v15, 0xffff0000, v{10+p}")
        a("v_max_f32 v12, 0, v12")
        a("v_max_f32 v13, 0, v13")
        a("v_mul_f32 v12, v12, v14")
        a("v_mul_f32 v13, v13, v15")
        a(f"v_cvt_pk_bf16_f32 v{16+p}, v12, v13")
    a("v_lshlrev_b32 v3, 3, v3")
    a(f"ds_write_b64 v3, v[16:17] offset:{L_H}")
    a("s_bitcmp1_b32 s34, 0")
    a("s_cselect_b32 s36, 0, 28")
    a("v_mov_b32 v3, s36")
    a("v_mov_b32 v12, 0")
    a(f"ds_write_b32 v3, v12 offset:{L_H}")
    a("s_waitcnt vmcnt(0) lgkmcnt(0)")
    stamp(6)
    if NS < 32:
        NR = 16 // pools
        a("s_lshr_b32 s37, s32, 3" if pools == 2 else "s_mov_b32 s37, 0")
        scalar_part("s55", pm, {"g": ("s38", 4)})
        if pools == 2:
            a("s_bfe_i32 s35, s32, 0x10003")
            a(f"s_and_b32 s35, s35, {mask_of('r3'):#x}")
            a("s_xor_b32 s55, s55, s35")
        for hi in range(2):
            a(f"v_add_u32 v1, {64*hi}, v0")
            if torder == "n":
                a(f"v_mul_u32_u24 v2, {(65536 + KP - 1) // KP}, v1")
                a("v_lshrrev_b32 v2, 16, v2")
                a(f"v_mul_u32_u24 v3, {KP}, v2")
                a("v_sub_u32 v3, v1, v3")
            else:
                a(f"v_and_b32 v2, {NR - 1}, v1")
                a(f"v_lshrrev_b32 v3, {NR.bit_length() - 1}, v1")
            a(f"v_add_u32 v3, {NS}, v3")
            a(f"v_mov_b32 v{20+hi}, s55")
            for pre, reg, nb in (("n", 3, 5), ("r", 2, NR.bit_length() - 1)):
                for i in range(nb):
                    a(f"v_bfe_i32 v7, v{reg}, {i}, 1")
                    a(f"v_and_b32 v7, {mask_of(pre + str(i)):#x}, v7")
                    a(f"v_xor_b32 v{20+hi}, v{20+hi}, v7")
        a(f"s_mul_i32 s36, s38, {pools}")
        a("s_add_u32 s36, s36, s37")
        a(f"s_mul_i32 s36, s36, {ctstride}")
        a(f"s_add_u32 s36, s36, {WS_CT}")
        a("s_add_u32 s68, s26, s36")
        a("s_addc_u32 s69, s27, 0")
        if pf is not None:
            a("v_bfe_u32 v1, v0, 1, 4")
            a("v_and_b32 v2, 1, v0")
            a("s_lshl_b32 s36, s38, 16")
            a("s_lshl_b32 s37, s32, 8")
            a("s_add_u32 s36, s36, s37")
            a(f"s_add_u32 s36, s36, {WS_P1}")
            a("v_lshl_add_u32 v22, v1, 12, s36")
            a("v_lshl_add_u32 v22, v2, 7, v22")
            a("v_and_b32 v1, 31, v0")
            a("s_and_b32 s36, s28, 3")
            a("s_lshl_b32 s36, s36, 3")
            a("s_lshr_b32 s37, s29, 2")
            a("s_add_u32 s36, s36, s37")
            a("v_add_u32 v2, s36, v1")
            a("v_and_b32 v2, 31, v2")
            a("s_lshr_b32 s36, s28, 2")
            a("s_lshl_b32 s36, s36, 2")
            a("s_and_b32 s37, s29, 3")
            a("s_add_u32 s36, s36, s37")
            a("s_lshl_b32 s36, s36, 17")
            a(f"s_add_u32 s36, s36, {WS_P2}")
            a("v_lshl_add_u32 v3, v1, 12, s36")
            a("v_lshl_add_u32 v3, v2, 7, v3")
            a("v_cmp_lt_u32 vcc, 31, v0")
            a("s_nop 1")
            a("v_cndmask_b32 v22, v22, v3, vcc")
        def prefetch():
            if pfmask != 3: a(f"s_mov_b32 exec_{'hi' if pfmask == 1 else 'lo'}, 0")
            a(f"global_load_dword v23, v22, s[26:27] {pf}")
            a("s_mov_b64 exec, -1")
        if pf is not None and pfat == "early": prefetch()
        a("s_mov_b32 s41, 0")
        a("v_mov_b32 v6, 0")
        a(f"v_mov_b32 v5, {L_TK}")
        a(f"s_mov_b32 s40, {spin * 8}")
        a("s_setprio 1")
        lab("L_disp")
        a(f"ds_read_b128 v[8:11], v6 offset:{L_REQ}")
        a("s_sub_u32 s40, s40, 1")
        a("s_cbranch_scc1 L_disp_done")
        a("s_waitcnt lgkmcnt(0)")
        a(f"v_{'min' if reqmin else 'max'}3_u32 v8, v8, v9, v10")
        a(f"v_{'min' if reqmin else 'max'}_u32 v8, v8, v11")
        a("v_cmp_lt_u32 vcc, s41, v8")
        a("s_cbranch_vccnz L_serve")
        a("s_sleep 1")
        a("s_branch L_disp")
        lab("L_serve")
        a("s_mov_b32 s67, 1")
        a("s_atomic_add s67, s[68:69], 0 glc")
        if pf is not None and pfat == "serve":
            a("s_cmp_lg_u32 s41, 0")
            a("s_cbranch_scc1 L_nopf")
            prefetch()
            lab("L_nopf")
        a("s_add_u32 s41, s41, 1")
        a("s_waitcnt lgkmcnt(0)")
        a("v_readlane_b32 s36, v20, s67")
        a("v_readlane_b32 s37, v21, s67")
        a("s_bitcmp1_b32 s67, 6")
        a("s_nop 0")
        a("s_cselect_b32 s36, s37, s36")
        if rush:
            a(f"s_cmp_ge_u32 s67, {max(0, POOL - rush)}")
            a("s_cselect_b32 s37, 1, 0")
            a("s_or_b32 s36, s36, s37")
        a(f"s_cmp_lt_u32 s67, {POOL}")
        a("s_cselect_b32 s36, s36, -2")
        a("v_mov_b32 v7, s36")
        a("ds_write_b32 v5, v7")
        a("v_add_u32 v5, 4, v5")
        a("s_cbranch_scc1 L_disp")
        lab("L_disp_done")
        if pf is not None and pfat == "fail": prefetch()
        a("s_waitcnt lgkmcnt(0)")
    a("s_barrier")
    dump_stamps("X")
    a("s_endpgm")

    L = [HEADER.rstrip("\n"), f"; @launch grid=(256,1,1) block=({NW*64},1,1) lds={L_END}",
         '.amdgcn_target "amdgcn-amd-amdhsa--gfx950"', ".text", f".globl {KN}", ".p2align 8", f".type {KN},@function"]
    for name in layout.split(): L.extend(SEC[name])
    L.append("L_codeend:")
    nv = VT + 20
    L.append('.section .rodata,"a"')
    L.append(".p2align 6")
    L.append(f".amdhsa_kernel {KN}")
    L.append(f"  .amdhsa_next_free_vgpr {nv}")
    L.append("  .amdhsa_next_free_sgpr 102")
    L.append(f"  .amdhsa_accum_offset {nv}")
    L.append("  .amdhsa_group_segment_fixed_size 0")
    L.append("  .amdhsa_kernarg_size 96")
    L.append("  .amdhsa_user_sgpr_count 2")
    L.append("  .amdhsa_user_sgpr_kernarg_segment_ptr 1")
    L.append("  .amdhsa_system_sgpr_workgroup_id_x 1")
    L.append("  .amdhsa_float_denorm_mode_32 3")
    L.append(".end_amdhsa_kernel")
    return "\n".join(L) + "\n"

if __name__ == "__main__":
    import json
    cfg = json.loads(sys.argv[1]) if len(sys.argv) > 1 else {}
    sys.stdout.write(gen(**cfg))
```

```python
import struct, sys, math

KN = "recurrent_scan__gqa_block_cached__glu_gated_reglu__decode_kernel"
HEADER = open("recurrent_scan__gqa_block_cached__glu_gated_reglu__decode.s.ref").read().split("; @launch")[0]

def f2u(x):
    return struct.unpack("<I", struct.pack("<f", x))[0]

WS_EPOCH = 0
WS_QP = 0x10000
WS_FP = 0x40000
WS_CT = 0x80000
WS_P1 = 0x100000
WS_P2 = 0x200000
WS_TS = 0x400000
WS_TT = 0x500000
L_W = 0
L_SC = 0
L_XN = 32768
L_XR = 34816
L_Q = 36864
L_Z = 37888
L_TAG = 38144
L_GO = 38160
L_REQ = 38176
L_H = 38400
L_ST = 38464
L_OB = 38592
L_TK = 38656
L_O = 39424
L_END = 47616
PHI = 0x9E3779B9

ROLES = [('X', slice(0, 1)), ('S', slice(1, 5))]

DOC = """;
; and streams about 1/16 of the group's keys.
;               o.wo and h.W_down partial rows, hand-off 2 (64 workgroups sum 128 partials each), gate, residual, store.
;   wave 5 (W): touches the code and the pages used later, then walks the S code with EXEC = 0 (instruction cache).
; Hand-offs carry a tag = (first word of d_ws at entry) + constant; the word is advanced at the end of the launch."""

def gen(RH=9, NA=27, NS=29, N=4, fine=1, NP=8, NK=4, fineK=2, nA=8, pre_bar=1, lnfirst=True, tlb=True, pf=True, merge=True,
        kvflags="nt", wflags="nt", woflags="", pmap="w0 w1 n0^r3^g0 n2 n1 n3 n4 r0 r1 r2 r3", i1bit=15, torder="n", ctstride=1280,
        qdelay=0, pq=4, skip=(), ts=False, spin=1 << 20, probe=None):
    KP = 32 - NS
    POOL = 16 * KP
    assert 0 < POOL <= 64 and NA % RH == 0 and NA >= 2 * RH and RH >= 9 and NS >= NA + 1 and N + fine <= 8 and NK + fineK <= 8
    SEC = {}
    cur = [None]
    def section(name): cur[0] = SEC.setdefault(name, [])
    if probe is not None: ts = True
    tt = ts and probe is None
    def a(s, c=None): cur[0].append("    " + (s if c is None else f"{s:<72}; {c}"))
    def lab(s): cur[0].append(s + ":")
    def note(s): cur[0].append("    ; " + s)
    skn = [0]
    def guarded(f):
        skn[0] += 1
        n = skn[0]
        a(f"s_cbranch_execz L_g{n}")
        f()
        lab(f"L_g{n}")
    def guard(lines): guarded(lambda: [a(x) for x in lines])
    def stamp(idx):
        if ts:
            a("s_waitcnt lgkmcnt(0)")
            a("s_memrealtime s[70:71]")
            a("s_waitcnt lgkmcnt(0)")
            a(f"s_mov_b32 s{80+idx}, s70")
    def zero_stamps():
        if ts:
            a("s_mov_b32 s80, s70")
            for i in range(1, 16): a(f"s_mov_b32 s{80+i}, 0")
    def tstamp():
        if tt:
            a("s_memrealtime s[70:71]")
            a("s_add_u32 s79, s79, 1")
            a("s_lshr_b32 m0, s79, 1")
            a("s_waitcnt lgkmcnt(0)")
            a("v_writelane_b32 v13, s70, m0")
    def dump_stamps(role):
        if probe is not None:
            if role == probe[0]:
                pidx = probe[1]
                if len(probe) > 2:
                    a(f"s_and_b32 s73, s2, {probe[2]}")
                    a(f"s_cmp_lg_u32 s73, {probe[3]}")
                    a("s_cbranch_scc1 L_pe")
                a(f"s_cmp_eq_u32 s{80+pidx}, 0")
                a("s_cbranch_scc1 L_pe")
                if len(probe) > 4:
                    a(f"s_sub_u32 s72, s{80+pidx}, s{80+probe[4]}")
                    a("s_lshl_b32 s72, s72, 4")
                    a("s_add_u32 s72, s72, s80")
                    a("s_add_u32 s72, s72, 10000")
                else:
                    a(f"s_add_u32 s72, s{80+pidx}, 10000")
                lab("L_pl")
                a("s_memrealtime s[70:71]")
                a("s_waitcnt lgkmcnt(0)")
                a("s_sub_u32 s73, s70, s72")
                a("s_cmp_lt_i32 s73, 0")
                a("s_cbranch_scc1 L_pl")
                lab("L_pe")
        elif ts:
            a("s_mov_b64 exec, 1")
            a("s_mul_i32 s70, s2, 5")
            a("s_add_u32 s70, s70, s3")
            a("s_lshl_b32 s70, s70, 6")
            a(f"s_add_u32 s70, s70, {WS_TS}")
            a("v_mov_b32 v1, s70")
            a("s_getreg_b32 s95, hwreg(HW_REG_XCC_ID)")
            for q in range(4):
                for i in range(4): a(f"v_mov_b32 v{4+i}, s{80+q*4+i}")
                a(f"global_store_dwordx4 v1, v[4:7], s[26:27] offset:{q*16}")
                a("s_nop 1")
    def tagregs():
        a("s_mov_b32 s56, s33", "s56..s59 = tag >> 8i, s60..s63 = byte-insert selectors")
        a("s_lshr_b32 s57, s33, 8")
        a("s_lshr_b32 s58, s33, 16")
        a("s_lshr_b32 s59, s33, 24")
        for i in range(4): a(f"s_mov_b32 s{60+i}, {0x07060500 + i:#x}")
    def check(regs, acc):
        first = True
        for r in regs:
            for i in range(4):
                if first: a(f"v_xor_b32 v{acc}, s{56+i}, v{r+i}"); first = False
                else: a(f"v_bitop3_b32 v{acc}, v{acc}, v{r+i}, s{56+i} bitop3:0xf6")
        a(f"v_and_b32 v{acc}, 0xff, v{acc}")
        a(f"v_cmp_ne_u32 vcc, 0, v{acc}")
    def pollend(name):
        a(f"s_cbranch_vccz {name}_done")
        a("s_sub_u32 s40, s40, 1")
        a(f"s_cbranch_scc0 {name}")
        lab(f"{name}_done")

    VB, VSW, VSR = 11, 12, 16
    VKO, VVO, VM, VL, VM0, VM1 = 18, 19, 20, 21, 22, 23
    VA, VQ, VO, VS, VR = 24, 32, 36, 44, 60
    VT = VR + 16 * RH
    (T_OW, T_SW, T_OR, T_SR, T_P1S, T_P1L, T_OBW, T_P2S, T_WO, T_H, T_F0, _, _, _, T_XO, T_X, T_D0, T_D1, T_OBR, T_FW, T_FR) = range(VT, VT + 21)
    NV = VT + 24
    RD, RW = VR + 64, VR + 80
    PD, PW = VR + 4, VR + 20
    VP2 = VR + 112
    def decode():
        a("s_and_b32 s28, s2, 7", "x")
        a("s_lshr_b32 s29, s2, 3", "j")
        a("s_bfe_u32 s30, s2, 0x30004", "kv head")
        a("s_lshr_b32 s31, s2, 7", "batch row")
        a("s_and_b32 s32, s2, 15", "split")
        a("s_and_b32 s34, s2, 127", "idx")
        a("s_lshr_b32 s38, s2, 4", "group")
    def srds():
        a("s_mov_b64 s[44:45], s[6:7]", "K"); a("s_brev_b32 s46, 16"); a("s_mov_b32 s47, 0x20000")
        a("s_mov_b64 s[48:49], s[8:9]", "V"); a("s_brev_b32 s50, 16"); a("s_mov_b32 s51, 0x20000")
        a("s_mov_b64 s[72:73], s[6:7]", "K or V"); a("s_brev_b32 s74, 16"); a("s_mov_b32 s75, 0x20000")
    pm = [set(x.split("^")) for x in pmap.split()]
    PB = [b for b in range(11, 23) if b != i1bit]
    assert len(pm) == 11 and i1bit != 11
    def mask_of(sym): return sum(1 << PB[p] for p in range(11) if sym in pm[p])
    def scalar_part(dst, srcs, base=True):
        a(f"s_lshl_b32 {dst}, s38, 23" if base else f"s_mov_b32 {dst}, 0")
        for pre, (reg, nb) in srcs.items():
            masks = [mask_of(f"{pre}{i}") for i in range(nb)]
            if masks[0] and all(masks[i] == masks[0] << i for i in range(nb)) and bin(masks[0]).count("1") == 1:
                a(f"s_lshl_b32 s35, {reg}, {masks[0].bit_length()-1}")
                a(f"s_xor_b32 {dst}, {dst}, s35")
                continue
            for i in range(nb):
                if masks[i]:
                    a(f"s_bfe_i32 s35, {reg}, {0x10000 + i:#x}")
                    a(f"s_and_b32 s35, s35, {masks[i]:#x}")
                    a(f"s_xor_b32 {dst}, {dst}, s35")
    def lane_bits(vdst, vsrc, pre, nb):
        for i in range(nb):
            a(f"v_bfe_i32 v7, v{vsrc}, {i}, 1")
            a(f"v_and_b32 v7, {mask_of(pre + str(i)):#x}, v7")
            a(f"v_xor_b32 v{vdst}, v{vdst}, v7")
    def nconst(n):
        c = 0
        for i in range(5):
            if n >> i & 1: c ^= mask_of(f"n{i}")
        return c
    def issue(reg, voff, srd, n, fn, down=False):
        seq = (2, 0, 3, 1) if down else (0, 2, 1, 3)
        for k, u in enumerate(seq):
            if k: a(f"s_bitset{u >> 1}_b32 s52, {i1bit}")
            if k % fn == 0: a(f"s_waitcnt vmcnt({n})")
            a(f"buffer_load_dwordx4 v[{reg+4*u}:{reg+4*u+3}], v{voff}, {srd}, s52 offen offset:{(u&1)*1024} {kvflags}")
        tstamp()
    rest = list(range(2, RH))
    PERM = [0 if p == (RH - 1) // 2 else 1 if p == RH - 1 else rest.pop(0) for p in range(RH)]

    section("E")
    lab(KN)
    a("s_load_dwordx16 s[4:19], s[0:1], 0", "s[4:5]=x s[6:7]=K s[8:9]=V s[12:13]=wo")
    a("s_load_dwordx8 s[20:27], s[0:1], 64", "s[20:21]=W_down s[22:23]=out s[26:27]=ws")
    if ts: a("s_memrealtime s[70:71]")
    a("v_lshrrev_b32 v1, 6, v0")
    a("s_cmpk_ge_u32 s2, 256")
    a("s_cbranch_scc1 L_end")
    a("v_readfirstlane_b32 s3, v1", "wave")
    a("v_and_b32 v0, 63, v0", "lane")
    a("s_mul_i32 s39, s2, 0x200408", "wq tile as a byte offset: bits 7..12 column block, bit 21 k-half")
    a("s_and_b32 s39, s39, 0x201f80")
    assert len({(w * 0x200408) & 0x201f80 for w in range(256) if not w & 8}) == 128
    a("s_sub_u32 s42, s3, 1", "w")
    a("s_cbranch_scc1 L_xwave")
    a("s_cmp_eq_u32 s3, 5")
    a("s_cbranch_scc1 L_wwave")
    a("s_lshl_b32 s36, s42, 19", "wg bit 3 clear: wq tile, wave w loads rows 64w..")
    a("s_or_b32 s36, s36, s39")
    a("s_movk_i32 s37, 8192")
    a("s_mov_b32 s35, 24")
    a("s_bitcmp0_b32 s2, 3")
    a("s_cbranch_scc1 L_job")
    a("s_andn2_b32 s35, 0x86, s2", "wg bit 3 set: gate (waves 0,1) / up (waves 2,3) tile; 16 workgroups have none")
    a("s_cbranch_scc0 L_srest")
    a("s_lshr_b32 s36, s2, 3")
    a("s_and_b32 s37, s36, 24")
    a("s_min_u32 s37, s37, 22")
    a("s_and_b32 s35, s2, 7")
    a("s_add_u32 s37, s37, s35", "column block")
    a("s_and_b32 s36, s36, 6")
    a("s_and_b32 s35, s42, 1")
    a("s_or_b32 s36, s36, s35", "64-row block")
    a("s_mulk_i32 s36, 1792")
    a("s_add_u32 s36, s36, s37")
    a("s_lshl_b32 s36, s36, 7")
    a("s_movk_i32 s37, 3584")
    a("s_lshr_b32 s35, s42, 1")
    a("s_lshl3_add_u32 s35, s35, 48")
    lab("L_job")
    a("s_load_dwordx2 s[40:41], s[0:1], s35", "wq, W_gate or W_up")
    a("v_lshrrev_b32 v2, 3, v0")
    a("v_and_b32 v3, 7, v0")
    a("v_mul_u32_u24 v2, s37, v2")
    a("v_lshl_add_u32 v2, v3, 4, v2")
    a("v_add_u32 v2, s36, v2")
    a("s_lshl_b32 m0, s42, 13")
    a("s_lshl_b32 s37, s37, 3")
    a("s_lshl_b32 s36, s3, 13")
    a("s_waitcnt lgkmcnt(0)")
    lab("L_wdma")
    a(f"global_load_lds_dwordx4 v2, s[40:41] {wflags}")
    a("s_addk_i32 m0, 1024")
    a("v_add_u32 v2, s37, v2")
    a("s_cmp_lg_u32 m0, s36")
    a("s_cbranch_scc1 L_wdma")
    a("s_branch L_srest")

    section("X1")
    cur[0].append(".p2align 8")
    lab("L_xwave")
    a("v_lshlrev_b32 v1, 5, v0")
    a("v_mov_b32 v6, 0")
    a("v_mov_b32 v7, 0")
    a("v_lshlrev_b32 v5, 3, v0")
    a(f"ds_write_b64 v5, v[6:7] offset:{L_Z}", "zero block + flags")
    a("s_waitcnt lgkmcnt(0)")
    a("global_load_dwordx4 v[8:11], v1, s[4:5]")
    a("global_load_dwordx4 v[12:15], v1, s[4:5] offset:16")
    a("s_load_dword s33, s[26:27], 0", "epoch")
    a("s_setprio 2")
    zero_stamps()
    decode()
    a("s_and_b32 s67, s39, 0x200300")
    a("s_and_b32 s36, s2, 8")
    a("s_or_b32 s67, s67, s36")
    a("s_cbranch_scc1 L_x2")
    a("s_bfe_u32 s36, s39, 0x3000a")
    a("s_bfe_u32 s37, s39, 0x10007")
    a("s_lshl3_add_u32 s36, s37, s36")
    a(f"s_mul_i32 s36, s36, {ctstride}")
    a(f"s_add_u32 s36, s36, {WS_CT}")
    a("v_lshl_add_u32 v5, v0, 2, s36")
    a("global_store_dword v5, v6, s[26:27] sc1")
    a("s_branch L_x2")

    section("W")
    lab("L_wwave")
    a("s_getpc_b64 s[68:69]", "touch every 128-B line of the code (results unused)")
    lab("L_wpc")
    a(f"s_sub_u32 s68, s68, L_wpc-{KN}")
    a("s_subb_u32 s69, s69, 0")
    a("v_lshlrev_b32 v7, 7, v0")
    a("v_add_u32 v8, 8192, v7")
    a("v_min_u32 v8, L_codeend-" + KN + "-4, v8")
    a("global_load_dword v9, v7, s[68:69]")
    a("global_load_dword v9, v8, s[68:69]")
    a("s_waitcnt lgkmcnt(0)")
    if tlb:
        note("touch the pages this workgroup uses later (one dword each, results unused)")
        a("s_and_b32 s34, s2, 127")
        a("s_mov_b64 exec, 1")
        a("s_lshl_b32 s36, s2, 19")
        a("v_mov_b32 v3, s36")
        a("global_load_dword v9, v3, s[6:7] nt")
        a("global_load_dword v9, v3, s[8:9] nt")
        a(f"s_mul_i32 s36, s34, {14*1024}")
        a("v_mov_b32 v3, s36")
        a("global_load_dword v9, v3, s[20:21] nt")
        a("s_lshl_b32 s36, s34, 15")
        a("v_mov_b32 v3, s36")
        a("global_load_dword v9, v3, s[12:13] nt")
        a("v_mov_b32 v3, 1024")
        a("global_load_dword v9, v3, s[26:27] nt")
        a("s_lshl_b32 s36, s2, 12")
        a(f"s_add_u32 s36, s36, {WS_P1}")
        a("v_mov_b32 v3, s36")
        a("global_load_dword v9, v3, s[26:27] nt")
        a(f"v_add_u32 v3, {WS_P2 - WS_P1}, v3")
        a("global_load_dword v9, v3, s[26:27] nt")
        a("v_xor_b32 v3, 0x80000, v3")
        a("global_load_dword v9, v3, s[26:27] nt")
        a("s_mov_b64 exec, -1")
    a("s_barrier", "barrier 0")
    srds()
    for r in [6, 14, VKO, VVO, VB] + list(range(VT, VT + 21)): a(f"v_mov_b32 v{r}, 0")
    a("s_mov_b64 exec, 0")
    for r in (42, 41, 33, 29, 76, 77): a(f"s_mov_b32 s{r}, 0")
    a("s_mov_b32 s54, 1")
    a("s_mov_b64 s[96:97], 0")
    a("s_mov_b64 s[98:99], 0")
    a("s_branch L_kloop")

    section("S")
    lab("L_srest")
    a("s_waitcnt lgkmcnt(0)")
    zero_stamps()
    if ts:
        a("v_mov_b32 v13, 0")
        a("s_mov_b32 s79, 1")
    stamp(9)
    decode()
    srds()
    scalar_part("s66", {"w": ("s42", 2), "r": ("s32", 4), "g": ("s38", 4)})
    a("v_lshrrev_b32 v2, 4, v0")
    a("v_and_b32 v3, 3, v0")
    a("v_bfe_u32 v4, v0, 2, 2")
    a("v_lshlrev_b32 v5, 8, v4")
    a("v_lshl_add_u32 v5, v2, 6, v5")
    a(f"v_lshl_add_u32 v{VKO}, v3, 4, v5", "K lane offset: key (lane>>2)&3, 16-B chunk 4(lane>>4) + (lane&3)")
    a("s_mov_b32 s52, s66")
    issue(VR + PERM[0] * 16, VKO, "s[44:47]", NP, 4)
    a(f"v_lshlrev_b32 v{VVO}, 4, v0", "V lane offset")
    a("v_mov_b32 v10, s66", "v10[n] = offset of this wave's tile n")
    lane_bits(10, 0, "n", 5)
    scalar_part("s55", {"w": ("s42", 2)}, base=False)
    a("s_lshl_b32 s36, s42, 2")
    a("v_mov_b32 v14, s36", "request slot")
    a("v_mov_b32 v6, 0xffff")
    a("v_mov_b32 v7, 0xffff0000")
    a("v_and_b32 v8, 1, v0")
    a("v_cmp_eq_u32 vcc, 1, v8")
    a("v_and_b32 v8, 2, v0")
    a("s_nop 0")
    a("v_cndmask_b32 v6, v6, v7, vcc")
    a("v_cmp_eq_u32 vcc, 2, v8")
    a(f"v_mov_b32 v{VM}, {f2u(-3.0e38):#x}")
    a(f"v_mov_b32 v{VL}, 0")
    a(f"v_cndmask_b32 v{VM1}, 0, v6, vcc", "P.V selector masks: bf16 slot lane&3 of the A fragment")
    a(f"v_xor_b32 v{VM0}, v{VM1}, v6")
    for i in range(8): a(f"v_mov_b32 v{VO+i}, 0")
    a(f"s_mov_b32 s53, {f2u(math.log2(math.e) / math.sqrt(128.0)):#x}", "log2(e)/sqrt(128)")
    a("s_mov_b32 s54, 1000", "counts down; set to 0 for the last tile")
    a(f"s_mov_b32 s41, {RH}", "next tile to issue")
    a(f"s_mov_b32 s76, {NA // RH - 1}")
    a(f"s_mov_b32 s77, {NA // RH - 1}")
    a("s_mov_b64 s[96:97], -1", "EXEC: all lanes")
    a("s_mov_b32 s98, 0x11111111", "EXEC: lane 0 of every quad")
    a("s_mov_b32 s99, 0x11111111")
    a(f"v_mov_b32 v{VB}, v{VKO}")
    a(f"s_mul_i32 s36, s42, {NA * 256}")
    a(f"v_lshl_add_u32 v{VSR}, v0, 2, s36")
    a(f"v_and_b32 v{VSW}, -16, v{VSR}")
    a("v_lshrrev_b32 v3, 4, v0", "g")
    a("v_and_b32 v4, 15, v0", "c")
    a("v_bfe_u32 v5, v0, 2, 2")
    a("s_lshl_b32 s35, s42, 11")
    a(f"v_lshl_add_u32 v{T_OW}, v0, 5, s35")
    a("s_lshl_b32 s36, s42, 3")
    a(f"v_lshl_add_u32 v{T_SW}, v5, 5, s36")
    a("s_lshl_b32 s35, s42, 9")
    a(f"v_lshl_add_u32 v{T_OR}, v0, 3, s35")
    a("s_lshl_b32 s36, s42, 5")
    a(f"v_mov_b32 v{T_SR}, s36")
    a("s_lshl_b32 s35, s2, 12")
    a("s_lshl_b32 s36, s42, 10")
    a("s_add_u32 s36, s35, s36")
    a(f"s_add_u32 s37, s36, {WS_P1}")
    a(f"v_lshl_add_u32 v{T_P1S}, v0, 4, s37", "P1 + wg*4096 + thread*16")
    a("s_lshl_b32 s36, s38, 16")
    a("s_lshl_b32 s37, s32, 8")
    a("s_add_u32 s36, s36, s37")
    a("s_lshl_b32 s37, s42, 6")
    a("s_add_u32 s36, s36, s37")
    a(f"s_add_u32 s36, s36, {WS_P1}")
    a(f"v_lshl_add_u32 v{T_P1L}, v4, 12, s36")
    a(f"v_lshl_add_u32 v{T_P1L}, v3, 4, v{T_P1L}", "P1 + (group*16 + c)*4096 + (16 split + 4w + g)*16")
    a("s_lshl_b32 s36, s42, 4")
    a(f"v_lshl_add_u32 v{T_OBW}, v3, 2, s36")
    a("s_lshl_b32 s36, s42, 6")
    a("s_lshl_b32 s37, s2, 3")
    a("s_add_u32 s36, s36, s37")
    a("v_lshl_add_u32 v1, v4, 2, v3")
    a("v_add_u32 v1, s36, v1")
    a("v_and_b32 v1, 255, v1")
    a(f"s_add_u32 s37, s35, {WS_P2}")
    a(f"v_lshl_add_u32 v{T_P2S}, v1, 4, s37", "P2 + wg*4096 + ((64w + 4c + g + 8wg) & 255)*16")
    a("s_lshl_b32 s36, s42, 8")
    a("v_lshl_add_u32 v1, v4, 4, s36")
    a("s_lshl_b32 s36, s34, 15")
    a("s_add_u32 s36, s36, 4096")
    a("v_lshl_add_u32 v2, v3, 13, s36")
    a(f"v_add_u32 v{T_WO}, v1, v2", "wo rows 32 idx + 8g + i, columns 128w + 8c..")
    a(f"s_mul_i32 s36, s34, {14*1024}")
    a("v_add_u32 v1, s36, v1")
    a("s_and_b32 s36, s34, 1")
    a("v_lshlrev_b32 v2, 1, v3")
    a("v_subrev_u32 v2, s36, v2")
    a("v_max_i32 v5, 0, v2")
    a(f"v_lshl_add_u32 v{T_D0}, v5, 11, v1", "W_down rows 14 idx + 2 clamp(2g + p - (idx&1), 0, 6) + i")
    a("v_add_u32 v2, 1, v2")
    a("v_min_i32 v5, 6, v2")
    a(f"v_lshl_add_u32 v{T_D1}, v5, 11, v1")
    a(f"v_lshlrev_b32 v{T_H}, 3, v3")
    a(f"v_lshlrev_b32 v{T_OBR}, 4, v3")
    a("v_and_b32 v2, 7, v0")
    a(f"v_lshlrev_b32 v{T_FR}, 4, v2")
    a("s_lshl_b32 s35, s42, 7")
    a(f"v_lshl_add_u32 v1, v3, 2, v{T_FR}")
    a(f"v_add_u32 v{T_FW}, s35, v1")
    a("s_lshr_b32 s35, s28, 2")
    a("s_and_b32 s36, s28, 3")
    a("s_lshl_b32 s36, s36, 3")
    a("s_lshr_b32 s37, s29, 2")
    a("s_add_u32 s36, s36, s37")
    a("v_lshrrev_b32 v3, 3, v0")
    a("s_lshl2_add_u32 s37, s35, s42")
    a("s_lshl_b32 s37, s37, 17")
    a(f"s_add_u32 s37, s37, {WS_P2}")
    a(f"v_add_u32 v5, s37, v{T_FR}")
    for k in range(4):
        a(f"v_add_u32 v1, {8*k}, v3")
        a("v_add_u32 v4, s36, v1")
        a("v_and_b32 v4, 31, v4")
        a("v_lshl_add_u32 v4, v4, 7, v5")
        a(f"v_lshl_add_u32 v{T_F0+k}, v1, 12, v4")
    a("s_lshl_b32 s37, s35, 10")
    a("s_lshl_b32 s36, s36, 5")
    a("s_add_u32 s37, s37, s36")
    a(f"v_lshl_add_u32 v{T_XO}, v2, 2, s37")
    a("s_mov_b32 s64, 0x05040100")
    a("s_mov_b32 s65, 0x07060302")
    a("s_mov_b32 s39, 0xffffff00")
    a("v_mov_b32 v6, 0")
    for p in range(RH):
        if p:
            a(f"s_xor_b32 s52, s66, {nconst(p):#x}")
            issue(VR + PERM[p] * 16, VKO, "s[44:47]", NK, fineK if p >= pre_bar else 4)
        if p == pre_bar - 1:
            a(f"s_waitcnt vmcnt({4 * pre_bar})")
            if probe is not None: stamp(11)
            a("s_barrier", "barrier 0: weight tile landed, LDS flags cleared")
            stamp(10)
        if p == pq:
            a("s_mov_b64 exec, 1", "q is needed soon: let the X wave gather it")
            a("v_mov_b32 v15, 1")
            a(f"ds_write_b32 v14, v15 offset:{L_GO}")
            a("s_mov_b64 exec, -1")
    stamp(1)
    a(f"s_mov_b32 s40, {spin * 8}")
    lab("L_qflag")
    a(f"ds_read_b64 v[2:3], v6 offset:{L_TAG}")
    a("s_waitcnt lgkmcnt(0)")
    a("v_cmp_eq_u32 vcc, 0, v3")
    a("s_cbranch_vccz L_qflag_done")
    a("s_sleep 1")
    a("s_sub_u32 s40, s40, 1")
    a("s_cbranch_scc0 L_qflag")
    lab("L_qflag_done")
    a(f"ds_read_b128 v[{VQ}:{VQ+3}], v{VKO} offset:{L_Q}")
    a("v_mov_b32 v17, v2", "tag")
    a("v_readfirstlane_b32 s33, v2")
    stamp(2)
    a("s_nop 1")
    tagregs()
    a("s_waitcnt lgkmcnt(0)")
    def claim(first=False):
        a("s_mov_b32 s35, 1" if first else f"s_sub_u32 s35, s41, {NS - 1}", "ask the X wave for step s41")
        a("s_mov_b64 exec, 1")
        a("v_mov_b32 v15, s35")
        a(f"ds_write_b32 v14, v15 offset:{L_REQ}")
        a("s_mov_b64 exec, -1")
    def qk(K):
        for u in range(4):
            a(f"v_mfma_f32_16x16x32_bf16 v[{VS+4*u}:{VS+4*u+3}], v[{K+4*u}:{K+4*u+3}], v[{VQ}:{VQ+3}], 0")
    def pv(V):
        for t in range(4):
            a(f"v_mfma_f32_16x16x16_bf16 v[{VO}:{VO+3}], v[{VA+2*t}:{VA+2*t+1}], v[{V+4*t}:{V+4*t+1}], v[{VO}:{VO+3}]")
            a(f"v_mfma_f32_16x16x16_bf16 v[{VO+4}:{VO+7}], v[{VA+2*t}:{VA+2*t+1}], v[{V+4*t+2}:{V+4*t+3}], v[{VO+4}:{VO+7}]")
    DPP = "row_mask:0xf bank_mask:0xf"
    def rowmax(dst):
        a("v_permlane16_swap_b32 v1, v2")
        a("s_nop 0")
        a("v_max_f32 v1, v1, v2")
        a("v_mov_b32 v2, v1")
        a("s_nop 1")
        a("v_permlane32_swap_b32 v1, v2")
        a("s_nop 0")
        a(f"v_max_f32 v{dst}, v1, v2")
    def softmax():
        for u in range(4): a(f"v_mov_b32_dpp v{4+u}, v{VS+4*u} quad_perm:[0,0,0,0] {DPP}")
        for p in range(1, 4):
            for u in range(4): a(f"v_add_f32_dpp v{4+u}, v{VS+4*u+p}, v{4+u} quad_perm:[{p},{p},{p},{p}] {DPP}")
        a("v_max3_f32 v1, v4, v5, v6")
        a(f"v_max3_f32 v1, v1, v7, v{VM}")
        a("v_mov_b32 v2, v1")
        a("s_nop 1")
        rowmax(1)
        a(f"v_sub_f32 v2, v{VM}, v1")
        a("v_mul_f32 v3, s53, v1")
        a("v_mul_f32 v2, s53, v2")
        a(f"v_mov_b32 v{VM}, v1")
        a("v_exp_f32 v2, v2", "rescale factor")
        for i in range(4): a(f"v_fma_f32 v{4+i}, v{4+i}, s53, -v3")
        for i in range(4): a(f"v_exp_f32 v{4+i}, v{4+i}")
        for g in range(4): a(f"v_mov_b32_dpp v8, v2 row_newbcast:{4*g} row_mask:{1<<g:#x} bank_mask:0xf")
        a(f"v_fma_f32 v{VL}, v{VL}, v2, v4")
        a("v_add_f32 v9, v5, v6")
        a(f"v_add_f32 v{VL}, v{VL}, v7")
        a(f"v_add_f32 v{VL}, v{VL}, v9")
        for i in range(4): a(f"v_cvt_pk_bf16_f32 v{4+i}, v{4+i}, v{4+i}")
        for i in range(8): a(f"v_mul_f32 v{VO+i}, v{VO+i}, v8")
        for i in range(4):
            a(f"v_and_b32 v{VA+2*i}, v{4+i}, v{VM0}")
            a(f"v_and_b32 v{VA+2*i+1}, v{4+i}, v{VM1}")
    lab("L_kloop")
    a("s_cmp_lg_u32 s76, 0")
    a("s_cbranch_scc1 L_k0")
    a("s_mov_b64 s[72:73], s[8:9]", "last trip: refill with V tiles 0..")
    a(f"v_mov_b32 v{VB}, v{VVO}")
    a("s_mov_b32 s41, 0")
    lab("L_k0")
    for p in range(RH):
        K = VR + PERM[p] * 16
        qk(K)
        a("v_readlane_b32 s52, v10, s41")
        a("s_add_u32 s41, s41, 1")
        a("s_nop 2")
        for u in range(4): a(f"v_add_f32_dpp v{4+u}, v{VS+4*u+1}, v{VS+4*u} quad_perm:[1,1,1,1] {DPP}")
        for q_ in (2, 3):
            for u in range(4): a(f"v_add_f32_dpp v{4+u}, v{VS+4*u+q_}, v{4+u} quad_perm:[{q_},{q_},{q_},{q_}] {DPP}")
        a("s_mov_b64 exec, s[98:99]")
        a(f"v_max3_f32 v{VM}, v4, v5, v{VM}")
        a(f"ds_write_b128 v{VSW}, v[4:7] offset:{L_SC + p*256}")
        a(f"v_max3_f32 v{VM}, v6, v7, v{VM}")
        a("s_mov_b64 exec, s[96:97]")
        guarded(lambda: issue(K, VB, "s[72:75]", N, fine))
    a(f"v_add_u32 v{VSW}, {RH*256}, v{VSW}")
    a("s_sub_u32 s76, s76, 1")
    a("s_cbranch_scc0 L_kloop")
    a(f"ds_read_b32 v9, v{VSR} offset:{L_SC}")
    a(f"v_mov_b32_dpp v1, v{VM} quad_perm:[0,0,0,0] {DPP}")
    a(f"v_mov_b32_dpp v2, v{VM} quad_perm:[0,0,0,0] {DPP}")
    a("s_mov_b32 s78, 1")
    a("s_nop 0")
    rowmax(VM)
    a(f"v_mul_f32 v3, s53, v{VM}")
    lab("L_vloop")
    a("s_cmp_lg_u32 s77, 0")
    a("s_cbranch_scc1 L_v0")
    a("s_mov_b64 s[72:73], s[6:7]", f"last trip: refill only slots 0, 1 with K, V of tile {NA}")
    a(f"v_mov_b32 v{VB}, v{VKO}")
    a("s_mov_b32 s78, 0")
    lab("L_v0")
    for p in range(RH):
        sl = PERM[p]
        V = VR + sl * 16
        a("v_readlane_b32 s52, v10, s41")
        a("s_waitcnt lgkmcnt(0)")
        a("v_fma_f32 v4, v9, s53, -v3")
        a(f"ds_read_b32 v9, v{VSR} offset:{L_SC + (p+1)*256}")
        a("v_exp_f32 v4, v4")
        a("s_add_u32 s41, s41, 1" if sl == 1 else "s_add_u32 s41, s41, s78")
        a("v_cvt_pk_bf16_f32 v5, v4, v4")
        a(f"v_add_f32 v{VL}, v{VL}, v4")
        a("s_nop 0")
        for t in range(4):
            a(f"v_and_b32_dpp v{VA+2*t}, v5, v{VM0} quad_perm:[{t},{t},{t},{t}] {DPP}")
            a(f"v_and_b32_dpp v{VA+2*t+1}, v5, v{VM1} quad_perm:[{t},{t},{t},{t}] {DPP}")
        if p == RH - 1:
            a("s_cmp_lg_u32 s77, 0", "last trip: only the K refill is younger than this slot's loads")
            a("s_cbranch_scc1 L_vw")
            a("s_waitcnt vmcnt(4)")
            lab("L_vw")
        pv(V)
        if sl >= 2:
            a("s_cmp_eq_u32 s77, 0")
            a(f"s_cbranch_scc1 L_vs{p}")
            issue(V, VVO, "s[48:51]", N, fine)
            lab(f"L_vs{p}")
        elif sl == 0:
            guarded(lambda: issue(V, VB, "s[72:75]", N, fine))
            if NS == NA + 1:
                a("s_cmp_lg_u32 s77, 0")
                a("s_cbranch_scc1 L_vnc")
                guarded(lambda: claim(first=True))
                lab("L_vnc")
        else:
            guarded(lambda: issue(V, VVO, "s[48:51]", N, fine))
    a(f"v_add_u32 v{VSR}, {RH*256}, v{VSR}")
    a("s_sub_u32 s77, s77, 1")
    a("s_cbranch_scc0 L_vloop")
    a(f"v_add_f32_dpp v{VL}, v{VL}, v{VL} quad_perm:[1,0,3,2] {DPP}")
    a("s_waitcnt lgkmcnt(0)")
    a("s_nop 0")
    a(f"v_add_f32_dpp v{VL}, v{VL}, v{VL} quad_perm:[2,3,0,1] {DPP}")
    a("s_cbranch_execnz L_loop")
    a("s_mov_b32 s41, 63")
    lab("L_loop")
    WL = [f"global_load_dwordx4 v[{RD+4*i}:{RD+4*i+3}], v{T_D0 + i//2}, s[20:21] offset:{(i&1)*1024} {woflags}" for i in range(4)]
    WL += [f"global_load_dwordx4 v[{RW+4*i}:{RW+4*i+3}], v{T_WO}, s[12:13] offset:{i*1024-4096} {woflags}" for i in range(8)]
    for slot in range(2):
        oth = 1 - slot
        a("v_readlane_b32 s52, v10, s41")
        a(f"s_cmp_ge_u32 s41, {NS}")
        a(f"s_cbranch_scc1 L_tk{slot}")
        a("s_nop 1")
        lab(f"L_gk{slot}")
        issue(VR + oth * 32, VKO, "s[44:47]", 4, 4)
        a("s_add_u32 s41, s41, 1")
        a(f"s_cmp_lt_u32 s41, {NS}")
        a(f"s_cbranch_scc1 L_rk{slot}")
        claim()
        lab(f"L_rk{slot}")
        qk(VR + slot * 32)
        a("s_nop 4")
        softmax()
        a("s_cmp_lt_u32 s54, 2")
        a(f"s_cbranch_scc1 L_dv{slot}")
        issue(VR + oth * 32 + 16, VVO, "s[48:51]", 4, 4, down=True)
        lab(f"L_rv{slot}")
        pv(VR + slot * 32 + 16)
        a("s_sub_u32 s54, s54, 1")
        a("s_cbranch_scc1 L_done")
    a("s_branch L_loop")
    for slot in range(2):
        lab(f"L_tk{slot}")
        a(f"s_cbranch_execz L_rk{slot}")
        a("s_lshl_b32 s35, s41, 2")
        a(f"s_add_u32 s35, s35, {L_TK - 4 * NS}")
        a("v_mov_b32 v15, s35")
        a(f"s_mov_b32 s40, {spin * 8}")
        lab(f"L_tp{slot}")
        a("ds_read_b32 v16, v15", "-1: not served yet, -2: pool empty")
        a("s_sub_u32 s40, s40, 1")
        a(f"s_cbranch_scc1 L_tf{slot}")
        a("s_waitcnt lgkmcnt(0)")
        a("v_readfirstlane_b32 s35, v16")
        a("s_nop 1")
        a("s_cmp_eq_u32 s35, -1")
        a(f"s_cbranch_scc1 L_tp{slot}")
        a("s_xor_b32 s52, s35, s55")
        a("s_cmp_lg_u32 s35, -2")
        a(f"s_cbranch_scc1 L_gk{slot}")
        lab(f"L_tf{slot}")
        a("s_mov_b32 s54, 0")
        a("s_waitcnt vmcnt(4)")
        a(f"s_branch L_rk{slot}")
        lab(f"L_dv{slot}")
        guard(WL[:nA])
        a(f"v_mov_b32 v2, v{VL}")
        a(f"v_mul_f32 v10, s53, v{VM}")
        a("s_nop 0")
        a(f"v_permlane16_swap_b32 v{VL}, v2")
        a("s_nop 0")
        a(f"v_add_f32 v11, v{VL}, v2")
        a("v_mov_b32 v2, v11")
        a("s_nop 1")
        a("v_permlane32_swap_b32 v11, v2")
        a("s_nop 0")
        a("v_add_f32 v11, v11, v2")
        a(f"ds_write_b64 v{T_SW}, v[10:11] offset:{L_ST}")
        a(f"s_waitcnt vmcnt({nA})")
        a(f"s_branch L_rv{slot}")
    lab("L_done")
    stamp(3)
    if tt:
        a("s_mov_b32 s94, s41")
        a(f"v_mov_b32 v{VR}, v13")
    poll1 = f"global_load_dwordx4 v[8:11], v{T_P1L}, s[26:27] sc1"
    a("s_nop 4")
    a(f"ds_write_b128 v{T_OW}, v[{VO}:{VO+3}] offset:{L_O}")
    a(f"ds_write_b128 v{T_OW}, v[{VO+4}:{VO+7}] offset:{L_O+16}")
    a("s_waitcnt lgkmcnt(0)")
    guard(["s_barrier"])
    a(f"ds_read_b128 v[8:11], v{T_SR} offset:{L_ST}")
    a(f"ds_read_b128 v[12:15], v{T_SR} offset:{L_ST+16}")
    for w in range(4): a(f"ds_read_b64 v[{24+2*w}:{25+2*w}], v{T_OR} offset:{L_O + w*2048}")
    a("v_mov_b32 v39, v17")
    a("s_waitcnt lgkmcnt(4)")
    a("v_max3_f32 v2, v8, v10, v12")
    a("v_max_f32 v2, v2, v14")
    for w in range(4): a(f"v_sub_f32 v{8+2*w}, v{8+2*w}, v2")
    for w in range(4): a(f"v_exp_f32 v{8+2*w}, v{8+2*w}")
    a("v_mul_f32 v16, v8, v9")
    a("v_fmac_f32 v16, v10, v11")
    a("v_fmac_f32 v16, v12, v13")
    a("v_fmac_f32 v16, v14, v15")
    a("s_waitcnt lgkmcnt(0)")
    a("v_rcp_f32 v5, v16")
    a("v_log_f32 v16, v16")
    a("v_mul_f32 v36, v8, v24")
    a("v_mul_f32 v37, v8, v25")
    for w in range(1, 4):
        a(f"v_fmac_f32 v36, v{8+2*w}, v{24+2*w}")
        a(f"v_fmac_f32 v37, v{8+2*w}, v{25+2*w}")
    a("v_add_f32 v38, v2, v16", "log2 of the partial sum")
    a("v_mul_f32 v36, v36, v5")
    a("v_mul_f32 v37, v37, v5")
    guard([f"global_store_dwordx4 v{T_P1S}, v[36:39], s[26:27] sc1"] + ([] if ts else WL[nA:] + [poll1]))
    stamp(4)
    if ts: guard(WL[nA:] + [poll1])
    a(f"ds_read_b32 v{T_X}, v{T_XO} offset:{L_XR}")
    a(f"ds_read_b64 v[24:25], v{T_H} offset:{L_H}")
    def younger(k): return (11 - k) + (1 if k < nA else 0) + 1
    def pairup(raw, dst, p):
        for d in range(4):
            a(f"v_perm_b32 v{dst+8*p+2*d}, v{raw+8*p+4+d}, v{raw+8*p+d}, s64")
            a(f"v_perm_b32 v{dst+8*p+2*d+1}, v{raw+8*p+4+d}, v{raw+8*p+d}, s65")
    def dots(pairs, vec, npairs):
        for p in range(npairs):
            for c in range(8):
                a(f"v_dot2_f32_bf16 v{VS+c}, v{pairs+8*p+c}, v{vec+p}, {'0' if p == 0 else 'v%d' % (VS+c)}")
    def fold(dst):
        for k in range(4): a(f"v_permlane32_swap_b32 v{VS+k}, v{VS+4+k}")
        for k in range(4): a(f"v_add_f32 v{VS+k}, v{VS+k}, v{VS+4+k}")
        a("s_nop 0")
        for k in range(2): a(f"v_permlane16_swap_b32 v{VS+k}, v{VS+2+k}")
        for k in range(2): a(f"v_add_f32 v{dst+k}, v{VS+k}, v{VS+2+k}")
    a(f"s_waitcnt vmcnt({younger(3)})")
    for p in range(2): pairup(RD, PD, p)
    a("s_waitcnt lgkmcnt(0)")
    dots(PD, 24, 2)
    fold(42)
    a("v_perm_b32 v42, v42, v17, s62")
    a("v_perm_b32 v43, v43, v17, s63")
    for p in range(4):
        a(f"s_waitcnt vmcnt({younger(4 + 2*p + 1)})")
        pairup(RW, PW, p)
    a(f"s_mov_b32 s40, {spin}")
    if probe is None: stamp(11)
    a("s_branch L_p1chk")
    lab("L_p1poll")
    a(poll1)
    lab("L_p1chk")
    a("s_waitcnt vmcnt(0)")
    a("v_cmp_ne_u32 vcc, s33, v11")
    pollend("L_p1poll")
    stamp(5)
    if tt: a(f"s_sub_u32 s92, {spin + 1}, s40")
    a(f"v_max_f32_dpp v2, v10, v10 row_ror:8 {DPP}")
    a("s_nop 1")
    for r in (4, 2, 1):
        a(f"v_max_f32_dpp v2, v2, v2 row_ror:{r} {DPP}")
        if r > 1: a("s_nop 1")
    a("v_sub_f32 v10, v10, v2")
    a("v_exp_f32 v10, v10")
    a("s_nop 0")
    a("v_mul_f32 v8, v8, v10")
    a("v_mul_f32 v9, v9, v10")
    for r in (8, 4, 2, 1):
        for v in (10, 8, 9): a(f"v_add_f32_dpp v{v}, v{v}, v{v} row_ror:{r} {DPP}")
    a("v_rcp_f32 v10, v10")
    a("s_nop 0")
    a("v_mul_f32 v8, v8, v10")
    a("v_mul_f32 v9, v9, v10")
    a("v_cvt_pk_bf16_f32 v8, v8, v9")
    a(f"ds_write_b32 v{T_OBW}, v8 offset:{L_OB}")
    a("s_waitcnt lgkmcnt(0)")
    guard(["s_barrier"])
    a(f"ds_read_b128 v[24:27], v{T_OBR} offset:{L_OB}")
    a("s_waitcnt lgkmcnt(0)")
    dots(PW, 24, 4)
    fold(40)
    a("v_perm_b32 v40, v40, v17, s60")
    a("v_perm_b32 v41, v41, v17, s61")
    guard([f"global_store_dwordx4 v{T_P2S}, v[40:43], s[26:27] sc1"])
    stamp(6)
    a("s_and_b32 s35, s29, 3")
    a("s_cbranch_scc1 L_sexit")
    a(f"s_mov_b32 s40, {spin}")
    lab("L_p2poll")
    guard([f"global_load_dwordx4 v[{VP2+4*i}:{VP2+4*i+3}], v{T_F0+i}, s[26:27] sc1" for i in range(4)])
    a("s_waitcnt vmcnt(0)")
    check([VP2 + 4 * i for i in range(4)], 2)
    pollend("L_p2poll")
    stamp(7)
    if tt: a(f"s_sub_u32 s93, {spin + 1}, s40")
    for i in range(16): a(f"v_and_b32 v{24+i}, s39, v{VP2+i}")
    for i in (0, 2):
        a(f"v_pk_add_f32 v[{24+i}:{25+i}], v[{24+i}:{25+i}], v[{28+i}:{29+i}]")
        a(f"v_pk_add_f32 v[{32+i}:{33+i}], v[{32+i}:{33+i}], v[{36+i}:{37+i}]")
    for i in (0, 2): a(f"v_pk_add_f32 v[{8+i}:{9+i}], v[{24+i}:{25+i}], v[{32+i}:{33+i}]")
    a("s_nop 1")
    a("v_permlane32_swap_b32 v8, v10", "afterwards row r of the wave holds dword r of granule lane&7")
    a("v_permlane32_swap_b32 v9, v11")
    a("s_nop 0")
    a("v_add_f32 v8, v8, v10")
    a("v_add_f32 v9, v9, v11")
    a("s_nop 1")
    a("v_permlane16_swap_b32 v8, v9")
    a("s_nop 0")
    a("v_add_f32 v8, v8, v9")
    a("s_nop 1")
    a(f"v_add_f32_dpp v8, v8, v8 row_ror:8 {DPP}")
    a(f"ds_write_b32 v{T_FW}, v8 offset:{L_O}")
    a("s_waitcnt lgkmcnt(0)")
    guard(["s_barrier"])
    a("s_cmp_lg_u32 s42, 0")
    a("s_cbranch_scc1 L_sexit")
    for w in range(4): a(f"ds_read_b128 v[{24+4*w}:{27+4*w}], v{T_FR} offset:{L_O + 128*w}")
    a(f"v_lshlrev_b32 v14, 16, v{T_X}")
    a(f"v_and_b32 v15, 0xffff0000, v{T_X}")
    a("s_waitcnt lgkmcnt(2)")
    for i in (2, 0): a(f"v_pk_add_f32 v[{24+i}:{25+i}], v[{24+i}:{25+i}], v[{28+i}:{29+i}]")
    a("s_waitcnt lgkmcnt(0)")
    for i in (2, 0): a(f"v_pk_add_f32 v[{32+i}:{33+i}], v[{32+i}:{33+i}], v[{36+i}:{37+i}]")
    for i in (2, 0): a(f"v_pk_add_f32 v[{8+i}:{9+i}], v[{24+i}:{25+i}], v[{32+i}:{33+i}]")
    a("v_cvt_pk_bf16_f32 v10, v10, v11", "FFN output")
    a("v_cvt_pk_bf16_f32 v8, v8, v9", "attention output")
    a("v_and_b32 v11, 0xffff0000, v10")
    a("v_lshlrev_b32 v10, 16, v10")
    a(f"v_mul_f32 v13, {f2u(-math.log2(math.e)):#x}, v11")
    a(f"v_mul_f32 v12, {f2u(-math.log2(math.e)):#x}, v10")
    a("v_exp_f32 v13, v13")
    a("v_exp_f32 v12, v12")
    a("v_and_b32 v9, 0xffff0000, v8")
    a("v_add_f32 v13, 1.0, v13")
    a("v_add_f32 v12, 1.0, v12")
    a("v_rcp_f32 v13, v13")
    a("v_rcp_f32 v12, v12")
    a("v_lshlrev_b32 v8, 16, v8")
    a("v_mul_f32 v11, v11, v13")
    a("v_mul_f32 v10, v10, v12")
    a("v_cvt_pk_bf16_f32 v10, v10, v11", "silu")
    a("v_and_b32 v11, 0xffff0000, v10")
    a("v_lshlrev_b32 v10, 16, v10")
    a("v_mul_f32 v9, v9, v11")
    a("v_mul_f32 v8, v8, v10")
    a("v_cvt_pk_bf16_f32 v8, v8, v9")
    a("v_and_b32 v9, 0xffff0000, v8")
    a("v_lshlrev_b32 v8, 16, v8")
    a("v_add_f32 v9, v9, v15")
    a("v_add_f32 v8, v8, v14")
    a("v_cvt_pk_bf16_f32 v8, v8, v9")
    a("s_cbranch_execz L_end")
    a("s_mov_b64 exec, 0xff")
    a(f"global_store_dword v{T_XO}, v8, s[22:23]")
    a("s_cmp_lg_u32 s2, 4")
    a("s_cbranch_scc1 L_sexit")
    a("s_mov_b64 exec, 1")
    a("v_mov_b32 v6, 0")
    a("global_store_dword v6, v17, s[26:27]")
    lab("L_sexit")
    stamp(8)
    if tt:
        a("s_mov_b64 exec, -1")
        a("s_lshl_b32 s70, s2, 2")
        a("s_add_u32 s70, s70, s42")
        a("s_lshl_b32 s70, s70, 8")
        a(f"s_add_u32 s70, s70, {WS_TT}")
        a("v_lshl_add_u32 v1, v0, 2, s70")
        a(f"global_store_dword v1, v{VR}, s[26:27]")
    dump_stamps("S")
    lab("L_end")
    a("s_endpgm")

    section("X2")
    lab("L_x2")
    a("v_lshrrev_b32 v46, 4, v0", "g")
    a("v_bfe_u32 v7, v0, 2, 2")
    a("v_and_b32 v5, 3, v0")
    a("v_lshlrev_b32 v44, 10, v46")
    a("v_lshl_add_u32 v44, v7, 7, v44")
    a("v_lshl_add_u32 v44, v5, 3, v44", "weight fragment address (transposing reads)")
    a("v_and_b32 v45, 1, v0", "batch row of this column of D")
    a("v_lshlrev_b32 v4, 10, v45")
    a("v_lshl_add_u32 v4, v46, 4, v4")
    a("v_bfe_u32 v47, v0, 1, 3", "which 16-column block lands in this column of D")
    a("v_bfe_u32 v2, v0, 1, 2")
    a("v_lshlrev_b32 v2, 6, v2")
    a("v_lshl_add_u32 v2, v46, 4, v2")
    a("s_bitcmp1_b32 s2, 3")
    a("s_cbranch_scc1 L_fsetup")
    a("s_lshr_b32 s35, s39, 21")
    a("s_lshl_b32 s43, s35, 9")
    a("s_add_u32 s52, s43, 256")
    a("s_mov_b32 s53, 0")
    a("s_bfe_u32 s36, s39, 0x3000a")
    a("s_lshl_b32 s36, s36, 13")
    a("s_lshl_b32 s37, s35, 11")
    a("s_add_u32 s36, s36, s37")
    a("s_bfe_u32 s37, s39, 0x30007")
    a("s_lshl_b32 s37, s37, 8")
    a("s_add_u32 s36, s36, s37")
    a(f"s_add_u32 s36, s36, {WS_QP}")
    a("v_lshl_add_u32 v3, v45, 12, s36")
    a("s_mov_b32 s54, 0x00ff00ff")
    a("s_branch L_jobset")
    lab("L_fsetup")
    a("s_and_b32 s35, s38, 3")
    a("s_lshl_b32 s43, s35, 8")
    a("s_mov_b32 s52, s43")
    a("s_mov_b32 s53, 4")
    a("s_and_b32 s37, s29, 24")
    a("s_min_u32 s37, s37, 22")
    a("s_add_u32 s37, s37, s28")
    a("s_lshl_b32 s37, s37, 8")
    a("s_mul_i32 s36, s35, 7168")
    a("s_add_u32 s36, s36, s37")
    a(f"s_add_u32 s36, s36, {WS_FP}")
    a("v_bfe_u32 v3, v0, 3, 1")
    a("v_lshl_add_u32 v3, v45, 1, v3")
    a(f"v_mul_u32_u24 v3, {4*7168}, v3")
    a("v_add_u32 v3, s36, v3")
    a("s_mov_b32 s54, -1")
    lab("L_jobset")
    a("v_add_u32 v35, v2, v3", "publish address")
    a("s_mov_b32 s55, s54")
    a(f"v_mov_b32 v34, {L_Z - L_XN}")
    for hh in range(2):
        a(f"v_add_u32 v5, s{43 if hh == 0 else 52}, v4")
        if hh: a("v_subrev_u32 v47, s53, v47")
        for k in range(4): a(f"v_cmp_eq_u32 s[{44+2*k}:{45+2*k}], {k}, v47")
        a("s_nop 0")
        for k in range(4): a(f"v_cndmask_b32 v{36+4*hh+k}, v34, v5, s[{44+2*k}:{45+2*k}]", "xn fragment address, or the zero block" if k == 0 else None)
    if ts: a("s_memrealtime s[72:73]")
    if not lnfirst: a("s_barrier", "barrier 0")
    a("s_waitcnt vmcnt(1)")
    a("s_cmp_eq_u32 s67, 0", "these still have the counter store in flight")
    a("s_cbranch_scc1 L_xok")
    a("s_waitcnt vmcnt(0)")
    lab("L_xok")
    stamp(1)
    if ts: a("s_mov_b32 s89, s72")
    a(f"ds_write_b128 v1, v[8:11] offset:{L_XR}", "raw x for the residual")
    a(f"ds_write_b128 v1, v[12:15] offset:{L_XR+16}")
    for i in range(8):
        a(f"v_lshlrev_b32 v{16+2*i}, 16, v{8+i}")
        a(f"v_and_b32 v{17+2*i}, 0xffff0000, v{8+i}")
    def red32(v, t):
        a("s_nop 1")
        for r in (8, 4, 2, 1):
            a(f"v_add_f32_dpp {v}, {v}, {v} row_ror:{r} {DPP}")
            a("s_nop 1")
        a(f"v_mov_b32 {t}, {v}")
        a("s_nop 1")
        a(f"v_permlane16_swap_b32 {v}, {t}")
        a("s_nop 0")
        a(f"v_add_f32 {v}, {v}, {t}")
    a("v_add_f32 v6, v16, v17")
    for i in range(2, 16): a(f"v_add_f32 v6, v6, v{16+i}")
    red32("v6", "v7")
    a(f"v_mul_f32 v6, {f2u(1.0/512):#x}, v6", "mean")
    a("v_sub_f32 v32, v16, v6")
    a("v_mul_f32 v33, v32, v32")
    for i in range(1, 16):
        a(f"v_sub_f32 v32, v{16+i}, v6")
        a("v_fmac_f32 v33, v32, v32")
    red32("v33", "v7")
    a(f"v_mul_f32 v33, {f2u(1.0/512):#x}, v33", "variance")
    a("v_cvt_pk_bf16_f32 v6, v6, v33")
    a("v_and_b32 v33, 0xffff0000, v6")
    a("v_lshlrev_b32 v6, 16, v6")
    a(f"v_add_f32 v33, {f2u(1e-5):#x}, v33")
    a("v_cvt_pk_bf16_f32 v33, v33, v33")
    a("v_lshlrev_b32 v33, 16, v33")
    a("v_sqrt_f32 v33, v33")
    a("s_nop 0")
    a("v_cvt_pk_bf16_f32 v33, v33, v33")
    a("v_lshlrev_b32 v33, 16, v33")
    a("v_rcp_f32 v33, v33")
    for i in range(8):
        a(f"v_sub_f32 v{16+2*i}, v{16+2*i}, v6")
        a(f"v_sub_f32 v{17+2*i}, v{17+2*i}, v6")
        a(f"v_cvt_pk_bf16_f32 v{8+i}, v{16+2*i}, v{17+2*i}")
        a(f"v_lshlrev_b32 v{16+2*i}, 16, v{8+i}")
        a(f"v_and_b32 v{17+2*i}, 0xffff0000, v{8+i}")
        a(f"v_mul_f32 v{16+2*i}, v{16+2*i}, v33")
        a(f"v_mul_f32 v{17+2*i}, v{17+2*i}, v33")
        a(f"v_cvt_pk_bf16_f32 v{8+i}, v{16+2*i}, v{17+2*i}")
    a(f"ds_write_b128 v1, v[8:11] offset:{L_XN}")
    a(f"ds_write_b128 v1, v[12:15] offset:{L_XN+16}")
    a("s_waitcnt lgkmcnt(0)")
    a(f"s_add_u32 s33, s33, {PHI:#x}", "tag")
    tagregs()
    a("v_mov_b32 v32, s33")
    a("v_mov_b32 v33, 1")
    if lnfirst: a("s_barrier", "barrier 0")
    stamp(2)
    a("s_andn2_b32 s35, 0x8e, s2")
    a("s_cbranch_scc0 L_nojob")
    steps = [(ks, blk) for ks in range(8) for blk in range(4)]
    def rd(n):
        ks, blk = steps[n]
        o = (n % 4) * 8
        a(f"ds_read_b128 v[{48+o}:{51+o}], v{36 + 4*(ks>>2) + blk} offset:{L_XN + (ks&3)*64}")
        a(f"ds_read_b64_tr_b16 v[{52+o}:{53+o}], v44 offset:{L_W + ks*4096 + blk*32}")
        a(f"ds_read_b64_tr_b16 v[{54+o}:{55+o}], v44 offset:{L_W + ks*4096 + blk*32 + 512}")
    for n in range(3): rd(n)
    for n in range(32):
        if n + 3 < 32: rd(n + 3)
        a(f"s_waitcnt lgkmcnt({3 * min(3, 31 - n)})")
        o = (n % 4) * 8
        a(f"v_mfma_f32_16x16x32_bf16 v[8:11], v[{52+o}:{55+o}], v[{48+o}:{51+o}], {'0' if n == 0 else 'v[8:11]'}")
    a("s_nop 7")
    for i in range(4): a(f"v_perm_b32 v{8+i}, v{8+i}, v32, s{60+i}")
    a("s_mov_b64 exec, s[54:55]")
    a("s_waitcnt vmcnt(0)")
    if "st" not in skip: a("global_store_dwordx4 v35, v[8:11], s[26:27] sc1")
    a("s_mov_b64 exec, -1")
    lab("L_nojob")
    stamp(3)
    scalar_part("s55", {"g": ("s38", 4)})
    if torder == "n":
        a(f"v_mul_u32_u24 v2, {(65536 + KP - 1) // KP}, v0")
        a("v_lshrrev_b32 v2, 16, v2")
        a(f"v_mul_u32_u24 v3, {KP}, v2")
        a("v_sub_u32 v3, v0, v3")
    else:
        a("v_and_b32 v2, 15, v0")
        a("v_lshrrev_b32 v3, 4, v0")
    a(f"v_add_u32 v3, {NS}, v3")
    a("v_mov_b32 v20, s55")
    lane_bits(20, 3, "n", 5)
    lane_bits(20, 2, "r", 4)
    a(f"s_mul_i32 s36, s38, {ctstride}")
    a(f"s_add_u32 s36, s36, {WS_CT}")
    a("s_add_u32 s68, s26, s36")
    a("s_addc_u32 s69, s27, 0")
    if pf:
        a("v_and_b32 v1, 31, v0")
        a("s_and_b32 s36, s28, 3")
        a("s_lshl_b32 s36, s36, 3")
        a("s_lshr_b32 s37, s29, 2")
        a("s_add_u32 s36, s36, s37")
        a("v_add_u32 v2, s36, v1")
        a("v_and_b32 v2, 31, v2")
        a("s_and_b32 s36, s28, 4")
        a("s_and_b32 s37, s29, 3")
        a("s_add_u32 s36, s36, s37")
        a("s_lshl_b32 s36, s36, 17")
        a(f"s_add_u32 s36, s36, {WS_P2}")
        a("v_lshl_add_u32 v22, v1, 12, s36")
        a("v_lshl_add_u32 v22, v2, 7, v22")
    a("v_mov_b32 v6, -1")
    a("v_mov_b32 v7, -1")
    a("v_lshlrev_b32 v21, 3, v0")
    a(f"ds_write_b64 v21, v[6:7] offset:{L_TK}")
    a("s_lshl_b32 s36, s30, 13")
    a("s_lshl_b32 s37, s31, 12")
    a("s_add_u32 s36, s36, s37")
    a(f"s_add_u32 s36, s36, {WS_QP}")
    a("v_lshl_add_u32 v1, v0, 4, s36")
    a("s_mul_i32 s36, s34, 56")
    a("s_andn2_b32 s36, s36, 15")
    a(f"s_mul_i32 s37, s31, {8*7168}")
    a("s_add_u32 s36, s36, s37")
    a(f"s_add_u32 s36, s36, {WS_FP}")
    a("v_lshrrev_b32 v2, 5, v0")
    a("v_bfe_u32 v3, v0, 2, 2")
    a("v_lshl_add_u32 v2, v2, 2, v3")
    a("v_mul_u32_u24 v2, 7168, v2")
    a("v_and_b32 v3, 3, v0")
    a("v_lshl_add_u32 v2, v3, 4, v2")
    a("v_add_u32 v2, s36, v2")
    if pq is not None:
        note("reads that race with the other workgroups' stores stall this CU's stream: start when an S wave asks")
        a("v_and_b32 v5, 12, v0")
        a(f"s_mov_b32 s40, {spin * 8}")
        lab("L_go")
        a(f"ds_read_b32 v6, v5 offset:{L_GO}")
        a("s_waitcnt lgkmcnt(0)")
        a("v_cmp_ne_u32 vcc, 0, v6")
        a("s_cbranch_vccnz L_go_done")
        a("s_sleep 1")
        a("s_sub_u32 s40, s40, 1")
        a("s_cbranch_scc0 L_go")
        lab("L_go_done")
    a(f"s_mov_b32 s40, {0 if 'wait' in skip else spin}")
    if qdelay: a(f"s_sleep {qdelay}")
    stamp(7)
    lab("L_qpoll")
    if "ld" not in skip:
        for i in range(4): a(f"global_load_dwordx4 v[{48+4*i}:{51+4*i}], v1, s[26:27] offset:{i*1024} sc1")
        if merge: a("global_load_dwordx4 v[8:11], v2, s[26:27] sc1")
    a("s_waitcnt vmcnt(0)")
    check([48, 52, 56, 60] + ([8] if merge else []), 6)
    pollend("L_qpoll")
    for i in range(16): a(f"v_and_b32 v{48+i}, 0xffffff00, v{48+i}")
    for i in range(8): a(f"v_add_f32 v{48+i}, v{48+i}, v{56+i}")
    for i in range(4): a(f"v_cvt_pk_bf16_f32 v{48+i}, v{48+2*i}, v{49+2*i}")
    a("v_mov_b32 v6, 0")
    a(f"ds_write_b64 v21, v[48:49] offset:{L_Q}")
    a(f"ds_write_b64 v21, v[50:51] offset:{L_Q+512}")
    a("s_waitcnt lgkmcnt(0)")
    a(f"ds_write_b64 v6, v[32:33] offset:{L_TAG}", "{tag, ready}")
    stamp(5)
    a("s_setprio 0")
    if not merge:
        a(f"s_mov_b32 s40, {0 if 'wait' in skip else spin}")
        lab("L_hpoll")
        if "ld" not in skip: a("global_load_dwordx4 v[8:11], v2, s[26:27] sc1")
        a("s_waitcnt vmcnt(0)")
        check([8], 5)
        pollend("L_hpoll")
    for i in range(4): a(f"v_and_b32 v{8+i}, 0xffffff00, v{8+i}")
    for r in (4, 8):
        for i in range(4): a(f"v_add_f32_dpp v{8+i}, v{8+i}, v{8+i} row_ror:{r} {DPP}")
    a("v_cvt_pk_bf16_f32 v8, v8, v9")
    a("v_cvt_pk_bf16_f32 v9, v10, v11")
    a("v_mov_b32 v10, v8")
    a("v_mov_b32 v11, v9")
    a("s_nop 1")
    a("v_permlane32_swap_b32 v8, v10", "v8,v9 = gate pairs, v10,v11 = up pairs")
    a("v_permlane32_swap_b32 v9, v11")
    for p in range(2):
        a(f"v_lshlrev_b32 v12, 16, v{8+p}")
        a(f"v_and_b32 v13, 0xffff0000, v{8+p}")
        a(f"v_lshlrev_b32 v14, 16, v{10+p}")
        a(f"v_and_b32 v15, 0xffff0000, v{10+p}")
        a("v_max_f32 v12, 0, v12")
        a("v_max_f32 v13, 0, v13")
        a("v_mul_f32 v12, v12, v14")
        a("v_mul_f32 v13, v13, v15")
        a(f"v_cvt_pk_bf16_f32 v{16+p}, v12, v13")
    a("v_lshlrev_b32 v3, 3, v3")
    a(f"ds_write_b64 v3, v[16:17] offset:{L_H}")
    a("s_bitcmp1_b32 s34, 0", "the 16-column window holds one pair of the neighbour's rows: clear it")
    a("s_cselect_b32 s36, 0, 28")
    a("v_mov_b32 v3, s36")
    a(f"ds_write_b32 v3, v6 offset:{L_H}")
    stamp(6)
    a("s_mov_b32 s41, 0")
    a(f"v_mov_b32 v5, {L_TK}")
    a(f"s_mov_b32 s40, {spin * 8}")
    a("s_setprio 1")
    lab("L_disp")
    a(f"ds_read_b128 v[8:11], v6 offset:{L_REQ}")
    a("s_sub_u32 s40, s40, 1")
    a("s_cbranch_scc1 L_disp_done")
    a("s_waitcnt lgkmcnt(0)")
    a("v_min3_u32 v8, v8, v9, v10")
    a("v_min_u32 v8, v8, v11")
    a("v_cmp_lt_u32 vcc, s41, v8")
    a("s_cbranch_vccnz L_serve")
    a("s_sleep 1")
    a("s_branch L_disp")
    lab("L_serve")
    a("s_mov_b32 s67, 1")
    a("s_atomic_add s67, s[68:69], 0 glc")
    a("s_add_u32 s41, s41, 1")
    a("s_waitcnt lgkmcnt(0)")
    a("v_readlane_b32 s36, v20, s67")
    a(f"s_cmp_lt_u32 s67, {POOL}")
    a("s_nop 0")
    a("s_cselect_b32 s36, s36, -2")
    a("v_mov_b32 v7, s36")
    a("ds_write_b32 v5, v7")
    a("v_add_u32 v5, 4, v5")
    a("s_cbranch_scc1 L_disp")
    lab("L_disp_done")
    if pf:
        a("s_mov_b32 exec_hi, 0")
        a("global_load_dword v23, v22, s[26:27] sc1", "pull a quarter of the lines the final task polls (result unused)")
    a("s_waitcnt lgkmcnt(0)")
    a("s_barrier")
    dump_stamps("X")
    a("s_endpgm")

    L = [HEADER.rstrip("\n"), f"; @launch grid=(256,1,1) block=(384,1,1) lds={L_END}", DOC,
         '.amdgcn_target "amdgcn-amd-amdhsa--gfx950"', ".text", f".globl {KN}", ".p2align 8", f".type {KN},@function"]
    for name in "E X1 S W X2".split(): L.extend(SEC[name])
    L.append("L_codeend:")
    L += ['.section .rodata,"a"', ".p2align 6", f".amdhsa_kernel {KN}",
          f"  .amdhsa_next_free_vgpr {NV}", "  .amdhsa_next_free_sgpr 102", f"  .amdhsa_accum_offset {NV}",
          "  .amdhsa_group_segment_fixed_size 0", "  .amdhsa_kernarg_size 96", "  .amdhsa_user_sgpr_count 2",
          "  .amdhsa_user_sgpr_kernarg_segment_ptr 1", "  .amdhsa_system_sgpr_workgroup_id_x 1",
          "  .amdhsa_float_denorm_mode_32 3", ".end_amdhsa_kernel"]
    return "\n".join(L) + "\n"

if __name__ == "__main__":
    import json
    cfg = json.loads(sys.argv[1]) if len(sys.argv) > 1 else {}
    sys.stdout.write(gen(**cfg))
```

```python
import struct, sys, math

KN = "recurrent_scan__gqa_block_cached__glu_gated_reglu__decode_kernel"
HEADER = open("recurrent_scan__gqa_block_cached__glu_gated_reglu__decode.s.ref").read().split("; @launch")[0]

def f2u(x):
    return struct.unpack("<I", struct.pack("<f", x))[0]

WS_EPOCH = 0
WS_QP = 0x10000
WS_FP = 0x40000
WS_CT = 0x80000
WS_P1 = 0x100000
WS_P2 = 0x200000
WS_TS = 0x400000
WS_TT = 0x500000
L_W = 0
L_SC = 0
L_XN = 32768
L_XR = 34816
L_Q = 36864
L_Z = 37888
L_TAG = 38144
L_GO = 38160
L_REQ = 38176
L_H = 38400
L_ST = 38464
L_OB = 38592
L_TK = 38656
L_O = 39424
L_END = 47616
PHI = 0x9E3779B9

ROLES = [('X', slice(0, 1)), ('S', slice(1, 5))]

DOC = """;
; and streams about 1/16 of the group's keys.
;               o.wo and h.W_down partial rows, hand-off 2 (64 workgroups sum 128 partials each), gate, residual, store.
;   wave 5 (W): touches the code and the pages used later, then walks the S code with EXEC = 0 (instruction cache).
; Hand-offs carry a tag = (first word of d_ws at entry) + constant; the word is advanced at the end of the launch."""

def gen(RH=7, NE=1, NA=28, NS=29, WS="4444", WP="4444", WM="4555", NP=8, nA=4, xsleep=1, xprio=1, sprio=0, al="kvmdws", outflags="", endexp=None, r0=0, cnt=8, nV=0, pads={}, gap1="bar", gap2=None, tune8=True, ep1=True, pre_bar=1, lnfirst=True, tlb=True, pf=True, merge=True,
        kvflags="nt", wflags="nt", woflags="", pmap="w0 w1 n0^r3^g0 n2^r0 n1 n3^r1 n4 r0 r1 r2 r3", i1bit=15, torder="r", ctstride=1280,
        qdelay=0, pq=4, pollfirst=False, lite=False, skip=(), ts=False, spin=1 << 20, probe=None):
    KP = 32 - NS
    POOL = 16 * KP
    assert 0 < POOL <= 64 and NA % RH == 0 and NA >= 2 * RH and RH >= 7 and NS >= NA + 1
    SEC = {}
    cur = [None]
    def section(name): cur[0] = SEC.setdefault(name, [])
    if probe is not None: ts = True
    if lite: ts = True
    tt = ts and probe is None and not lite
    def a(s, c=None): cur[0].append("    " + (s if c is None else f"{s:<72}; {c}"))
    def lab(s): cur[0].append(s + ":")
    def note(s): cur[0].append("    ; " + s)
    def align(key):
        if key in pads:
            cur[0].append(".p2align 6")
            if pads[key]: cur[0].append(f".fill {pads[key]}, 4, 0xbf800000")
        elif key in al: cur[0].append(".p2align 6")
        if key.upper() in al: cur[0].append(".p2align 3")
    skn = [0]
    def guarded(f):
        skn[0] += 1
        n = skn[0]
        a(f"s_cbranch_execz L_g{n}")
        f()
        lab(f"L_g{n}")
    def guard(lines): guarded(lambda: [a(x) for x in lines])
    def stamp(idx):
        if ts and (not lite or idx == 8):
            a("s_waitcnt lgkmcnt(0)")
            a("s_memrealtime s[70:71]")
            a("s_waitcnt lgkmcnt(0)")
            a(f"s_mov_b32 s{80+idx}, s70")
    def zero_stamps():
        if ts:
            a("s_mov_b32 s80, s70")
            for i in range(1, 16): a(f"s_mov_b32 s{80+i}, 0")
    def tstamp():
        if tt:
            a("s_memrealtime s[70:71]")
            a("s_add_u32 s79, s79, 1")
            a("s_lshr_b32 m0, s79, 1")
            a("s_waitcnt lgkmcnt(0)")
            a("v_writelane_b32 v13, s70, m0")
    def dump_stamps(role):
        if probe is not None:
            if role == probe[0]:
                pidx = probe[1]
                if len(probe) > 2:
                    a(f"s_and_b32 s73, s2, {probe[2]}")
                    a(f"s_cmp_lg_u32 s73, {probe[3]}")
                    a("s_cbranch_scc1 L_pe")
                a(f"s_cmp_eq_u32 s{80+pidx}, 0")
                a("s_cbranch_scc1 L_pe")
                if len(probe) > 4:
                    a(f"s_sub_u32 s72, s{80+pidx}, s{80+probe[4]}")
                    a("s_lshl_b32 s72, s72, 4")
                    a("s_add_u32 s72, s72, s80")
                    a("s_add_u32 s72, s72, 10000")
                else:
                    a(f"s_add_u32 s72, s{80+pidx}, 10000")
                lab("L_pl")
                a("s_memrealtime s[70:71]")
                a("s_waitcnt lgkmcnt(0)")
                a("s_sub_u32 s73, s70, s72")
                a("s_cmp_lt_i32 s73, 0")
                a("s_cbranch_scc1 L_pl")
                lab("L_pe")
        elif ts and not (lite and role == "X"):
            a("s_mov_b64 exec, 1")
            a("s_mul_i32 s70, s2, 5")
            a("s_add_u32 s70, s70, s3")
            a("s_lshl_b32 s70, s70, 6")
            a(f"s_add_u32 s70, s70, {WS_TS}")
            a("v_mov_b32 v1, s70")
            a("s_getreg_b32 s95, hwreg(HW_REG_XCC_ID)")
            for q in range(4):
                for i in range(4): a(f"v_mov_b32 v{4+i}, s{80+q*4+i}")
                a(f"global_store_dwordx4 v1, v[4:7], s[26:27] offset:{q*16}")
                a("s_nop 1")
    def tagregs():
        a("s_mov_b32 s56, s33", "s56..s59 = tag >> 8i, s60..s63 = byte-insert selectors")
        a("s_lshr_b32 s57, s33, 8")
        a("s_lshr_b32 s58, s33, 16")
        a("s_lshr_b32 s59, s33, 24")
        for i in range(4): a(f"s_mov_b32 s{60+i}, {0x07060500 + i:#x}")
    def check(regs, acc):
        first = True
        for r in regs:
            for i in range(4):
                if first: a(f"v_xor_b32 v{acc}, s{56+i}, v{r+i}"); first = False
                else: a(f"v_bitop3_b32 v{acc}, v{acc}, v{r+i}, s{56+i} bitop3:0xf6")
        a(f"v_and_b32 v{acc}, 0xff, v{acc}")
        a(f"v_cmp_ne_u32 vcc, 0, v{acc}")
    def pollend(name):
        a(f"s_cbranch_vccz {name}_done")
        a("s_sub_u32 s40, s40, 1")
        a(f"s_cbranch_scc0 {name}")
        lab(f"{name}_done")

    VB, VSW, VSR = 11, 12, 16
    VKO, VVO, VM, VL, VM0, VM1 = 18, 19, 20, 21, 22, 23
    VA, VQ, VO, VS, VR = 24, 32, 36, 44, 60
    VT = VR + 16 * max(RH + NE, 8)
    (T_OW, T_SW, T_OR, T_SR, T_P1S, T_P1L, T_OBW, T_P2S, T_WO, T_H, T_F0, _, _, _, T_XO, T_X, T_D0, T_D1, T_OBR, T_FW, T_FR) = range(VT, VT + 21)
    NV = VT + 24
    RD, RW = VR + 64, VR + 80
    PD, PW = VR + 4, VR + 20
    VP2 = VR + 112
    def decode():
        a("s_and_b32 s28, s2, 7", "x")
        a("s_lshr_b32 s29, s2, 3", "j")
        a("s_bfe_u32 s30, s2, 0x30004", "kv head")
        a("s_lshr_b32 s31, s2, 7", "batch row")
        a("s_and_b32 s32, s2, 15", "split")
        a("s_and_b32 s34, s2, 127", "idx")
        a("s_lshr_b32 s38, s2, 4", "group")
    def srds():
        a("s_mov_b64 s[44:45], s[6:7]", "K"); a("s_brev_b32 s46, 16"); a("s_mov_b32 s47, 0x20000")
        a("s_mov_b64 s[48:49], s[8:9]", "V"); a("s_brev_b32 s50, 16"); a("s_mov_b32 s51, 0x20000")
        a("s_mov_b64 s[72:73], s[6:7]", "K or V"); a("s_brev_b32 s74, 16"); a("s_mov_b32 s75, 0x20000")
    pm = [set(x.split("^")) for x in pmap.split()]
    PB = [b for b in range(11, 23) if b != i1bit]
    assert len(pm) == 11 and i1bit != 11
    def mask_of(sym): return sum(1 << PB[p] for p in range(11) if sym in pm[p])
    def scalar_part(dst, srcs, base=True):
        a(f"s_lshl_b32 {dst}, s38, 23" if base else f"s_mov_b32 {dst}, 0")
        for pre, (reg, nb) in srcs.items():
            masks = [mask_of(f"{pre}{i}") for i in range(nb)]
            if masks[0] and all(masks[i] == masks[0] << i for i in range(nb)) and bin(masks[0]).count("1") == 1:
                a(f"s_lshl_b32 s35, {reg}, {masks[0].bit_length()-1}")
                a(f"s_xor_b32 {dst}, {dst}, s35")
                continue
            for i in range(nb):
                if masks[i]:
                    a(f"s_bfe_i32 s35, {reg}, {0x10000 + i:#x}")
                    a(f"s_and_b32 s35, s35, {masks[i]:#x}")
                    a(f"s_xor_b32 {dst}, {dst}, s35")
    def lane_bits(vdst, vsrc, pre, nb):
        for i in range(nb):
            a(f"v_bfe_i32 v7, v{vsrc}, {i}, 1")
            a(f"v_and_b32 v7, {mask_of(pre + str(i)):#x}, v7")
            a(f"v_xor_b32 v{vdst}, v{vdst}, v7")
    def nconst(n):
        c = 0
        for i in range(5):
            if n >> i & 1: c ^= mask_of(f"n{i}")
        return c
    def issue(reg, voff, srd, pat, down=False):
        last = max(k for k in range(4) if pat[k] != "-")
        assert pat[0] != "-" and (int(pat[last]) + 4 - last <= 8 or pat == f"{NP}---")
        seq = (2, 0, 3, 1) if down else (0, 2, 1, 3)
        for k, u in enumerate(seq):
            if k: a(f"s_bitset{u >> 1}_b32 s52, {i1bit}")
            if pat[k] != "-": a(f"s_waitcnt vmcnt({pat[k]})")
            a(f"buffer_load_dwordx4 v[{reg+4*u}:{reg+4*u+3}], v{voff}, {srd}, s52 offen offset:{(u&1)*1024} {kvflags}")
        tstamp()
    rest = list(range(2, RH))
    PERM = [0 if p == (RH - 1) // 2 else 1 if p == RH - 1 else rest.pop(0) for p in range(RH)]
    def preg(n): return VR + 16 * (RH + n if n < NE else PERM[n % RH])

    section("E")
    lab(KN)
    a("s_load_dwordx16 s[4:19], s[0:1], 0", "s[4:5]=x s[6:7]=K s[8:9]=V s[12:13]=wo")
    a("s_load_dwordx8 s[20:27], s[0:1], 64", "s[20:21]=W_down s[22:23]=out s[26:27]=ws")
    if ts: a("s_memrealtime s[70:71]")
    a("v_lshrrev_b32 v1, 6, v0")
    a("s_cmpk_ge_u32 s2, 256")
    a("s_cbranch_scc1 L_end")
    a("v_readfirstlane_b32 s3, v1", "wave")
    a("v_and_b32 v0, 63, v0", "lane")
    a("s_mul_i32 s39, s2, 0x200408", "wq tile as a byte offset: bits 7..12 column block, bit 21 k-half")
    a("s_and_b32 s39, s39, 0x201f80")
    assert len({(w * 0x200408) & 0x201f80 for w in range(256) if not w & 8}) == 128
    a("s_sub_u32 s42, s3, 1", "w")
    a("s_cbranch_scc1 L_xwave")
    a("s_cmp_eq_u32 s3, 5")
    a("s_cbranch_scc1 L_wwave")
    a("s_lshl_b32 s36, s42, 19", "wg bit 3 clear: wq tile, wave w loads rows 64w..")
    a("s_or_b32 s36, s36, s39")
    a("s_movk_i32 s37, 8192")
    a("s_mov_b32 s35, 24")
    a("s_bitcmp0_b32 s2, 3")
    a("s_cbranch_scc1 L_job")
    a("s_andn2_b32 s35, 0x86, s2", "wg bit 3 set: gate (waves 0,1) / up (waves 2,3) tile; 16 workgroups have none")
    a("s_cbranch_scc0 L_srest")
    a("s_lshr_b32 s36, s2, 3")
    a("s_and_b32 s37, s36, 24")
    a("s_min_u32 s37, s37, 22")
    a("s_and_b32 s35, s2, 7")
    a("s_add_u32 s37, s37, s35", "column block")
    a("s_and_b32 s36, s36, 6")
    a("s_and_b32 s35, s42, 1")
    a("s_or_b32 s36, s36, s35", "64-row block")
    a("s_mulk_i32 s36, 1792")
    a("s_add_u32 s36, s36, s37")
    a("s_lshl_b32 s36, s36, 7")
    a("s_movk_i32 s37, 3584")
    a("s_lshr_b32 s35, s42, 1")
    a("s_lshl3_add_u32 s35, s35, 48")
    lab("L_job")
    a("s_load_dwordx2 s[40:41], s[0:1], s35", "wq, W_gate or W_up")
    a("v_lshrrev_b32 v2, 3, v0")
    a("v_and_b32 v3, 7, v0")
    a("v_mul_u32_u24 v2, s37, v2")
    a("v_lshl_add_u32 v2, v3, 4, v2")
    a("v_add_u32 v2, s36, v2")
    a("s_lshl_b32 m0, s42, 13")
    a("s_lshl_b32 s37, s37, 3")
    a("s_lshl_b32 s36, s3, 13")
    a("s_waitcnt lgkmcnt(0)")
    lab("L_wdma")
    a(f"global_load_lds_dwordx4 v2, s[40:41] {wflags}")
    a("s_addk_i32 m0, 1024")
    a("v_add_u32 v2, s37, v2")
    a("s_cmp_lg_u32 m0, s36")
    a("s_cbranch_scc1 L_wdma")
    a("s_branch L_srest")

    section("X1")
    cur[0].append(".p2align 8")
    lab("L_xwave")
    a("v_lshlrev_b32 v1, 5, v0")
    a("v_mov_b32 v6, 0")
    a("v_mov_b32 v7, 0")
    a("v_lshlrev_b32 v5, 3, v0")
    a(f"ds_write_b64 v5, v[6:7] offset:{L_Z}", "zero block + flags")
    a("s_waitcnt lgkmcnt(0)")
    a("global_load_dwordx4 v[8:11], v1, s[4:5]")
    a("global_load_dwordx4 v[12:15], v1, s[4:5] offset:16")
    a("s_load_dword s33, s[26:27], 0", "epoch")
    a("s_setprio 2")
    zero_stamps()
    decode()
    a("s_and_b32 s67, s39, 0x200300")
    a("s_and_b32 s36, s2, 8")
    a("s_or_b32 s67, s67, s36")
    a("s_cbranch_scc1 L_x2")
    a("s_bfe_u32 s36, s39, 0x3000a")
    a("s_bfe_u32 s37, s39, 0x10007")
    a("s_lshl3_add_u32 s36, s37, s36")
    a(f"s_mul_i32 s36, s36, {ctstride}")
    a(f"s_add_u32 s36, s36, {WS_CT}")
    a("v_lshl_add_u32 v5, v0, 2, s36")
    a("global_store_dword v5, v6, s[26:27] sc1")
    a("s_branch L_x2")

    section("W")
    align("w")
    lab("L_wwave")
    a("s_getpc_b64 s[68:69]", "touch every 128-B line of the code (results unused)")
    lab("L_wpc")
    a(f"s_sub_u32 s68, s68, L_wpc-{KN}")
    a("s_subb_u32 s69, s69, 0")
    a("v_lshlrev_b32 v7, 7, v0")
    a("v_add_u32 v8, L_codeend-" + KN + "-8192, v7")
    a("global_load_dword v9, v7, s[68:69]")
    a("global_load_dword v9, v8, s[68:69]")
    a("s_waitcnt lgkmcnt(0)")
    if tlb:
        note("touch the pages this workgroup uses later (one dword each, results unused)")
        a("s_and_b32 s34, s2, 127")
        a("s_mov_b64 exec, 1")
        a("s_lshl_b32 s36, s2, 19")
        a("v_mov_b32 v3, s36")
        a("global_load_dword v9, v3, s[6:7] nt")
        a("global_load_dword v9, v3, s[8:9] nt")
        a(f"s_mul_i32 s36, s34, {14*1024}")
        a("v_mov_b32 v3, s36")
        a("global_load_dword v9, v3, s[20:21] nt")
        a("s_lshl_b32 s36, s34, 15")
        a("v_mov_b32 v3, s36")
        a("global_load_dword v9, v3, s[12:13] nt")
        a("v_mov_b32 v3, 1024")
        a("global_load_dword v9, v3, s[26:27] nt")
        a("s_lshl_b32 s36, s2, 12")
        a(f"s_add_u32 s36, s36, {WS_P1}")
        a("v_mov_b32 v3, s36")
        a("global_load_dword v9, v3, s[26:27] nt")
        a(f"v_add_u32 v3, {WS_P2 - WS_P1}, v3")
        a("global_load_dword v9, v3, s[26:27] nt")
        a("v_xor_b32 v3, 0x80000, v3")
        a("global_load_dword v9, v3, s[26:27] nt")
        a("s_mov_b64 exec, -1")
    a("s_barrier", "barrier 0")
    srds()
    for r in [6, 14, VKO, VVO, VB] + list(range(VT, VT + 21)): a(f"v_mov_b32 v{r}, 0")
    a("s_mov_b64 exec, 0")
    for r in (42, 41, 33, 29, 76, 77): a(f"s_mov_b32 s{r}, 0")
    a("s_mov_b32 s54, 1")
    a("s_mov_b64 s[96:97], 0")
    a("s_mov_b64 s[98:99], 0")
    a("s_branch L_kpre")

    section("S")
    align("s")
    lab("L_srest")
    a("s_waitcnt lgkmcnt(0)")
    zero_stamps()
    if ts:
        a("v_mov_b32 v13, 0")
        a("s_mov_b32 s79, 1")
    stamp(9)
    decode()
    srds()
    scalar_part("s66", {"w": ("s42", 2), "r": ("s32", 4), "g": ("s38", 4)})
    a("v_lshrrev_b32 v2, 4, v0")
    a("v_and_b32 v3, 3, v0")
    a("v_bfe_u32 v4, v0, 2, 2")
    a("v_lshlrev_b32 v5, 8, v4")
    a("v_lshl_add_u32 v5, v2, 6, v5")
    a(f"v_lshl_add_u32 v{VKO}, v3, 4, v5", "K lane offset: key (lane>>2)&3, 16-B chunk 4(lane>>4) + (lane&3)")
    a("s_mov_b32 s52, s66")
    issue(preg(0), VKO, "s[44:47]", f"{NP}---")
    a(f"v_lshlrev_b32 v{VVO}, 4, v0", "V lane offset")
    a("v_mov_b32 v10, s66", "v10[n] = offset of this wave's tile n")
    lane_bits(10, 0, "n", 5)
    scalar_part("s55", {"w": ("s42", 2)}, base=False)
    a("s_lshl_b32 s36, s42, 2")
    a("v_mov_b32 v14, s36", "request slot")
    a("v_mov_b32 v6, 0xffff")
    a("v_mov_b32 v7, 0xffff0000")
    a("v_and_b32 v8, 1, v0")
    a("v_cmp_eq_u32 vcc, 1, v8")
    a("v_and_b32 v8, 2, v0")
    a("s_nop 0")
    a("v_cndmask_b32 v6, v6, v7, vcc")
    a("v_cmp_eq_u32 vcc, 2, v8")
    a(f"v_mov_b32 v{VM}, {f2u(-3.0e38):#x}")
    a(f"v_mov_b32 v{VL}, 0")
    a(f"v_cndmask_b32 v{VM1}, 0, v6, vcc", "P.V selector masks: bf16 slot lane&3 of the A fragment")
    a(f"v_xor_b32 v{VM0}, v{VM1}, v6")
    for i in range(8): a(f"v_mov_b32 v{VO+i}, 0")
    a(f"s_mov_b32 s53, {f2u(math.log2(math.e) / math.sqrt(128.0)):#x}", "log2(e)/sqrt(128)")
    a("s_mov_b32 s54, 1000", "counts down; set to 0 for the last tile")
    a(f"s_mov_b32 s41, {RH + NE}", "next tile to issue")
    a(f"s_mov_b32 s76, {NA // RH - 1}")
    a(f"s_mov_b32 s77, {NA // RH - 1}")
    a("s_mov_b64 s[96:97], -1", "EXEC: all lanes")
    a("s_mov_b32 s98, 0x11111111", "EXEC: lane 0 of every quad")
    a("s_mov_b32 s99, 0x11111111")
    a(f"v_mov_b32 v{VB}, v{VKO}")
    a(f"s_mul_i32 s36, s42, {NA * 256}")
    a(f"v_lshl_add_u32 v{VSR}, v0, 2, s36")
    a(f"v_and_b32 v{VSW}, -16, v{VSR}")
    a("v_lshrrev_b32 v3, 4, v0", "g")
    a("v_and_b32 v4, 15, v0", "c")
    a("v_bfe_u32 v5, v0, 2, 2")
    a("s_lshl_b32 s35, s42, 11")
    a(f"v_lshl_add_u32 v{T_OW}, v0, 5, s35")
    a("s_lshl_b32 s36, s42, 3")
    a(f"v_lshl_add_u32 v{T_SW}, v5, 5, s36")
    a("s_lshl_b32 s35, s42, 9")
    a(f"v_lshl_add_u32 v{T_OR}, v0, 3, s35")
    a("s_lshl_b32 s36, s42, 5")
    a(f"v_mov_b32 v{T_SR}, s36")
    a("s_lshl_b32 s35, s2, 12")
    a("s_lshl_b32 s36, s42, 10")
    a("s_add_u32 s36, s35, s36")
    a(f"s_add_u32 s37, s36, {WS_P1}")
    a(f"v_lshl_add_u32 v{T_P1S}, v0, 4, s37", "P1 + wg*4096 + thread*16")
    a("s_lshl_b32 s36, s38, 16")
    a("s_lshl_b32 s37, s32, 8")
    a("s_add_u32 s36, s36, s37")
    a("s_lshl_b32 s37, s42, 6")
    a("s_add_u32 s36, s36, s37")
    a(f"s_add_u32 s36, s36, {WS_P1}")
    a(f"v_lshl_add_u32 v{T_P1L}, v4, 12, s36")
    a(f"v_lshl_add_u32 v{T_P1L}, v3, 4, v{T_P1L}", "P1 + (group*16 + c)*4096 + (16 split + 4w + g)*16")
    a("s_lshl_b32 s36, s42, 4")
    a(f"v_lshl_add_u32 v{T_OBW}, v3, 2, s36")
    a("s_lshl_b32 s36, s42, 6")
    a("s_lshl_b32 s37, s2, 3")
    a("s_add_u32 s36, s36, s37")
    a("v_lshl_add_u32 v1, v4, 2, v3")
    a("v_add_u32 v1, s36, v1")
    a("v_and_b32 v1, 255, v1")
    a(f"s_add_u32 s37, s35, {WS_P2}")
    a(f"v_lshl_add_u32 v{T_P2S}, v1, 4, s37", "P2 + wg*4096 + ((64w + 4c + g + 8wg) & 255)*16")
    a("s_lshl_b32 s36, s42, 8")
    a("v_lshl_add_u32 v1, v4, 4, s36")
    a("s_lshl_b32 s36, s34, 15")
    a("s_add_u32 s36, s36, 4096")
    a("v_lshl_add_u32 v2, v3, 13, s36")
    a(f"v_add_u32 v{T_WO}, v1, v2", "wo rows 32 idx + 8g + i, columns 128w + 8c..")
    a(f"s_mul_i32 s36, s34, {14*1024}")
    a("v_add_u32 v1, s36, v1")
    a("s_and_b32 s36, s34, 1")
    a("v_lshlrev_b32 v2, 1, v3")
    a("v_subrev_u32 v2, s36, v2")
    a("v_max_i32 v5, 0, v2")
    a(f"v_lshl_add_u32 v{T_D0}, v5, 11, v1", "W_down rows 14 idx + 2 clamp(2g + p - (idx&1), 0, 6) + i")
    a("v_add_u32 v2, 1, v2")
    a("v_min_i32 v5, 6, v2")
    a(f"v_lshl_add_u32 v{T_D1}, v5, 11, v1")
    a(f"v_lshlrev_b32 v{T_H}, 3, v3")
    a(f"v_lshlrev_b32 v{T_OBR}, 4, v3")
    a("v_and_b32 v2, 7, v0")
    a(f"v_lshlrev_b32 v{T_FR}, 4, v2")
    a("s_lshl_b32 s35, s42, 7")
    a(f"v_lshl_add_u32 v1, v3, 2, v{T_FR}")
    a(f"v_add_u32 v{T_FW}, s35, v1")
    a("s_lshr_b32 s35, s28, 2")
    a("s_and_b32 s36, s28, 3")
    a("s_lshl_b32 s36, s36, 3")
    a("s_lshr_b32 s37, s29, 2")
    a("s_add_u32 s36, s36, s37")
    a("v_lshrrev_b32 v3, 3, v0")
    a("s_lshl2_add_u32 s37, s35, s42")
    a("s_lshl_b32 s37, s37, 17")
    a(f"s_add_u32 s37, s37, {WS_P2}")
    a(f"v_add_u32 v5, s37, v{T_FR}")
    for k in range(4):
        a(f"v_add_u32 v1, {8*k}, v3")
        a("v_add_u32 v4, s36, v1")
        a("v_and_b32 v4, 31, v4")
        a("v_lshl_add_u32 v4, v4, 7, v5")
        a(f"v_lshl_add_u32 v{T_F0+k}, v1, 12, v4")
    a("s_lshl_b32 s37, s35, 10")
    a("s_lshl_b32 s36, s36, 5")
    a("s_add_u32 s37, s37, s36")
    a(f"v_lshl_add_u32 v{T_XO}, v2, 2, s37")
    a("s_mov_b32 s64, 0x05040100")
    a("s_mov_b32 s65, 0x07060302")
    a("s_mov_b32 s39, 0xffffff00")
    a("v_mov_b32 v6, 0")
    for p in range(RH + NE):
        if p:
            a(f"s_xor_b32 s52, s66, {nconst(p):#x}")
            issue(preg(p), VKO, "s[44:47]", WP if p >= pre_bar else "4---")
        if p == pre_bar - 1:
            a(f"s_waitcnt vmcnt({4 * pre_bar})")
            if probe is not None: stamp(11)
            a("s_barrier", "barrier 0: weight tile landed, LDS flags cleared")
            stamp(10)
        if p == pq:
            a("s_mov_b64 exec, 1", "q is needed soon: let the X wave gather it")
            a("v_mov_b32 v15, 1")
            a(f"ds_write_b32 v14, v15 offset:{L_GO}")
            a("s_mov_b64 exec, -1")
    stamp(1)
    a(f"s_mov_b32 s40, {spin * 8}")
    lab("L_qflag")
    a(f"ds_read_b64 v[2:3], v6 offset:{L_TAG}")
    a("s_waitcnt lgkmcnt(0)")
    a("v_cmp_eq_u32 vcc, 0, v3")
    a("s_cbranch_vccz L_qflag_done")
    a("s_sleep 1")
    a("s_sub_u32 s40, s40, 1")
    a("s_cbranch_scc0 L_qflag")
    lab("L_qflag_done")
    if sprio: a(f"s_setprio {sprio}")
    a(f"ds_read_b128 v[{VQ}:{VQ+3}], v{VKO} offset:{L_Q}")
    a("v_mov_b32 v17, v2", "tag")
    a("v_readfirstlane_b32 s33, v2")
    stamp(2)
    a("s_nop 1")
    tagregs()
    a("s_waitcnt lgkmcnt(0)")
    def claim(first=False):
        a("s_mov_b32 s35, 1" if first else f"s_sub_u32 s35, s41, {NS - 1}", "ask the X wave for step s41")
        a("s_mov_b64 exec, 1")
        a("v_mov_b32 v15, s35")
        a(f"ds_write_b32 v14, v15 offset:{L_REQ}")
        a("s_mov_b64 exec, -1")
    def qk(K):
        for u in range(4):
            a(f"v_mfma_f32_16x16x32_bf16 v[{VS+4*u}:{VS+4*u+3}], v[{K+4*u}:{K+4*u+3}], v[{VQ}:{VQ+3}], 0")
    def pv(V):
        for t in range(4):
            a(f"v_mfma_f32_16x16x16_bf16 v[{VO}:{VO+3}], v[{VA+2*t}:{VA+2*t+1}], v[{V+4*t}:{V+4*t+1}], v[{VO}:{VO+3}]")
            a(f"v_mfma_f32_16x16x16_bf16 v[{VO+4}:{VO+7}], v[{VA+2*t}:{VA+2*t+1}], v[{V+4*t+2}:{V+4*t+3}], v[{VO+4}:{VO+7}]")
    DPP = "row_mask:0xf bank_mask:0xf"
    def rowmax(dst):
        a("v_permlane16_swap_b32 v1, v2")
        a("s_nop 0")
        a("v_max_f32 v1, v1, v2")
        a("v_mov_b32 v2, v1")
        a("s_nop 1")
        a("v_permlane32_swap_b32 v1, v2")
        a("s_nop 0")
        a(f"v_max_f32 v{dst}, v1, v2")
    def softmax():
        for u in range(4): a(f"v_mov_b32_dpp v{4+u}, v{VS+4*u} quad_perm:[0,0,0,0] {DPP}")
        for p in range(1, 4):
            for u in range(4): a(f"v_add_f32_dpp v{4+u}, v{VS+4*u+p}, v{4+u} quad_perm:[{p},{p},{p},{p}] {DPP}")
        a("v_max3_f32 v1, v4, v5, v6")
        a(f"v_max3_f32 v1, v1, v7, v{VM}")
        a("v_mov_b32 v2, v1")
        a("s_nop 1")
        rowmax(1)
        a(f"v_sub_f32 v2, v{VM}, v1")
        a("v_mul_f32 v3, s53, v1")
        a("v_mul_f32 v2, s53, v2")
        a(f"v_mov_b32 v{VM}, v1")
        a("v_exp_f32 v2, v2", "rescale factor")
        for i in range(4): a(f"v_fma_f32 v{4+i}, v{4+i}, s53, -v3")
        for i in range(4): a(f"v_exp_f32 v{4+i}, v{4+i}")
        for g in range(4): a(f"v_mov_b32_dpp v8, v2 row_newbcast:{4*g} row_mask:{1<<g:#x} bank_mask:0xf")
        a(f"v_fma_f32 v{VL}, v{VL}, v2, v4")
        a("v_add_f32 v9, v5, v6")
        a(f"v_add_f32 v{VL}, v{VL}, v7")
        a(f"v_add_f32 v{VL}, v{VL}, v9")
        for i in range(4): a(f"v_cvt_pk_bf16_f32 v{4+i}, v{4+i}, v{4+i}")
        for i in range(8): a(f"v_mul_f32 v{VO+i}, v{VO+i}, v8")
        for i in range(4):
            a(f"v_and_b32 v{VA+2*i}, v{4+i}, v{VM0}")
            a(f"v_and_b32 v{VA+2*i+1}, v{4+i}, v{VM1}")
    def scores(K, p, ring):
        qk(K)
        if ring:
            a("v_readlane_b32 s52, v10, s41")
            a("s_add_u32 s41, s41, 1")
            a("s_nop 2")
        else:
            a("s_nop 4")
        for u in range(4): a(f"v_add_f32_dpp v{4+u}, v{VS+4*u+1}, v{VS+4*u} quad_perm:[1,1,1,1] {DPP}")
        for q_ in (2, 3):
            for u in range(4): a(f"v_add_f32_dpp v{4+u}, v{VS+4*u+q_}, v{4+u} quad_perm:[{q_},{q_},{q_},{q_}] {DPP}")
        a("s_mov_b64 exec, s[98:99]")
        a(f"v_max3_f32 v{VM}, v4, v5, v{VM}")
        a(f"ds_write_b128 v{VSW}, v[4:7] offset:{L_SC + p*256}")
        a(f"v_max3_f32 v{VM}, v6, v7, v{VM}")
        a("s_mov_b64 exec, s[96:97]")
    lab("L_kpre")
    for p in range(NE): scores(preg(p), p, False)
    if NE: a(f"s_cbranch_execnz L_kp{NE}", "their ring slots already hold later tiles")
    align("k")
    lab("L_kloop")
    a("s_cmp_lg_u32 s76, 0")
    a("s_cbranch_scc1 L_kp0")
    a("s_mov_b64 s[72:73], s[8:9]", "last trip: refill with V tiles 0..")
    a(f"v_mov_b32 v{VB}, v{VVO}")
    a("s_mov_b32 s41, 0")
    for p in range(RH):
        K = VR + PERM[p] * 16
        lab(f"L_kp{p}")
        scores(K, p, True)
        guarded(lambda: issue(K, VB, "s[72:75]", WS))
    a(f"v_add_u32 v{VSW}, {RH*256}, v{VSW}")
    a("s_sub_u32 s76, s76, 1")
    a("s_cbranch_scc0 L_kloop")
    a(f"ds_read_b32 v9, v{VSR} offset:{L_SC}")
    a(f"v_mov_b32_dpp v1, v{VM} quad_perm:[0,0,0,0] {DPP}")
    a(f"v_mov_b32_dpp v2, v{VM} quad_perm:[0,0,0,0] {DPP}")
    a("s_mov_b32 s78, 1")
    a("s_nop 0")
    rowmax(VM)
    a(f"v_mul_f32 v3, s53, v{VM}")
    WL = [f"global_load_dwordx4 v[{RD+4*i}:{RD+4*i+3}], v{T_D0 + i//2}, s[20:21] offset:{(i&1)*1024} {woflags}" for i in range(4)]
    WL += [f"global_load_dwordx4 v[{RW+4*i}:{RW+4*i+3}], v{T_WO}, s[12:13] offset:{i*1024-4096} {woflags}" for i in range(8)]
    assert nV in (0, 4, 8, 12) and nA >= nV and not (nV and r0)
    vsn = []
    align("v")
    lab("L_vloop")
    a("s_cmp_lg_u32 s77, 0")
    a("s_cbranch_scc1 L_v0")
    a("s_mov_b64 s[72:73], s[6:7]", f"last trip: refill only slots 0, 1 with K, V of tile {NA}")
    a(f"v_mov_b32 v{VB}, v{VKO}")
    a("s_mov_b32 s78, 0")
    lab("L_v0")
    for p in range(RH):
        sl = PERM[p]
        V = VR + sl * 16
        a("v_readlane_b32 s52, v10, s41")
        a("s_waitcnt lgkmcnt(0)")
        a("v_fma_f32 v4, v9, s53, -v3")
        a(f"ds_read_b32 v9, v{VSR} offset:{L_SC + (p+1)*256}")
        a("v_exp_f32 v4, v4")
        a("s_add_u32 s41, s41, 1" if sl == 1 else "s_add_u32 s41, s41, s78")
        a("v_cvt_pk_bf16_f32 v5, v4, v4")
        a(f"v_add_f32 v{VL}, v{VL}, v4")
        a("s_nop 0")
        for t in range(4):
            a(f"v_and_b32_dpp v{VA+2*t}, v5, v{VM0} quad_perm:[{t},{t},{t},{t}] {DPP}")
            a(f"v_and_b32_dpp v{VA+2*t+1}, v5, v{VM1} quad_perm:[{t},{t},{t},{t}] {DPP}")
        if p == RH - 1:
            a("s_cmp_lg_u32 s77, 0", "last trip: only the K refill is younger than this slot's loads")
            a("s_cbranch_scc1 L_vw")
            a(f"s_waitcnt vmcnt({4 + nV})")
            lab("L_vw")
        pv(V)
        if sl >= 2:
            a("s_cmp_eq_u32 s77, 0")
            k4 = sl - 4
            if 0 <= k4 < nV // 4:
                a(f"s_cbranch_scc1 L_vx{p}")
                vsn.append((p, WL[4*k4:4*k4+4]))
            else:
                a(f"s_cbranch_scc1 L_vs{p}")
            issue(V, VVO, "s[48:51]", WS)
            lab(f"L_vs{p}")
        elif sl == 0:
            guarded(lambda: issue(V, VB, "s[72:75]", WS))
            if NS == NA + 1:
                a("s_cmp_lg_u32 s77, 0")
                a("s_cbranch_scc1 L_vnc")
                guarded(lambda: claim(first=True))
                lab("L_vnc")
        else:
            guarded(lambda: issue(V, VVO, "s[48:51]", WS))
    a(f"v_add_u32 v{VSR}, {RH*256}, v{VSR}")
    a("s_sub_u32 s77, s77, 1")
    a("s_cbranch_scc0 L_vloop")
    a(f"v_add_f32_dpp v{VL}, v{VL}, v{VL} quad_perm:[1,0,3,2] {DPP}")
    a("s_waitcnt lgkmcnt(0)")
    a("s_nop 0")
    a(f"v_add_f32_dpp v{VL}, v{VL}, v{VL} quad_perm:[2,3,0,1] {DPP}")
    a("s_cbranch_execnz L_loop")
    a("s_mov_b32 s41, 63")
    align("m")
    lab("L_loop")
    assert int(WM[0]) <= 4
    for slot in range(2):
        oth = 1 - slot
        a("v_readlane_b32 s52, v10, s41")
        a(f"s_cmp_ge_u32 s41, {NS}")
        a(f"s_cbranch_scc1 L_tk{slot}")
        a("s_nop 1")
        lab(f"L_gk{slot}")
        issue(VR + oth * 32, VKO, "s[44:47]", WM)
        a("s_add_u32 s41, s41, 1")
        a(f"s_cmp_lt_u32 s41, {NS}")
        a(f"s_cbranch_scc1 L_rk{slot}")
        claim()
        lab(f"L_rk{slot}")
        qk(VR + slot * 32)
        a("s_nop 4")
        softmax()
        a("s_cmp_lt_u32 s54, 2")
        a(f"s_cbranch_scc1 L_dv{slot}")
        issue(VR + oth * 32 + 16, VVO, "s[48:51]", WM, down=True)
        lab(f"L_rv{slot}")
        pv(VR + slot * 32 + 16)
        a("s_sub_u32 s54, s54, 1")
        a("s_cbranch_scc1 L_done")
    a("s_branch L_loop")
    for p, ls in vsn:
        lab(f"L_vx{p}")
        a(f"s_cbranch_execz L_vs{p}")
        for k, x in enumerate(ls):
            if WS[k] != "-": a(f"s_waitcnt vmcnt({WS[k]})")
            a(x)
        a(f"s_branch L_vs{p}")
    for slot in range(2):
        lab(f"L_tk{slot}")
        a(f"s_cbranch_execz L_rk{slot}")
        a("s_lshl_b32 s35, s41, 2")
        a(f"s_add_u32 s35, s35, {L_TK - 4 * NS}")
        a("v_mov_b32 v15, s35")
        a(f"s_mov_b32 s40, {spin * 8}")
        lab(f"L_tp{slot}")
        a("ds_read_b32 v16, v15", "-1: not served yet, -2: pool empty")
        a("s_sub_u32 s40, s40, 1")
        a(f"s_cbranch_scc1 L_tf{slot}")
        a("s_waitcnt lgkmcnt(0)")
        a("v_readfirstlane_b32 s35, v16")
        a("s_nop 1")
        a("s_cmp_eq_u32 s35, -1")
        a(f"s_cbranch_scc1 L_tp{slot}")
        a("s_xor_b32 s52, s35, s55")
        a("s_cmp_lt_u32 s35, -3")
        a(f"s_cbranch_scc1 L_gk{slot}")
        if r0: a("s_and_b32 s78, s35, 1", "early finisher")
        lab(f"L_tf{slot}")
        a("s_mov_b32 s54, 0")
        a("s_waitcnt vmcnt(4)")
        a(f"s_branch L_rk{slot}")
        lab(f"L_dv{slot}")
        if r0 and nA:
            a("s_cmp_lg_u32 s78, 0")
            a(f"s_cbranch_scc1 L_de{slot}")
        if nA > nV: guard(WL[nV:nA])
        if r0 and nA: lab(f"L_de{slot}")
        a(f"v_mov_b32 v2, v{VL}")
        a(f"v_mul_f32 v10, s53, v{VM}")
        a("s_nop 0")
        a(f"v_permlane16_swap_b32 v{VL}, v2")
        a("s_nop 0")
        a(f"v_add_f32 v11, v{VL}, v2")
        a("v_mov_b32 v2, v11")
        a("s_nop 1")
        a("v_permlane32_swap_b32 v11, v2")
        a("s_nop 0")
        a("v_add_f32 v11, v11, v2")
        a(f"ds_write_b64 v{T_SW}, v[10:11] offset:{L_ST}")
        a(f"s_waitcnt vmcnt({nA - nV})")
        if r0 and nA:
            a(f"s_cbranch_scc0 L_rv{slot}")
            a("s_waitcnt vmcnt(0)")
        a(f"s_branch L_rv{slot}")
    align("d")
    lab("L_done")
    stamp(3)
    if tt:
        a("s_mov_b32 s94, s41")
        a(f"v_mov_b32 v{VR}, v13")
    poll1 = f"global_load_dwordx4 v[8:11], v{T_P1L}, s[26:27] sc1"
    if gap1 == "prio": a("s_setprio 3")
    a("s_nop 4")
    a(f"ds_write_b128 v{T_OW}, v[{VO}:{VO+3}] offset:{L_O}")
    a(f"ds_write_b128 v{T_OW}, v[{VO+4}:{VO+7}] offset:{L_O+16}")
    a("s_waitcnt lgkmcnt(0)")
    guard(["s_barrier"])
    a(f"ds_read_b128 v[8:11], v{T_SR} offset:{L_ST}")
    a(f"ds_read_b128 v[12:15], v{T_SR} offset:{L_ST+16}")
    for w in range(4): a(f"ds_read_b64 v[{24+2*w}:{25+2*w}], v{T_OR} offset:{L_O + w*2048}")
    a("v_mov_b32 v39, v17")
    a("s_waitcnt lgkmcnt(4)")
    a("v_max3_f32 v2, v8, v10, v12")
    a("v_max_f32 v2, v2, v14")
    for w in range(4): a(f"v_sub_f32 v{8+2*w}, v{8+2*w}, v2")
    for w in range(4): a(f"v_exp_f32 v{8+2*w}, v{8+2*w}")
    a("v_mul_f32 v16, v8, v9")
    a("v_fmac_f32 v16, v10, v11")
    a("v_fmac_f32 v16, v12, v13")
    a("v_fmac_f32 v16, v14, v15")
    a("s_waitcnt lgkmcnt(0)")
    a("v_rcp_f32 v5, v16")
    a("v_log_f32 v16, v16")
    a("v_mul_f32 v36, v8, v24")
    a("v_mul_f32 v37, v8, v25")
    for w in range(1, 4):
        a(f"v_fmac_f32 v36, v{8+2*w}, v{24+2*w}")
        a(f"v_fmac_f32 v37, v{8+2*w}, v{25+2*w}")
    a("v_add_f32 v38, v2, v16", "log2 of the partial sum")
    a("v_mul_f32 v36, v36, v5")
    a("v_mul_f32 v37, v37, v5")
    assert not pollfirst
    def gap(kind):
        if kind == "bar": a("s_barrier", "all four stores go out before any wave's loads")
        if kind == "prio": a("s_setprio 0")
    if not r0:
        def f():
            a(f"global_store_dwordx4 v{T_P1S}, v[36:39], s[26:27] sc1")
            stamp(4)
            gap(gap1)
            for x in WL[nA:] + [poll1]: a(x)
        guarded(f)
    else:
        def f():
            a(f"global_store_dwordx4 v{T_P1S}, v[36:39], s[26:27] sc1")
            stamp(4)
            a("s_cmp_eq_u32 s78, 0")
            a("s_cbranch_scc1 L_wlate")
            a(f"s_mov_b32 s40, {spin}")
            lab("L_pre")
            a(poll1)
            a("s_waitcnt vmcnt(0)")
            a("v_cmp_eq_u32 vcc, s33, v11")
            a("s_sub_u32 s40, s40, 1")
            a("s_cbranch_scc1 L_pre_done")
            a("s_bcnt1_i32_b64 s35, vcc")
            a(f"s_cmp_lt_u32 s35, {4 * cnt}")
            a("s_cbranch_scc1 L_pre")
            lab("L_pre_done")
            for x in WL[:nA]: a(x)
            lab("L_wlate")
            for x in WL[nA:] + [poll1]: a(x)
        guarded(f)
    a(f"ds_read_b32 v{T_X}, v{T_XO} offset:{L_XR}")
    a(f"ds_read_b64 v[24:25], v{T_H} offset:{L_H}")
    def younger(k): return (11 - k) + (1 if k < nA and not r0 else 0) + 1
    def pairup(raw, dst, p):
        for d in range(4):
            a(f"v_perm_b32 v{dst+8*p+2*d}, v{raw+8*p+4+d}, v{raw+8*p+d}, s64")
            a(f"v_perm_b32 v{dst+8*p+2*d+1}, v{raw+8*p+4+d}, v{raw+8*p+d}, s65")
    def dots(pairs, vec, npairs):
        for p in range(npairs):
            for c in range(8):
                a(f"v_dot2_f32_bf16 v{VS+c}, v{pairs+8*p+c}, v{vec+p}, {'0' if p == 0 else 'v%d' % (VS+c)}")
    def fold(dst):
        for k in range(4): a(f"v_permlane32_swap_b32 v{VS+k}, v{VS+4+k}")
        for k in range(4): a(f"v_add_f32 v{VS+k}, v{VS+k}, v{VS+4+k}")
        a("s_nop 0")
        for k in range(2): a(f"v_permlane16_swap_b32 v{VS+k}, v{VS+2+k}")
        for k in range(2): a(f"v_add_f32 v{dst+k}, v{VS+k}, v{VS+2+k}")
    a(f"s_waitcnt vmcnt({younger(3)})")
    for p in range(2): pairup(RD, PD, p)
    a("s_waitcnt lgkmcnt(0)")
    dots(PD, 24, 2)
    fold(42)
    a("v_perm_b32 v42, v42, v17, s62")
    a("v_perm_b32 v43, v43, v17, s63")
    nearly = (nA - 4) // 2 if pollfirst else 4
    for p in range(nearly):
        a(f"s_waitcnt vmcnt({younger(4 + 2*p + 1)})")
        pairup(RW, PW, p)
    a(f"s_mov_b32 s40, {spin}")
    if probe is None: stamp(11)
    a(f"s_waitcnt vmcnt({12 - nA if pollfirst else 0})")
    a("s_branch L_p1chk")
    align("p")
    lab("L_p1poll")
    a(poll1)
    a("s_waitcnt vmcnt(0)")
    lab("L_p1chk")
    a("v_cmp_ne_u32 vcc, s33, v11")
    pollend("L_p1poll")
    stamp(5)
    if tt: a(f"s_sub_u32 s92, {spin + 1}, s40")
    a(f"v_max_f32_dpp v2, v10, v10 row_ror:8 {DPP}")
    a("s_nop 1")
    for r in (4, 2, 1):
        a(f"v_max_f32_dpp v2, v2, v2 row_ror:{r} {DPP}")
        if r > 1: a("s_nop 1")
    a("v_sub_f32 v10, v10, v2")
    a("v_exp_f32 v10, v10")
    a("s_nop 0")
    a("v_mul_f32 v8, v8, v10")
    a("v_mul_f32 v9, v9, v10")
    for r in (8, 4, 2, 1):
        for v in (10, 8, 9): a(f"v_add_f32_dpp v{v}, v{v}, v{v} row_ror:{r} {DPP}")
    a("v_rcp_f32 v10, v10")
    a("s_nop 0")
    a("v_mul_f32 v8, v8, v10")
    a("v_mul_f32 v9, v9, v10")
    a("v_cvt_pk_bf16_f32 v8, v8, v9")
    a(f"ds_write_b32 v{T_OBW}, v8 offset:{L_OB}")
    a("s_waitcnt lgkmcnt(0)")
    guard(["s_barrier"])
    if gap2 == "prio": a("s_setprio 3")
    a(f"ds_read_b128 v[24:27], v{T_OBR} offset:{L_OB}")
    for p in range(nearly, 4):
        a(f"s_waitcnt vmcnt({6 - 2*p})")
        pairup(RW, PW, p)
    a("s_waitcnt lgkmcnt(0)")
    dots(PW, 24, 4)
    fold(40)
    a("v_perm_b32 v40, v40, v17, s60")
    a("v_perm_b32 v41, v41, v17, s61")
    guard([f"global_store_dwordx4 v{T_P2S}, v[40:43], s[26:27] sc1"])
    stamp(6)
    a("s_and_b32 s35, s29, 3")
    a("s_cbranch_scc1 L_end" if lite else "s_cbranch_scc1 L_sexit")
    a(f"s_mov_b32 s40, {spin}")
    if gap2: guarded(lambda: gap(gap2))
    align("q")
    lab("L_p2poll")
    guard([f"global_load_dwordx4 v[{VP2+4*i}:{VP2+4*i+3}], v{T_F0+i}, s[26:27] sc1" for i in range(4)])
    a("s_waitcnt vmcnt(0)")
    check([VP2 + 4 * i for i in range(4)], 2)
    pollend("L_p2poll")
    stamp(7)
    if tt: a(f"s_sub_u32 s93, {spin + 1}, s40")
    for i in range(16): a(f"v_and_b32 v{24+i}, s39, v{VP2+i}")
    for i in (0, 2):
        a(f"v_pk_add_f32 v[{24+i}:{25+i}], v[{24+i}:{25+i}], v[{28+i}:{29+i}]")
        a(f"v_pk_add_f32 v[{32+i}:{33+i}], v[{32+i}:{33+i}], v[{36+i}:{37+i}]")
    for i in (0, 2): a(f"v_pk_add_f32 v[{8+i}:{9+i}], v[{24+i}:{25+i}], v[{32+i}:{33+i}]")
    a("s_nop 1")
    a("v_permlane32_swap_b32 v8, v10", "afterwards row r of the wave holds dword r of granule lane&7")
    a("v_permlane32_swap_b32 v9, v11")
    a("s_nop 0")
    a("v_add_f32 v8, v8, v10")
    a("v_add_f32 v9, v9, v11")
    a("s_nop 1")
    a("v_permlane16_swap_b32 v8, v9")
    a("s_nop 0")
    a("v_add_f32 v8, v8, v9")
    a("s_nop 1")
    a(f"v_add_f32_dpp v8, v8, v8 row_ror:8 {DPP}")
    a(f"ds_write_b32 v{T_FW}, v8 offset:{L_O}")
    a("s_waitcnt lgkmcnt(0)")
    guard(["s_barrier"])
    a("s_cmp_lg_u32 s42, 0")
    a("s_cbranch_scc1 L_epoch" if ep1 else "s_cbranch_scc1 L_end" if lite else "s_cbranch_scc1 L_sexit")
    for w in range(4): a(f"ds_read_b128 v[{24+4*w}:{27+4*w}], v{T_FR} offset:{L_O + 128*w}")
    a(f"v_lshlrev_b32 v14, 16, v{T_X}")
    a(f"v_and_b32 v15, 0xffff0000, v{T_X}")
    a("s_waitcnt lgkmcnt(2)")
    for i in (2, 0): a(f"v_pk_add_f32 v[{24+i}:{25+i}], v[{24+i}:{25+i}], v[{28+i}:{29+i}]")
    a("s_waitcnt lgkmcnt(0)")
    for i in (2, 0): a(f"v_pk_add_f32 v[{32+i}:{33+i}], v[{32+i}:{33+i}], v[{36+i}:{37+i}]")
    for i in (2, 0): a(f"v_pk_add_f32 v[{8+i}:{9+i}], v[{24+i}:{25+i}], v[{32+i}:{33+i}]")
    a("v_cvt_pk_bf16_f32 v10, v10, v11", "FFN output")
    a("v_cvt_pk_bf16_f32 v8, v8, v9", "attention output")
    a("v_and_b32 v11, 0xffff0000, v10")
    a("v_lshlrev_b32 v10, 16, v10")
    a(f"v_mul_f32 v13, {f2u(-math.log2(math.e)):#x}, v11")
    a(f"v_mul_f32 v12, {f2u(-math.log2(math.e)):#x}, v10")
    a("v_exp_f32 v13, v13")
    a("v_exp_f32 v12, v12")
    a("v_and_b32 v9, 0xffff0000, v8")
    a("v_add_f32 v13, 1.0, v13")
    a("v_add_f32 v12, 1.0, v12")
    a("v_rcp_f32 v13, v13")
    a("v_rcp_f32 v12, v12")
    a("v_lshlrev_b32 v8, 16, v8")
    a("v_mul_f32 v11, v11, v13")
    a("v_mul_f32 v10, v10, v12")
    a("v_cvt_pk_bf16_f32 v10, v10, v11", "silu")
    a("v_and_b32 v11, 0xffff0000, v10")
    a("v_lshlrev_b32 v10, 16, v10")
    a("v_mul_f32 v9, v9, v11")
    a("v_mul_f32 v8, v8, v10")
    a("v_cvt_pk_bf16_f32 v8, v8, v9")
    a("v_and_b32 v9, 0xffff0000, v8")
    a("v_lshlrev_b32 v8, 16, v8")
    a("v_add_f32 v9, v9, v15")
    a("v_add_f32 v8, v8, v14")
    a("v_cvt_pk_bf16_f32 v8, v8, v9")
    a("s_cbranch_execz L_end")
    a("s_mov_b64 exec, 0xff")
    if endexp is not None:
        if endexp == "before": a(f"global_store_dword v{T_XO}, v8, s[22:23] {outflags}")
        a("s_add_u32 s72, s80, 10000")
        lab("L_hold")
        a("s_memrealtime s[70:71]")
        a("s_waitcnt lgkmcnt(0)")
        a("s_sub_u32 s73, s70, s72")
        a("s_cmp_lt_i32 s73, 0")
        a("s_cbranch_scc1 L_hold")
    if endexp != "before": a(f"global_store_dword v{T_XO}, v8, s[22:23] {outflags}")
    if ep1:
        a("s_branch L_sexit" if ts else "s_endpgm")
        lab("L_epoch")
    if ep1: a("s_lshl2_add_u32 s35, s2, s42")
    a("s_cmp_lg_u32 s35, 17" if ep1 else "s_cmp_lg_u32 s2, 4")
    a("s_cbranch_scc1 L_end" if (ep1 and lite) else "s_cbranch_scc1 L_sexit")
    a("s_mov_b64 exec, 1")
    a("v_mov_b32 v6, 0")
    a(f"global_store_dword v6, v17, s[26:27] {outflags}")
    if ep1 and lite: a("s_endpgm")
    lab("L_sexit")
    stamp(8)
    if tt:
        a("s_mov_b64 exec, -1")
        a("s_lshl_b32 s70, s2, 2")
        a("s_add_u32 s70, s70, s42")
        a("s_lshl_b32 s70, s70, 8")
        a(f"s_add_u32 s70, s70, {WS_TT}")
        a("v_lshl_add_u32 v1, v0, 2, s70")
        a(f"global_store_dword v1, v{VR}, s[26:27]")
    dump_stamps("S")
    lab("L_end")
    a("s_endpgm")

    section("X2")
    align("x")
    lab("L_x2")
    a("v_lshrrev_b32 v46, 4, v0", "g")
    a("v_bfe_u32 v7, v0, 2, 2")
    a("v_and_b32 v5, 3, v0")
    a("v_lshlrev_b32 v44, 10, v46")
    a("v_lshl_add_u32 v44, v7, 7, v44")
    a("v_lshl_add_u32 v44, v5, 3, v44", "weight fragment address (transposing reads)")
    a("v_and_b32 v45, 1, v0", "batch row of this column of D")
    a("v_lshlrev_b32 v4, 10, v45")
    a("v_lshl_add_u32 v4, v46, 4, v4")
    a("v_bfe_u32 v47, v0, 1, 3", "which 16-column block lands in this column of D")
    a("v_bfe_u32 v2, v0, 1, 2")
    a("v_lshlrev_b32 v2, 6, v2")
    a("v_lshl_add_u32 v2, v46, 4, v2")
    a("s_bitcmp1_b32 s2, 3")
    a("s_cbranch_scc1 L_fsetup")
    a("s_lshr_b32 s35, s39, 21")
    a("s_lshl_b32 s43, s35, 9")
    a("s_add_u32 s52, s43, 256")
    a("s_mov_b32 s53, 0")
    a("s_bfe_u32 s36, s39, 0x3000a")
    a("s_lshl_b32 s36, s36, 13")
    a("s_lshl_b32 s37, s35, 11")
    a("s_add_u32 s36, s36, s37")
    a("s_bfe_u32 s37, s39, 0x30007")
    a("s_lshl_b32 s37, s37, 8")
    a("s_add_u32 s36, s36, s37")
    a(f"s_add_u32 s36, s36, {WS_QP}")
    a("v_lshl_add_u32 v3, v45, 12, s36")
    a("s_mov_b32 s54, 0x00ff00ff")
    a("s_branch L_jobset")
    lab("L_fsetup")
    a("s_and_b32 s35, s38, 3")
    a("s_lshl_b32 s43, s35, 8")
    a("s_mov_b32 s52, s43")
    a("s_mov_b32 s53, 4")
    a("s_and_b32 s37, s29, 24")
    a("s_min_u32 s37, s37, 22")
    a("s_add_u32 s37, s37, s28")
    a("s_lshl_b32 s37, s37, 8")
    a("s_mul_i32 s36, s35, 7168")
    a("s_add_u32 s36, s36, s37")
    a(f"s_add_u32 s36, s36, {WS_FP}")
    a("v_bfe_u32 v3, v0, 3, 1")
    a("v_lshl_add_u32 v3, v45, 1, v3")
    a(f"v_mul_u32_u24 v3, {4*7168}, v3")
    a("v_add_u32 v3, s36, v3")
    a("s_mov_b32 s54, -1")
    lab("L_jobset")
    a("v_add_u32 v35, v2, v3", "publish address")
    a("s_mov_b32 s55, s54")
    a(f"v_mov_b32 v34, {L_Z - L_XN}")
    for hh in range(2):
        a(f"v_add_u32 v5, s{43 if hh == 0 else 52}, v4")
        if hh: a("v_subrev_u32 v47, s53, v47")
        for k in range(4): a(f"v_cmp_eq_u32 s[{44+2*k}:{45+2*k}], {k}, v47")
        a("s_nop 0")
        for k in range(4): a(f"v_cndmask_b32 v{36+4*hh+k}, v34, v5, s[{44+2*k}:{45+2*k}]", "xn fragment address, or the zero block" if k == 0 else None)
    if tt: a("s_memrealtime s[72:73]")
    if not lnfirst: a("s_barrier", "barrier 0")
    a("s_waitcnt vmcnt(1)")
    a("s_cmp_eq_u32 s67, 0", "these still have the counter store in flight")
    a("s_cbranch_scc1 L_xok")
    a("s_waitcnt vmcnt(0)")
    lab("L_xok")
    stamp(1)
    if tt: a("s_mov_b32 s89, s72")
    a(f"ds_write_b128 v1, v[8:11] offset:{L_XR}", "raw x for the residual")
    a(f"ds_write_b128 v1, v[12:15] offset:{L_XR+16}")
    for i in range(8):
        a(f"v_lshlrev_b32 v{16+2*i}, 16, v{8+i}")
        a(f"v_and_b32 v{17+2*i}, 0xffff0000, v{8+i}")
    def red32(v, t):
        a("s_nop 1")
        for r in (8, 4, 2, 1):
            a(f"v_add_f32_dpp {v}, {v}, {v} row_ror:{r} {DPP}")
            a("s_nop 1")
        a(f"v_mov_b32 {t}, {v}")
        a("s_nop 1")
        a(f"v_permlane16_swap_b32 {v}, {t}")
        a("s_nop 0")
        a(f"v_add_f32 {v}, {v}, {t}")
    a("v_add_f32 v6, v16, v17")
    for i in range(2, 16): a(f"v_add_f32 v6, v6, v{16+i}")
    red32("v6", "v7")
    a(f"v_mul_f32 v6, {f2u(1.0/512):#x}, v6", "mean")
    a("v_sub_f32 v32, v16, v6")
    a("v_mul_f32 v33, v32, v32")
    for i in range(1, 16):
        a(f"v_sub_f32 v32, v{16+i}, v6")
        a("v_fmac_f32 v33, v32, v32")
    red32("v33", "v7")
    a(f"v_mul_f32 v33, {f2u(1.0/512):#x}, v33", "variance")
    a("v_cvt_pk_bf16_f32 v6, v6, v33")
    a("v_and_b32 v33, 0xffff0000, v6")
    a("v_lshlrev_b32 v6, 16, v6")
    a(f"v_add_f32 v33, {f2u(1e-5):#x}, v33")
    a("v_cvt_pk_bf16_f32 v33, v33, v33")
    a("v_lshlrev_b32 v33, 16, v33")
    a("v_sqrt_f32 v33, v33")
    a("s_nop 0")
    a("v_cvt_pk_bf16_f32 v33, v33, v33")
    a("v_lshlrev_b32 v33, 16, v33")
    a("v_rcp_f32 v33, v33")
    for i in range(8):
        a(f"v_sub_f32 v{16+2*i}, v{16+2*i}, v6")
        a(f"v_sub_f32 v{17+2*i}, v{17+2*i}, v6")
        a(f"v_cvt_pk_bf16_f32 v{8+i}, v{16+2*i}, v{17+2*i}")
        a(f"v_lshlrev_b32 v{16+2*i}, 16, v{8+i}")
        a(f"v_and_b32 v{17+2*i}, 0xffff0000, v{8+i}")
        a(f"v_mul_f32 v{16+2*i}, v{16+2*i}, v33")
        a(f"v_mul_f32 v{17+2*i}, v{17+2*i}, v33")
        a(f"v_cvt_pk_bf16_f32 v{8+i}, v{16+2*i}, v{17+2*i}")
    a(f"ds_write_b128 v1, v[8:11] offset:{L_XN}")
    a(f"ds_write_b128 v1, v[12:15] offset:{L_XN+16}")
    a("s_waitcnt lgkmcnt(0)")
    a(f"s_add_u32 s33, s33, {PHI:#x}", "tag")
    tagregs()
    a("v_mov_b32 v32, s33")
    a("v_mov_b32 v33, 1")
    if lnfirst: a("s_barrier", "barrier 0")
    stamp(2)
    a("s_andn2_b32 s35, 0x8e, s2")
    a("s_cbranch_scc0 L_nojob")
    steps = [(ks, blk) for ks in range(8) for blk in range(4)]
    def rd(n):
        ks, blk = steps[n]
        o = (n % 4) * 8
        a(f"ds_read_b128 v[{48+o}:{51+o}], v{36 + 4*(ks>>2) + blk} offset:{L_XN + (ks&3)*64}")
        a(f"ds_read_b64_tr_b16 v[{52+o}:{53+o}], v44 offset:{L_W + ks*4096 + blk*32}")
        a(f"ds_read_b64_tr_b16 v[{54+o}:{55+o}], v44 offset:{L_W + ks*4096 + blk*32 + 512}")
    for n in range(3): rd(n)
    for n in range(32):
        if n + 3 < 32: rd(n + 3)
        a(f"s_waitcnt lgkmcnt({3 * min(3, 31 - n)})")
        o = (n % 4) * 8
        a(f"v_mfma_f32_16x16x32_bf16 v[8:11], v[{52+o}:{55+o}], v[{48+o}:{51+o}], {'0' if n == 0 else 'v[8:11]'}")
    a("s_nop 7")
    for i in range(4): a(f"v_perm_b32 v{8+i}, v{8+i}, v32, s{60+i}")
    a("s_mov_b64 exec, s[54:55]")
    a("s_waitcnt vmcnt(0)")
    if "st" not in skip: a("global_store_dwordx4 v35, v[8:11], s[26:27] sc1")
    a("s_mov_b64 exec, -1")
    lab("L_nojob")
    stamp(3)
    scalar_part("s55", {"g": ("s38", 4)})
    if torder == "n":
        a(f"v_mul_u32_u24 v2, {(65536 + KP - 1) // KP}, v0")
        a("v_lshrrev_b32 v2, 16, v2")
        a(f"v_mul_u32_u24 v3, {KP}, v2")
        a("v_sub_u32 v3, v0, v3")
    else:
        a("v_and_b32 v2, 15, v0")
        a("v_lshrrev_b32 v3, 4, v0")
    a(f"v_add_u32 v3, {NS}, v3")
    a("v_mov_b32 v20, s55")
    lane_bits(20, 3, "n", 5)
    lane_bits(20, 2, "r", 4)
    a(f"s_mul_i32 s36, s38, {ctstride}")
    a(f"s_add_u32 s36, s36, {WS_CT}")
    a("s_add_u32 s68, s26, s36")
    a("s_addc_u32 s69, s27, 0")
    if pf:
        a("v_and_b32 v1, 31, v0")
        a("s_and_b32 s36, s28, 3")
        a("s_lshl_b32 s36, s36, 3")
        a("s_lshr_b32 s37, s29, 2")
        a("s_add_u32 s36, s36, s37")
        a("v_add_u32 v2, s36, v1")
        a("v_and_b32 v2, 31, v2")
        a("s_and_b32 s36, s28, 4")
        a("s_and_b32 s37, s29, 3")
        a("s_add_u32 s36, s36, s37")
        a("s_lshl_b32 s36, s36, 17")
        a(f"s_add_u32 s36, s36, {WS_P2}")
        a("v_lshl_add_u32 v22, v1, 12, s36")
        a("v_lshl_add_u32 v22, v2, 7, v22")
    a("v_mov_b32 v6, -1")
    a("v_mov_b32 v7, -1")
    a("v_lshlrev_b32 v21, 3, v0")
    a(f"ds_write_b64 v21, v[6:7] offset:{L_TK}")
    a("s_lshl_b32 s36, s30, 13")
    a("s_lshl_b32 s37, s31, 12")
    a("s_add_u32 s36, s36, s37")
    a(f"s_add_u32 s36, s36, {WS_QP}")
    a("v_lshl_add_u32 v1, v0, 4, s36")
    a("s_mul_i32 s36, s34, 56")
    a("s_andn2_b32 s36, s36, 15")
    a(f"s_mul_i32 s37, s31, {8*7168}")
    a("s_add_u32 s36, s36, s37")
    a(f"s_add_u32 s36, s36, {WS_FP}")
    a("v_lshrrev_b32 v2, 5, v0")
    a("v_bfe_u32 v3, v0, 2, 2")
    a("v_lshl_add_u32 v2, v2, 2, v3")
    a("v_mul_u32_u24 v2, 7168, v2")
    a("v_and_b32 v3, 3, v0")
    a("v_lshl_add_u32 v2, v3, 4, v2")
    a("v_add_u32 v2, s36, v2")
    if pq is not None:
        note("reads that race with the other workgroups' stores stall this CU's stream: start when an S wave asks")
        a("v_and_b32 v5, 12, v0")
        a(f"s_mov_b32 s40, {spin * 8}")
        lab("L_go")
        a(f"ds_read_b32 v6, v5 offset:{L_GO}")
        a("s_waitcnt lgkmcnt(0)")
        a("v_cmp_ne_u32 vcc, 0, v6")
        a("s_cbranch_vccnz L_go_done")
        a("s_sleep 1")
        a("s_sub_u32 s40, s40, 1")
        a("s_cbranch_scc0 L_go")
        lab("L_go_done")
    a(f"s_mov_b32 s40, {0 if 'wait' in skip else spin}")
    if qdelay: a(f"s_sleep {qdelay}")
    stamp(7)
    lab("L_qpoll")
    if "ld" not in skip:
        for i in range(4): a(f"global_load_dwordx4 v[{48+4*i}:{51+4*i}], v1, s[26:27] offset:{i*1024} sc1")
        if merge: a("global_load_dwordx4 v[8:11], v2, s[26:27] sc1")
    a("s_waitcnt vmcnt(0)")
    check([48, 52, 56, 60] + ([8] if merge else []), 6)
    pollend("L_qpoll")
    for i in range(16): a(f"v_and_b32 v{48+i}, 0xffffff00, v{48+i}")
    for i in range(8): a(f"v_add_f32 v{48+i}, v{48+i}, v{56+i}")
    for i in range(4): a(f"v_cvt_pk_bf16_f32 v{48+i}, v{48+2*i}, v{49+2*i}")
    a("v_mov_b32 v6, 0")
    a(f"ds_write_b64 v21, v[48:49] offset:{L_Q}")
    a(f"ds_write_b64 v21, v[50:51] offset:{L_Q+512}")
    a("s_waitcnt lgkmcnt(0)")
    a(f"ds_write_b64 v6, v[32:33] offset:{L_TAG}", "{tag, ready}")
    stamp(5)
    a("s_setprio 0")
    if not merge:
        a(f"s_mov_b32 s40, {0 if 'wait' in skip else spin}")
        lab("L_hpoll")
        if "ld" not in skip: a("global_load_dwordx4 v[8:11], v2, s[26:27] sc1")
        a("s_waitcnt vmcnt(0)")
        check([8], 5)
        pollend("L_hpoll")
    for i in range(4): a(f"v_and_b32 v{8+i}, 0xffffff00, v{8+i}")
    for r in (4, 8):
        for i in range(4): a(f"v_add_f32_dpp v{8+i}, v{8+i}, v{8+i} row_ror:{r} {DPP}")
    a("v_cvt_pk_bf16_f32 v8, v8, v9")
    a("v_cvt_pk_bf16_f32 v9, v10, v11")
    a("v_mov_b32 v10, v8")
    a("v_mov_b32 v11, v9")
    a("s_nop 1")
    a("v_permlane32_swap_b32 v8, v10", "v8,v9 = gate pairs, v10,v11 = up pairs")
    a("v_permlane32_swap_b32 v9, v11")
    for p in range(2):
        a(f"v_lshlrev_b32 v12, 16, v{8+p}")
        a(f"v_and_b32 v13, 0xffff0000, v{8+p}")
        a(f"v_lshlrev_b32 v14, 16, v{10+p}")
        a(f"v_and_b32 v15, 0xffff0000, v{10+p}")
        a("v_max_f32 v12, 0, v12")
        a("v_max_f32 v13, 0, v13")
        a("v_mul_f32 v12, v12, v14")
        a("v_mul_f32 v13, v13, v15")
        a(f"v_cvt_pk_bf16_f32 v{16+p}, v12, v13")
    a("v_lshlrev_b32 v3, 3, v3")
    a(f"ds_write_b64 v3, v[16:17] offset:{L_H}")
    a("s_bitcmp1_b32 s34, 0", "the 16-column window holds one pair of the neighbour's rows: clear it")
    a("s_cselect_b32 s36, 0, 28")
    a("v_mov_b32 v3, s36")
    a(f"ds_write_b32 v3, v6 offset:{L_H}")
    stamp(6)
    a("s_mov_b32 s41, 0")
    a(f"v_mov_b32 v5, {L_TK}")
    a(f"s_mov_b32 s40, {spin * 8}")
    a(f"s_setprio {xprio}")
    align("i")
    lab("L_disp")
    a(f"ds_read_b128 v[8:11], v6 offset:{L_REQ}")
    a("s_sub_u32 s40, s40, 1")
    a("s_cbranch_scc1 L_disp_done")
    a("s_waitcnt lgkmcnt(0)")
    a("v_min3_u32 v8, v8, v9, v10")
    a("v_min_u32 v8, v8, v11")
    a("v_cmp_lt_u32 vcc, s41, v8")
    a("s_cbranch_vccnz L_serve")
    a(f"s_sleep {xsleep}")
    a("s_branch L_disp")
    lab("L_serve")
    a("s_mov_b32 s67, 1")
    a("s_atomic_add s67, s[68:69], 0 glc")
    a("s_add_u32 s41, s41, 1")
    a("s_waitcnt lgkmcnt(0)")
    a("v_readlane_b32 s36, v20, s67")
    if r0:
        a(f"s_cmp_lt_u32 s67, {POOL + r0}")
        a("s_cselect_b32 s37, -3, -2")
        a(f"s_cmp_lt_u32 s67, {POOL}")
        a("s_cselect_b32 s36, s36, s37")
    else:
        a(f"s_cmp_lt_u32 s67, {POOL}")
        a("s_nop 0")
        a("s_cselect_b32 s36, s36, -2")
    a("v_mov_b32 v7, s36")
    a("ds_write_b32 v5, v7")
    a("v_add_u32 v5, 4, v5")
    a("s_cbranch_scc1 L_disp")
    lab("L_disp_done")
    if pf:
        a("s_mov_b32 exec_hi, 0")
        a("global_load_dword v23, v22, s[26:27] sc1", "pull a quarter of the lines the final task polls (result unused)")
    a("s_waitcnt lgkmcnt(0)")
    a("s_barrier")
    dump_stamps("X")
    a("s_endpgm")

    L = [HEADER.rstrip("\n"), f"; @launch grid=(256,1,1) block=(384,1,1) lds={L_END}", DOC,
         '.amdgcn_target "amdgcn-amd-amdhsa--gfx950"', ".text", f".globl {KN}", ".p2align 8", f".type {KN},@function"]
    for name in "E X1 S W X2".split(): L.extend(SEC[name])
    L.append("L_codeend:")
    L += ['.section .rodata,"a"', ".p2align 6", f".amdhsa_kernel {KN}",
          f"  .amdhsa_next_free_vgpr {NV}", "  .amdhsa_next_free_sgpr 102", f"  .amdhsa_accum_offset {NV}",
          "  .amdhsa_group_segment_fixed_size 0", "  .amdhsa_kernarg_size 96", "  .amdhsa_user_sgpr_count 2",
          "  .amdhsa_user_sgpr_kernarg_segment_ptr 1", "  .amdhsa_system_sgpr_workgroup_id_x 1",
          "  .amdhsa_float_denorm_mode_32 3", ".end_amdhsa_kernel"]
    if tune8: L = align_runs("\n".join(L).split("\n"))
    return "\n".join(L) + "\n"

WIDEN = ("v_mov_b32", "v_add_f32", "v_sub_f32", "v_mul_f32", "v_max_f32", "v_exp_f32", "v_rcp_f32", "v_log_f32", "v_and_b32", "v_xor_b32",
         "v_lshlrev_b32", "v_lshrrev_b32", "v_add_u32", "v_fmac_f32", "v_sqrt_f32", "v_min_u32", "v_or_b32")

def sizes_of(lines):
    import subprocess, re
    out = subprocess.run(["llvm-mc", "-triple=amdgcn-amd-amdhsa", "-mcpu=gfx950", "-show-encoding"],
                         input="\n".join(lines) + "\n", capture_output=True, text=True, check=True).stdout
    return [m.count(",") + 1 for m in re.findall(r"; encoding: \[(.*?)\]", out)]

def align_runs(lines):
    isins = [l.startswith("    ") and not l.strip().startswith(";") for l in lines]
    sz = iter(sizes_of(lines))
    size = [next(sz) if f else 0 for f in isins]
    out, osz, addr, active = [], [], 0, False
    for i, l in enumerate(lines):
        if l.startswith(".p2align"):
            k = 1 << int(l.split()[1]); addr = (addr + k - 1) // k * k
        elif l.startswith(".fill"):
            addr += 4 * int(l.split()[1].rstrip(","))
        elif l.startswith("L_xwave"):
            active = True
        if isins[i] and active and size[i] == 8 and addr % 8 == 4 and (not osz or osz[-1] != 8):
            run, j = 0, i
            while j < len(lines) and (size[j] == 8 or not isins[j]) and not lines[j].startswith("."):
                run += size[j] == 8 and "mfma" not in lines[j]; j += 1
            if run >= 3:
                j = len(out) - 1
                while j >= 0 and osz[j] in (0, 4) and not out[j].startswith("."):
                    op = out[j].split()[0] if osz[j] else ""
                    if op in WIDEN:
                        out[j] = out[j].replace(op + " ", op + "_e64 ", 1).replace("    ;", ";", 1); osz[j] = 8; addr += 4
                        break
                    if op == "s_nop" and int(out[j].split()[1]) > 0:
                        out[j] = f"    s_nop {int(out[j].split()[1]) - 1}"
                        out.insert(j, "    s_nop 0"); osz.insert(j, 4); addr += 4
                        break
                    j -= 1
                if addr % 8 == 4 and run >= 6:
                    out.append("    s_nop 0"); osz.append(4); addr += 4
        out.append(l); osz.append(size[i]); addr += size[i]
    return out

if __name__ == "__main__":
    import json
    cfg = json.loads(sys.argv[1]) if len(sys.argv) > 1 else {}
    sys.stdout.write(gen(**cfg))
```

```python
import struct, sys, math

KN = "recurrent_scan__gqa_block_cached__glu_gated_reglu__decode_kernel"
HEADER = open("recurrent_scan__gqa_block_cached__glu_gated_reglu__decode.s.ref").read().split("; @launch")[0]

def f2u(x):
    return struct.unpack("<I", struct.pack("<f", x))[0]

WS_EPOCH = 0
WS_QP = 0x10000
WS_FP = 0x40000
WS_CT = 0x80000
WS_P1 = 0x100000
WS_P2 = 0x200000
WS_TS = 0x400000
WS_TT = 0x500000
L_W = 0
L_SC = 0
L_XN = 32768
L_XR = 34816
L_Q = 36864
L_Z = 37888
L_TAG = 38144
L_GO = 38160
L_REQ = 38176
L_H = 38400
L_ST = 38464
L_OB = 38592
L_TK = 38656
L_O = 39424
L_END = 47616
PHI = 0x9E3779B9

ROLES = [('X', slice(0, 1)), ('S', slice(1, 5))]

DOC = """;
; and streams about 1/16 of the group's keys.
;               o.wo and h.W_down partial rows, hand-off 2 (64 workgroups sum 128 partials each), gate, residual, store.
;   wave 5 (W): touches the code and the pages used later, then walks the S code with EXEC = 0 (instruction cache).
; Hand-offs carry a tag = (first word of d_ws at entry) + constant; the word is advanced at the end of the launch."""

def gen(RH=4, NE=4, peel=True, mimic=True, rnd=True, mi=False, rq=4, reqfn="min", vat=False, WL0=None, NA=28, NS=29, WS="4444", WP="4444", WM="4555", NP=8, nA=4, xsleep=1, xprio=1, sprio=0, al="kvmdws", outflags="", endexp=None, r0=0, cnt=8, nV=0, pads={}, gap1="bar", gap2=None, tune8=True, ep1=True, pre_bar=1, lnfirst=True, tlb=True, pf=True, pfflags="sc1", merge=True,
        kvflags="nt", wflags="nt", woflags="", pmap="w0 w1 n0^r3^g0 n2^r0 n1 n3^r1 n4 r0 r1 r2 r3", i1bit=15, torder="r", ctstride=1280,
        qdelay=0, pq=4, pollfirst=False, lite=False, skip=(), ts=False, spin=1 << 20, probe=None):
    KP = 32 - NS
    POOL = 16 * KP
    assert 0 < POOL <= 64 and NA % RH == 0 and NA >= 2 * RH and RH >= 4 and NS >= NA + 1
    SEC = {}
    cur = [None]
    def section(name): cur[0] = SEC.setdefault(name, [])
    if probe is not None: ts = True
    if lite: ts = True
    tt = ts and probe is None and not lite
    def a(s, c=None): cur[0].append("    " + (s if c is None else f"{s:<72}; {c}"))
    def lab(s): cur[0].append(s + ":")
    def note(s): cur[0].append("    ; " + s)
    def align(key):
        if key in pads:
            cur[0].append(".p2align 6")
            if pads[key]: cur[0].append(f".fill {pads[key]}, 4, 0xbf800000")
        elif key in al: cur[0].append(".p2align 6")
        if key.upper() in al: cur[0].append(".p2align 3")
    skn = [0]
    def guarded(f):
        skn[0] += 1
        n = skn[0]
        a(f"s_cbranch_execz L_g{n}")
        f()
        lab(f"L_g{n}")
    def guard(lines): guarded(lambda: [a(x) for x in lines])
    def stamp(idx):
        if ts and (not lite or idx == 8):
            a("s_waitcnt lgkmcnt(0)")
            a("s_memrealtime s[70:71]")
            a("s_waitcnt lgkmcnt(0)")
            a(f"s_mov_b32 s{80+idx}, s70")
    def zero_stamps():
        if ts:
            a("s_mov_b32 s80, s70")
            for i in range(1, 16): a(f"s_mov_b32 s{80+i}, 0")
    def tstamp():
        if tt:
            a("s_memrealtime s[70:71]")
            a("s_add_u32 s79, s79, 1")
            a("s_lshr_b32 m0, s79, 1")
            a("s_waitcnt lgkmcnt(0)")
            a("v_writelane_b32 v13, s70, m0")
    def dump_stamps(role):
        if probe is not None:
            if role == probe[0]:
                pidx = probe[1]
                if len(probe) > 2:
                    a(f"s_and_b32 s73, s2, {probe[2]}")
                    a(f"s_cmp_lg_u32 s73, {probe[3]}")
                    a("s_cbranch_scc1 L_pe")
                a(f"s_cmp_eq_u32 s{80+pidx}, 0")
                a("s_cbranch_scc1 L_pe")
                if len(probe) > 4:
                    a(f"s_sub_u32 s72, s{80+pidx}, s{80+probe[4]}")
                    a("s_lshl_b32 s72, s72, 4")
                    a("s_add_u32 s72, s72, s80")
                    a("s_add_u32 s72, s72, 10000")
                else:
                    a(f"s_add_u32 s72, s{80+pidx}, 10000")
                lab("L_pl")
                a("s_memrealtime s[70:71]")
                a("s_waitcnt lgkmcnt(0)")
                a("s_sub_u32 s73, s70, s72")
                a("s_cmp_lt_i32 s73, 0")
                a("s_cbranch_scc1 L_pl")
                lab("L_pe")
        elif ts and not (lite and role == "X"):
            a("s_mov_b64 exec, 1")
            a("s_mul_i32 s70, s2, 5")
            a("s_add_u32 s70, s70, s3")
            a("s_lshl_b32 s70, s70, 6")
            a(f"s_add_u32 s70, s70, {WS_TS}")
            a("v_mov_b32 v1, s70")
            a("s_getreg_b32 s95, hwreg(HW_REG_XCC_ID)")
            for q in range(4):
                for i in range(4): a(f"v_mov_b32 v{4+i}, s{80+q*4+i}")
                a(f"global_store_dwordx4 v1, v[4:7], s[26:27] offset:{q*16}")
                a("s_nop 1")
    def tagregs():
        a("s_mov_b32 s56, s33", "s56..s59 = tag >> 8i, s60..s63 = byte-insert selectors")
        a("s_lshr_b32 s57, s33, 8")
        a("s_lshr_b32 s58, s33, 16")
        a("s_lshr_b32 s59, s33, 24")
        for i in range(4): a(f"s_mov_b32 s{60+i}, {0x07060500 + i:#x}")
    def check(regs, acc):
        first = True
        for r in regs:
            for i in range(4):
                if first: a(f"v_xor_b32 v{acc}, s{56+i}, v{r+i}"); first = False
                else: a(f"v_bitop3_b32 v{acc}, v{acc}, v{r+i}, s{56+i} bitop3:0xf6")
        a(f"v_and_b32 v{acc}, 0xff, v{acc}")
        a(f"v_cmp_ne_u32 vcc, 0, v{acc}")
    def pollend(name):
        a(f"s_cbranch_vccz {name}_done")
        a("s_sub_u32 s40, s40, 1")
        a(f"s_cbranch_scc0 {name}")
        lab(f"{name}_done")

    VB, VSW, VSR = 11, 12, 16
    VKO, VVO, VM, VL, VM0, VM1 = 18, 19, 20, 21, 22, 23
    VA, VQ, VO, VS, VR = 24, 32, 36, 44, 60
    VT = VR + 16 * max(RH + NE, 8)
    (T_OW, T_SW, T_OR, T_SR, T_P1S, T_P1L, T_OBW, T_P2S, T_WO, T_H, T_F0, _, _, _, T_XO, T_X, T_D0, T_D1, T_OBR, T_FW, T_FR) = range(VT, VT + 21)
    NV = VT + 24
    RD, RW = VR + 64, VR + 80
    PD, PW = VR + 4, VR + 20
    VP2 = VR + 112
    def decode():
        a("s_and_b32 s28, s2, 7", "x")
        a("s_lshr_b32 s29, s2, 3", "j")
        a("s_bfe_u32 s30, s2, 0x30004", "kv head")
        a("s_lshr_b32 s31, s2, 7", "batch row")
        a("s_and_b32 s32, s2, 15", "split")
        a("s_and_b32 s34, s2, 127", "idx")
        a("s_lshr_b32 s38, s2, 4", "group")
    def srds():
        a("s_mov_b64 s[44:45], s[6:7]", "K"); a("s_brev_b32 s46, 16"); a("s_mov_b32 s47, 0x20000")
        a("s_mov_b64 s[48:49], s[8:9]", "V"); a("s_brev_b32 s50, 16"); a("s_mov_b32 s51, 0x20000")
        a("s_mov_b64 s[72:73], s[6:7]", "K or V"); a("s_brev_b32 s74, 16"); a("s_mov_b32 s75, 0x20000")
    pm = [set(x.split("^")) for x in pmap.split()]
    PB = [b for b in range(11, 23) if b != i1bit]
    assert len(pm) == 11 and i1bit != 11
    def mask_of(sym): return sum(1 << PB[p] for p in range(11) if sym in pm[p])
    def scalar_part(dst, srcs, base=True):
        a(f"s_lshl_b32 {dst}, s38, 23" if base else f"s_mov_b32 {dst}, 0")
        for pre, (reg, nb) in srcs.items():
            masks = [mask_of(f"{pre}{i}") for i in range(nb)]
            if masks[0] and all(masks[i] == masks[0] << i for i in range(nb)) and bin(masks[0]).count("1") == 1:
                a(f"s_lshl_b32 s35, {reg}, {masks[0].bit_length()-1}")
                a(f"s_xor_b32 {dst}, {dst}, s35")
                continue
            for i in range(nb):
                if masks[i]:
                    a(f"s_bfe_i32 s35, {reg}, {0x10000 + i:#x}")
                    a(f"s_and_b32 s35, s35, {masks[i]:#x}")
                    a(f"s_xor_b32 {dst}, {dst}, s35")
    def lane_bits(vdst, vsrc, pre, nb):
        for i in range(nb):
            a(f"v_bfe_i32 v7, v{vsrc}, {i}, 1")
            a(f"v_and_b32 v7, {mask_of(pre + str(i)):#x}, v7")
            a(f"v_xor_b32 v{vdst}, v{vdst}, v7")
    def nconst(n):
        c = 0
        for i in range(5):
            if n >> i & 1: c ^= mask_of(f"n{i}")
        return c
    def issue(reg, voff, srd, pat, down=False, ks=range(4)):
        last = max(k for k in range(4) if pat[k] != "-")
        assert pat[0] != "-" and (int(pat[last]) + 4 - last <= 8 or pat == f"{NP}---")
        seq = (2, 0, 3, 1) if down else (0, 2, 1, 3)
        for k, u in enumerate(seq):
            if k not in ks: continue
            if k: a(f"s_bitset{u >> 1}_b32 s52, {i1bit}")
            if pat[k] != "-": a(f"s_waitcnt vmcnt({pat[k]})")
            a(f"buffer_load_dwordx4 v[{reg+4*u}:{reg+4*u+3}], v{voff}, {srd}, s52 offen offset:{(u&1)*1024} {kvflags}")
        if 3 in ks: tstamp()
    rest = list(range(2, RH))
    PERM = [0 if p == (RH - 1) // 2 else 1 if p == RH - 1 else rest.pop(0) for p in range(RH)]
    def preg(n): return VR + 16 * (RH + n if n < NE else PERM[n % RH])

    section("E")
    lab(KN)
    a("s_load_dwordx16 s[4:19], s[0:1], 0", "s[4:5]=x s[6:7]=K s[8:9]=V s[12:13]=wo")
    a("s_load_dwordx8 s[20:27], s[0:1], 64", "s[20:21]=W_down s[22:23]=out s[26:27]=ws")
    if ts: a("s_memrealtime s[70:71]")
    a("v_lshrrev_b32 v1, 6, v0")
    a("s_cmpk_ge_u32 s2, 256")
    a("s_cbranch_scc1 L_end")
    a("v_readfirstlane_b32 s3, v1", "wave")
    a("v_and_b32 v0, 63, v0", "lane")
    a("s_mul_i32 s39, s2, 0x200408", "wq tile as a byte offset: bits 7..12 column block, bit 21 k-half")
    a("s_and_b32 s39, s39, 0x201f80")
    assert len({(w * 0x200408) & 0x201f80 for w in range(256) if not w & 8}) == 128
    a("s_sub_u32 s42, s3, 1", "w")
    a("s_cbranch_scc1 L_xwave")
    a("s_cmp_eq_u32 s3, 5")
    a("s_cbranch_scc1 L_wwave")
    a("s_lshl_b32 s36, s42, 19", "wg bit 3 clear: wq tile, wave w loads rows 64w..")
    a("s_or_b32 s36, s36, s39")
    a("s_movk_i32 s37, 8192")
    a("s_mov_b32 s35, 24")
    a("s_bitcmp0_b32 s2, 3")
    a("s_cbranch_scc1 L_job")
    a("s_andn2_b32 s35, 0x86, s2", "wg bit 3 set: gate (waves 0,1) / up (waves 2,3) tile; 16 workgroups have none")
    a("s_cbranch_scc0 L_srest")
    a("s_lshr_b32 s36, s2, 3")
    a("s_and_b32 s37, s36, 24")
    a("s_min_u32 s37, s37, 22")
    a("s_and_b32 s35, s2, 7")
    a("s_add_u32 s37, s37, s35", "column block")
    a("s_and_b32 s36, s36, 6")
    a("s_and_b32 s35, s42, 1")
    a("s_or_b32 s36, s36, s35", "64-row block")
    a("s_mulk_i32 s36, 1792")
    a("s_add_u32 s36, s36, s37")
    a("s_lshl_b32 s36, s36, 7")
    a("s_movk_i32 s37, 3584")
    a("s_lshr_b32 s35, s42, 1")
    a("s_lshl3_add_u32 s35, s35, 48")
    lab("L_job")
    a("s_load_dwordx2 s[40:41], s[0:1], s35", "wq, W_gate or W_up")
    a("v_lshrrev_b32 v2, 3, v0")
    a("v_and_b32 v3, 7, v0")
    a("v_mul_u32_u24 v2, s37, v2")
    a("v_lshl_add_u32 v2, v3, 4, v2")
    a("v_add_u32 v2, s36, v2")
    a("s_lshl_b32 m0, s42, 13")
    a("s_lshl_b32 s37, s37, 3")
    a("s_lshl_b32 s36, s3, 13")
    a("s_waitcnt lgkmcnt(0)")
    lab("L_wdma")
    a(f"global_load_lds_dwordx4 v2, s[40:41] {wflags}")
    a("s_addk_i32 m0, 1024")
    a("v_add_u32 v2, s37, v2")
    a("s_cmp_lg_u32 m0, s36")
    a("s_cbranch_scc1 L_wdma")
    a("s_branch L_srest")

    section("X1")
    cur[0].append(".p2align 8")
    lab("L_xwave")
    a("v_lshlrev_b32 v1, 5, v0")
    a("v_mov_b32 v6, 0")
    a("v_mov_b32 v7, 0")
    a("v_lshlrev_b32 v5, 3, v0")
    a(f"ds_write_b64 v5, v[6:7] offset:{L_Z}", "zero block + flags")
    a("s_waitcnt lgkmcnt(0)")
    a("global_load_dwordx4 v[8:11], v1, s[4:5]")
    a("global_load_dwordx4 v[12:15], v1, s[4:5] offset:16")
    a("s_load_dword s33, s[26:27], 0", "epoch")
    a("s_setprio 2")
    zero_stamps()
    decode()
    a("s_and_b32 s67, s39, 0x200300")
    a("s_and_b32 s36, s2, 8")
    a("s_or_b32 s67, s67, s36")
    a("s_cbranch_scc1 L_x2")
    a("s_bfe_u32 s36, s39, 0x3000a")
    a("s_bfe_u32 s37, s39, 0x10007")
    a("s_lshl3_add_u32 s36, s37, s36")
    a(f"s_mul_i32 s36, s36, {ctstride}")
    a(f"s_add_u32 s36, s36, {WS_CT}")
    a("v_lshl_add_u32 v5, v0, 2, s36")
    a("global_store_dword v5, v6, s[26:27] sc1")
    a("s_branch L_x2")

    section("W")
    align("w")
    lab("L_wwave")
    a("s_getpc_b64 s[68:69]", "touch every 128-B line of the code (results unused)")
    lab("L_wpc")
    a(f"s_sub_u32 s68, s68, L_wpc-{KN}")
    a("s_subb_u32 s69, s69, 0")
    a("v_lshlrev_b32 v7, 7, v0")
    a("v_add_u32 v8, L_codeend-" + KN + "-8192, v7")
    a("global_load_dword v9, v7, s[68:69]")
    a("global_load_dword v9, v8, s[68:69]")
    a("s_waitcnt lgkmcnt(0)")
    if tlb:
        note("touch the pages this workgroup uses later (one dword each, results unused)")
        a("s_and_b32 s34, s2, 127")
        a("s_mov_b64 exec, 1")
        a("s_lshl_b32 s36, s2, 19")
        a("v_mov_b32 v3, s36")
        a("global_load_dword v9, v3, s[6:7] nt")
        a("global_load_dword v9, v3, s[8:9] nt")
        a(f"s_mul_i32 s36, s34, {14*1024}")
        a("v_mov_b32 v3, s36")
        a("global_load_dword v9, v3, s[20:21] nt")
        a("s_lshl_b32 s36, s34, 15")
        a("v_mov_b32 v3, s36")
        a("global_load_dword v9, v3, s[12:13] nt")
        a("v_mov_b32 v3, 1024")
        a("global_load_dword v9, v3, s[26:27] nt")
        a("s_lshl_b32 s36, s2, 12")
        a(f"s_add_u32 s36, s36, {WS_P1}")
        a("v_mov_b32 v3, s36")
        a("global_load_dword v9, v3, s[26:27] nt")
        a(f"v_add_u32 v3, {WS_P2 - WS_P1}, v3")
        a("global_load_dword v9, v3, s[26:27] nt")
        a("v_xor_b32 v3, 0x80000, v3")
        a("global_load_dword v9, v3, s[26:27] nt")
        a("s_mov_b64 exec, -1")
    a("s_barrier", "barrier 0")
    srds()
    for r in [6, 14, VKO, VVO, VB] + list(range(VT, VT + 21)): a(f"v_mov_b32 v{r}, 0")
    a("s_mov_b64 exec, 0")
    for r in (42, 41, 33, 29, 76, 77): a(f"s_mov_b32 s{r}, 0")
    a("s_mov_b32 s54, 1")
    a("s_mov_b64 s[96:97], 0")
    a("s_mov_b64 s[98:99], 0")
    a("s_branch L_kpre")

    section("S")
    align("s")
    lab("L_srest")
    a("s_waitcnt lgkmcnt(0)")
    zero_stamps()
    if ts:
        a("v_mov_b32 v13, 0")
        a("s_mov_b32 s79, 1")
    stamp(9)
    decode()
    srds()
    scalar_part("s66", {"w": ("s42", 2), "r": ("s32", 4), "g": ("s38", 4)})
    a("v_lshrrev_b32 v2, 4, v0")
    a("v_and_b32 v3, 3, v0")
    a("v_bfe_u32 v4, v0, 2, 2")
    a("v_lshlrev_b32 v5, 8, v4")
    a("v_lshl_add_u32 v5, v2, 6, v5")
    a(f"v_lshl_add_u32 v{VKO}, v3, 4, v5", "K lane offset: key (lane>>2)&3, 16-B chunk 4(lane>>4) + (lane&3)")
    a("s_mov_b32 s52, s66")
    issue(preg(0), VKO, "s[44:47]", f"{NP}---")
    a(f"v_lshlrev_b32 v{VVO}, 4, v0", "V lane offset")
    a("v_mov_b32 v10, s66", "v10[n] = offset of this wave's tile n")
    lane_bits(10, 0, "n", 5)
    scalar_part("s55", {"w": ("s42", 2)}, base=False)
    a("s_lshl_b32 s36, s42, 2")
    a("v_mov_b32 v14, s36", "request slot")
    a("v_mov_b32 v6, 0xffff")
    a("v_mov_b32 v7, 0xffff0000")
    a("v_and_b32 v8, 1, v0")
    a("v_cmp_eq_u32 vcc, 1, v8")
    a("v_and_b32 v8, 2, v0")
    a("s_nop 0")
    a("v_cndmask_b32 v6, v6, v7, vcc")
    a("v_cmp_eq_u32 vcc, 2, v8")
    a(f"v_mov_b32 v{VM}, {f2u(-3.0e38):#x}")
    a(f"v_mov_b32 v{VL}, 0")
    a(f"v_cndmask_b32 v{VM1}, 0, v6, vcc", "P.V selector masks: bf16 slot lane&3 of the A fragment")
    a(f"v_xor_b32 v{VM0}, v{VM1}, v6")
    for i in range(8): a(f"v_mov_b32 v{VO+i}, 0")
    if mimic:
        a(f"s_mov_b32 s53, {f2u(math.log2(math.e)):#x}", "log2(e)")
        a(f"s_mov_b32 s43, {f2u(128.0 ** -0.5):#x}", "1/sqrt(128)")
        a("s_mov_b32 s67, 0xffff0000")
    else:
        a(f"s_mov_b32 s53, {f2u(math.log2(math.e) / math.sqrt(128.0)):#x}", "log2(e)/sqrt(128)")
    a("s_mov_b32 s54, 1000", "counts down; set to 0 for the last tile")
    a(f"s_mov_b32 s41, {RH + NE}", "next tile to issue")
    a(f"s_mov_b32 s76, {NA // RH - (3 if peel else 1)}")
    a(f"s_mov_b32 s77, {NA // RH - 1}")
    a("s_mov_b64 s[96:97], -1", "EXEC: all lanes")
    a("s_mov_b32 s98, 0x11111111", "EXEC: lane 0 of every quad")
    a("s_mov_b32 s99, 0x11111111")
    a(f"v_mov_b32 v{VB}, v{VKO}")
    a(f"s_mul_i32 s36, s42, {NA * 256}")
    a(f"v_lshl_add_u32 v{VSR}, v0, 2, s36")
    a(f"v_and_b32 v{VSW}, -16, v{VSR}")
    a("v_lshrrev_b32 v3, 4, v0", "g")
    a("v_and_b32 v4, 15, v0", "c")
    a("v_bfe_u32 v5, v0, 2, 2")
    a("s_lshl_b32 s35, s42, 11")
    a(f"v_lshl_add_u32 v{T_OW}, v0, 5, s35")
    a("s_lshl_b32 s36, s42, 3")
    a(f"v_lshl_add_u32 v{T_SW}, v5, 5, s36")
    a("s_lshl_b32 s35, s42, 9")
    a(f"v_lshl_add_u32 v{T_OR}, v0, 3, s35")
    a("s_lshl_b32 s36, s42, 5")
    a(f"v_mov_b32 v{T_SR}, s36")
    a("s_lshl_b32 s35, s2, 12")
    a("s_lshl_b32 s36, s42, 10")
    a("s_add_u32 s36, s35, s36")
    a(f"s_add_u32 s37, s36, {WS_P1}")
    a(f"v_lshl_add_u32 v{T_P1S}, v0, 4, s37", "P1 + wg*4096 + thread*16")
    a("s_lshl_b32 s36, s38, 16")
    a("s_lshl_b32 s37, s32, 8")
    a("s_add_u32 s36, s36, s37")
    a("s_lshl_b32 s37, s42, 6")
    a("s_add_u32 s36, s36, s37")
    a(f"s_add_u32 s36, s36, {WS_P1}")
    a(f"v_lshl_add_u32 v{T_P1L}, v4, 12, s36")
    a(f"v_lshl_add_u32 v{T_P1L}, v3, 4, v{T_P1L}", "P1 + (group*16 + c)*4096 + (16 split + 4w + g)*16")
    a("s_lshl_b32 s36, s42, 4")
    a(f"v_lshl_add_u32 v{T_OBW}, v3, 2, s36")
    a("s_lshl_b32 s36, s42, 6")
    a("s_lshl_b32 s37, s2, 3")
    a("s_add_u32 s36, s36, s37")
    a("v_lshl_add_u32 v1, v4, 2, v3")
    a("v_add_u32 v1, s36, v1")
    a("v_and_b32 v1, 255, v1")
    a(f"s_add_u32 s37, s35, {WS_P2}")
    a(f"v_lshl_add_u32 v{T_P2S}, v1, 4, s37", "P2 + wg*4096 + ((64w + 4c + g + 8wg) & 255)*16")
    a("s_lshl_b32 s36, s42, 8")
    a("v_lshl_add_u32 v1, v4, 4, s36")
    a("s_lshl_b32 s36, s34, 15")
    a("s_add_u32 s36, s36, 4096")
    a("v_lshl_add_u32 v2, v3, 13, s36")
    a(f"v_add_u32 v{T_WO}, v1, v2", "wo rows 32 idx + 8g + i, columns 128w + 8c..")
    a(f"s_mul_i32 s36, s34, {14*1024}")
    a("v_add_u32 v1, s36, v1")
    a("s_and_b32 s36, s34, 1")
    a("v_lshlrev_b32 v2, 1, v3")
    a("v_subrev_u32 v2, s36, v2")
    a("v_max_i32 v5, 0, v2")
    a(f"v_lshl_add_u32 v{T_D0}, v5, 11, v1", "W_down rows 14 idx + 2 clamp(2g + p - (idx&1), 0, 6) + i")
    a("v_add_u32 v2, 1, v2")
    a("v_min_i32 v5, 6, v2")
    a(f"v_lshl_add_u32 v{T_D1}, v5, 11, v1")
    a(f"v_lshlrev_b32 v{T_H}, 3, v3")
    a(f"v_lshlrev_b32 v{T_OBR}, 4, v3")
    a("v_and_b32 v2, 7, v0")
    a(f"v_lshlrev_b32 v{T_FR}, 4, v2")
    a("s_lshl_b32 s35, s42, 7")
    a(f"v_lshl_add_u32 v1, v3, 2, v{T_FR}")
    a(f"v_add_u32 v{T_FW}, s35, v1")
    a("s_lshr_b32 s35, s28, 2")
    a("s_and_b32 s36, s28, 3")
    a("s_lshl_b32 s36, s36, 3")
    a("s_lshr_b32 s37, s29, 2")
    a("s_add_u32 s36, s36, s37")
    a("v_lshrrev_b32 v3, 3, v0")
    a("s_lshl2_add_u32 s37, s35, s42")
    a("s_lshl_b32 s37, s37, 17")
    a(f"s_add_u32 s37, s37, {WS_P2}")
    a(f"v_add_u32 v5, s37, v{T_FR}")
    for k in range(4):
        a(f"v_add_u32 v1, {8*k}, v3")
        a("v_add_u32 v4, s36, v1")
        a("v_and_b32 v4, 31, v4")
        a("v_lshl_add_u32 v4, v4, 7, v5")
        a(f"v_lshl_add_u32 v{T_F0+k}, v1, 12, v4")
    a("s_lshl_b32 s37, s35, 10")
    a("s_lshl_b32 s36, s36, 5")
    a("s_add_u32 s37, s37, s36")
    a(f"v_lshl_add_u32 v{T_XO}, v2, 2, s37")
    a("s_mov_b32 s64, 0x05040100")
    a("s_mov_b32 s65, 0x07060302")
    a("s_mov_b32 s39, 0xffffff00")
    a("v_mov_b32 v6, 0")
    for p in range(RH + NE):
        if p:
            a(f"s_xor_b32 s52, s66, {nconst(p):#x}")
            issue(preg(p), VKO, "s[44:47]", (WL0 if WL0 and p == RH + NE - 1 else WP) if p >= pre_bar else "4---")
        if p == pre_bar - 1:
            a(f"s_waitcnt vmcnt({4 * pre_bar})")
            if probe is not None: stamp(11)
            a("s_barrier", "barrier 0: weight tile landed, LDS flags cleared")
            stamp(10)
        if p == pq:
            a("s_mov_b64 exec, 1", "q is needed soon: let the X wave gather it")
            a("v_mov_b32 v15, 1")
            a(f"ds_write_b32 v14, v15 offset:{L_GO}")
            a("s_mov_b64 exec, -1")
    stamp(1)
    a(f"s_mov_b32 s40, {spin * 8}")
    lab("L_qflag")
    a(f"ds_read_b64 v[2:3], v6 offset:{L_TAG}")
    a("s_waitcnt lgkmcnt(0)")
    a("v_cmp_eq_u32 vcc, 0, v3")
    a("s_cbranch_vccz L_qflag_done")
    a("s_sleep 1")
    a("s_sub_u32 s40, s40, 1")
    a("s_cbranch_scc0 L_qflag")
    lab("L_qflag_done")
    if sprio: a(f"s_setprio {sprio}")
    a(f"ds_read_b128 v[{VQ}:{VQ+3}], v{VKO} offset:{L_Q}")
    a("v_mov_b32 v17, v2", "tag")
    a("v_readfirstlane_b32 s33, v2")
    stamp(2)
    a("s_nop 1")
    tagregs()
    a("s_waitcnt lgkmcnt(0)")
    def claim(first=False):
        a("s_mov_b32 s35, 1" if first else f"s_sub_u32 s35, s41, {NS - 1}", "ask the X wave for step s41")
        a("s_mov_b64 exec, 1")
        a("v_mov_b32 v15, s35")
        a(f"ds_write_b32 v14, v15 offset:{L_REQ}")
        a("s_mov_b64 exec, -1")
    def qk(K):
        for u in range(4):
            a(f"v_mfma_f32_16x16x32_bf16 v[{VS+4*u}:{VS+4*u+3}], v[{K+4*u}:{K+4*u+3}], v[{VQ}:{VQ+3}], 0")
    def pv(V):
        for t in range(4):
            a(f"v_mfma_f32_16x16x16_bf16 v[{VO}:{VO+3}], v[{VA+2*t}:{VA+2*t+1}], v[{V+4*t}:{V+4*t+1}], v[{VO}:{VO+3}]")
            a(f"v_mfma_f32_16x16x16_bf16 v[{VO+4}:{VO+7}], v[{VA+2*t}:{VA+2*t+1}], v[{V+4*t+2}:{V+4*t+3}], v[{VO+4}:{VO+7}]")
    DPP = "row_mask:0xf bank_mask:0xf"
    def rowmax(dst):
        a("v_permlane16_swap_b32 v1, v2")
        a("s_nop 0")
        a("v_max_f32 v1, v1, v2")
        a("v_mov_b32 v2, v1")
        a("s_nop 1")
        a("v_permlane32_swap_b32 v1, v2")
        a("s_nop 0")
        a(f"v_max_f32 v{dst}, v1, v2")
    def scale1(dst, src):
        a(f"v_cvt_pk_bf16_f32 v{dst}, v{src}, v{src}")
        a(f"v_and_b32 v{dst}, s67, v{dst}")
        a(f"v_mul_f32 v{dst}, s43, v{dst}")
        a(f"v_cvt_pk_bf16_f32 v{dst}, v{dst}, v{dst}")
        a(f"v_and_b32 v{dst}, s67, v{dst}")
    def scale4():
        for rep in range(2):
            a("v_cvt_pk_bf16_f32 v5, v4, v5")
            a("v_cvt_pk_bf16_f32 v7, v6, v7")
            a("v_lshlrev_b32 v4, 16, v5")
            a("v_lshlrev_b32 v6, 16, v7")
            a("v_and_b32 v5, s67, v5")
            a("v_and_b32 v7, s67, v7")
            if rep == 0:
                for i in range(4): a(f"v_mul_f32 v{4+i}, s43, v{4+i}")
    def softmax(hook=lambda k: None):
        for u in range(4): a(f"v_mov_b32_dpp v{4+u}, v{VS+4*u} quad_perm:[0,0,0,0] {DPP}")
        for p in range(1, 4):
            for u in range(4): a(f"v_add_f32_dpp v{4+u}, v{VS+4*u+p}, v{4+u} quad_perm:[{p},{p},{p},{p}] {DPP}")
        hook(1)
        if mimic: scale4()
        a("v_max3_f32 v1, v4, v5, v6")
        a(f"v_max3_f32 v1, v1, v7, v{VM}")
        a("v_mov_b32 v2, v1")
        a("s_nop 1")
        rowmax(1)
        a(f"v_sub_f32 v2, v{VM}, v1")
        a("v_mul_f32 v3, s53, v1")
        a("v_mul_f32 v2, s53, v2")
        a(f"v_mov_b32 v{VM}, v1")
        a("v_exp_f32 v2, v2", "rescale factor")
        for i in range(4): a(f"v_fma_f32 v{4+i}, v{4+i}, s53, -v3")
        hook(2)
        for i in range(4): a(f"v_exp_f32 v{4+i}, v{4+i}")
        for g in range(4): a(f"v_mov_b32_dpp v8, v2 row_newbcast:{4*g} row_mask:{1<<g:#x} bank_mask:0xf")
        a(f"v_fma_f32 v{VL}, v{VL}, v2, v4")
        a("v_add_f32 v9, v5, v6")
        a(f"v_add_f32 v{VL}, v{VL}, v7")
        a(f"v_add_f32 v{VL}, v{VL}, v9")
        for i in range(4): a(f"v_cvt_pk_bf16_f32 v{4+i}, v{4+i}, v{4+i}")
        hook(3)
        for i in range(8): a(f"v_mul_f32 v{VO+i}, v{VO+i}, v8")
        for i in range(4):
            a(f"v_and_b32 v{VA+2*i}, v{4+i}, v{VM0}")
            a(f"v_and_b32 v{VA+2*i+1}, v{4+i}, v{VM1}")
    def scores(K, p, ring):
        qk(K)
        if ring:
            a("v_readlane_b32 s52, v10, s41")
            a("s_add_u32 s41, s41, 1")
            a("s_nop 2")
        else:
            a("s_nop 4")
        for u in range(4): a(f"v_add_f32_dpp v{4+u}, v{VS+4*u+1}, v{VS+4*u} quad_perm:[1,1,1,1] {DPP}")
        for q_ in (2, 3):
            for u in range(4): a(f"v_add_f32_dpp v{4+u}, v{VS+4*u+q_}, v{4+u} quad_perm:[{q_},{q_},{q_},{q_}] {DPP}")
        a("s_mov_b64 exec, s[98:99]")
        a(f"v_max3_f32 v{VM}, v4, v5, v{VM}")
        a(f"ds_write_b128 v{VSW}, v[4:7] offset:{L_SC + p*256}")
        a(f"v_max3_f32 v{VM}, v6, v7, v{VM}")
        a("s_mov_b64 exec, s[96:97]")
    lab("L_kpre")
    if peel:
        assert NE == RH and NA >= 3 * RH
        for p in range(RH):
            K = VR + PERM[p] * 16
            scores(K, RH + p, True)
            guarded(lambda: issue(K, VKO, "s[44:47]", WS, ks=(0, 1)))
            scores(preg(p), p, False)
            guarded(lambda: issue(K, VKO, "s[44:47]", WS, ks=(2, 3)))
        a(f"v_add_u32 v{VSW}, {2*RH*256}, v{VSW}")
    else:
        assert NE < RH
        for p in range(NE): scores(preg(p), p, False)
        if NE: a(f"s_cbranch_execnz L_kp{NE}", "their ring slots already hold later tiles")
    align("k")
    lab("L_kloop")
    a("s_cmp_lg_u32 s76, 0")
    a("s_cbranch_scc1 L_kp0")
    a("s_mov_b64 s[72:73], s[8:9]", "last trip: refill with V tiles 0..")
    a(f"v_mov_b32 v{VB}, v{VVO}")
    a("s_mov_b32 s41, 0")
    for p in range(RH):
        K = VR + PERM[p] * 16
        lab(f"L_kp{p}")
        scores(K, p, True)
        guarded(lambda: issue(K, VB, "s[72:75]", WS))
    a(f"v_add_u32 v{VSW}, {RH*256}, v{VSW}")
    a("s_sub_u32 s76, s76, 1")
    a("s_cbranch_scc0 L_kloop")
    a(f"ds_read_b32 v9, v{VSR} offset:{L_SC}")
    a(f"v_mov_b32_dpp v1, v{VM} quad_perm:[0,0,0,0] {DPP}")
    a(f"v_mov_b32_dpp v2, v{VM} quad_perm:[0,0,0,0] {DPP}")
    a("s_mov_b32 s78, 1")
    a("s_nop 0")
    rowmax(VM)
    if mimic: scale1(VM, VM)
    a(f"v_mul_f32 v3, s53, v{VM}")
    WL = [f"global_load_dwordx4 v[{RD+4*i}:{RD+4*i+3}], v{T_D0 + i//2}, s[20:21] offset:{(i&1)*1024} {woflags}" for i in range(4)]
    WL += [f"global_load_dwordx4 v[{RW+4*i}:{RW+4*i+3}], v{T_WO}, s[12:13] offset:{i*1024-4096} {woflags}" for i in range(8)]
    assert nV in (0, 4, 8, 12) and nA >= nV and not (nV and r0)
    vsn = []
    align("v")
    lab("L_vloop")
    a("s_cmp_lg_u32 s77, 0")
    a("s_cbranch_scc1 L_v0")
    a("s_mov_b64 s[72:73], s[6:7]", f"last trip: refill only slots 0, 1 with K, V of tile {NA}")
    a(f"v_mov_b32 v{VB}, v{VKO}")
    a("s_mov_b32 s78, 0")
    lab("L_v0")
    for p in range(RH):
        sl = PERM[p]
        V = VR + sl * 16
        a("v_readlane_b32 s52, v10, s41")
        a("s_waitcnt lgkmcnt(0)")
        if mimic:
            scale1(4, 9)
            a("v_fma_f32 v4, v4, s53, -v3")
        else:
            a("v_fma_f32 v4, v9, s53, -v3")
        a(f"ds_read_b32 v9, v{VSR} offset:{L_SC + (p+1)*256}")
        a("v_exp_f32 v4, v4")
        a("s_add_u32 s41, s41, 1" if sl == 1 else "s_add_u32 s41, s41, s78")
        a("v_cvt_pk_bf16_f32 v5, v4, v4")
        a(f"v_add_f32 v{VL}, v{VL}, v4")
        a("s_nop 0")
        for t in range(4):
            a(f"v_and_b32_dpp v{VA+2*t}, v5, v{VM0} quad_perm:[{t},{t},{t},{t}] {DPP}")
            a(f"v_and_b32_dpp v{VA+2*t+1}, v5, v{VM1} quad_perm:[{t},{t},{t},{t}] {DPP}")
        if p == RH - 1:
            a("s_cmp_lg_u32 s77, 0", "last trip: only the K refill is younger than this slot's loads")
            a("s_cbranch_scc1 L_vw")
            a(f"s_waitcnt vmcnt({4 + nV})")
            lab("L_vw")
        pv(V)
        if sl >= 2:
            a("s_cmp_eq_u32 s77, 0")
            k4 = sl - 4
            if 0 <= k4 < nV // 4:
                a(f"s_cbranch_scc1 L_vx{p}")
                vsn.append((p, WL[4*k4:4*k4+4]))
            else:
                a(f"s_cbranch_scc1 L_vs{p}")
            issue(V, VVO, "s[48:51]", WS)
            lab(f"L_vs{p}")
        elif sl == 0:
            if rq == 4: guarded(lambda: issue(V, VB, "s[72:75]", WS))
            if NS == NA + 1:
                a("s_cmp_lg_u32 s77, 0")
                a("s_cbranch_scc1 L_vnc")
                guarded(lambda: claim(first=True))
                lab("L_vnc")
            if rq < 4: guarded(lambda: issue(V, VB, "s[72:75]", WS))
        else:
            guarded(lambda: issue(V, VVO, "s[48:51]", WS))
    a(f"v_add_u32 v{VSR}, {RH*256}, v{VSR}")
    a("s_sub_u32 s77, s77, 1")
    a("s_cbranch_scc0 L_vloop")
    a(f"v_add_f32_dpp v{VL}, v{VL}, v{VL} quad_perm:[1,0,3,2] {DPP}")
    a("s_waitcnt lgkmcnt(0)")
    a("s_nop 0")
    a(f"v_add_f32_dpp v{VL}, v{VL}, v{VL} quad_perm:[2,3,0,1] {DPP}")
    a("s_cbranch_execnz L_loop")
    a("s_mov_b32 s41, 63")
    align("m")
    lab("L_loop")
    assert int(WM[0]) <= 4
    for slot in range(2):
        oth = 1 - slot
        a("v_readlane_b32 s52, v10, s41")
        a(f"s_cmp_ge_u32 s41, {NS}")
        a(f"s_cbranch_scc1 L_tk{slot}")
        a("s_nop 1")
        lab(f"L_gk{slot}")
        issue(VR + oth * 32, VKO, "s[44:47]", WM, ks=(0,) if mi else range(rq))
        a("s_add_u32 s41, s41, 1")
        a(f"s_cmp_lt_u32 s41, {NS}")
        a(f"s_cbranch_scc1 L_nc{slot}")
        claim()
        lab(f"L_nc{slot}")
        if not mi: issue(VR + oth * 32, VKO, "s[44:47]", WM, ks=range(rq, 4))
        lab(f"L_rk{slot}")
        qk(VR + slot * 32)
        a("s_nop 4")
        def hook(k):
            a("s_cmp_lt_u32 s54, 2")
            a(f"s_cbranch_scc1 L_mk{slot}{k}")
            issue(VR + oth * 32, VKO, "s[44:47]", WM, ks=(k,))
            lab(f"L_mk{slot}{k}")
        softmax(hook) if mi else softmax()
        a("s_cmp_lt_u32 s54, 2")
        a(f"s_cbranch_scc1 L_dv{slot}")
        issue(VR + oth * 32 + 16, VVO, "s[48:51]", WM, down=True, ks=(0,) if mi else range(4))
        lab(f"L_rv{slot}")
        pv(VR + slot * 32 + 16)
        a("s_sub_u32 s54, s54, 1")
        a("s_cbranch_scc1 L_done")
        if mi: guarded(lambda: issue(VR + oth * 32 + 16, VVO, "s[48:51]", WM, down=True, ks=(1, 2, 3)))
    a("s_branch L_loop")
    for p, ls in vsn:
        lab(f"L_vx{p}")
        a(f"s_cbranch_execz L_vs{p}")
        for k, x in enumerate(ls):
            if WS[k] != "-": a(f"s_waitcnt vmcnt({WS[k]})")
            a(x)
        a(f"s_branch L_vs{p}")
    for slot in range(2):
        lab(f"L_tk{slot}")
        a(f"s_cbranch_execz L_rk{slot}")
        a("s_lshl_b32 s35, s41, 2")
        a(f"s_add_u32 s35, s35, {L_TK - 4 * NS}")
        a("v_mov_b32 v15, s35")
        a(f"s_mov_b32 s40, {spin * 8}")
        lab(f"L_tp{slot}")
        a("ds_read_b32 v16, v15", "-1: not served yet, -2: pool empty")
        a("s_sub_u32 s40, s40, 1")
        a(f"s_cbranch_scc1 L_tf{slot}")
        a("s_waitcnt lgkmcnt(0)")
        a("v_readfirstlane_b32 s35, v16")
        a("s_nop 1")
        a("s_cmp_eq_u32 s35, -1")
        a(f"s_cbranch_scc1 L_tp{slot}")
        a("s_xor_b32 s52, s35, s55")
        a("s_cmp_lt_u32 s35, -3")
        a(f"s_cbranch_scc1 L_gk{slot}")
        if r0: a("s_and_b32 s78, s35, 1", "early finisher")
        lab(f"L_tf{slot}")
        a("s_mov_b32 s54, 0")
        a("s_waitcnt vmcnt(4)")
        a(f"s_branch L_rk{slot}")
        lab(f"L_dv{slot}")
        if r0 and nA:
            a("s_cmp_lg_u32 s78, 0")
            a(f"s_cbranch_scc1 L_de{slot}")
        if nA > nV: guard(WL[nV:nA])
        if r0 and nA: lab(f"L_de{slot}")
        a(f"v_mov_b32 v2, v{VL}")
        a(f"v_mul_f32 v10, s53, v{VM}")
        a("s_nop 0")
        a(f"v_permlane16_swap_b32 v{VL}, v2")
        a("s_nop 0")
        a(f"v_add_f32 v11, v{VL}, v2")
        a("v_mov_b32 v2, v11")
        a("s_nop 1")
        a("v_permlane32_swap_b32 v11, v2")
        a("s_nop 0")
        a("v_add_f32 v11, v11, v2")
        a(f"ds_write_b64 v{T_SW}, v[10:11] offset:{L_ST}")
        a(f"s_waitcnt vmcnt({nA - nV})")
        if r0 and nA:
            a(f"s_cbranch_scc0 L_rv{slot}")
            a("s_waitcnt vmcnt(0)")
        a(f"s_branch L_rv{slot}")
    align("d")
    lab("L_done")
    stamp(3)
    if tt:
        a("s_mov_b32 s94, s41")
        a(f"v_mov_b32 v{VR}, v13")
    poll1 = f"global_load_dwordx4 v[8:11], v{T_P1L}, s[26:27] sc1"
    if gap1 == "prio": a("s_setprio 3")
    a("s_nop 4")
    a(f"ds_write_b128 v{T_OW}, v[{VO}:{VO+3}] offset:{L_O}")
    a(f"ds_write_b128 v{T_OW}, v[{VO+4}:{VO+7}] offset:{L_O+16}")
    a("s_waitcnt lgkmcnt(0)")
    guard(["s_barrier"])
    a(f"ds_read_b128 v[8:11], v{T_SR} offset:{L_ST}")
    a(f"ds_read_b128 v[12:15], v{T_SR} offset:{L_ST+16}")
    for w in range(4): a(f"ds_read_b64 v[{24+2*w}:{25+2*w}], v{T_OR} offset:{L_O + w*2048}")
    a("v_mov_b32 v39, v17")
    a("s_waitcnt lgkmcnt(4)")
    a("v_max3_f32 v2, v8, v10, v12")
    a("v_max_f32 v2, v2, v14")
    for w in range(4): a(f"v_sub_f32 v{8+2*w}, v{8+2*w}, v2")
    for w in range(4): a(f"v_exp_f32 v{8+2*w}, v{8+2*w}")
    a("v_mul_f32 v16, v8, v9")
    a("v_fmac_f32 v16, v10, v11")
    a("v_fmac_f32 v16, v12, v13")
    a("v_fmac_f32 v16, v14, v15")
    a("s_waitcnt lgkmcnt(0)")
    a("v_rcp_f32 v5, v16")
    a("v_log_f32 v16, v16")
    a("v_mul_f32 v36, v8, v24")
    a("v_mul_f32 v37, v8, v25")
    for w in range(1, 4):
        a(f"v_fmac_f32 v36, v{8+2*w}, v{24+2*w}")
        a(f"v_fmac_f32 v37, v{8+2*w}, v{25+2*w}")
    a("v_add_f32 v38, v2, v16", "log2 of the partial sum")
    a("v_mul_f32 v36, v36, v5")
    a("v_mul_f32 v37, v37, v5")
    assert not pollfirst
    def gap(kind):
        if kind == "bar": a("s_barrier", "all four stores go out before any wave's loads")
        if kind == "prio": a("s_setprio 0")
    if not r0:
        def f():
            a(f"global_store_dwordx4 v{T_P1S}, v[36:39], s[26:27] sc1")
            stamp(4)
            gap(gap1)
            for x in WL[nA:] + [poll1]: a(x)
        guarded(f)
    else:
        def f():
            a(f"global_store_dwordx4 v{T_P1S}, v[36:39], s[26:27] sc1")
            stamp(4)
            a("s_cmp_eq_u32 s78, 0")
            a("s_cbranch_scc1 L_wlate")
            a(f"s_mov_b32 s40, {spin}")
            lab("L_pre")
            a(poll1)
            a("s_waitcnt vmcnt(0)")
            a("v_cmp_eq_u32 vcc, s33, v11")
            a("s_sub_u32 s40, s40, 1")
            a("s_cbranch_scc1 L_pre_done")
            a("s_bcnt1_i32_b64 s35, vcc")
            a(f"s_cmp_lt_u32 s35, {4 * cnt}")
            a("s_cbranch_scc1 L_pre")
            lab("L_pre_done")
            for x in WL[:nA]: a(x)
            lab("L_wlate")
            for x in WL[nA:] + [poll1]: a(x)
        guarded(f)
    a(f"ds_read_b32 v{T_X}, v{T_XO} offset:{L_XR}")
    a(f"ds_read_b64 v[24:25], v{T_H} offset:{L_H}")
    def younger(k): return (11 - k) + (1 if k < nA and not r0 else 0) + 1
    def pairup(raw, dst, p):
        for d in range(4):
            a(f"v_perm_b32 v{dst+8*p+2*d}, v{raw+8*p+4+d}, v{raw+8*p+d}, s64")
            a(f"v_perm_b32 v{dst+8*p+2*d+1}, v{raw+8*p+4+d}, v{raw+8*p+d}, s65")
    def dots(pairs, vec, npairs):
        for p in range(npairs):
            for c in range(8):
                a(f"v_dot2_f32_bf16 v{VS+c}, v{pairs+8*p+c}, v{vec+p}, {'0' if p == 0 else 'v%d' % (VS+c)}")
    def fold(dst):
        for k in range(4): a(f"v_permlane32_swap_b32 v{VS+k}, v{VS+4+k}")
        for k in range(4): a(f"v_add_f32 v{VS+k}, v{VS+k}, v{VS+4+k}")
        a("s_nop 0")
        for k in range(2): a(f"v_permlane16_swap_b32 v{VS+k}, v{VS+2+k}")
        for k in range(2): a(f"v_add_f32 v{dst+k}, v{VS+k}, v{VS+2+k}")
    a(f"s_waitcnt vmcnt({younger(3)})")
    for p in range(2): pairup(RD, PD, p)
    a("s_waitcnt lgkmcnt(0)")
    dots(PD, 24, 2)
    fold(42)
    a("v_perm_b32 v42, v42, v17, s62")
    a("v_perm_b32 v43, v43, v17, s63")
    nearly = (nA - 4) // 2 if pollfirst else 4
    for p in range(nearly):
        a(f"s_waitcnt vmcnt({younger(4 + 2*p + 1)})")
        pairup(RW, PW, p)
    a(f"s_mov_b32 s40, {spin}")
    if probe is None: stamp(11)
    a(f"s_waitcnt vmcnt({12 - nA if pollfirst else 0})")
    a("s_branch L_p1chk")
    align("p")
    lab("L_p1poll")
    a(poll1)
    a("s_waitcnt vmcnt(0)")
    lab("L_p1chk")
    a("v_cmp_ne_u32 vcc, s33, v11")
    pollend("L_p1poll")
    stamp(5)
    if tt: a(f"s_sub_u32 s92, {spin + 1}, s40")
    a(f"v_max_f32_dpp v2, v10, v10 row_ror:8 {DPP}")
    a("s_nop 1")
    for r in (4, 2, 1):
        a(f"v_max_f32_dpp v2, v2, v2 row_ror:{r} {DPP}")
        if r > 1: a("s_nop 1")
    a("v_sub_f32 v10, v10, v2")
    a("v_exp_f32 v10, v10")
    a("s_nop 0")
    a("v_mul_f32 v8, v8, v10")
    a("v_mul_f32 v9, v9, v10")
    for r in (8, 4, 2, 1):
        for v in (10, 8, 9): a(f"v_add_f32_dpp v{v}, v{v}, v{v} row_ror:{r} {DPP}")
    a("v_rcp_f32 v10, v10")
    a("s_nop 0")
    a("v_mul_f32 v8, v8, v10")
    a("v_mul_f32 v9, v9, v10")
    a("v_cvt_pk_bf16_f32 v8, v8, v9")
    a(f"ds_write_b32 v{T_OBW}, v8 offset:{L_OB}")
    a("s_waitcnt lgkmcnt(0)")
    guard(["s_barrier"])
    if gap2 == "prio": a("s_setprio 3")
    a(f"ds_read_b128 v[24:27], v{T_OBR} offset:{L_OB}")
    for p in range(nearly, 4):
        a(f"s_waitcnt vmcnt({6 - 2*p})")
        pairup(RW, PW, p)
    a("s_waitcnt lgkmcnt(0)")
    dots(PW, 24, 4)
    fold(40)
    a("v_perm_b32 v40, v40, v17, s60")
    a("v_perm_b32 v41, v41, v17, s61")
    guard([f"global_store_dwordx4 v{T_P2S}, v[40:43], s[26:27] sc1"])
    stamp(6)
    a("s_and_b32 s35, s29, 3")
    a("s_cbranch_scc1 L_end" if lite else "s_cbranch_scc1 L_sexit")
    a(f"s_mov_b32 s40, {spin}")
    if gap2: guarded(lambda: gap(gap2))
    align("q")
    lab("L_p2poll")
    guard([f"global_load_dwordx4 v[{VP2+4*i}:{VP2+4*i+3}], v{T_F0+i}, s[26:27] sc1" for i in range(4)])
    a("s_waitcnt vmcnt(0)")
    check([VP2 + 4 * i for i in range(4)], 2)
    pollend("L_p2poll")
    stamp(7)
    if tt: a(f"s_sub_u32 s93, {spin + 1}, s40")
    for i in range(16): a(f"v_and_b32 v{24+i}, s39, v{VP2+i}")
    for i in (0, 2):
        a(f"v_pk_add_f32 v[{24+i}:{25+i}], v[{24+i}:{25+i}], v[{28+i}:{29+i}]")
        a(f"v_pk_add_f32 v[{32+i}:{33+i}], v[{32+i}:{33+i}], v[{36+i}:{37+i}]")
    for i in (0, 2): a(f"v_pk_add_f32 v[{8+i}:{9+i}], v[{24+i}:{25+i}], v[{32+i}:{33+i}]")
    a("s_nop 1")
    a("v_permlane32_swap_b32 v8, v10", "afterwards row r of the wave holds dword r of granule lane&7")
    a("v_permlane32_swap_b32 v9, v11")
    a("s_nop 0")
    a("v_add_f32 v8, v8, v10")
    a("v_add_f32 v9, v9, v11")
    a("s_nop 1")
    a("v_permlane16_swap_b32 v8, v9")
    a("s_nop 0")
    a("v_add_f32 v8, v8, v9")
    a("s_nop 1")
    a(f"v_add_f32_dpp v8, v8, v8 row_ror:8 {DPP}")
    a(f"ds_write_b32 v{T_FW}, v8 offset:{L_O}")
    a("s_waitcnt lgkmcnt(0)")
    guard(["s_barrier"])
    a("s_cmp_lg_u32 s42, 0")
    a("s_cbranch_scc1 L_epoch" if ep1 else "s_cbranch_scc1 L_end" if lite else "s_cbranch_scc1 L_sexit")
    for w in range(4): a(f"ds_read_b128 v[{24+4*w}:{27+4*w}], v{T_FR} offset:{L_O + 128*w}")
    a(f"v_lshlrev_b32 v14, 16, v{T_X}")
    a(f"v_and_b32 v15, 0xffff0000, v{T_X}")
    a("s_waitcnt lgkmcnt(2)")
    for i in (2, 0): a(f"v_pk_add_f32 v[{24+i}:{25+i}], v[{24+i}:{25+i}], v[{28+i}:{29+i}]")
    a("s_waitcnt lgkmcnt(0)")
    for i in (2, 0): a(f"v_pk_add_f32 v[{32+i}:{33+i}], v[{32+i}:{33+i}], v[{36+i}:{37+i}]")
    for i in (2, 0): a(f"v_pk_add_f32 v[{8+i}:{9+i}], v[{24+i}:{25+i}], v[{32+i}:{33+i}]")
    a("v_cvt_pk_bf16_f32 v10, v10, v11", "FFN output")
    a("v_cvt_pk_bf16_f32 v8, v8, v9", "attention output")
    a("v_and_b32 v11, 0xffff0000, v10")
    a("v_lshlrev_b32 v10, 16, v10")
    a(f"v_mul_f32 v13, {f2u(-math.log2(math.e)):#x}, v11")
    a(f"v_mul_f32 v12, {f2u(-math.log2(math.e)):#x}, v10")
    a("v_exp_f32 v13, v13")
    a("v_exp_f32 v12, v12")
    a("v_and_b32 v9, 0xffff0000, v8")
    a("v_add_f32 v13, 1.0, v13")
    a("v_add_f32 v12, 1.0, v12")
    a("v_rcp_f32 v13, v13")
    a("v_rcp_f32 v12, v12")
    a("v_lshlrev_b32 v8, 16, v8")
    a("v_mul_f32 v11, v11, v13")
    a("v_mul_f32 v10, v10, v12")
    a("v_cvt_pk_bf16_f32 v10, v10, v11", "silu")
    a("v_and_b32 v11, 0xffff0000, v10")
    a("v_lshlrev_b32 v10, 16, v10")
    a("v_mul_f32 v9, v9, v11")
    a("v_mul_f32 v8, v8, v10")
    a("v_cvt_pk_bf16_f32 v8, v8, v9")
    a("v_and_b32 v9, 0xffff0000, v8")
    a("v_lshlrev_b32 v8, 16, v8")
    a("v_add_f32 v9, v9, v15")
    a("v_add_f32 v8, v8, v14")
    a("v_cvt_pk_bf16_f32 v8, v8, v9")
    a("s_cbranch_execz L_end")
    a("s_mov_b64 exec, 0xff")
    if endexp is not None:
        if endexp == "before": a(f"global_store_dword v{T_XO}, v8, s[22:23] {outflags}")
        a("s_add_u32 s72, s80, 10000")
        lab("L_hold")
        a("s_memrealtime s[70:71]")
        a("s_waitcnt lgkmcnt(0)")
        a("s_sub_u32 s73, s70, s72")
        a("s_cmp_lt_i32 s73, 0")
        a("s_cbranch_scc1 L_hold")
    if endexp != "before": a(f"global_store_dword v{T_XO}, v8, s[22:23] {outflags}")
    if ep1:
        a("s_branch L_sexit" if ts else "s_endpgm")
        lab("L_epoch")
    if ep1: a("s_lshl2_add_u32 s35, s2, s42")
    a("s_cmp_lg_u32 s35, 17" if ep1 else "s_cmp_lg_u32 s2, 4")
    a("s_cbranch_scc1 L_end" if (ep1 and lite) else "s_cbranch_scc1 L_sexit")
    a("s_mov_b64 exec, 1")
    a("v_mov_b32 v6, 0")
    a(f"global_store_dword v6, v17, s[26:27] {outflags}")
    if ep1 and lite: a("s_endpgm")
    lab("L_sexit")
    stamp(8)
    if tt:
        a("s_mov_b64 exec, -1")
        a("s_lshl_b32 s70, s2, 2")
        a("s_add_u32 s70, s70, s42")
        a("s_lshl_b32 s70, s70, 8")
        a(f"s_add_u32 s70, s70, {WS_TT}")
        a("v_lshl_add_u32 v1, v0, 2, s70")
        a(f"global_store_dword v1, v{VR}, s[26:27]")
    dump_stamps("S")
    lab("L_end")
    a("s_endpgm")

    section("X2")
    align("x")
    lab("L_x2")
    a("v_lshrrev_b32 v46, 4, v0", "g")
    a("v_bfe_u32 v7, v0, 2, 2")
    a("v_and_b32 v5, 3, v0")
    a("v_lshlrev_b32 v44, 10, v46")
    a("v_lshl_add_u32 v44, v7, 7, v44")
    a("v_lshl_add_u32 v44, v5, 3, v44", "weight fragment address (transposing reads)")
    a("v_and_b32 v45, 1, v0", "batch row of this column of D")
    a("v_lshlrev_b32 v4, 10, v45")
    a("v_lshl_add_u32 v4, v46, 4, v4")
    a("v_bfe_u32 v47, v0, 1, 3", "which 16-column block lands in this column of D")
    a("v_bfe_u32 v2, v0, 1, 2")
    a("v_lshlrev_b32 v2, 6, v2")
    a("v_lshl_add_u32 v2, v46, 4, v2")
    a("s_bitcmp1_b32 s2, 3")
    a("s_cbranch_scc1 L_fsetup")
    a("s_lshr_b32 s35, s39, 21")
    a("s_lshl_b32 s43, s35, 9")
    a("s_add_u32 s52, s43, 256")
    a("s_mov_b32 s53, 0")
    a("s_bfe_u32 s36, s39, 0x3000a")
    a("s_lshl_b32 s36, s36, 13")
    a("s_lshl_b32 s37, s35, 11")
    a("s_add_u32 s36, s36, s37")
    a("s_bfe_u32 s37, s39, 0x30007")
    a("s_lshl_b32 s37, s37, 8")
    a("s_add_u32 s36, s36, s37")
    a(f"s_add_u32 s36, s36, {WS_QP}")
    a("v_lshl_add_u32 v3, v45, 12, s36")
    a("s_mov_b32 s54, 0x00ff00ff")
    a("s_branch L_jobset")
    lab("L_fsetup")
    a("s_and_b32 s35, s38, 3")
    a("s_lshl_b32 s43, s35, 8")
    a("s_mov_b32 s52, s43")
    a("s_mov_b32 s53, 4")
    a("s_and_b32 s37, s29, 24")
    a("s_min_u32 s37, s37, 22")
    a("s_add_u32 s37, s37, s28")
    a("s_lshl_b32 s37, s37, 8")
    a("s_mul_i32 s36, s35, 7168")
    a("s_add_u32 s36, s36, s37")
    a(f"s_add_u32 s36, s36, {WS_FP}")
    a("v_bfe_u32 v3, v0, 3, 1")
    a("v_lshl_add_u32 v3, v45, 1, v3")
    a(f"v_mul_u32_u24 v3, {4*7168}, v3")
    a("v_add_u32 v3, s36, v3")
    a("s_mov_b32 s54, -1")
    lab("L_jobset")
    a("v_add_u32 v35, v2, v3", "publish address")
    a("s_mov_b32 s55, s54")
    a(f"v_mov_b32 v34, {L_Z - L_XN}")
    for hh in range(2):
        a(f"v_add_u32 v5, s{43 if hh == 0 else 52}, v4")
        if hh: a("v_subrev_u32 v47, s53, v47")
        for k in range(4): a(f"v_cmp_eq_u32 s[{44+2*k}:{45+2*k}], {k}, v47")
        a("s_nop 0")
        for k in range(4): a(f"v_cndmask_b32 v{36+4*hh+k}, v34, v5, s[{44+2*k}:{45+2*k}]", "xn fragment address, or the zero block" if k == 0 else None)
    if tt: a("s_memrealtime s[72:73]")
    if not lnfirst: a("s_barrier", "barrier 0")
    a("s_waitcnt vmcnt(1)")
    a("s_cmp_eq_u32 s67, 0", "these still have the counter store in flight")
    a("s_cbranch_scc1 L_xok")
    a("s_waitcnt vmcnt(0)")
    lab("L_xok")
    stamp(1)
    if tt: a("s_mov_b32 s89, s72")
    a(f"ds_write_b128 v1, v[8:11] offset:{L_XR}", "raw x for the residual")
    a(f"ds_write_b128 v1, v[12:15] offset:{L_XR+16}")
    for i in range(8):
        a(f"v_lshlrev_b32 v{16+2*i}, 16, v{8+i}")
        a(f"v_and_b32 v{17+2*i}, 0xffff0000, v{8+i}")
    def red32(v, t):
        a("s_nop 1")
        for r in (8, 4, 2, 1):
            a(f"v_add_f32_dpp {v}, {v}, {v} row_ror:{r} {DPP}")
            a("s_nop 1")
        a(f"v_mov_b32 {t}, {v}")
        a("s_nop 1")
        a(f"v_permlane16_swap_b32 {v}, {t}")
        a("s_nop 0")
        a(f"v_add_f32 {v}, {v}, {t}")
    a("v_add_f32 v6, v16, v17")
    for i in range(2, 16): a(f"v_add_f32 v6, v6, v{16+i}")
    red32("v6", "v7")
    a(f"v_mul_f32 v6, {f2u(1.0/512):#x}, v6", "mean")
    a("v_sub_f32 v32, v16, v6")
    a("v_mul_f32 v33, v32, v32")
    for i in range(1, 16):
        a(f"v_sub_f32 v32, v{16+i}, v6")
        a("v_fmac_f32 v33, v32, v32")
    red32("v33", "v7")
    a(f"v_mul_f32 v33, {f2u(1.0/512):#x}, v33", "variance")
    a("v_cvt_pk_bf16_f32 v6, v6, v33")
    a("v_and_b32 v33, 0xffff0000, v6")
    a("v_lshlrev_b32 v6, 16, v6")
    a(f"v_add_f32 v33, {f2u(1e-5):#x}, v33")
    a("v_cvt_pk_bf16_f32 v33, v33, v33")
    a("v_lshlrev_b32 v33, 16, v33")
    a("v_sqrt_f32 v33, v33")
    a("s_nop 0")
    a("v_cvt_pk_bf16_f32 v33, v33, v33")
    a("v_lshlrev_b32 v33, 16, v33")
    a("v_rcp_f32 v33, v33")
    for i in range(8):
        a(f"v_sub_f32 v{16+2*i}, v{16+2*i}, v6")
        a(f"v_sub_f32 v{17+2*i}, v{17+2*i}, v6")
        a(f"v_cvt_pk_bf16_f32 v{8+i}, v{16+2*i}, v{17+2*i}")
        a(f"v_lshlrev_b32 v{16+2*i}, 16, v{8+i}")
        a(f"v_and_b32 v{17+2*i}, 0xffff0000, v{8+i}")
        a(f"v_mul_f32 v{16+2*i}, v{16+2*i}, v33")
        a(f"v_mul_f32 v{17+2*i}, v{17+2*i}, v33")
        a(f"v_cvt_pk_bf16_f32 v{8+i}, v{16+2*i}, v{17+2*i}")
    a(f"ds_write_b128 v1, v[8:11] offset:{L_XN}")
    a(f"ds_write_b128 v1, v[12:15] offset:{L_XN+16}")
    a("s_waitcnt lgkmcnt(0)")
    a(f"s_add_u32 s33, s33, {PHI:#x}", "tag")
    tagregs()
    a("v_mov_b32 v32, s33")
    a("v_mov_b32 v33, 1")
    if lnfirst: a("s_barrier", "barrier 0")
    stamp(2)
    a("s_andn2_b32 s35, 0x8e, s2")
    a("s_cbranch_scc0 L_nojob")
    steps = [(ks, blk) for ks in range(8) for blk in range(4)]
    def rd(n):
        ks, blk = steps[n]
        o = (n % 4) * 8
        a(f"ds_read_b128 v[{48+o}:{51+o}], v{36 + 4*(ks>>2) + blk} offset:{L_XN + (ks&3)*64}")
        a(f"ds_read_b64_tr_b16 v[{52+o}:{53+o}], v44 offset:{L_W + ks*4096 + blk*32}")
        a(f"ds_read_b64_tr_b16 v[{54+o}:{55+o}], v44 offset:{L_W + ks*4096 + blk*32 + 512}")
    for n in range(3): rd(n)
    for n in range(32):
        if n + 3 < 32: rd(n + 3)
        a(f"s_waitcnt lgkmcnt({3 * min(3, 31 - n)})")
        o = (n % 4) * 8
        a(f"v_mfma_f32_16x16x32_bf16 v[8:11], v[{52+o}:{55+o}], v[{48+o}:{51+o}], {'0' if n == 0 else 'v[8:11]'}")
    a("s_nop 7")
    if rnd:
        for i in range(4): a(f"v_add_u32 v{8+i}, 0x80, v{8+i}", "round to the 24 bits a granule keeps" if i == 0 else None)
    for i in range(4): a(f"v_perm_b32 v{8+i}, v{8+i}, v32, s{60+i}")
    a("s_mov_b64 exec, s[54:55]")
    a("s_waitcnt vmcnt(0)")
    if "st" not in skip: a("global_store_dwordx4 v35, v[8:11], s[26:27] sc1")
    a("s_mov_b64 exec, -1")
    lab("L_nojob")
    stamp(3)
    scalar_part("s55", {"g": ("s38", 4)})
    if torder == "n":
        a(f"v_mul_u32_u24 v2, {(65536 + KP - 1) // KP}, v0")
        a("v_lshrrev_b32 v2, 16, v2")
        a(f"v_mul_u32_u24 v3, {KP}, v2")
        a("v_sub_u32 v3, v0, v3")
    else:
        a("v_and_b32 v2, 15, v0")
        a("v_lshrrev_b32 v3, 4, v0")
    a(f"v_add_u32 v3, {NS}, v3")
    a("v_mov_b32 v20, s55")
    lane_bits(20, 3, "n", 5)
    lane_bits(20, 2, "r", 4)
    a(f"s_mul_i32 s36, s38, {ctstride}")
    a(f"s_add_u32 s36, s36, {WS_CT}")
    a("s_add_u32 s68, s26, s36")
    a("s_addc_u32 s69, s27, 0")
    if pf:
        a("v_and_b32 v1, 31, v0")
        a("s_and_b32 s36, s28, 3")
        a("s_lshl_b32 s36, s36, 3")
        a("s_lshr_b32 s37, s29, 2")
        a("s_add_u32 s36, s36, s37")
        a("v_add_u32 v2, s36, v1")
        a("v_and_b32 v2, 31, v2")
        a("s_and_b32 s36, s28, 4")
        a("s_and_b32 s37, s29, 3")
        a("s_add_u32 s36, s36, s37")
        a("s_lshl_b32 s36, s36, 17")
        a(f"s_add_u32 s36, s36, {WS_P2}")
        a("v_lshl_add_u32 v22, v1, 12, s36")
        a("v_lshl_add_u32 v22, v2, 7, v22")
    a("v_mov_b32 v6, -1")
    a("v_mov_b32 v7, -1")
    a("v_lshlrev_b32 v21, 3, v0")
    a(f"ds_write_b64 v21, v[6:7] offset:{L_TK}")
    a("s_lshl_b32 s36, s30, 13")
    a("s_lshl_b32 s37, s31, 12")
    a("s_add_u32 s36, s36, s37")
    a(f"s_add_u32 s36, s36, {WS_QP}")
    a("v_lshl_add_u32 v1, v0, 4, s36")
    a("s_mul_i32 s36, s34, 56")
    a("s_andn2_b32 s36, s36, 15")
    a(f"s_mul_i32 s37, s31, {8*7168}")
    a("s_add_u32 s36, s36, s37")
    a(f"s_add_u32 s36, s36, {WS_FP}")
    a("v_lshrrev_b32 v2, 5, v0")
    a("v_bfe_u32 v3, v0, 2, 2")
    a("v_lshl_add_u32 v2, v2, 2, v3")
    a("v_mul_u32_u24 v2, 7168, v2")
    a("v_and_b32 v3, 3, v0")
    a("v_lshl_add_u32 v2, v3, 4, v2")
    a("v_add_u32 v2, s36, v2")
    if pq is not None:
        note("reads that race with the other workgroups' stores stall this CU's stream: start when an S wave asks")
        a("v_and_b32 v5, 12, v0")
        a(f"s_mov_b32 s40, {spin * 8}")
        lab("L_go")
        a(f"ds_read_b32 v6, v5 offset:{L_GO}")
        a("s_waitcnt lgkmcnt(0)")
        a("v_cmp_ne_u32 vcc, 0, v6")
        a("s_cbranch_vccnz L_go_done")
        a("s_sleep 1")
        a("s_sub_u32 s40, s40, 1")
        a("s_cbranch_scc0 L_go")
        lab("L_go_done")
    a(f"s_mov_b32 s40, {0 if 'wait' in skip else spin}")
    if qdelay: a(f"s_sleep {qdelay}")
    stamp(7)
    lab("L_qpoll")
    if "ld" not in skip:
        for i in range(4): a(f"global_load_dwordx4 v[{48+4*i}:{51+4*i}], v1, s[26:27] offset:{i*1024} sc1")
        if merge: a("global_load_dwordx4 v[8:11], v2, s[26:27] sc1")
    a("s_waitcnt vmcnt(0)")
    check([48, 52, 56, 60] + ([8] if merge else []), 6)
    pollend("L_qpoll")
    for i in range(16): a(f"v_and_b32 v{48+i}, 0xffffff00, v{48+i}")
    for i in range(8): a(f"v_add_f32 v{48+i}, v{48+i}, v{56+i}")
    for i in range(4): a(f"v_cvt_pk_bf16_f32 v{48+i}, v{48+2*i}, v{49+2*i}")
    a("v_mov_b32 v6, 0")
    a(f"ds_write_b64 v21, v[48:49] offset:{L_Q}")
    a(f"ds_write_b64 v21, v[50:51] offset:{L_Q+512}")
    a("s_waitcnt lgkmcnt(0)")
    a(f"ds_write_b64 v6, v[32:33] offset:{L_TAG}", "{tag, ready}")
    stamp(5)
    a("s_setprio 0")
    if not merge:
        a(f"s_mov_b32 s40, {0 if 'wait' in skip else spin}")
        lab("L_hpoll")
        if "ld" not in skip: a("global_load_dwordx4 v[8:11], v2, s[26:27] sc1")
        a("s_waitcnt vmcnt(0)")
        check([8], 5)
        pollend("L_hpoll")
    for i in range(4): a(f"v_and_b32 v{8+i}, 0xffffff00, v{8+i}")
    for r in (4, 8):
        for i in range(4): a(f"v_add_f32_dpp v{8+i}, v{8+i}, v{8+i} row_ror:{r} {DPP}")
    a("v_cvt_pk_bf16_f32 v8, v8, v9")
    a("v_cvt_pk_bf16_f32 v9, v10, v11")
    a("v_mov_b32 v10, v8")
    a("v_mov_b32 v11, v9")
    a("s_nop 1")
    a("v_permlane32_swap_b32 v8, v10", "v8,v9 = gate pairs, v10,v11 = up pairs")
    a("v_permlane32_swap_b32 v9, v11")
    for p in range(2):
        a(f"v_lshlrev_b32 v12, 16, v{8+p}")
        a(f"v_and_b32 v13, 0xffff0000, v{8+p}")
        a(f"v_lshlrev_b32 v14, 16, v{10+p}")
        a(f"v_and_b32 v15, 0xffff0000, v{10+p}")
        a("v_max_f32 v12, 0, v12")
        a("v_max_f32 v13, 0, v13")
        a("v_mul_f32 v12, v12, v14")
        a("v_mul_f32 v13, v13, v15")
        a(f"v_cvt_pk_bf16_f32 v{16+p}, v12, v13")
    a("v_lshlrev_b32 v3, 3, v3")
    a(f"ds_write_b64 v3, v[16:17] offset:{L_H}")
    a("s_bitcmp1_b32 s34, 0", "the 16-column window holds one pair of the neighbour's rows: clear it")
    a("s_cselect_b32 s36, 0, 28")
    a("v_mov_b32 v3, s36")
    a(f"ds_write_b32 v3, v6 offset:{L_H}")
    stamp(6)
    a("s_mov_b32 s41, 0")
    a(f"v_mov_b32 v5, {L_TK}")
    a(f"s_mov_b32 s40, {spin * 8}")
    a(f"s_setprio {xprio}")
    align("i")
    lab("L_disp")
    a(f"ds_read_b128 v[8:11], v6 offset:{L_REQ}")
    a("s_sub_u32 s40, s40, 1")
    a("s_cbranch_scc1 L_disp_done")
    a("s_waitcnt lgkmcnt(0)")
    if reqfn == "med":
        a("v_min_u32 v12, v8, v9")
        a("v_max_u32 v8, v8, v9")
        a("v_min_u32 v13, v10, v11")
        a("v_max_u32 v10, v10, v11")
        a("v_max_u32 v12, v12, v13")
        a("v_min3_u32 v8, v8, v10, v12")
    else:
        a(f"v_{reqfn}3_u32 v8, v8, v9, v10")
        a(f"v_{reqfn}_u32 v8, v8, v11")
    a("v_cmp_lt_u32 vcc, s41, v8")
    a("s_cbranch_vccnz L_serve")
    a(f"s_sleep {xsleep}")
    a("s_branch L_disp")
    lab("L_serve")
    if tt:
        a("s_memrealtime s[72:73]")
        a("s_waitcnt lgkmcnt(0)")
    if vat:
        a("s_mov_b64 exec, 1")
        a("global_atomic_add v12, v6, v33, s[68:69] sc0")
        a("s_mov_b64 exec, -1")
        a("s_add_u32 s41, s41, 1")
        a("s_waitcnt vmcnt(0)")
        a("v_readfirstlane_b32 s67, v12")
        a("s_nop 3")
    else:
        a("s_mov_b32 s67, 1")
        a("s_atomic_add s67, s[68:69], 0 glc")
        a("s_add_u32 s41, s41, 1")
        a("s_waitcnt lgkmcnt(0)")
    if tt:
        a("s_memrealtime s[70:71]")
        a("s_waitcnt lgkmcnt(0)")
        a("s_sub_u32 s70, s70, s72")
        a("s_max_u32 s92, s92, s70")
        a("s_add_u32 s93, s93, s70")
        a("s_mov_b32 s94, s41")
    a("v_readlane_b32 s36, v20, s67")
    if r0:
        a(f"s_cmp_lt_u32 s67, {POOL + r0}")
        a("s_cselect_b32 s37, -3, -2")
        a(f"s_cmp_lt_u32 s67, {POOL}")
        a("s_cselect_b32 s36, s36, s37")
    else:
        a(f"s_cmp_lt_u32 s67, {POOL}")
        a("s_nop 0")
        a("s_cselect_b32 s36, s36, -2")
    a("v_mov_b32 v7, s36")
    a("ds_write_b32 v5, v7")
    a("v_add_u32 v5, 4, v5")
    a("s_cbranch_scc1 L_disp")
    lab("L_disp_done")
    if pf:
        a("s_mov_b32 exec_hi, 0")
        a(f"global_load_dword v23, v22, s[26:27] {pfflags}", "pull a quarter of the lines the final task polls (result unused)")
    a("s_waitcnt lgkmcnt(0)")
    a("s_barrier")
    dump_stamps("X")
    a("s_endpgm")

    L = [HEADER.rstrip("\n"), f"; @launch grid=(256,1,1) block=(384,1,1) lds={L_END}", DOC,
         '.amdgcn_target "amdgcn-amd-amdhsa--gfx950"', ".text", f".globl {KN}", ".p2align 8", f".type {KN},@function"]
    for name in "E X1 S W X2".split(): L.extend(SEC[name])
    L.append("L_codeend:")
    L += ['.section .rodata,"a"', ".p2align 6", f".amdhsa_kernel {KN}",
          f"  .amdhsa_next_free_vgpr {NV}", "  .amdhsa_next_free_sgpr 102", f"  .amdhsa_accum_offset {NV}",
          "  .amdhsa_group_segment_fixed_size 0", "  .amdhsa_kernarg_size 96", "  .amdhsa_user_sgpr_count 2",
          "  .amdhsa_user_sgpr_kernarg_segment_ptr 1", "  .amdhsa_system_sgpr_workgroup_id_x 1",
          "  .amdhsa_float_denorm_mode_32 3", ".end_amdhsa_kernel"]
    if tune8: L = align_runs("\n".join(L).split("\n"))
    return "\n".join(L) + "\n"

WIDEN = ("v_mov_b32", "v_add_f32", "v_sub_f32", "v_mul_f32", "v_max_f32", "v_exp_f32", "v_rcp_f32", "v_log_f32", "v_and_b32", "v_xor_b32",
         "v_lshlrev_b32", "v_lshrrev_b32", "v_add_u32", "v_fmac_f32", "v_sqrt_f32", "v_min_u32", "v_or_b32")

def sizes_of(lines):
    import subprocess, re
    out = subprocess.run(["llvm-mc", "-triple=amdgcn-amd-amdhsa", "-mcpu=gfx950", "-show-encoding"],
                         input="\n".join(lines) + "\n", capture_output=True, text=True, check=True).stdout
    return [m.count(",") + 1 for m in re.findall(r"; encoding: \[(.*?)\]", out)]

def align_runs(lines):
    isins = [l.startswith("    ") and not l.strip().startswith(";") for l in lines]
    sz = iter(sizes_of(lines))
    size = [next(sz) if f else 0 for f in isins]
    out, osz, addr, active = [], [], 0, False
    for i, l in enumerate(lines):
        if l.startswith(".p2align"):
            k = 1 << int(l.split()[1]); addr = (addr + k - 1) // k * k
        elif l.startswith(".fill"):
            addr += 4 * int(l.split()[1].rstrip(","))
        elif l.startswith("L_xwave"):
            active = True
        if isins[i] and active and size[i] == 8 and addr % 8 == 4 and (not osz or osz[-1] != 8):
            run, j = 0, i
            while j < len(lines) and (size[j] == 8 or not isins[j]) and not lines[j].startswith("."):
                run += size[j] == 8 and "mfma" not in lines[j]; j += 1
            if run >= 3:
                j = len(out) - 1
                while j >= 0 and osz[j] in (0, 4) and not out[j].startswith("."):
                    op = out[j].split()[0] if osz[j] else ""
                    if op in WIDEN:
                        out[j] = out[j].replace(op + " ", op + "_e64 ", 1).replace("    ;", ";", 1); osz[j] = 8; addr += 4
                        break
                    if op == "s_nop" and int(out[j].split()[1]) > 0:
                        out[j] = f"    s_nop {int(out[j].split()[1]) - 1}"
                        out.insert(j, "    s_nop 0"); osz.insert(j, 4); addr += 4
                        break
                    j -= 1
                if addr % 8 == 4 and run >= 6:
                    out.append("    s_nop 0"); osz.append(4); addr += 4
        out.append(l); osz.append(size[i]); addr += size[i]
    return out

if __name__ == "__main__":
    import json
    cfg = json.loads(sys.argv[1]) if len(sys.argv) > 1 else {}
    sys.stdout.write(gen(**cfg))
```

```python
import struct, sys, math

KN = "recurrent_scan__gqa_block_cached__glu_gated_reglu__decode_kernel"
HEADER = open("recurrent_scan__gqa_block_cached__glu_gated_reglu__decode.s.ref").read().split("; @launch")[0]

def f2u(x):
    return struct.unpack("<I", struct.pack("<f", x))[0]

WS_EPOCH = 0
WS_QP = 0x10000
WS_FP = 0x40000
WS_CT = 0x80000
WS_P1 = 0x100000
WS_P2 = 0x200000
WS_TS = 0x400000
WS_TT = 0x500000
L_W = 0
L_SC = 0
L_XN = 32768
L_XR = 34816
L_Q = 36864
L_Z = 37888
L_TAG = 38144
L_GO = 38160
L_REQ = 38176
L_H = 38400
L_ST = 38464
L_OB = 38592
L_TK = 38656
L_O = 39424
L_END = 47616
PHI = 0x9E3779B9

ROLES = [('X', slice(0, 1)), ('S', slice(1, 5))]

DOC = """;
; and streams about 1/16 of the group's keys.
;               o.wo and h.W_down partial rows, hand-off 2 (64 workgroups sum 128 partials each), gate, residual, store.
;   wave 5 (W): touches the code and the pages used later, then walks the S code with EXEC = 0 (instruction cache).
; Hand-offs carry a tag = (first word of d_ws at entry) + constant; the word is advanced at the end of the launch."""

def gen(RH=4, NE=4, peel=True, mimic=True, rnd=True, mi=False, rq=4, reqfn="min", vat=False, WL0=None, NA=28, NS=29, WS="4444", WP="4444", WM="4555", NP=8, nA=4, xsleep=1, xprio=1, sprio=0, al="kvmdws", outflags="", endexp=None, r0=0, cnt=8, nV=0, pads={}, gap1="bar", gap2=None, tune8=True, ep1=True, pre_bar=1, lnfirst=True, tlb="", l2pf=True, pf=True, pfflags="sc1", pf1=False, pfat="fail", sleep1=0, sleep2=0, merge=True,
        kvflags="nt", wflags="nt", woflags="", pmap="w0 w1 n0^r3^g0 n2^r0 n1 n3^r1 n4 r0 r1 r2 r3", i1bit=15, torder="r", ctstride=1280,
        qdelay=0, pq=4, pollfirst=False, lite=False, skip=(), ts=False, spin=1 << 20, probe=None):
    KP = 32 - NS
    POOL = 16 * KP
    assert 0 < POOL <= 64 and NA % RH == 0 and NA >= 2 * RH and RH >= 4 and NS >= NA + 1
    SEC = {}
    cur = [None]
    def section(name): cur[0] = SEC.setdefault(name, [])
    if probe is not None: ts = True
    if lite: ts = True
    tt = ts and probe is None and not lite
    def a(s, c=None): cur[0].append("    " + (s if c is None else f"{s:<72}; {c}"))
    def lab(s): cur[0].append(s + ":")
    def note(s): cur[0].append("    ; " + s)
    def align(key):
        if key in pads:
            cur[0].append(".p2align 6")
            if pads[key]: cur[0].append(f".fill {pads[key]}, 4, 0xbf800000")
        elif key in al: cur[0].append(".p2align 6")
        if key.upper() in al: cur[0].append(".p2align 3")
    skn = [0]
    def guarded(f):
        skn[0] += 1
        n = skn[0]
        a(f"s_cbranch_execz L_g{n}")
        f()
        lab(f"L_g{n}")
    def guard(lines): guarded(lambda: [a(x) for x in lines])
    def stamp(idx):
        if ts and (not lite or idx == 8):
            a("s_waitcnt lgkmcnt(0)")
            a("s_memrealtime s[70:71]")
            a("s_waitcnt lgkmcnt(0)")
            a(f"s_mov_b32 s{80+idx}, s70")
    def zero_stamps():
        if ts:
            a("s_mov_b32 s80, s70")
            for i in range(1, 16): a(f"s_mov_b32 s{80+i}, 0")
    def tstamp():
        if tt:
            a("s_memrealtime s[70:71]")
            a("s_add_u32 s79, s79, 1")
            a("s_lshr_b32 m0, s79, 1")
            a("s_waitcnt lgkmcnt(0)")
            a("v_writelane_b32 v13, s70, m0")
    def dump_stamps(role):
        if probe is not None:
            if role == probe[0]:
                pidx = probe[1]
                if len(probe) > 2:
                    a(f"s_and_b32 s73, s2, {probe[2]}")
                    a(f"s_cmp_lg_u32 s73, {probe[3]}")
                    a("s_cbranch_scc1 L_pe")
                a(f"s_cmp_eq_u32 s{80+pidx}, 0")
                a("s_cbranch_scc1 L_pe")
                if len(probe) > 4:
                    a(f"s_sub_u32 s72, s{80+pidx}, s{80+probe[4]}")
                    a("s_lshl_b32 s72, s72, 4")
                    a("s_add_u32 s72, s72, s80")
                    a("s_add_u32 s72, s72, 10000")
                else:
                    a(f"s_add_u32 s72, s{80+pidx}, 10000")
                lab("L_pl")
                a("s_memrealtime s[70:71]")
                a("s_waitcnt lgkmcnt(0)")
                a("s_sub_u32 s73, s70, s72")
                a("s_cmp_lt_i32 s73, 0")
                a("s_cbranch_scc1 L_pl")
                lab("L_pe")
        elif ts and not (lite and role == "X"):
            a("s_mov_b64 exec, 1")
            a("s_mul_i32 s70, s2, 5")
            a("s_add_u32 s70, s70, s3")
            a("s_lshl_b32 s70, s70, 6")
            a(f"s_add_u32 s70, s70, {WS_TS}")
            a("v_mov_b32 v1, s70")
            a("s_getreg_b32 s95, hwreg(HW_REG_XCC_ID)")
            for q in range(4):
                for i in range(4): a(f"v_mov_b32 v{4+i}, s{80+q*4+i}")
                a(f"global_store_dwordx4 v1, v[4:7], s[26:27] offset:{q*16}")
                a("s_nop 1")
    def tagregs():
        a("s_mov_b32 s56, s33", "s56..s59 = tag >> 8i, s60..s63 = byte-insert selectors")
        a("s_lshr_b32 s57, s33, 8")
        a("s_lshr_b32 s58, s33, 16")
        a("s_lshr_b32 s59, s33, 24")
        for i in range(4): a(f"s_mov_b32 s{60+i}, {0x07060500 + i:#x}")
    def check(regs, acc):
        first = True
        for r in regs:
            for i in range(4):
                if first: a(f"v_xor_b32 v{acc}, s{56+i}, v{r+i}"); first = False
                else: a(f"v_bitop3_b32 v{acc}, v{acc}, v{r+i}, s{56+i} bitop3:0xf6")
        a(f"v_and_b32 v{acc}, 0xff, v{acc}")
        a(f"v_cmp_ne_u32 vcc, 0, v{acc}")
    def pollend(name):
        a(f"s_cbranch_vccz {name}_done")
        a("s_sub_u32 s40, s40, 1")
        a(f"s_cbranch_scc0 {name}")
        lab(f"{name}_done")

    VB, VSW, VSR = 11, 12, 16
    VKO, VVO, VM, VL, VM0, VM1 = 18, 19, 20, 21, 22, 23
    VA, VQ, VO, VS, VR = 24, 32, 36, 44, 60
    VT = VR + 16 * max(RH + NE, 8)
    (T_OW, T_SW, T_OR, T_SR, T_P1S, T_P1L, T_OBW, T_P2S, T_WO, T_H, T_F0, _, _, _, T_XO, T_X, T_D0, T_D1, T_OBR, T_FW, T_FR) = range(VT, VT + 21)
    NV = VT + 24
    RD, RW = VR + 64, VR + 80
    PD, PW = VR + 4, VR + 20
    VP2 = VR + 112
    def decode():
        a("s_and_b32 s28, s2, 7", "x")
        a("s_lshr_b32 s29, s2, 3", "j")
        a("s_bfe_u32 s30, s2, 0x30004", "kv head")
        a("s_lshr_b32 s31, s2, 7", "batch row")
        a("s_and_b32 s32, s2, 15", "split")
        a("s_and_b32 s34, s2, 127", "idx")
        a("s_lshr_b32 s38, s2, 4", "group")
    def srds():
        a("s_mov_b64 s[44:45], s[6:7]", "K"); a("s_brev_b32 s46, 16"); a("s_mov_b32 s47, 0x20000")
        a("s_mov_b64 s[48:49], s[8:9]", "V"); a("s_brev_b32 s50, 16"); a("s_mov_b32 s51, 0x20000")
        a("s_mov_b64 s[72:73], s[6:7]", "K or V"); a("s_brev_b32 s74, 16"); a("s_mov_b32 s75, 0x20000")
    pm = [set(x.split("^")) for x in pmap.split()]
    PB = [b for b in range(11, 23) if b != i1bit]
    assert len(pm) == 11 and i1bit != 11
    def mask_of(sym): return sum(1 << PB[p] for p in range(11) if sym in pm[p])
    def scalar_part(dst, srcs, base=True):
        a(f"s_lshl_b32 {dst}, s38, 23" if base else f"s_mov_b32 {dst}, 0")
        for pre, (reg, nb) in srcs.items():
            masks = [mask_of(f"{pre}{i}") for i in range(nb)]
            if masks[0] and all(masks[i] == masks[0] << i for i in range(nb)) and bin(masks[0]).count("1") == 1:
                a(f"s_lshl_b32 s35, {reg}, {masks[0].bit_length()-1}")
                a(f"s_xor_b32 {dst}, {dst}, s35")
                continue
            for i in range(nb):
                if masks[i]:
                    a(f"s_bfe_i32 s35, {reg}, {0x10000 + i:#x}")
                    a(f"s_and_b32 s35, s35, {masks[i]:#x}")
                    a(f"s_xor_b32 {dst}, {dst}, s35")
    def lane_bits(vdst, vsrc, pre, nb):
        for i in range(nb):
            a(f"v_bfe_i32 v7, v{vsrc}, {i}, 1")
            a(f"v_and_b32 v7, {mask_of(pre + str(i)):#x}, v7")
            a(f"v_xor_b32 v{vdst}, v{vdst}, v7")
    def nconst(n):
        c = 0
        for i in range(5):
            if n >> i & 1: c ^= mask_of(f"n{i}")
        return c
    def issue(reg, voff, srd, pat, down=False, ks=range(4)):
        last = max(k for k in range(4) if pat[k] != "-")
        assert pat[0] != "-" and (int(pat[last]) + 4 - last <= 8 or pat == f"{NP}---")
        seq = (2, 0, 3, 1) if down else (0, 2, 1, 3)
        for k, u in enumerate(seq):
            if k not in ks: continue
            if k: a(f"s_bitset{u >> 1}_b32 s52, {i1bit}")
            if pat[k] != "-": a(f"s_waitcnt vmcnt({pat[k]})")
            a(f"buffer_load_dwordx4 v[{reg+4*u}:{reg+4*u+3}], v{voff}, {srd}, s52 offen offset:{(u&1)*1024} {kvflags}")
        if 3 in ks: tstamp()
    rest = list(range(2, RH))
    PERM = [0 if p == (RH - 1) // 2 else 1 if p == RH - 1 else rest.pop(0) for p in range(RH)]
    def preg(n): return VR + 16 * (RH + n if n < NE else PERM[n % RH])

    section("E")
    lab(KN)
    a("s_load_dwordx16 s[4:19], s[0:1], 0", "s[4:5]=x s[6:7]=K s[8:9]=V s[12:13]=wo")
    a("s_load_dwordx8 s[20:27], s[0:1], 64", "s[20:21]=W_down s[22:23]=out s[26:27]=ws")
    if ts: a("s_memrealtime s[70:71]")
    a("v_lshrrev_b32 v1, 6, v0")
    a("s_cmpk_ge_u32 s2, 256")
    a("s_cbranch_scc1 L_end")
    a("v_readfirstlane_b32 s3, v1", "wave")
    a("v_and_b32 v0, 63, v0", "lane")
    a("s_mul_i32 s39, s2, 0x200408", "wq tile as a byte offset: bits 7..12 column block, bit 21 k-half")
    a("s_and_b32 s39, s39, 0x201f80")
    assert len({(w * 0x200408) & 0x201f80 for w in range(256) if not w & 8}) == 128
    a("s_sub_u32 s42, s3, 1", "w")
    a("s_cbranch_scc1 L_xwave")
    a("s_cmp_eq_u32 s3, 5")
    a("s_cbranch_scc1 L_wwave")
    a("s_lshl_b32 s36, s42, 19", "wg bit 3 clear: wq tile, wave w loads rows 64w..")
    a("s_or_b32 s36, s36, s39")
    a("s_movk_i32 s37, 8192")
    a("s_mov_b32 s35, 24")
    a("s_bitcmp0_b32 s2, 3")
    a("s_cbranch_scc1 L_job")
    a("s_andn2_b32 s35, 0x86, s2", "wg bit 3 set: gate (waves 0,1) / up (waves 2,3) tile; 16 workgroups have none")
    a("s_cbranch_scc0 L_srest")
    a("s_lshr_b32 s36, s2, 3")
    a("s_and_b32 s37, s36, 24")
    a("s_min_u32 s37, s37, 22")
    a("s_and_b32 s35, s2, 7")
    a("s_add_u32 s37, s37, s35", "column block")
    a("s_and_b32 s36, s36, 6")
    a("s_and_b32 s35, s42, 1")
    a("s_or_b32 s36, s36, s35", "64-row block")
    a("s_mulk_i32 s36, 1792")
    a("s_add_u32 s36, s36, s37")
    a("s_lshl_b32 s36, s36, 7")
    a("s_movk_i32 s37, 3584")
    a("s_lshr_b32 s35, s42, 1")
    a("s_lshl3_add_u32 s35, s35, 48")
    lab("L_job")
    a("s_load_dwordx2 s[40:41], s[0:1], s35", "wq, W_gate or W_up")
    a("v_lshrrev_b32 v2, 3, v0")
    a("v_and_b32 v3, 7, v0")
    a("v_mul_u32_u24 v2, s37, v2")
    a("v_lshl_add_u32 v2, v3, 4, v2")
    a("v_add_u32 v2, s36, v2")
    a("s_lshl_b32 m0, s42, 13")
    a("s_lshl_b32 s37, s37, 3")
    a("s_lshl_b32 s36, s3, 13")
    a("s_waitcnt lgkmcnt(0)")
    lab("L_wdma")
    a(f"global_load_lds_dwordx4 v2, s[40:41] {wflags}")
    a("s_addk_i32 m0, 1024")
    a("v_add_u32 v2, s37, v2")
    a("s_cmp_lg_u32 m0, s36")
    a("s_cbranch_scc1 L_wdma")
    a("s_branch L_srest")

    section("X1")
    cur[0].append(".p2align 8")
    lab("L_xwave")
    a("v_lshlrev_b32 v1, 5, v0")
    a("v_mov_b32 v6, 0")
    a("v_mov_b32 v7, 0")
    a("v_lshlrev_b32 v5, 3, v0")
    a(f"ds_write_b64 v5, v[6:7] offset:{L_Z}", "zero block + flags")
    a("s_waitcnt lgkmcnt(0)")
    a("global_load_dwordx4 v[8:11], v1, s[4:5]")
    a("global_load_dwordx4 v[12:15], v1, s[4:5] offset:16")
    a("s_load_dword s33, s[26:27], 0", "epoch")
    a("s_setprio 2")
    zero_stamps()
    decode()
    a("s_and_b32 s67, s39, 0x200300")
    a("s_and_b32 s36, s2, 8")
    a("s_or_b32 s67, s67, s36")
    a("s_cbranch_scc1 L_x2")
    a("s_bfe_u32 s36, s39, 0x3000a")
    a("s_bfe_u32 s37, s39, 0x10007")
    a("s_lshl3_add_u32 s36, s37, s36")
    a(f"s_mul_i32 s36, s36, {ctstride}")
    a(f"s_add_u32 s36, s36, {WS_CT}")
    a("v_lshl_add_u32 v5, v0, 2, s36")
    a("global_store_dword v5, v6, s[26:27] sc1")
    a("s_branch L_x2")

    section("W")
    align("w")
    lab("L_wwave")
    a("s_getpc_b64 s[68:69]", "touch every 128-B line of the code (results unused)")
    lab("L_wpc")
    a(f"s_sub_u32 s68, s68, L_wpc-{KN}")
    a("s_subb_u32 s69, s69, 0")
    a("v_lshlrev_b32 v7, 7, v0")
    a("v_add_u32 v8, L_codeend-" + KN + "-8192, v7")
    if l2pf is True:
        a("global_load_dword v9, v7, s[68:69]")
        a("global_load_dword v9, v8, s[68:69]")
    elif l2pf:
        a(f"s_cmp_ge_u32 s2, {l2pf}")
        a("s_cbranch_scc1 L_nl2")
        a("global_load_dword v9, v7, s[68:69]")
        a("global_load_dword v9, v8, s[68:69]")
        lab("L_nl2")
    a("s_waitcnt lgkmcnt(0)")
    if tlb:
        note("touch pages this workgroup uses later (one dword each, results unused)")
        a("s_and_b32 s34, s2, 127")
        a("s_mov_b64 exec, 1")
        a("s_lshl_b32 s36, s2, 19")
        a("v_mov_b32 v3, s36")
        if "k" in tlb: a("global_load_dword v9, v3, s[6:7] nt")
        if "v" in tlb: a("global_load_dword v9, v3, s[8:9] nt")
        if "w" in tlb:
            a(f"s_mul_i32 s36, s34, {14*1024}")
            a("v_mov_b32 v3, s36")
            a("global_load_dword v9, v3, s[20:21] nt")
            a("s_lshl_b32 s36, s34, 15")
            a("v_mov_b32 v3, s36")
            a("global_load_dword v9, v3, s[12:13] nt")
        if "q" in tlb:
            a("v_mov_b32 v3, 1024")
            a("global_load_dword v9, v3, s[26:27] nt")
        if "p" in tlb:
            a("s_lshl_b32 s36, s2, 12")
            a(f"s_add_u32 s36, s36, {WS_P1}")
            a("v_mov_b32 v3, s36")
            a("global_load_dword v9, v3, s[26:27] nt")
            a(f"v_add_u32 v3, {WS_P2 - WS_P1}, v3")
            a("global_load_dword v9, v3, s[26:27] nt")
            a("v_xor_b32 v3, 0x80000, v3")
            a("global_load_dword v9, v3, s[26:27] nt")
        a("s_mov_b64 exec, -1")
    a("s_barrier", "barrier 0")
    srds()
    for r in [6, 14, VKO, VVO, VB] + list(range(VT, VT + 21)): a(f"v_mov_b32 v{r}, 0")
    a("s_mov_b64 exec, 0")
    for r in (42, 41, 33, 29, 76, 77): a(f"s_mov_b32 s{r}, 0")
    a("s_mov_b32 s54, 1")
    a("s_mov_b64 s[96:97], 0")
    a("s_mov_b64 s[98:99], 0")
    a("s_branch L_kpre")

    section("S")
    align("s")
    lab("L_srest")
    a("s_waitcnt lgkmcnt(0)")
    zero_stamps()
    if ts:
        a("v_mov_b32 v13, 0")
        a("s_mov_b32 s79, 1")
    stamp(9)
    decode()
    srds()
    scalar_part("s66", {"w": ("s42", 2), "r": ("s32", 4), "g": ("s38", 4)})
    a("v_lshrrev_b32 v2, 4, v0")
    a("v_and_b32 v3, 3, v0")
    a("v_bfe_u32 v4, v0, 2, 2")
    a("v_lshlrev_b32 v5, 8, v4")
    a("v_lshl_add_u32 v5, v2, 6, v5")
    a(f"v_lshl_add_u32 v{VKO}, v3, 4, v5", "K lane offset: key (lane>>2)&3, 16-B chunk 4(lane>>4) + (lane&3)")
    a("s_mov_b32 s52, s66")
    issue(preg(0), VKO, "s[44:47]", f"{NP}---")
    a(f"v_lshlrev_b32 v{VVO}, 4, v0", "V lane offset")
    a("v_mov_b32 v10, s66", "v10[n] = offset of this wave's tile n")
    lane_bits(10, 0, "n", 5)
    scalar_part("s55", {"w": ("s42", 2)}, base=False)
    a("s_lshl_b32 s36, s42, 2")
    a("v_mov_b32 v14, s36", "request slot")
    a("v_mov_b32 v6, 0xffff")
    a("v_mov_b32 v7, 0xffff0000")
    a("v_and_b32 v8, 1, v0")
    a("v_cmp_eq_u32 vcc, 1, v8")
    a("v_and_b32 v8, 2, v0")
    a("s_nop 0")
    a("v_cndmask_b32 v6, v6, v7, vcc")
    a("v_cmp_eq_u32 vcc, 2, v8")
    a(f"v_mov_b32 v{VM}, {f2u(-3.0e38):#x}")
    a(f"v_mov_b32 v{VL}, 0")
    a(f"v_cndmask_b32 v{VM1}, 0, v6, vcc", "P.V selector masks: bf16 slot lane&3 of the A fragment")
    a(f"v_xor_b32 v{VM0}, v{VM1}, v6")
    for i in range(8): a(f"v_mov_b32 v{VO+i}, 0")
    if mimic:
        a(f"s_mov_b32 s53, {f2u(math.log2(math.e)):#x}", "log2(e)")
        a(f"s_mov_b32 s43, {f2u(128.0 ** -0.5):#x}", "1/sqrt(128)")
        a("s_mov_b32 s67, 0xffff0000")
    else:
        a(f"s_mov_b32 s53, {f2u(math.log2(math.e) / math.sqrt(128.0)):#x}", "log2(e)/sqrt(128)")
    a("s_mov_b32 s54, 1000", "counts down; set to 0 for the last tile")
    a(f"s_mov_b32 s41, {RH + NE}", "next tile to issue")
    a(f"s_mov_b32 s76, {NA // RH - (3 if peel else 1)}")
    a(f"s_mov_b32 s77, {NA // RH - 1}")
    a("s_mov_b64 s[96:97], -1", "EXEC: all lanes")
    a("s_mov_b32 s98, 0x11111111", "EXEC: lane 0 of every quad")
    a("s_mov_b32 s99, 0x11111111")
    a(f"v_mov_b32 v{VB}, v{VKO}")
    a(f"s_mul_i32 s36, s42, {NA * 256}")
    a(f"v_lshl_add_u32 v{VSR}, v0, 2, s36")
    a(f"v_and_b32 v{VSW}, -16, v{VSR}")
    a("v_lshrrev_b32 v3, 4, v0", "g")
    a("v_and_b32 v4, 15, v0", "c")
    a("v_bfe_u32 v5, v0, 2, 2")
    a("s_lshl_b32 s35, s42, 11")
    a(f"v_lshl_add_u32 v{T_OW}, v0, 5, s35")
    a("s_lshl_b32 s36, s42, 3")
    a(f"v_lshl_add_u32 v{T_SW}, v5, 5, s36")
    a("s_lshl_b32 s35, s42, 9")
    a(f"v_lshl_add_u32 v{T_OR}, v0, 3, s35")
    a("s_lshl_b32 s36, s42, 5")
    a(f"v_mov_b32 v{T_SR}, s36")
    a("s_lshl_b32 s35, s2, 12")
    a("s_lshl_b32 s36, s42, 10")
    a("s_add_u32 s36, s35, s36")
    a(f"s_add_u32 s37, s36, {WS_P1}")
    a(f"v_lshl_add_u32 v{T_P1S}, v0, 4, s37", "P1 + wg*4096 + thread*16")
    a("s_lshl_b32 s36, s38, 16")
    a("s_lshl_b32 s37, s32, 8")
    a("s_add_u32 s36, s36, s37")
    a("s_lshl_b32 s37, s42, 6")
    a("s_add_u32 s36, s36, s37")
    a(f"s_add_u32 s36, s36, {WS_P1}")
    a(f"v_lshl_add_u32 v{T_P1L}, v4, 12, s36")
    a(f"v_lshl_add_u32 v{T_P1L}, v3, 4, v{T_P1L}", "P1 + (group*16 + c)*4096 + (16 split + 4w + g)*16")
    a("s_lshl_b32 s36, s42, 4")
    a(f"v_lshl_add_u32 v{T_OBW}, v3, 2, s36")
    a("s_lshl_b32 s36, s42, 6")
    a("s_lshl_b32 s37, s2, 3")
    a("s_add_u32 s36, s36, s37")
    a("v_lshl_add_u32 v1, v4, 2, v3")
    a("v_add_u32 v1, s36, v1")
    a("v_and_b32 v1, 255, v1")
    a(f"s_add_u32 s37, s35, {WS_P2}")
    a(f"v_lshl_add_u32 v{T_P2S}, v1, 4, s37", "P2 + wg*4096 + ((64w + 4c + g + 8wg) & 255)*16")
    a("s_lshl_b32 s36, s42, 8")
    a("v_lshl_add_u32 v1, v4, 4, s36")
    a("s_lshl_b32 s36, s34, 15")
    a("s_add_u32 s36, s36, 4096")
    a("v_lshl_add_u32 v2, v3, 13, s36")
    a(f"v_add_u32 v{T_WO}, v1, v2", "wo rows 32 idx + 8g + i, columns 128w + 8c..")
    a(f"s_mul_i32 s36, s34, {14*1024}")
    a("v_add_u32 v1, s36, v1")
    a("s_and_b32 s36, s34, 1")
    a("v_lshlrev_b32 v2, 1, v3")
    a("v_subrev_u32 v2, s36, v2")
    a("v_max_i32 v5, 0, v2")
    a(f"v_lshl_add_u32 v{T_D0}, v5, 11, v1", "W_down rows 14 idx + 2 clamp(2g + p - (idx&1), 0, 6) + i")
    a("v_add_u32 v2, 1, v2")
    a("v_min_i32 v5, 6, v2")
    a(f"v_lshl_add_u32 v{T_D1}, v5, 11, v1")
    a(f"v_lshlrev_b32 v{T_H}, 3, v3")
    a(f"v_lshlrev_b32 v{T_OBR}, 4, v3")
    a("v_and_b32 v2, 7, v0")
    a(f"v_lshlrev_b32 v{T_FR}, 4, v2")
    a("s_lshl_b32 s35, s42, 7")
    a(f"v_lshl_add_u32 v1, v3, 2, v{T_FR}")
    a(f"v_add_u32 v{T_FW}, s35, v1")
    a("s_lshr_b32 s35, s28, 2")
    a("s_and_b32 s36, s28, 3")
    a("s_lshl_b32 s36, s36, 3")
    a("s_lshr_b32 s37, s29, 2")
    a("s_add_u32 s36, s36, s37")
    a("v_lshrrev_b32 v3, 3, v0")
    a("s_lshl2_add_u32 s37, s35, s42")
    a("s_lshl_b32 s37, s37, 17")
    a(f"s_add_u32 s37, s37, {WS_P2}")
    a(f"v_add_u32 v5, s37, v{T_FR}")
    for k in range(4):
        a(f"v_add_u32 v1, {8*k}, v3")
        a("v_add_u32 v4, s36, v1")
        a("v_and_b32 v4, 31, v4")
        a("v_lshl_add_u32 v4, v4, 7, v5")
        a(f"v_lshl_add_u32 v{T_F0+k}, v1, 12, v4")
    a("s_lshl_b32 s37, s35, 10")
    a("s_lshl_b32 s36, s36, 5")
    a("s_add_u32 s37, s37, s36")
    a(f"v_lshl_add_u32 v{T_XO}, v2, 2, s37")
    a("s_mov_b32 s64, 0x05040100")
    a("s_mov_b32 s65, 0x07060302")
    a("s_mov_b32 s39, 0xffffff00")
    a("v_mov_b32 v6, 0")
    for p in range(RH + NE):
        if p:
            a(f"s_xor_b32 s52, s66, {nconst(p):#x}")
            issue(preg(p), VKO, "s[44:47]", (WL0 if WL0 and p == RH + NE - 1 else WP) if p >= pre_bar else "4---")
        if p == pre_bar - 1:
            a(f"s_waitcnt vmcnt({4 * pre_bar})")
            if probe is not None: stamp(11)
            a("s_barrier", "barrier 0: weight tile landed, LDS flags cleared")
            stamp(10)
        if p == pq:
            a("s_mov_b64 exec, 1", "q is needed soon: let the X wave gather it")
            a("v_mov_b32 v15, 1")
            a(f"ds_write_b32 v14, v15 offset:{L_GO}")
            a("s_mov_b64 exec, -1")
    stamp(1)
    a(f"s_mov_b32 s40, {spin * 8}")
    lab("L_qflag")
    a(f"ds_read_b64 v[2:3], v6 offset:{L_TAG}")
    a("s_waitcnt lgkmcnt(0)")
    a("v_cmp_eq_u32 vcc, 0, v3")
    a("s_cbranch_vccz L_qflag_done")
    a("s_sleep 1")
    a("s_sub_u32 s40, s40, 1")
    a("s_cbranch_scc0 L_qflag")
    lab("L_qflag_done")
    if sprio: a(f"s_setprio {sprio}")
    a(f"ds_read_b128 v[{VQ}:{VQ+3}], v{VKO} offset:{L_Q}")
    a("v_mov_b32 v17, v2", "tag")
    a("v_readfirstlane_b32 s33, v2")
    stamp(2)
    a("s_nop 1")
    tagregs()
    a("s_waitcnt lgkmcnt(0)")
    def claim(first=False):
        a("s_mov_b32 s35, 1" if first else f"s_sub_u32 s35, s41, {NS - 1}", "ask the X wave for step s41")
        a("s_mov_b64 exec, 1")
        a("v_mov_b32 v15, s35")
        a(f"ds_write_b32 v14, v15 offset:{L_REQ}")
        a("s_mov_b64 exec, -1")
    def qk(K):
        for u in range(4):
            a(f"v_mfma_f32_16x16x32_bf16 v[{VS+4*u}:{VS+4*u+3}], v[{K+4*u}:{K+4*u+3}], v[{VQ}:{VQ+3}], 0")
    def pv(V):
        for t in range(4):
            a(f"v_mfma_f32_16x16x16_bf16 v[{VO}:{VO+3}], v[{VA+2*t}:{VA+2*t+1}], v[{V+4*t}:{V+4*t+1}], v[{VO}:{VO+3}]")
            a(f"v_mfma_f32_16x16x16_bf16 v[{VO+4}:{VO+7}], v[{VA+2*t}:{VA+2*t+1}], v[{V+4*t+2}:{V+4*t+3}], v[{VO+4}:{VO+7}]")
    DPP = "row_mask:0xf bank_mask:0xf"
    def rowmax(dst):
        a("v_permlane16_swap_b32 v1, v2")
        a("s_nop 0")
        a("v_max_f32 v1, v1, v2")
        a("v_mov_b32 v2, v1")
        a("s_nop 1")
        a("v_permlane32_swap_b32 v1, v2")
        a("s_nop 0")
        a(f"v_max_f32 v{dst}, v1, v2")
    def scale1(dst, src):
        a(f"v_cvt_pk_bf16_f32 v{dst}, v{src}, v{src}")
        a(f"v_and_b32 v{dst}, s67, v{dst}")
        a(f"v_mul_f32 v{dst}, s43, v{dst}")
        a(f"v_cvt_pk_bf16_f32 v{dst}, v{dst}, v{dst}")
        a(f"v_and_b32 v{dst}, s67, v{dst}")
    def scale4():
        for rep in range(2):
            a("v_cvt_pk_bf16_f32 v5, v4, v5")
            a("v_cvt_pk_bf16_f32 v7, v6, v7")
            a("v_lshlrev_b32 v4, 16, v5")
            a("v_lshlrev_b32 v6, 16, v7")
            a("v_and_b32 v5, s67, v5")
            a("v_and_b32 v7, s67, v7")
            if rep == 0:
                for i in range(4): a(f"v_mul_f32 v{4+i}, s43, v{4+i}")
    def softmax(hook=lambda k: None):
        for u in range(4): a(f"v_mov_b32_dpp v{4+u}, v{VS+4*u} quad_perm:[0,0,0,0] {DPP}")
        for p in range(1, 4):
            for u in range(4): a(f"v_add_f32_dpp v{4+u}, v{VS+4*u+p}, v{4+u} quad_perm:[{p},{p},{p},{p}] {DPP}")
        hook(1)
        if mimic: scale4()
        a("v_max3_f32 v1, v4, v5, v6")
        a(f"v_max3_f32 v1, v1, v7, v{VM}")
        a("v_mov_b32 v2, v1")
        a("s_nop 1")
        rowmax(1)
        a(f"v_sub_f32 v2, v{VM}, v1")
        a("v_mul_f32 v3, s53, v1")
        a("v_mul_f32 v2, s53, v2")
        a(f"v_mov_b32 v{VM}, v1")
        a("v_exp_f32 v2, v2", "rescale factor")
        for i in range(4): a(f"v_fma_f32 v{4+i}, v{4+i}, s53, -v3")
        hook(2)
        for i in range(4): a(f"v_exp_f32 v{4+i}, v{4+i}")
        for g in range(4): a(f"v_mov_b32_dpp v8, v2 row_newbcast:{4*g} row_mask:{1<<g:#x} bank_mask:0xf")
        a(f"v_fma_f32 v{VL}, v{VL}, v2, v4")
        a("v_add_f32 v9, v5, v6")
        a(f"v_add_f32 v{VL}, v{VL}, v7")
        a(f"v_add_f32 v{VL}, v{VL}, v9")
        for i in range(4): a(f"v_cvt_pk_bf16_f32 v{4+i}, v{4+i}, v{4+i}")
        hook(3)
        for i in range(8): a(f"v_mul_f32 v{VO+i}, v{VO+i}, v8")
        for i in range(4):
            a(f"v_and_b32 v{VA+2*i}, v{4+i}, v{VM0}")
            a(f"v_and_b32 v{VA+2*i+1}, v{4+i}, v{VM1}")
    def scores(K, p, ring):
        qk(K)
        if ring:
            a("v_readlane_b32 s52, v10, s41")
            a("s_add_u32 s41, s41, 1")
            a("s_nop 2")
        else:
            a("s_nop 4")
        for u in range(4): a(f"v_add_f32_dpp v{4+u}, v{VS+4*u+1}, v{VS+4*u} quad_perm:[1,1,1,1] {DPP}")
        for q_ in (2, 3):
            for u in range(4): a(f"v_add_f32_dpp v{4+u}, v{VS+4*u+q_}, v{4+u} quad_perm:[{q_},{q_},{q_},{q_}] {DPP}")
        a("s_mov_b64 exec, s[98:99]")
        a(f"v_max3_f32 v{VM}, v4, v5, v{VM}")
        a(f"ds_write_b128 v{VSW}, v[4:7] offset:{L_SC + p*256}")
        a(f"v_max3_f32 v{VM}, v6, v7, v{VM}")
        a("s_mov_b64 exec, s[96:97]")
    lab("L_kpre")
    if peel:
        assert NE == RH and NA >= 3 * RH
        for p in range(RH):
            K = VR + PERM[p] * 16
            scores(K, RH + p, True)
            guarded(lambda: issue(K, VKO, "s[44:47]", WS, ks=(0, 1)))
            scores(preg(p), p, False)
            guarded(lambda: issue(K, VKO, "s[44:47]", WS, ks=(2, 3)))
        a(f"v_add_u32 v{VSW}, {2*RH*256}, v{VSW}")
    else:
        assert NE < RH
        for p in range(NE): scores(preg(p), p, False)
        if NE: a(f"s_cbranch_execnz L_kp{NE}", "their ring slots already hold later tiles")
    align("k")
    lab("L_kloop")
    a("s_cmp_lg_u32 s76, 0")
    a("s_cbranch_scc1 L_kp0")
    if probe is not None: stamp(12)
    a("s_mov_b64 s[72:73], s[8:9]", "last trip: refill with V tiles 0..")
    a(f"v_mov_b32 v{VB}, v{VVO}")
    a("s_mov_b32 s41, 0")
    for p in range(RH):
        K = VR + PERM[p] * 16
        lab(f"L_kp{p}")
        scores(K, p, True)
        guarded(lambda: issue(K, VB, "s[72:75]", WS))
    a(f"v_add_u32 v{VSW}, {RH*256}, v{VSW}")
    a("s_sub_u32 s76, s76, 1")
    a("s_cbranch_scc0 L_kloop")
    a(f"ds_read_b32 v9, v{VSR} offset:{L_SC}")
    a(f"v_mov_b32_dpp v1, v{VM} quad_perm:[0,0,0,0] {DPP}")
    a(f"v_mov_b32_dpp v2, v{VM} quad_perm:[0,0,0,0] {DPP}")
    a("s_mov_b32 s78, 1")
    a("s_nop 0")
    rowmax(VM)
    if mimic: scale1(VM, VM)
    a(f"v_mul_f32 v3, s53, v{VM}")
    WL = [f"global_load_dwordx4 v[{RD+4*i}:{RD+4*i+3}], v{T_D0 + i//2}, s[20:21] offset:{(i&1)*1024} {woflags}" for i in range(4)]
    WL += [f"global_load_dwordx4 v[{RW+4*i}:{RW+4*i+3}], v{T_WO}, s[12:13] offset:{i*1024-4096} {woflags}" for i in range(8)]
    assert nV in (0, 4, 8, 12) and nA >= nV and not (nV and r0)
    vsn = []
    align("v")
    lab("L_vloop")
    a("s_cmp_lg_u32 s77, 0")
    a("s_cbranch_scc1 L_v0")
    a("s_mov_b64 s[72:73], s[6:7]", f"last trip: refill only slots 0, 1 with K, V of tile {NA}")
    a(f"v_mov_b32 v{VB}, v{VKO}")
    a("s_mov_b32 s78, 0")
    lab("L_v0")
    for p in range(RH):
        sl = PERM[p]
        V = VR + sl * 16
        a("v_readlane_b32 s52, v10, s41")
        a("s_waitcnt lgkmcnt(0)")
        if mimic:
            scale1(4, 9)
            a("v_fma_f32 v4, v4, s53, -v3")
        else:
            a("v_fma_f32 v4, v9, s53, -v3")
        a(f"ds_read_b32 v9, v{VSR} offset:{L_SC + (p+1)*256}")
        a("v_exp_f32 v4, v4")
        a("s_add_u32 s41, s41, 1" if sl == 1 else "s_add_u32 s41, s41, s78")
        a("v_cvt_pk_bf16_f32 v5, v4, v4")
        a(f"v_add_f32 v{VL}, v{VL}, v4")
        a("s_nop 0")
        for t in range(4):
            a(f"v_and_b32_dpp v{VA+2*t}, v5, v{VM0} quad_perm:[{t},{t},{t},{t}] {DPP}")
            a(f"v_and_b32_dpp v{VA+2*t+1}, v5, v{VM1} quad_perm:[{t},{t},{t},{t}] {DPP}")
        if p == RH - 1:
            a("s_cmp_lg_u32 s77, 0", "last trip: only the K refill is younger than this slot's loads")
            a("s_cbranch_scc1 L_vw")
            a(f"s_waitcnt vmcnt({4 + nV})")
            lab("L_vw")
        pv(V)
        if sl >= 2:
            a("s_cmp_eq_u32 s77, 0")
            k4 = sl - 4
            if 0 <= k4 < nV // 4:
                a(f"s_cbranch_scc1 L_vx{p}")
                vsn.append((p, WL[4*k4:4*k4+4]))
            else:
                a(f"s_cbranch_scc1 L_vs{p}")
            issue(V, VVO, "s[48:51]", WS)
            lab(f"L_vs{p}")
        elif sl == 0:
            if rq == 4: guarded(lambda: issue(V, VB, "s[72:75]", WS))
            if NS == NA + 1:
                a("s_cmp_lg_u32 s77, 0")
                a("s_cbranch_scc1 L_vnc")
                guarded(lambda: claim(first=True))
                lab("L_vnc")
            if rq < 4: guarded(lambda: issue(V, VB, "s[72:75]", WS))
        else:
            guarded(lambda: issue(V, VVO, "s[48:51]", WS))
    a(f"v_add_u32 v{VSR}, {RH*256}, v{VSR}")
    a("s_sub_u32 s77, s77, 1")
    a("s_cbranch_scc0 L_vloop")
    a(f"v_add_f32_dpp v{VL}, v{VL}, v{VL} quad_perm:[1,0,3,2] {DPP}")
    a("s_waitcnt lgkmcnt(0)")
    a("s_nop 0")
    a(f"v_add_f32_dpp v{VL}, v{VL}, v{VL} quad_perm:[2,3,0,1] {DPP}")
    a("s_cbranch_execnz L_loop")
    a("s_mov_b32 s41, 63")
    align("m")
    lab("L_loop")
    assert int(WM[0]) <= 4
    for slot in range(2):
        oth = 1 - slot
        a("v_readlane_b32 s52, v10, s41")
        a(f"s_cmp_ge_u32 s41, {NS}")
        a(f"s_cbranch_scc1 L_tk{slot}")
        a("s_nop 1")
        lab(f"L_gk{slot}")
        issue(VR + oth * 32, VKO, "s[44:47]", WM, ks=(0,) if mi else range(rq))
        a("s_add_u32 s41, s41, 1")
        a(f"s_cmp_lt_u32 s41, {NS}")
        a(f"s_cbranch_scc1 L_nc{slot}")
        claim()
        lab(f"L_nc{slot}")
        if not mi: issue(VR + oth * 32, VKO, "s[44:47]", WM, ks=range(rq, 4))
        lab(f"L_rk{slot}")
        qk(VR + slot * 32)
        a("s_nop 4")
        def hook(k):
            a("s_cmp_lt_u32 s54, 2")
            a(f"s_cbranch_scc1 L_mk{slot}{k}")
            issue(VR + oth * 32, VKO, "s[44:47]", WM, ks=(k,))
            lab(f"L_mk{slot}{k}")
        softmax(hook) if mi else softmax()
        a("s_cmp_lt_u32 s54, 2")
        a(f"s_cbranch_scc1 L_dv{slot}")
        issue(VR + oth * 32 + 16, VVO, "s[48:51]", WM, down=True, ks=(0,) if mi else range(4))
        lab(f"L_rv{slot}")
        pv(VR + slot * 32 + 16)
        a("s_sub_u32 s54, s54, 1")
        a("s_cbranch_scc1 L_done")
        if mi: guarded(lambda: issue(VR + oth * 32 + 16, VVO, "s[48:51]", WM, down=True, ks=(1, 2, 3)))
    a("s_branch L_loop")
    for p, ls in vsn:
        lab(f"L_vx{p}")
        a(f"s_cbranch_execz L_vs{p}")
        for k, x in enumerate(ls):
            if WS[k] != "-": a(f"s_waitcnt vmcnt({WS[k]})")
            a(x)
        a(f"s_branch L_vs{p}")
    for slot in range(2):
        lab(f"L_tk{slot}")
        a(f"s_cbranch_execz L_rk{slot}")
        a("s_lshl_b32 s35, s41, 2")
        a(f"s_add_u32 s35, s35, {L_TK - 4 * NS}")
        a("v_mov_b32 v15, s35")
        a(f"s_mov_b32 s40, {spin * 8}")
        lab(f"L_tp{slot}")
        a("ds_read_b32 v16, v15", "-1: not served yet, -2: pool empty")
        a("s_sub_u32 s40, s40, 1")
        a(f"s_cbranch_scc1 L_tf{slot}")
        a("s_waitcnt lgkmcnt(0)")
        a("v_readfirstlane_b32 s35, v16")
        a("s_nop 1")
        a("s_cmp_eq_u32 s35, -1")
        a(f"s_cbranch_scc1 L_tp{slot}")
        a("s_xor_b32 s52, s35, s55")
        a("s_cmp_lt_u32 s35, -3")
        a(f"s_cbranch_scc1 L_gk{slot}")
        if r0: a("s_and_b32 s78, s35, 1", "early finisher")
        lab(f"L_tf{slot}")
        a("s_mov_b32 s54, 0")
        a("s_waitcnt vmcnt(4)")
        a(f"s_branch L_rk{slot}")
        lab(f"L_dv{slot}")
        if r0 and nA:
            a("s_cmp_lg_u32 s78, 0")
            a(f"s_cbranch_scc1 L_de{slot}")
        if nA > nV: guard(WL[nV:nA])
        if r0 and nA: lab(f"L_de{slot}")
        a(f"v_mov_b32 v2, v{VL}")
        a(f"v_mul_f32 v10, s53, v{VM}")
        a("s_nop 0")
        a(f"v_permlane16_swap_b32 v{VL}, v2")
        a("s_nop 0")
        a(f"v_add_f32 v11, v{VL}, v2")
        a("v_mov_b32 v2, v11")
        a("s_nop 1")
        a("v_permlane32_swap_b32 v11, v2")
        a("s_nop 0")
        a("v_add_f32 v11, v11, v2")
        a(f"ds_write_b64 v{T_SW}, v[10:11] offset:{L_ST}")
        a(f"s_waitcnt vmcnt({nA - nV})")
        if r0 and nA:
            a(f"s_cbranch_scc0 L_rv{slot}")
            a("s_waitcnt vmcnt(0)")
        a(f"s_branch L_rv{slot}")
    align("d")
    lab("L_done")
    stamp(3)
    if tt:
        a("s_mov_b32 s94, s41")
        a(f"v_mov_b32 v{VR}, v13")
    poll1 = f"global_load_dwordx4 v[8:11], v{T_P1L}, s[26:27] sc1"
    if gap1 == "prio": a("s_setprio 3")
    a("s_nop 4")
    a(f"ds_write_b128 v{T_OW}, v[{VO}:{VO+3}] offset:{L_O}")
    a(f"ds_write_b128 v{T_OW}, v[{VO+4}:{VO+7}] offset:{L_O+16}")
    a("s_waitcnt lgkmcnt(0)")
    guard(["s_barrier"])
    a(f"ds_read_b128 v[8:11], v{T_SR} offset:{L_ST}")
    a(f"ds_read_b128 v[12:15], v{T_SR} offset:{L_ST+16}")
    for w in range(4): a(f"ds_read_b64 v[{24+2*w}:{25+2*w}], v{T_OR} offset:{L_O + w*2048}")
    a("v_mov_b32 v39, v17")
    a("s_waitcnt lgkmcnt(4)")
    a("v_max3_f32 v2, v8, v10, v12")
    a("v_max_f32 v2, v2, v14")
    for w in range(4): a(f"v_sub_f32 v{8+2*w}, v{8+2*w}, v2")
    for w in range(4): a(f"v_exp_f32 v{8+2*w}, v{8+2*w}")
    a("v_mul_f32 v16, v8, v9")
    a("v_fmac_f32 v16, v10, v11")
    a("v_fmac_f32 v16, v12, v13")
    a("v_fmac_f32 v16, v14, v15")
    a("s_waitcnt lgkmcnt(0)")
    a("v_rcp_f32 v5, v16")
    a("v_log_f32 v16, v16")
    a("v_mul_f32 v36, v8, v24")
    a("v_mul_f32 v37, v8, v25")
    for w in range(1, 4):
        a(f"v_fmac_f32 v36, v{8+2*w}, v{24+2*w}")
        a(f"v_fmac_f32 v37, v{8+2*w}, v{25+2*w}")
    a("v_add_f32 v38, v2, v16", "log2 of the partial sum")
    a("v_mul_f32 v36, v36, v5")
    a("v_mul_f32 v37, v37, v5")
    assert not pollfirst
    def gap(kind):
        if kind == "bar": a("s_barrier", "all four stores go out before any wave's loads")
        if kind == "prio": a("s_setprio 0")
    if not r0:
        def f():
            a(f"global_store_dwordx4 v{T_P1S}, v[36:39], s[26:27] sc1")
            stamp(4)
            gap(gap1)
            for x in WL[nA:] + [poll1]: a(x)
        guarded(f)
    else:
        def f():
            a(f"global_store_dwordx4 v{T_P1S}, v[36:39], s[26:27] sc1")
            stamp(4)
            a("s_cmp_eq_u32 s78, 0")
            a("s_cbranch_scc1 L_wlate")
            a(f"s_mov_b32 s40, {spin}")
            lab("L_pre")
            a(poll1)
            a("s_waitcnt vmcnt(0)")
            a("v_cmp_eq_u32 vcc, s33, v11")
            a("s_sub_u32 s40, s40, 1")
            a("s_cbranch_scc1 L_pre_done")
            a("s_bcnt1_i32_b64 s35, vcc")
            a(f"s_cmp_lt_u32 s35, {4 * cnt}")
            a("s_cbranch_scc1 L_pre")
            lab("L_pre_done")
            for x in WL[:nA]: a(x)
            lab("L_wlate")
            for x in WL[nA:] + [poll1]: a(x)
        guarded(f)
    a(f"ds_read_b32 v{T_X}, v{T_XO} offset:{L_XR}")
    a(f"ds_read_b64 v[24:25], v{T_H} offset:{L_H}")
    def younger(k): return (11 - k) + (1 if k < nA and not r0 else 0) + 1
    def pairup(raw, dst, p):
        for d in range(4):
            a(f"v_perm_b32 v{dst+8*p+2*d}, v{raw+8*p+4+d}, v{raw+8*p+d}, s64")
            a(f"v_perm_b32 v{dst+8*p+2*d+1}, v{raw+8*p+4+d}, v{raw+8*p+d}, s65")
    def dots(pairs, vec, npairs):
        for p in range(npairs):
            for c in range(8):
                a(f"v_dot2_f32_bf16 v{VS+c}, v{pairs+8*p+c}, v{vec+p}, {'0' if p == 0 else 'v%d' % (VS+c)}")
    def fold(dst):
        for k in range(4): a(f"v_permlane32_swap_b32 v{VS+k}, v{VS+4+k}")
        for k in range(4): a(f"v_add_f32 v{VS+k}, v{VS+k}, v{VS+4+k}")
        a("s_nop 0")
        for k in range(2): a(f"v_permlane16_swap_b32 v{VS+k}, v{VS+2+k}")
        for k in range(2): a(f"v_add_f32 v{dst+k}, v{VS+k}, v{VS+2+k}")
    a(f"s_waitcnt vmcnt({younger(3)})")
    for p in range(2): pairup(RD, PD, p)
    a("s_waitcnt lgkmcnt(0)")
    dots(PD, 24, 2)
    fold(42)
    a("v_perm_b32 v42, v42, v17, s62")
    a("v_perm_b32 v43, v43, v17, s63")
    nearly = (nA - 4) // 2 if pollfirst else 4
    for p in range(nearly):
        a(f"s_waitcnt vmcnt({younger(4 + 2*p + 1)})")
        pairup(RW, PW, p)
    a(f"s_mov_b32 s40, {spin}")
    if probe is None: stamp(11)
    a(f"s_waitcnt vmcnt({12 - nA if pollfirst else 0})")
    a("s_branch L_p1chk")
    align("p")
    lab("L_p1poll")
    if sleep1: a(f"s_sleep {sleep1}")
    a(poll1)
    a("s_waitcnt vmcnt(0)")
    lab("L_p1chk")
    a("v_cmp_ne_u32 vcc, s33, v11")
    pollend("L_p1poll")
    stamp(5)
    if tt: a(f"s_sub_u32 s92, {spin + 1}, s40")
    a(f"v_max_f32_dpp v2, v10, v10 row_ror:8 {DPP}")
    a("s_nop 1")
    for r in (4, 2, 1):
        a(f"v_max_f32_dpp v2, v2, v2 row_ror:{r} {DPP}")
        if r > 1: a("s_nop 1")
    a("v_sub_f32 v10, v10, v2")
    a("v_exp_f32 v10, v10")
    a("s_nop 0")
    a("v_mul_f32 v8, v8, v10")
    a("v_mul_f32 v9, v9, v10")
    for r in (8, 4, 2, 1):
        for v in (10, 8, 9): a(f"v_add_f32_dpp v{v}, v{v}, v{v} row_ror:{r} {DPP}")
    a("v_rcp_f32 v10, v10")
    a("s_nop 0")
    a("v_mul_f32 v8, v8, v10")
    a("v_mul_f32 v9, v9, v10")
    a("v_cvt_pk_bf16_f32 v8, v8, v9")
    a(f"ds_write_b32 v{T_OBW}, v8 offset:{L_OB}")
    a("s_waitcnt lgkmcnt(0)")
    guard(["s_barrier"])
    if gap2 == "prio": a("s_setprio 3")
    a(f"ds_read_b128 v[24:27], v{T_OBR} offset:{L_OB}")
    for p in range(nearly, 4):
        a(f"s_waitcnt vmcnt({6 - 2*p})")
        pairup(RW, PW, p)
    a("s_waitcnt lgkmcnt(0)")
    dots(PW, 24, 4)
    fold(40)
    a("v_perm_b32 v40, v40, v17, s60")
    a("v_perm_b32 v41, v41, v17, s61")
    guard([f"global_store_dwordx4 v{T_P2S}, v[40:43], s[26:27] sc1"])
    stamp(6)
    a("s_and_b32 s35, s29, 3")
    a("s_cbranch_scc1 L_end" if lite else "s_cbranch_scc1 L_sexit")
    a(f"s_mov_b32 s40, {spin}")
    if gap2: guarded(lambda: gap(gap2))
    align("q")
    lab("L_p2poll")
    if sleep2: a(f"s_sleep {sleep2}")
    guard([f"global_load_dwordx4 v[{VP2+4*i}:{VP2+4*i+3}], v{T_F0+i}, s[26:27] sc1" for i in range(4)])
    a("s_waitcnt vmcnt(0)")
    check([VP2 + 4 * i for i in range(4)], 2)
    pollend("L_p2poll")
    stamp(7)
    if tt: a(f"s_sub_u32 s93, {spin + 1}, s40")
    for i in range(16): a(f"v_and_b32 v{24+i}, s39, v{VP2+i}")
    for i in (0, 2):
        a(f"v_pk_add_f32 v[{24+i}:{25+i}], v[{24+i}:{25+i}], v[{28+i}:{29+i}]")
        a(f"v_pk_add_f32 v[{32+i}:{33+i}], v[{32+i}:{33+i}], v[{36+i}:{37+i}]")
    for i in (0, 2): a(f"v_pk_add_f32 v[{8+i}:{9+i}], v[{24+i}:{25+i}], v[{32+i}:{33+i}]")
    a("s_nop 1")
    a("v_permlane32_swap_b32 v8, v10", "afterwards row r of the wave holds dword r of granule lane&7")
    a("v_permlane32_swap_b32 v9, v11")
    a("s_nop 0")
    a("v_add_f32 v8, v8, v10")
    a("v_add_f32 v9, v9, v11")
    a("s_nop 1")
    a("v_permlane16_swap_b32 v8, v9")
    a("s_nop 0")
    a("v_add_f32 v8, v8, v9")
    a("s_nop 1")
    a(f"v_add_f32_dpp v8, v8, v8 row_ror:8 {DPP}")
    a(f"ds_write_b32 v{T_FW}, v8 offset:{L_O}")
    a("s_waitcnt lgkmcnt(0)")
    guard(["s_barrier"])
    a("s_cmp_lg_u32 s42, 0")
    a("s_cbranch_scc1 L_epoch" if ep1 else "s_cbranch_scc1 L_end" if lite else "s_cbranch_scc1 L_sexit")
    for w in range(4): a(f"ds_read_b128 v[{24+4*w}:{27+4*w}], v{T_FR} offset:{L_O + 128*w}")
    a(f"v_lshlrev_b32 v14, 16, v{T_X}")
    a(f"v_and_b32 v15, 0xffff0000, v{T_X}")
    a("s_waitcnt lgkmcnt(2)")
    for i in (2, 0): a(f"v_pk_add_f32 v[{24+i}:{25+i}], v[{24+i}:{25+i}], v[{28+i}:{29+i}]")
    a("s_waitcnt lgkmcnt(0)")
    for i in (2, 0): a(f"v_pk_add_f32 v[{32+i}:{33+i}], v[{32+i}:{33+i}], v[{36+i}:{37+i}]")
    for i in (2, 0): a(f"v_pk_add_f32 v[{8+i}:{9+i}], v[{24+i}:{25+i}], v[{32+i}:{33+i}]")
    a("v_cvt_pk_bf16_f32 v10, v10, v11", "FFN output")
    a("v_cvt_pk_bf16_f32 v8, v8, v9", "attention output")
    a("v_and_b32 v11, 0xffff0000, v10")
    a("v_lshlrev_b32 v10, 16, v10")
    a(f"v_mul_f32 v13, {f2u(-math.log2(math.e)):#x}, v11")
    a(f"v_mul_f32 v12, {f2u(-math.log2(math.e)):#x}, v10")
    a("v_exp_f32 v13, v13")
    a("v_exp_f32 v12, v12")
    a("v_and_b32 v9, 0xffff0000, v8")
    a("v_add_f32 v13, 1.0, v13")
    a("v_add_f32 v12, 1.0, v12")
    a("v_rcp_f32 v13, v13")
    a("v_rcp_f32 v12, v12")
    a("v_lshlrev_b32 v8, 16, v8")
    a("v_mul_f32 v11, v11, v13")
    a("v_mul_f32 v10, v10, v12")
    a("v_cvt_pk_bf16_f32 v10, v10, v11", "silu")
    a("v_and_b32 v11, 0xffff0000, v10")
    a("v_lshlrev_b32 v10, 16, v10")
    a("v_mul_f32 v9, v9, v11")
    a("v_mul_f32 v8, v8, v10")
    a("v_cvt_pk_bf16_f32 v8, v8, v9")
    a("v_and_b32 v9, 0xffff0000, v8")
    a("v_lshlrev_b32 v8, 16, v8")
    a("v_add_f32 v9, v9, v15")
    a("v_add_f32 v8, v8, v14")
    a("v_cvt_pk_bf16_f32 v8, v8, v9")
    a("s_cbranch_execz L_end")
    a("s_mov_b64 exec, 0xff")
    if endexp is not None:
        if endexp == "before": a(f"global_store_dword v{T_XO}, v8, s[22:23] {outflags}")
        a("s_add_u32 s72, s80, 10000")
        lab("L_hold")
        a("s_memrealtime s[70:71]")
        a("s_waitcnt lgkmcnt(0)")
        a("s_sub_u32 s73, s70, s72")
        a("s_cmp_lt_i32 s73, 0")
        a("s_cbranch_scc1 L_hold")
    if endexp != "before": a(f"global_store_dword v{T_XO}, v8, s[22:23] {outflags}")
    if ep1:
        a("s_branch L_sexit" if ts else "s_endpgm")
        lab("L_epoch")
    if ep1: a("s_lshl2_add_u32 s35, s2, s42")
    a("s_cmp_lg_u32 s35, 17" if ep1 else "s_cmp_lg_u32 s2, 4")
    a("s_cbranch_scc1 L_end" if (ep1 and lite) else "s_cbranch_scc1 L_sexit")
    a("s_mov_b64 exec, 1")
    a("v_mov_b32 v6, 0")
    a(f"global_store_dword v6, v17, s[26:27] {outflags}")
    if ep1 and lite: a("s_endpgm")
    lab("L_sexit")
    stamp(8)
    if tt:
        a("s_mov_b64 exec, -1")
        a("s_lshl_b32 s70, s2, 2")
        a("s_add_u32 s70, s70, s42")
        a("s_lshl_b32 s70, s70, 8")
        a(f"s_add_u32 s70, s70, {WS_TT}")
        a("v_lshl_add_u32 v1, v0, 2, s70")
        a(f"global_store_dword v1, v{VR}, s[26:27]")
    dump_stamps("S")
    lab("L_end")
    a("s_endpgm")

    section("X2")
    align("x")
    lab("L_x2")
    a("v_lshrrev_b32 v46, 4, v0", "g")
    a("v_bfe_u32 v7, v0, 2, 2")
    a("v_and_b32 v5, 3, v0")
    a("v_lshlrev_b32 v44, 10, v46")
    a("v_lshl_add_u32 v44, v7, 7, v44")
    a("v_lshl_add_u32 v44, v5, 3, v44", "weight fragment address (transposing reads)")
    a("v_and_b32 v45, 1, v0", "batch row of this column of D")
    a("v_lshlrev_b32 v4, 10, v45")
    a("v_lshl_add_u32 v4, v46, 4, v4")
    a("v_bfe_u32 v47, v0, 1, 3", "which 16-column block lands in this column of D")
    a("v_bfe_u32 v2, v0, 1, 2")
    a("v_lshlrev_b32 v2, 6, v2")
    a("v_lshl_add_u32 v2, v46, 4, v2")
    a("s_bitcmp1_b32 s2, 3")
    a("s_cbranch_scc1 L_fsetup")
    a("s_lshr_b32 s35, s39, 21")
    a("s_lshl_b32 s43, s35, 9")
    a("s_add_u32 s52, s43, 256")
    a("s_mov_b32 s53, 0")
    a("s_bfe_u32 s36, s39, 0x3000a")
    a("s_lshl_b32 s36, s36, 13")
    a("s_lshl_b32 s37, s35, 11")
    a("s_add_u32 s36, s36, s37")
    a("s_bfe_u32 s37, s39, 0x30007")
    a("s_lshl_b32 s37, s37, 8")
    a("s_add_u32 s36, s36, s37")
    a(f"s_add_u32 s36, s36, {WS_QP}")
    a("v_lshl_add_u32 v3, v45, 12, s36")
    a("s_mov_b32 s54, 0x00ff00ff")
    a("s_branch L_jobset")
    lab("L_fsetup")
    a("s_and_b32 s35, s38, 3")
    a("s_lshl_b32 s43, s35, 8")
    a("s_mov_b32 s52, s43")
    a("s_mov_b32 s53, 4")
    a("s_and_b32 s37, s29, 24")
    a("s_min_u32 s37, s37, 22")
    a("s_add_u32 s37, s37, s28")
    a("s_lshl_b32 s37, s37, 8")
    a("s_mul_i32 s36, s35, 7168")
    a("s_add_u32 s36, s36, s37")
    a(f"s_add_u32 s36, s36, {WS_FP}")
    a("v_bfe_u32 v3, v0, 3, 1")
    a("v_lshl_add_u32 v3, v45, 1, v3")
    a(f"v_mul_u32_u24 v3, {4*7168}, v3")
    a("v_add_u32 v3, s36, v3")
    a("s_mov_b32 s54, -1")
    lab("L_jobset")
    a("v_add_u32 v35, v2, v3", "publish address")
    a("s_mov_b32 s55, s54")
    a(f"v_mov_b32 v34, {L_Z - L_XN}")
    for hh in range(2):
        a(f"v_add_u32 v5, s{43 if hh == 0 else 52}, v4")
        if hh: a("v_subrev_u32 v47, s53, v47")
        for k in range(4): a(f"v_cmp_eq_u32 s[{44+2*k}:{45+2*k}], {k}, v47")
        a("s_nop 0")
        for k in range(4): a(f"v_cndmask_b32 v{36+4*hh+k}, v34, v5, s[{44+2*k}:{45+2*k}]", "xn fragment address, or the zero block" if k == 0 else None)
    if tt: a("s_memrealtime s[72:73]")
    if not lnfirst: a("s_barrier", "barrier 0")
    a("s_waitcnt vmcnt(1)")
    a("s_cmp_eq_u32 s67, 0", "these still have the counter store in flight")
    a("s_cbranch_scc1 L_xok")
    a("s_waitcnt vmcnt(0)")
    lab("L_xok")
    stamp(1)
    if tt: a("s_mov_b32 s89, s72")
    a(f"ds_write_b128 v1, v[8:11] offset:{L_XR}", "raw x for the residual")
    a(f"ds_write_b128 v1, v[12:15] offset:{L_XR+16}")
    for i in range(8):
        a(f"v_lshlrev_b32 v{16+2*i}, 16, v{8+i}")
        a(f"v_and_b32 v{17+2*i}, 0xffff0000, v{8+i}")
    def red32(v, t):
        a("s_nop 1")
        for r in (8, 4, 2, 1):
            a(f"v_add_f32_dpp {v}, {v}, {v} row_ror:{r} {DPP}")
            a("s_nop 1")
        a(f"v_mov_b32 {t}, {v}")
        a("s_nop 1")
        a(f"v_permlane16_swap_b32 {v}, {t}")
        a("s_nop 0")
        a(f"v_add_f32 {v}, {v}, {t}")
    a("v_add_f32 v6, v16, v17")
    for i in range(2, 16): a(f"v_add_f32 v6, v6, v{16+i}")
    red32("v6", "v7")
    a(f"v_mul_f32 v6, {f2u(1.0/512):#x}, v6", "mean")
    a("v_sub_f32 v32, v16, v6")
    a("v_mul_f32 v33, v32, v32")
    for i in range(1, 16):
        a(f"v_sub_f32 v32, v{16+i}, v6")
        a("v_fmac_f32 v33, v32, v32")
    red32("v33", "v7")
    a(f"v_mul_f32 v33, {f2u(1.0/512):#x}, v33", "variance")
    a("v_cvt_pk_bf16_f32 v6, v6, v33")
    a("v_and_b32 v33, 0xffff0000, v6")
    a("v_lshlrev_b32 v6, 16, v6")
    a(f"v_add_f32 v33, {f2u(1e-5):#x}, v33")
    a("v_cvt_pk_bf16_f32 v33, v33, v33")
    a("v_lshlrev_b32 v33, 16, v33")
    a("v_sqrt_f32 v33, v33")
    a("s_nop 0")
    a("v_cvt_pk_bf16_f32 v33, v33, v33")
    a("v_lshlrev_b32 v33, 16, v33")
    a("v_rcp_f32 v33, v33")
    for i in range(8):
        a(f"v_sub_f32 v{16+2*i}, v{16+2*i}, v6")
        a(f"v_sub_f32 v{17+2*i}, v{17+2*i}, v6")
        a(f"v_cvt_pk_bf16_f32 v{8+i}, v{16+2*i}, v{17+2*i}")
        a(f"v_lshlrev_b32 v{16+2*i}, 16, v{8+i}")
        a(f"v_and_b32 v{17+2*i}, 0xffff0000, v{8+i}")
        a(f"v_mul_f32 v{16+2*i}, v{16+2*i}, v33")
        a(f"v_mul_f32 v{17+2*i}, v{17+2*i}, v33")
        a(f"v_cvt_pk_bf16_f32 v{8+i}, v{16+2*i}, v{17+2*i}")
    a(f"ds_write_b128 v1, v[8:11] offset:{L_XN}")
    a(f"ds_write_b128 v1, v[12:15] offset:{L_XN+16}")
    a("s_waitcnt lgkmcnt(0)")
    a(f"s_add_u32 s33, s33, {PHI:#x}", "tag")
    tagregs()
    a("v_mov_b32 v32, s33")
    a("v_mov_b32 v33, 1")
    if lnfirst: a("s_barrier", "barrier 0")
    stamp(2)
    a("s_andn2_b32 s35, 0x8e, s2")
    a("s_cbranch_scc0 L_nojob")
    steps = [(ks, blk) for ks in range(8) for blk in range(4)]
    def rd(n):
        ks, blk = steps[n]
        o = (n % 4) * 8
        a(f"ds_read_b128 v[{48+o}:{51+o}], v{36 + 4*(ks>>2) + blk} offset:{L_XN + (ks&3)*64}")
        a(f"ds_read_b64_tr_b16 v[{52+o}:{53+o}], v44 offset:{L_W + ks*4096 + blk*32}")
        a(f"ds_read_b64_tr_b16 v[{54+o}:{55+o}], v44 offset:{L_W + ks*4096 + blk*32 + 512}")
    for n in range(3): rd(n)
    for n in range(32):
        if n + 3 < 32: rd(n + 3)
        a(f"s_waitcnt lgkmcnt({3 * min(3, 31 - n)})")
        o = (n % 4) * 8
        a(f"v_mfma_f32_16x16x32_bf16 v[8:11], v[{52+o}:{55+o}], v[{48+o}:{51+o}], {'0' if n == 0 else 'v[8:11]'}")
    a("s_nop 7")
    if rnd:
        for i in range(4): a(f"v_add_u32 v{8+i}, 0x80, v{8+i}", "round to the 24 bits a granule keeps" if i == 0 else None)
    for i in range(4): a(f"v_perm_b32 v{8+i}, v{8+i}, v32, s{60+i}")
    a("s_mov_b64 exec, s[54:55]")
    a("s_waitcnt vmcnt(0)")
    if "st" not in skip: a("global_store_dwordx4 v35, v[8:11], s[26:27] sc1")
    a("s_mov_b64 exec, -1")
    lab("L_nojob")
    stamp(3)
    scalar_part("s55", {"g": ("s38", 4)})
    if torder == "n":
        a(f"v_mul_u32_u24 v2, {(65536 + KP - 1) // KP}, v0")
        a("v_lshrrev_b32 v2, 16, v2")
        a(f"v_mul_u32_u24 v3, {KP}, v2")
        a("v_sub_u32 v3, v0, v3")
    else:
        a("v_and_b32 v2, 15, v0")
        a("v_lshrrev_b32 v3, 4, v0")
    a(f"v_add_u32 v3, {NS}, v3")
    a("v_mov_b32 v20, s55")
    lane_bits(20, 3, "n", 5)
    lane_bits(20, 2, "r", 4)
    a(f"s_mul_i32 s36, s38, {ctstride}")
    a(f"s_add_u32 s36, s36, {WS_CT}")
    a("s_add_u32 s68, s26, s36")
    a("s_addc_u32 s69, s27, 0")
    if pf:
        a("v_and_b32 v1, 31, v0")
        a("s_and_b32 s36, s28, 3")
        a("s_lshl_b32 s36, s36, 3")
        a("s_lshr_b32 s37, s29, 2")
        a("s_add_u32 s36, s36, s37")
        a("v_add_u32 v2, s36, v1")
        a("v_and_b32 v2, 31, v2")
        a("s_and_b32 s36, s28, 4")
        a("s_and_b32 s37, s29, 3")
        a("s_add_u32 s36, s36, s37")
        a("s_lshl_b32 s36, s36, 17")
        a(f"s_add_u32 s36, s36, {WS_P2}")
        a("v_lshl_add_u32 v22, v1, 12, s36")
        a("v_lshl_add_u32 v22, v2, 7, v22")
        if pf1:
            a("v_bfe_u32 v1, v0, 1, 4")
            a("v_and_b32 v2, 1, v0")
            a("s_lshl_b32 s36, s38, 16")
            a("s_lshl_b32 s37, s32, 8")
            a("s_add_u32 s36, s36, s37")
            a(f"s_add_u32 s36, s36, {WS_P1}")
            a("v_lshl_add_u32 v3, v1, 12, s36")
            a("v_lshl_add_u32 v3, v2, 7, v3")
            a("v_cmp_lt_u32 vcc, 31, v0")
            a("s_nop 1")
            a("v_cndmask_b32 v22, v22, v3, vcc")
    a("v_mov_b32 v6, -1")
    a("v_mov_b32 v7, -1")
    a("v_lshlrev_b32 v21, 3, v0")
    a(f"ds_write_b64 v21, v[6:7] offset:{L_TK}")
    a("s_lshl_b32 s36, s30, 13")
    a("s_lshl_b32 s37, s31, 12")
    a("s_add_u32 s36, s36, s37")
    a(f"s_add_u32 s36, s36, {WS_QP}")
    a("v_lshl_add_u32 v1, v0, 4, s36")
    a("s_mul_i32 s36, s34, 56")
    a("s_andn2_b32 s36, s36, 15")
    a(f"s_mul_i32 s37, s31, {8*7168}")
    a("s_add_u32 s36, s36, s37")
    a(f"s_add_u32 s36, s36, {WS_FP}")
    a("v_lshrrev_b32 v2, 5, v0")
    a("v_bfe_u32 v3, v0, 2, 2")
    a("v_lshl_add_u32 v2, v2, 2, v3")
    a("v_mul_u32_u24 v2, 7168, v2")
    a("v_and_b32 v3, 3, v0")
    a("v_lshl_add_u32 v2, v3, 4, v2")
    a("v_add_u32 v2, s36, v2")
    if pq is not None:
        note("reads that race with the other workgroups' stores stall this CU's stream: start when an S wave asks")
        a("v_and_b32 v5, 12, v0")
        a(f"s_mov_b32 s40, {spin * 8}")
        lab("L_go")
        a(f"ds_read_b32 v6, v5 offset:{L_GO}")
        a("s_waitcnt lgkmcnt(0)")
        a("v_cmp_ne_u32 vcc, 0, v6")
        a("s_cbranch_vccnz L_go_done")
        a("s_sleep 1")
        a("s_sub_u32 s40, s40, 1")
        a("s_cbranch_scc0 L_go")
        lab("L_go_done")
    a(f"s_mov_b32 s40, {0 if 'wait' in skip else spin}")
    if qdelay: a(f"s_sleep {qdelay}")
    stamp(7)
    lab("L_qpoll")
    if "ld" not in skip:
        for i in range(4): a(f"global_load_dwordx4 v[{48+4*i}:{51+4*i}], v1, s[26:27] offset:{i*1024} sc1")
        if merge: a("global_load_dwordx4 v[8:11], v2, s[26:27] sc1")
    a("s_waitcnt vmcnt(0)")
    check([48, 52, 56, 60] + ([8] if merge else []), 6)
    pollend("L_qpoll")
    for i in range(16): a(f"v_and_b32 v{48+i}, 0xffffff00, v{48+i}")
    for i in range(8): a(f"v_add_f32 v{48+i}, v{48+i}, v{56+i}")
    for i in range(4): a(f"v_cvt_pk_bf16_f32 v{48+i}, v{48+2*i}, v{49+2*i}")
    a("v_mov_b32 v6, 0")
    a(f"ds_write_b64 v21, v[48:49] offset:{L_Q}")
    a(f"ds_write_b64 v21, v[50:51] offset:{L_Q+512}")
    a("s_waitcnt lgkmcnt(0)")
    a(f"ds_write_b64 v6, v[32:33] offset:{L_TAG}", "{tag, ready}")
    stamp(5)
    a("s_setprio 0")
    if not merge:
        a(f"s_mov_b32 s40, {0 if 'wait' in skip else spin}")
        lab("L_hpoll")
        if "ld" not in skip: a("global_load_dwordx4 v[8:11], v2, s[26:27] sc1")
        a("s_waitcnt vmcnt(0)")
        check([8], 5)
        pollend("L_hpoll")
    for i in range(4): a(f"v_and_b32 v{8+i}, 0xffffff00, v{8+i}")
    for r in (4, 8):
        for i in range(4): a(f"v_add_f32_dpp v{8+i}, v{8+i}, v{8+i} row_ror:{r} {DPP}")
    a("v_cvt_pk_bf16_f32 v8, v8, v9")
    a("v_cvt_pk_bf16_f32 v9, v10, v11")
    a("v_mov_b32 v10, v8")
    a("v_mov_b32 v11, v9")
    a("s_nop 1")
    a("v_permlane32_swap_b32 v8, v10", "v8,v9 = gate pairs, v10,v11 = up pairs")
    a("v_permlane32_swap_b32 v9, v11")
    for p in range(2):
        a(f"v_lshlrev_b32 v12, 16, v{8+p}")
        a(f"v_and_b32 v13, 0xffff0000, v{8+p}")
        a(f"v_lshlrev_b32 v14, 16, v{10+p}")
        a(f"v_and_b32 v15, 0xffff0000, v{10+p}")
        a("v_max_f32 v12, 0, v12")
        a("v_max_f32 v13, 0, v13")
        a("v_mul_f32 v12, v12, v14")
        a("v_mul_f32 v13, v13, v15")
        a(f"v_cvt_pk_bf16_f32 v{16+p}, v12, v13")
    a("v_lshlrev_b32 v3, 3, v3")
    a(f"ds_write_b64 v3, v[16:17] offset:{L_H}")
    a("s_bitcmp1_b32 s34, 0", "the 16-column window holds one pair of the neighbour's rows: clear it")
    a("s_cselect_b32 s36, 0, 28")
    a("v_mov_b32 v3, s36")
    a(f"ds_write_b32 v3, v6 offset:{L_H}")
    stamp(6)
    a("s_mov_b32 s41, 0")
    a(f"v_mov_b32 v5, {L_TK}")
    a(f"s_mov_b32 s40, {spin * 8}")
    a(f"s_setprio {xprio}")
    align("i")
    lab("L_disp")
    a(f"ds_read_b128 v[8:11], v6 offset:{L_REQ}")
    a("s_sub_u32 s40, s40, 1")
    a("s_cbranch_scc1 L_disp_done")
    a("s_waitcnt lgkmcnt(0)")
    if reqfn == "med":
        a("v_min_u32 v12, v8, v9")
        a("v_max_u32 v8, v8, v9")
        a("v_min_u32 v13, v10, v11")
        a("v_max_u32 v10, v10, v11")
        a("v_max_u32 v12, v12, v13")
        a("v_min3_u32 v8, v8, v10, v12")
    else:
        a(f"v_{reqfn}3_u32 v8, v8, v9, v10")
        a(f"v_{reqfn}_u32 v8, v8, v11")
    a("v_cmp_lt_u32 vcc, s41, v8")
    a("s_cbranch_vccnz L_serve")
    a(f"s_sleep {xsleep}")
    a("s_branch L_disp")
    lab("L_serve")
    if tt:
        a("s_memrealtime s[72:73]")
        a("s_waitcnt lgkmcnt(0)")
    if vat:
        a("s_mov_b64 exec, 1")
        a("global_atomic_add v12, v6, v33, s[68:69] sc0")
        a("s_mov_b64 exec, -1")
        a("s_add_u32 s41, s41, 1")
        a("s_waitcnt vmcnt(0)")
        a("v_readfirstlane_b32 s67, v12")
        a("s_nop 3")
    else:
        a("s_mov_b32 s67, 1")
        a("s_atomic_add s67, s[68:69], 0 glc")
        a("s_add_u32 s41, s41, 1")
        a("s_waitcnt lgkmcnt(0)")
    if tt:
        a("s_memrealtime s[70:71]")
        a("s_waitcnt lgkmcnt(0)")
        a("s_sub_u32 s70, s70, s72")
        a("s_max_u32 s92, s92, s70")
        a("s_add_u32 s93, s93, s70")
        a("s_mov_b32 s94, s41")
    a("v_readlane_b32 s36, v20, s67")
    if r0:
        a(f"s_cmp_lt_u32 s67, {POOL + r0}")
        a("s_cselect_b32 s37, -3, -2")
        a(f"s_cmp_lt_u32 s67, {POOL}")
        a("s_cselect_b32 s36, s36, s37")
    else:
        a(f"s_cmp_lt_u32 s67, {POOL}")
        a("s_nop 0")
        a("s_cselect_b32 s36, s36, -2")
    a("v_mov_b32 v7, s36")
    a("ds_write_b32 v5, v7")
    a("v_add_u32 v5, 4, v5")
    a("s_cbranch_scc1 L_disp")
    lab("L_disp_done")
    def prefetch():
        if not pf1: a("s_mov_b32 exec_hi, 0")
        a(f"global_load_dword v23, v22, s[26:27] {pfflags}", "pull a quarter of the lines the final task polls (result unused)")
    if pf and pfat == "fail": prefetch()
    a("s_waitcnt lgkmcnt(0)")
    a("s_barrier")
    if pf and pfat == "late":
        a("s_barrier")
        prefetch()
    dump_stamps("X")
    a("s_endpgm")

    L = [HEADER.rstrip("\n"), f"; @launch grid=(256,1,1) block=(384,1,1) lds={L_END}", DOC,
         '.amdgcn_target "amdgcn-amd-amdhsa--gfx950"', ".text", f".globl {KN}", ".p2align 8", f".type {KN},@function"]
    for name in "E X1 S W X2".split(): L.extend(SEC[name])
    L.append("L_codeend:")
    L += ['.section .rodata,"a"', ".p2align 6", f".amdhsa_kernel {KN}",
          f"  .amdhsa_next_free_vgpr {NV}", "  .amdhsa_next_free_sgpr 102", f"  .amdhsa_accum_offset {NV}",
          "  .amdhsa_group_segment_fixed_size 0", "  .amdhsa_kernarg_size 96", "  .amdhsa_user_sgpr_count 2",
          "  .amdhsa_user_sgpr_kernarg_segment_ptr 1", "  .amdhsa_system_sgpr_workgroup_id_x 1",
          "  .amdhsa_float_denorm_mode_32 3", ".end_amdhsa_kernel"]
    if tune8: L = align_runs("\n".join(L).split("\n"))
    return "\n".join(L) + "\n"

WIDEN = ("v_mov_b32", "v_add_f32", "v_sub_f32", "v_mul_f32", "v_max_f32", "v_exp_f32", "v_rcp_f32", "v_log_f32", "v_and_b32", "v_xor_b32",
         "v_lshlrev_b32", "v_lshrrev_b32", "v_add_u32", "v_fmac_f32", "v_sqrt_f32", "v_min_u32", "v_or_b32")

def sizes_of(lines):
    import subprocess, re
    out = subprocess.run(["llvm-mc", "-triple=amdgcn-amd-amdhsa", "-mcpu=gfx950", "-show-encoding"],
                         input="\n".join(lines) + "\n", capture_output=True, text=True, check=True).stdout
    return [m.count(",") + 1 for m in re.findall(r"; encoding: \[(.*?)\]", out)]

def align_runs(lines):
    isins = [l.startswith("    ") and not l.strip().startswith(";") for l in lines]
    sz = iter(sizes_of(lines))
    size = [next(sz) if f else 0 for f in isins]
    out, osz, addr, active = [], [], 0, False
    for i, l in enumerate(lines):
        if l.startswith(".p2align"):
            k = 1 << int(l.split()[1]); addr = (addr + k - 1) // k * k
        elif l.startswith(".fill"):
            addr += 4 * int(l.split()[1].rstrip(","))
        elif l.startswith("L_xwave"):
            active = True
        if isins[i] and active and size[i] == 8 and addr % 8 == 4 and (not osz or osz[-1] != 8):
            run, j = 0, i
            while j < len(lines) and (size[j] == 8 or not isins[j]) and not lines[j].startswith("."):
                run += size[j] == 8 and "mfma" not in lines[j]; j += 1
            if run >= 3:
                j = len(out) - 1
                while j >= 0 and osz[j] in (0, 4) and not out[j].startswith("."):
                    op = out[j].split()[0] if osz[j] else ""
                    if op in WIDEN:
                        out[j] = out[j].replace(op + " ", op + "_e64 ", 1).replace("    ;", ";", 1); osz[j] = 8; addr += 4
                        break
                    if op == "s_nop" and int(out[j].split()[1]) > 0:
                        out[j] = f"    s_nop {int(out[j].split()[1]) - 1}"
                        out.insert(j, "    s_nop 0"); osz.insert(j, 4); addr += 4
                        break
                    j -= 1
                if addr % 8 == 4 and run >= 6:
                    out.append("    s_nop 0"); osz.append(4); addr += 4
        out.append(l); osz.append(size[i]); addr += size[i]
    return out

if __name__ == "__main__":
    import json
    cfg = json.loads(sys.argv[1]) if len(sys.argv) > 1 else {}
    sys.stdout.write(gen(**cfg))
```

```python
import struct, sys, math

KN = "recurrent_scan__gqa_block_cached__glu_gated_reglu__decode_kernel"
HEADER = open("recurrent_scan__gqa_block_cached__glu_gated_reglu__decode.s.ref").read().split("; @launch")[0]

def f2u(x):
    return struct.unpack("<I", struct.pack("<f", x))[0]

WS_EPOCH = 0
WS_QP = 0x10000
WS_FP = 0x40000
WS_CT = 0x80000
WS_P1 = 0x100000
WS_P2 = 0x200000
WS_TS = 0x400000
WS_TT = 0x500000
L_W = 0
L_SC = 0
L_XN = 32768
L_XR = 34816
L_Q = 36864
L_Z = 37888
L_TAG = 38144
L_GO = 38160
L_REQ = 38176
L_H = 38400
L_ST = 38464
L_OB = 38592
L_TK = 38656
L_O = 39424
L_END = 47616
PHI = 0x9E3779B9

ROLES = [('X', slice(0, 1)), ('S', slice(1, 5))]

DOC = """;
; and streams about 1/16 of the group's keys.
;               o.wo and h.W_down partial rows, hand-off 2 (64 workgroups sum 128 partials each), gate, residual, store.
;   wave 5 (W): touches the code and the pages used later, then walks the S code with EXEC = 0 (instruction cache).
; Hand-offs carry a tag = (first word of d_ws at entry) + constant; the word is advanced at the end of the launch."""

def gen(RH=4, NE=4, peel=True, mimic=True, rnd=True, mi=False, rq=4, reqfn="min", vat=False, WL0=None, NA=28, NS=29, WS="4444", WP="4444", WM="4555", NP=8, nA=4, xsleep=1, xprio=1, sprio=0, al="kvmdws", outflags="", endexp=None, r0=0, cnt=8, nV=0, pads={}, gap1="bar", gap2=None, tune8=True, ep1=True, pre_bar=1, lnfirst=True, tlb="", l2pf=True, pf=True, pfflags="sc1", pf1=False, pfat="fail", sleep1=0, sleep2=0, merge=True,
        kvflags="nt", wflags="nt", woflags="", pmap="w0 w1 n0^r3^g0 n2^r0 n1 n3^r1 n4 r0 r1 r2 r3", i1bit=15, torder="r", ctstride=1280,
        qdelay=0, pq=4, pollfirst=False, lite=False, skip=(), ts=False, spin=1 << 20, probe=None):
    KP = 32 - NS
    POOL = 16 * KP
    assert 0 < POOL <= 64 and NA % RH == 0 and NA >= 2 * RH and RH >= 4 and NS >= NA + 1
    SEC = {}
    cur = [None]
    def section(name): cur[0] = SEC.setdefault(name, [])
    if probe is not None: ts = True
    if lite: ts = True
    tt = ts and probe is None and not lite
    def a(s, c=None): cur[0].append("    " + (s if c is None else f"{s:<72}; {c}"))
    def lab(s): cur[0].append(s + ":")
    def note(s): cur[0].append("    ; " + s)
    def align(key):
        if key in pads:
            cur[0].append(".p2align 6")
            if pads[key]: cur[0].append(f".fill {pads[key]}, 4, 0xbf800000")
        elif key in al: cur[0].append(".p2align 6")
        if key.upper() in al: cur[0].append(".p2align 3")
    skn = [0]
    def guarded(f):
        skn[0] += 1
        n = skn[0]
        a(f"s_cbranch_execz L_g{n}")
        f()
        lab(f"L_g{n}")
    def guard(lines): guarded(lambda: [a(x) for x in lines])
    def stamp(idx):
        if ts and (not lite or idx == 8):
            a("s_waitcnt lgkmcnt(0)")
            a("s_memrealtime s[70:71]")
            a("s_waitcnt lgkmcnt(0)")
            a(f"s_mov_b32 s{80+idx}, s70")
    def zero_stamps():
        if ts:
            a("s_mov_b32 s80, s70")
            for i in range(1, 16): a(f"s_mov_b32 s{80+i}, 0")
    def tstamp():
        if tt:
            a("s_memrealtime s[70:71]")
            a("s_add_u32 s79, s79, 1")
            a("s_lshr_b32 m0, s79, 1")
            a("s_waitcnt lgkmcnt(0)")
            a("v_writelane_b32 v13, s70, m0")
    def dump_stamps(role):
        if probe is not None:
            if role == probe[0] and len(probe) > 2 and probe[2] == "mean":
                def hold(name):
                    lab(name)
                    a("s_memrealtime s[70:71]")
                    a("s_waitcnt lgkmcnt(0)")
                    a("s_sub_u32 s73, s70, s72")
                    a("s_cmp_lt_i32 s73, 0")
                    a(f"s_cbranch_scc1 {name}")
                a("s_add_u32 s72, s80, 5000")
                hold("L_h0")
                a(f"s_sub_u32 s72, s{80+probe[1]}, s{80+probe[4]}")
                a("s_mov_b64 exec, 1")
                a("v_mov_b32 v1, 0")
                a("v_mov_b32 v2, s72")
                a("global_atomic_add v1, v2, s[24:25]")
                a("s_lshl2_add_u32 s73, s2, s42")
                a("s_cmp_lg_u32 s73, 16")
                a("s_cbranch_scc1 L_pe")
                a("s_add_u32 s72, s80, 9000")
                hold("L_h1")
                a("global_load_dword v2, v1, s[24:25] sc1")
                a("s_waitcnt vmcnt(0)")
                a("v_readfirstlane_b32 s72, v2")
                a("s_nop 3")
                a("s_lshr_b32 s72, s72, 6")
                a("s_add_u32 s72, s72, s80")
                a("s_add_u32 s72, s72, 10000")
                hold("L_h2")
                lab("L_pe")
            elif role == probe[0]:
                pidx = probe[1]
                if len(probe) > 2:
                    a(f"s_and_b32 s73, s2, {probe[2]}")
                    a(f"s_cmp_lg_u32 s73, {probe[3]}")
                    a("s_cbranch_scc1 L_pe")
                a(f"s_cmp_eq_u32 s{80+pidx}, 0")
                a("s_cbranch_scc1 L_pe")
                if len(probe) > 4:
                    a(f"s_sub_u32 s72, s{80+pidx}, s{80+probe[4]}")
                    a("s_lshl_b32 s72, s72, 4")
                    a("s_add_u32 s72, s72, s80")
                    a("s_add_u32 s72, s72, 10000")
                else:
                    a(f"s_add_u32 s72, s{80+pidx}, 10000")
                lab("L_pl")
                a("s_memrealtime s[70:71]")
                a("s_waitcnt lgkmcnt(0)")
                a("s_sub_u32 s73, s70, s72")
                a("s_cmp_lt_i32 s73, 0")
                a("s_cbranch_scc1 L_pl")
                lab("L_pe")
        elif ts and not (lite and role == "X"):
            a("s_mov_b64 exec, 1")
            a("s_mul_i32 s70, s2, 5")
            a("s_add_u32 s70, s70, s3")
            a("s_lshl_b32 s70, s70, 6")
            a(f"s_add_u32 s70, s70, {WS_TS}")
            a("v_mov_b32 v1, s70")
            a("s_getreg_b32 s95, hwreg(HW_REG_XCC_ID)")
            for q in range(4):
                for i in range(4): a(f"v_mov_b32 v{4+i}, s{80+q*4+i}")
                a(f"global_store_dwordx4 v1, v[4:7], s[26:27] offset:{q*16}")
                a("s_nop 1")
    def tagregs():
        a("s_mov_b32 s56, s33", "s56..s59 = tag >> 8i, s60..s63 = byte-insert selectors")
        a("s_lshr_b32 s57, s33, 8")
        a("s_lshr_b32 s58, s33, 16")
        a("s_lshr_b32 s59, s33, 24")
        for i in range(4): a(f"s_mov_b32 s{60+i}, {0x07060500 + i:#x}")
    def check(regs, acc):
        first = True
        for r in regs:
            for i in range(4):
                if first: a(f"v_xor_b32 v{acc}, s{56+i}, v{r+i}"); first = False
                else: a(f"v_bitop3_b32 v{acc}, v{acc}, v{r+i}, s{56+i} bitop3:0xf6")
        a(f"v_and_b32 v{acc}, 0xff, v{acc}")
        a(f"v_cmp_ne_u32 vcc, 0, v{acc}")
    def pollend(name):
        a(f"s_cbranch_vccz {name}_done")
        a("s_sub_u32 s40, s40, 1")
        a(f"s_cbranch_scc0 {name}")
        lab(f"{name}_done")

    VB, VSW, VSR = 11, 12, 16
    VKO, VVO, VM, VL, VM0, VM1 = 18, 19, 20, 21, 22, 23
    VA, VQ, VO, VS, VR = 24, 32, 36, 44, 60
    VT = VR + 16 * max(RH + NE, 8)
    (T_OW, T_SW, T_OR, T_SR, T_P1S, T_P1L, T_OBW, T_P2S, T_WO, T_H, T_F0, _, _, _, T_XO, T_X, T_D0, T_D1, T_OBR, T_FW, T_FR) = range(VT, VT + 21)
    NV = VT + 24
    RD, RW = VR + 64, VR + 80
    PD, PW = VR + 4, VR + 20
    VP2 = VR + 112
    def decode():
        a("s_and_b32 s28, s2, 7", "x")
        a("s_lshr_b32 s29, s2, 3", "j")
        a("s_bfe_u32 s30, s2, 0x30004", "kv head")
        a("s_lshr_b32 s31, s2, 7", "batch row")
        a("s_and_b32 s32, s2, 15", "split")
        a("s_and_b32 s34, s2, 127", "idx")
        a("s_lshr_b32 s38, s2, 4", "group")
    def srds():
        a("s_mov_b64 s[44:45], s[6:7]", "K"); a("s_brev_b32 s46, 16"); a("s_mov_b32 s47, 0x20000")
        a("s_mov_b64 s[48:49], s[8:9]", "V"); a("s_brev_b32 s50, 16"); a("s_mov_b32 s51, 0x20000")
        a("s_mov_b64 s[72:73], s[6:7]", "K or V"); a("s_brev_b32 s74, 16"); a("s_mov_b32 s75, 0x20000")
    pm = [set(x.split("^")) for x in pmap.split()]
    PB = [b for b in range(11, 23) if b != i1bit]
    assert len(pm) == 11 and i1bit != 11
    def mask_of(sym): return sum(1 << PB[p] for p in range(11) if sym in pm[p])
    def scalar_part(dst, srcs, base=True):
        a(f"s_lshl_b32 {dst}, s38, 23" if base else f"s_mov_b32 {dst}, 0")
        for pre, (reg, nb) in srcs.items():
            masks = [mask_of(f"{pre}{i}") for i in range(nb)]
            if masks[0] and all(masks[i] == masks[0] << i for i in range(nb)) and bin(masks[0]).count("1") == 1:
                a(f"s_lshl_b32 s35, {reg}, {masks[0].bit_length()-1}")
                a(f"s_xor_b32 {dst}, {dst}, s35")
                continue
            for i in range(nb):
                if masks[i]:
                    a(f"s_bfe_i32 s35, {reg}, {0x10000 + i:#x}")
                    a(f"s_and_b32 s35, s35, {masks[i]:#x}")
                    a(f"s_xor_b32 {dst}, {dst}, s35")
    def lane_bits(vdst, vsrc, pre, nb):
        for i in range(nb):
            a(f"v_bfe_i32 v7, v{vsrc}, {i}, 1")
            a(f"v_and_b32 v7, {mask_of(pre + str(i)):#x}, v7")
            a(f"v_xor_b32 v{vdst}, v{vdst}, v7")
    def nconst(n):
        c = 0
        for i in range(5):
            if n >> i & 1: c ^= mask_of(f"n{i}")
        return c
    def issue(reg, voff, srd, pat, down=False, ks=range(4)):
        last = max(k for k in range(4) if pat[k] != "-")
        assert pat[0] != "-" and (int(pat[last]) + 4 - last <= 8 or pat == f"{NP}---")
        seq = (2, 0, 3, 1) if down else (0, 2, 1, 3)
        for k, u in enumerate(seq):
            if k not in ks: continue
            if k: a(f"s_bitset{u >> 1}_b32 s52, {i1bit}")
            if pat[k] != "-": a(f"s_waitcnt vmcnt({pat[k]})")
            a(f"buffer_load_dwordx4 v[{reg+4*u}:{reg+4*u+3}], v{voff}, {srd}, s52 offen offset:{(u&1)*1024} {kvflags}")
        if 3 in ks: tstamp()
    rest = list(range(2, RH))
    PERM = [0 if p == (RH - 1) // 2 else 1 if p == RH - 1 else rest.pop(0) for p in range(RH)]
    def preg(n): return VR + 16 * (RH + n if n < NE else PERM[n % RH])

    section("E")
    lab(KN)
    a("s_load_dwordx16 s[4:19], s[0:1], 0", "s[4:5]=x s[6:7]=K s[8:9]=V s[12:13]=wo")
    a("s_load_dwordx8 s[20:27], s[0:1], 64", "s[20:21]=W_down s[22:23]=out s[26:27]=ws")
    if ts: a("s_memrealtime s[70:71]")
    a("v_lshrrev_b32 v1, 6, v0")
    a("s_cmpk_ge_u32 s2, 256")
    a("s_cbranch_scc1 L_end")
    a("v_readfirstlane_b32 s3, v1", "wave")
    a("v_and_b32 v0, 63, v0", "lane")
    a("s_mul_i32 s39, s2, 0x200408", "wq tile as a byte offset: bits 7..12 column block, bit 21 k-half")
    a("s_and_b32 s39, s39, 0x201f80")
    assert len({(w * 0x200408) & 0x201f80 for w in range(256) if not w & 8}) == 128
    a("s_sub_u32 s42, s3, 1", "w")
    a("s_cbranch_scc1 L_xwave")
    a("s_cmp_eq_u32 s3, 5")
    a("s_cbranch_scc1 L_wwave")
    a("s_lshl_b32 s36, s42, 19", "wg bit 3 clear: wq tile, wave w loads rows 64w..")
    a("s_or_b32 s36, s36, s39")
    a("s_movk_i32 s37, 8192")
    a("s_mov_b32 s35, 24")
    a("s_bitcmp0_b32 s2, 3")
    a("s_cbranch_scc1 L_job")
    a("s_andn2_b32 s35, 0x86, s2", "wg bit 3 set: gate (waves 0,1) / up (waves 2,3) tile; 16 workgroups have none")
    a("s_cbranch_scc0 L_srest")
    a("s_lshr_b32 s36, s2, 3")
    a("s_and_b32 s37, s36, 24")
    a("s_min_u32 s37, s37, 22")
    a("s_and_b32 s35, s2, 7")
    a("s_add_u32 s37, s37, s35", "column block")
    a("s_and_b32 s36, s36, 6")
    a("s_and_b32 s35, s42, 1")
    a("s_or_b32 s36, s36, s35", "64-row block")
    a("s_mulk_i32 s36, 1792")
    a("s_add_u32 s36, s36, s37")
    a("s_lshl_b32 s36, s36, 7")
    a("s_movk_i32 s37, 3584")
    a("s_lshr_b32 s35, s42, 1")
    a("s_lshl3_add_u32 s35, s35, 48")
    lab("L_job")
    a("s_load_dwordx2 s[40:41], s[0:1], s35", "wq, W_gate or W_up")
    a("v_lshrrev_b32 v2, 3, v0")
    a("v_and_b32 v3, 7, v0")
    a("v_mul_u32_u24 v2, s37, v2")
    a("v_lshl_add_u32 v2, v3, 4, v2")
    a("v_add_u32 v2, s36, v2")
    a("s_lshl_b32 m0, s42, 13")
    a("s_lshl_b32 s37, s37, 3")
    a("s_lshl_b32 s36, s3, 13")
    a("s_waitcnt lgkmcnt(0)")
    lab("L_wdma")
    a(f"global_load_lds_dwordx4 v2, s[40:41] {wflags}")
    a("s_addk_i32 m0, 1024")
    a("v_add_u32 v2, s37, v2")
    a("s_cmp_lg_u32 m0, s36")
    a("s_cbranch_scc1 L_wdma")
    a("s_branch L_srest")

    section("X1")
    cur[0].append(".p2align 8")
    lab("L_xwave")
    a("v_lshlrev_b32 v1, 5, v0")
    a("v_mov_b32 v6, 0")
    a("v_mov_b32 v7, 0")
    a("v_lshlrev_b32 v5, 3, v0")
    a(f"ds_write_b64 v5, v[6:7] offset:{L_Z}", "zero block + flags")
    a("s_waitcnt lgkmcnt(0)")
    a("global_load_dwordx4 v[8:11], v1, s[4:5]")
    a("global_load_dwordx4 v[12:15], v1, s[4:5] offset:16")
    a("s_load_dword s33, s[26:27], 0", "epoch")
    a("s_setprio 2")
    zero_stamps()
    decode()
    a("s_and_b32 s67, s39, 0x200300")
    a("s_and_b32 s36, s2, 8")
    a("s_or_b32 s67, s67, s36")
    a("s_cbranch_scc1 L_x2")
    a("s_bfe_u32 s36, s39, 0x3000a")
    a("s_bfe_u32 s37, s39, 0x10007")
    a("s_lshl3_add_u32 s36, s37, s36")
    a(f"s_mul_i32 s36, s36, {ctstride}")
    a(f"s_add_u32 s36, s36, {WS_CT}")
    a("v_lshl_add_u32 v5, v0, 2, s36")
    a("global_store_dword v5, v6, s[26:27] sc1")
    a("s_branch L_x2")

    section("W")
    align("w")
    lab("L_wwave")
    a("s_getpc_b64 s[68:69]", "touch every 128-B line of the code (results unused)")
    lab("L_wpc")
    a(f"s_sub_u32 s68, s68, L_wpc-{KN}")
    a("s_subb_u32 s69, s69, 0")
    a("v_lshlrev_b32 v7, 7, v0")
    a("v_add_u32 v8, L_codeend-" + KN + "-8192, v7")
    if l2pf is True:
        a("global_load_dword v9, v7, s[68:69]")
        a("global_load_dword v9, v8, s[68:69]")
    elif l2pf:
        a(f"s_cmp_ge_u32 s2, {l2pf}")
        a("s_cbranch_scc1 L_nl2")
        a("global_load_dword v9, v7, s[68:69]")
        a("global_load_dword v9, v8, s[68:69]")
        lab("L_nl2")
    a("s_waitcnt lgkmcnt(0)")
    if tlb:
        note("touch pages this workgroup uses later (one dword each, results unused)")
        a("s_and_b32 s34, s2, 127")
        a("s_mov_b64 exec, 1")
        a("s_lshl_b32 s36, s2, 19")
        a("v_mov_b32 v3, s36")
        if "k" in tlb: a("global_load_dword v9, v3, s[6:7] nt")
        if "v" in tlb: a("global_load_dword v9, v3, s[8:9] nt")
        if "w" in tlb:
            a(f"s_mul_i32 s36, s34, {14*1024}")
            a("v_mov_b32 v3, s36")
            a("global_load_dword v9, v3, s[20:21] nt")
            a("s_lshl_b32 s36, s34, 15")
            a("v_mov_b32 v3, s36")
            a("global_load_dword v9, v3, s[12:13] nt")
        if "q" in tlb:
            a("v_mov_b32 v3, 1024")
            a("global_load_dword v9, v3, s[26:27] nt")
        if "p" in tlb:
            a("s_lshl_b32 s36, s2, 12")
            a(f"s_add_u32 s36, s36, {WS_P1}")
            a("v_mov_b32 v3, s36")
            a("global_load_dword v9, v3, s[26:27] nt")
            a(f"v_add_u32 v3, {WS_P2 - WS_P1}, v3")
            a("global_load_dword v9, v3, s[26:27] nt")
            a("v_xor_b32 v3, 0x80000, v3")
            a("global_load_dword v9, v3, s[26:27] nt")
        a("s_mov_b64 exec, -1")
    a("s_barrier", "barrier 0")
    srds()
    for r in [6, 14, VKO, VVO, VB] + list(range(VT, VT + 21)): a(f"v_mov_b32 v{r}, 0")
    a("s_mov_b64 exec, 0")
    for r in (42, 41, 33, 29, 76, 77): a(f"s_mov_b32 s{r}, 0")
    a("s_mov_b32 s54, 1")
    a("s_mov_b64 s[96:97], 0")
    a("s_mov_b64 s[98:99], 0")
    a("s_branch L_kpre")

    section("S")
    align("s")
    lab("L_srest")
    a("s_waitcnt lgkmcnt(0)")
    zero_stamps()
    if ts:
        a("v_mov_b32 v13, 0")
        a("s_mov_b32 s79, 1")
    stamp(9)
    decode()
    srds()
    scalar_part("s66", {"w": ("s42", 2), "r": ("s32", 4), "g": ("s38", 4)})
    a("v_lshrrev_b32 v2, 4, v0")
    a("v_and_b32 v3, 3, v0")
    a("v_bfe_u32 v4, v0, 2, 2")
    a("v_lshlrev_b32 v5, 8, v4")
    a("v_lshl_add_u32 v5, v2, 6, v5")
    a(f"v_lshl_add_u32 v{VKO}, v3, 4, v5", "K lane offset: key (lane>>2)&3, 16-B chunk 4(lane>>4) + (lane&3)")
    a("s_mov_b32 s52, s66")
    issue(preg(0), VKO, "s[44:47]", f"{NP}---")
    a(f"v_lshlrev_b32 v{VVO}, 4, v0", "V lane offset")
    a("v_mov_b32 v10, s66", "v10[n] = offset of this wave's tile n")
    lane_bits(10, 0, "n", 5)
    scalar_part("s55", {"w": ("s42", 2)}, base=False)
    a("s_lshl_b32 s36, s42, 2")
    a("v_mov_b32 v14, s36", "request slot")
    a("v_mov_b32 v6, 0xffff")
    a("v_mov_b32 v7, 0xffff0000")
    a("v_and_b32 v8, 1, v0")
    a("v_cmp_eq_u32 vcc, 1, v8")
    a("v_and_b32 v8, 2, v0")
    a("s_nop 0")
    a("v_cndmask_b32 v6, v6, v7, vcc")
    a("v_cmp_eq_u32 vcc, 2, v8")
    a(f"v_mov_b32 v{VM}, {f2u(-3.0e38):#x}")
    a(f"v_mov_b32 v{VL}, 0")
    a(f"v_cndmask_b32 v{VM1}, 0, v6, vcc", "P.V selector masks: bf16 slot lane&3 of the A fragment")
    a(f"v_xor_b32 v{VM0}, v{VM1}, v6")
    for i in range(8): a(f"v_mov_b32 v{VO+i}, 0")
    if mimic:
        a(f"s_mov_b32 s53, {f2u(math.log2(math.e)):#x}", "log2(e)")
        a(f"s_mov_b32 s43, {f2u(128.0 ** -0.5):#x}", "1/sqrt(128)")
        a("s_mov_b32 s67, 0xffff0000")
    else:
        a(f"s_mov_b32 s53, {f2u(math.log2(math.e) / math.sqrt(128.0)):#x}", "log2(e)/sqrt(128)")
    a("s_mov_b32 s54, 1000", "counts down; set to 0 for the last tile")
    a(f"s_mov_b32 s41, {RH + NE}", "next tile to issue")
    a(f"s_mov_b32 s76, {NA // RH - (3 if peel else 1)}")
    a(f"s_mov_b32 s77, {NA // RH - 1}")
    a("s_mov_b64 s[96:97], -1", "EXEC: all lanes")
    a("s_mov_b32 s98, 0x11111111", "EXEC: lane 0 of every quad")
    a("s_mov_b32 s99, 0x11111111")
    a(f"v_mov_b32 v{VB}, v{VKO}")
    a(f"s_mul_i32 s36, s42, {NA * 256}")
    a(f"v_lshl_add_u32 v{VSR}, v0, 2, s36")
    a(f"v_and_b32 v{VSW}, -16, v{VSR}")
    a("v_lshrrev_b32 v3, 4, v0", "g")
    a("v_and_b32 v4, 15, v0", "c")
    a("v_bfe_u32 v5, v0, 2, 2")
    a("s_lshl_b32 s35, s42, 11")
    a(f"v_lshl_add_u32 v{T_OW}, v0, 5, s35")
    a("s_lshl_b32 s36, s42, 3")
    a(f"v_lshl_add_u32 v{T_SW}, v5, 5, s36")
    a("s_lshl_b32 s35, s42, 9")
    a(f"v_lshl_add_u32 v{T_OR}, v0, 3, s35")
    a("s_lshl_b32 s36, s42, 5")
    a(f"v_mov_b32 v{T_SR}, s36")
    a("s_lshl_b32 s35, s2, 12")
    a("s_lshl_b32 s36, s42, 10")
    a("s_add_u32 s36, s35, s36")
    a(f"s_add_u32 s37, s36, {WS_P1}")
    a(f"v_lshl_add_u32 v{T_P1S}, v0, 4, s37", "P1 + wg*4096 + thread*16")
    a("s_lshl_b32 s36, s38, 16")
    a("s_lshl_b32 s37, s32, 8")
    a("s_add_u32 s36, s36, s37")
    a("s_lshl_b32 s37, s42, 6")
    a("s_add_u32 s36, s36, s37")
    a(f"s_add_u32 s36, s36, {WS_P1}")
    a(f"v_lshl_add_u32 v{T_P1L}, v4, 12, s36")
    a(f"v_lshl_add_u32 v{T_P1L}, v3, 4, v{T_P1L}", "P1 + (group*16 + c)*4096 + (16 split + 4w + g)*16")
    a("s_lshl_b32 s36, s42, 4")
    a(f"v_lshl_add_u32 v{T_OBW}, v3, 2, s36")
    a("s_lshl_b32 s36, s42, 6")
    a("s_lshl_b32 s37, s2, 3")
    a("s_add_u32 s36, s36, s37")
    a("v_lshl_add_u32 v1, v4, 2, v3")
    a("v_add_u32 v1, s36, v1")
    a("v_and_b32 v1, 255, v1")
    a(f"s_add_u32 s37, s35, {WS_P2}")
    a(f"v_lshl_add_u32 v{T_P2S}, v1, 4, s37", "P2 + wg*4096 + ((64w + 4c + g + 8wg) & 255)*16")
    a("s_lshl_b32 s36, s42, 8")
    a("v_lshl_add_u32 v1, v4, 4, s36")
    a("s_lshl_b32 s36, s34, 15")
    a("s_add_u32 s36, s36, 4096")
    a("v_lshl_add_u32 v2, v3, 13, s36")
    a(f"v_add_u32 v{T_WO}, v1, v2", "wo rows 32 idx + 8g + i, columns 128w + 8c..")
    a(f"s_mul_i32 s36, s34, {14*1024}")
    a("v_add_u32 v1, s36, v1")
    a("s_and_b32 s36, s34, 1")
    a("v_lshlrev_b32 v2, 1, v3")
    a("v_subrev_u32 v2, s36, v2")
    a("v_max_i32 v5, 0, v2")
    a(f"v_lshl_add_u32 v{T_D0}, v5, 11, v1", "W_down rows 14 idx + 2 clamp(2g + p - (idx&1), 0, 6) + i")
    a("v_add_u32 v2, 1, v2")
    a("v_min_i32 v5, 6, v2")
    a(f"v_lshl_add_u32 v{T_D1}, v5, 11, v1")
    a(f"v_lshlrev_b32 v{T_H}, 3, v3")
    a(f"v_lshlrev_b32 v{T_OBR}, 4, v3")
    a("v_and_b32 v2, 7, v0")
    a(f"v_lshlrev_b32 v{T_FR}, 4, v2")
    a("s_lshl_b32 s35, s42, 7")
    a(f"v_lshl_add_u32 v1, v3, 2, v{T_FR}")
    a(f"v_add_u32 v{T_FW}, s35, v1")
    a("s_lshr_b32 s35, s28, 2")
    a("s_and_b32 s36, s28, 3")
    a("s_lshl_b32 s36, s36, 3")
    a("s_lshr_b32 s37, s29, 2")
    a("s_add_u32 s36, s36, s37")
    a("v_lshrrev_b32 v3, 3, v0")
    a("s_lshl2_add_u32 s37, s35, s42")
    a("s_lshl_b32 s37, s37, 17")
    a(f"s_add_u32 s37, s37, {WS_P2}")
    a(f"v_add_u32 v5, s37, v{T_FR}")
    for k in range(4):
        a(f"v_add_u32 v1, {8*k}, v3")
        a("v_add_u32 v4, s36, v1")
        a("v_and_b32 v4, 31, v4")
        a("v_lshl_add_u32 v4, v4, 7, v5")
        a(f"v_lshl_add_u32 v{T_F0+k}, v1, 12, v4")
    a("s_lshl_b32 s37, s35, 10")
    a("s_lshl_b32 s36, s36, 5")
    a("s_add_u32 s37, s37, s36")
    a(f"v_lshl_add_u32 v{T_XO}, v2, 2, s37")
    a("s_mov_b32 s64, 0x05040100")
    a("s_mov_b32 s65, 0x07060302")
    a("s_mov_b32 s39, 0xffffff00")
    a("v_mov_b32 v6, 0")
    for p in range(RH + NE):
        if p:
            a(f"s_xor_b32 s52, s66, {nconst(p):#x}")
            issue(preg(p), VKO, "s[44:47]", (WL0 if WL0 and p == RH + NE - 1 else WP) if p >= pre_bar else "4---")
        if p == pre_bar - 1:
            a(f"s_waitcnt vmcnt({4 * pre_bar})")
            if probe is not None: stamp(11)
            a("s_barrier", "barrier 0: weight tile landed, LDS flags cleared")
            stamp(10)
        if p == pq:
            a("s_mov_b64 exec, 1", "q is needed soon: let the X wave gather it")
            a("v_mov_b32 v15, 1")
            a(f"ds_write_b32 v14, v15 offset:{L_GO}")
            a("s_mov_b64 exec, -1")
    stamp(1)
    a(f"s_mov_b32 s40, {spin * 8}")
    lab("L_qflag")
    a(f"ds_read_b64 v[2:3], v6 offset:{L_TAG}")
    a("s_waitcnt lgkmcnt(0)")
    a("v_cmp_eq_u32 vcc, 0, v3")
    a("s_cbranch_vccz L_qflag_done")
    a("s_sleep 1")
    a("s_sub_u32 s40, s40, 1")
    a("s_cbranch_scc0 L_qflag")
    lab("L_qflag_done")
    if sprio: a(f"s_setprio {sprio}")
    a(f"ds_read_b128 v[{VQ}:{VQ+3}], v{VKO} offset:{L_Q}")
    a("v_mov_b32 v17, v2", "tag")
    a("v_readfirstlane_b32 s33, v2")
    stamp(2)
    a("s_nop 1")
    tagregs()
    a("s_waitcnt lgkmcnt(0)")
    def claim(first=False):
        a("s_mov_b32 s35, 1" if first else f"s_sub_u32 s35, s41, {NS - 1}", "ask the X wave for step s41")
        a("s_mov_b64 exec, 1")
        a("v_mov_b32 v15, s35")
        a(f"ds_write_b32 v14, v15 offset:{L_REQ}")
        a("s_mov_b64 exec, -1")
    def qk(K):
        for u in range(4):
            a(f"v_mfma_f32_16x16x32_bf16 v[{VS+4*u}:{VS+4*u+3}], v[{K+4*u}:{K+4*u+3}], v[{VQ}:{VQ+3}], 0")
    def pv(V):
        for t in range(4):
            a(f"v_mfma_f32_16x16x16_bf16 v[{VO}:{VO+3}], v[{VA+2*t}:{VA+2*t+1}], v[{V+4*t}:{V+4*t+1}], v[{VO}:{VO+3}]")
            a(f"v_mfma_f32_16x16x16_bf16 v[{VO+4}:{VO+7}], v[{VA+2*t}:{VA+2*t+1}], v[{V+4*t+2}:{V+4*t+3}], v[{VO+4}:{VO+7}]")
    DPP = "row_mask:0xf bank_mask:0xf"
    def rowmax(dst):
        a("v_permlane16_swap_b32 v1, v2")
        a("s_nop 0")
        a("v_max_f32 v1, v1, v2")
        a("v_mov_b32 v2, v1")
        a("s_nop 1")
        a("v_permlane32_swap_b32 v1, v2")
        a("s_nop 0")
        a(f"v_max_f32 v{dst}, v1, v2")
    def scale1(dst, src):
        a(f"v_cvt_pk_bf16_f32 v{dst}, v{src}, v{src}")
        a(f"v_and_b32 v{dst}, s67, v{dst}")
        a(f"v_mul_f32 v{dst}, s43, v{dst}")
        a(f"v_cvt_pk_bf16_f32 v{dst}, v{dst}, v{dst}")
        a(f"v_and_b32 v{dst}, s67, v{dst}")
    def scale4():
        for rep in range(2):
            a("v_cvt_pk_bf16_f32 v5, v4, v5")
            a("v_cvt_pk_bf16_f32 v7, v6, v7")
            a("v_lshlrev_b32 v4, 16, v5")
            a("v_lshlrev_b32 v6, 16, v7")
            a("v_and_b32 v5, s67, v5")
            a("v_and_b32 v7, s67, v7")
            if rep == 0:
                for i in range(4): a(f"v_mul_f32 v{4+i}, s43, v{4+i}")
    def softmax(hook=lambda k: None):
        for u in range(4): a(f"v_mov_b32_dpp v{4+u}, v{VS+4*u} quad_perm:[0,0,0,0] {DPP}")
        for p in range(1, 4):
            for u in range(4): a(f"v_add_f32_dpp v{4+u}, v{VS+4*u+p}, v{4+u} quad_perm:[{p},{p},{p},{p}] {DPP}")
        hook(1)
        if mimic: scale4()
        a("v_max3_f32 v1, v4, v5, v6")
        a(f"v_max3_f32 v1, v1, v7, v{VM}")
        a("v_mov_b32 v2, v1")
        a("s_nop 1")
        rowmax(1)
        a(f"v_sub_f32 v2, v{VM}, v1")
        a("v_mul_f32 v3, s53, v1")
        a("v_mul_f32 v2, s53, v2")
        a(f"v_mov_b32 v{VM}, v1")
        a("v_exp_f32 v2, v2", "rescale factor")
        for i in range(4): a(f"v_fma_f32 v{4+i}, v{4+i}, s53, -v3")
        hook(2)
        for i in range(4): a(f"v_exp_f32 v{4+i}, v{4+i}")
        for g in range(4): a(f"v_mov_b32_dpp v8, v2 row_newbcast:{4*g} row_mask:{1<<g:#x} bank_mask:0xf")
        a(f"v_fma_f32 v{VL}, v{VL}, v2, v4")
        a("v_add_f32 v9, v5, v6")
        a(f"v_add_f32 v{VL}, v{VL}, v7")
        a(f"v_add_f32 v{VL}, v{VL}, v9")
        for i in range(4): a(f"v_cvt_pk_bf16_f32 v{4+i}, v{4+i}, v{4+i}")
        hook(3)
        for i in range(8): a(f"v_mul_f32 v{VO+i}, v{VO+i}, v8")
        for i in range(4):
            a(f"v_and_b32 v{VA+2*i}, v{4+i}, v{VM0}")
            a(f"v_and_b32 v{VA+2*i+1}, v{4+i}, v{VM1}")
    def scores(K, p, ring):
        qk(K)
        if ring:
            a("v_readlane_b32 s52, v10, s41")
            a("s_add_u32 s41, s41, 1")
            a("s_nop 2")
        else:
            a("s_nop 4")
        for u in range(4): a(f"v_add_f32_dpp v{4+u}, v{VS+4*u+1}, v{VS+4*u} quad_perm:[1,1,1,1] {DPP}")
        for q_ in (2, 3):
            for u in range(4): a(f"v_add_f32_dpp v{4+u}, v{VS+4*u+q_}, v{4+u} quad_perm:[{q_},{q_},{q_},{q_}] {DPP}")
        a("s_mov_b64 exec, s[98:99]")
        a(f"v_max3_f32 v{VM}, v4, v5, v{VM}")
        a(f"ds_write_b128 v{VSW}, v[4:7] offset:{L_SC + p*256}")
        a(f"v_max3_f32 v{VM}, v6, v7, v{VM}")
        a("s_mov_b64 exec, s[96:97]")
    lab("L_kpre")
    if peel:
        assert NE == RH and NA >= 3 * RH
        for p in range(RH):
            K = VR + PERM[p] * 16
            scores(K, RH + p, True)
            guarded(lambda: issue(K, VKO, "s[44:47]", WS, ks=(0, 1)))
            scores(preg(p), p, False)
            guarded(lambda: issue(K, VKO, "s[44:47]", WS, ks=(2, 3)))
        a(f"v_add_u32 v{VSW}, {2*RH*256}, v{VSW}")
    else:
        assert NE < RH
        for p in range(NE): scores(preg(p), p, False)
        if NE: a(f"s_cbranch_execnz L_kp{NE}", "their ring slots already hold later tiles")
    align("k")
    lab("L_kloop")
    a("s_cmp_lg_u32 s76, 0")
    a("s_cbranch_scc1 L_kp0")
    if probe is not None: stamp(12)
    a("s_mov_b64 s[72:73], s[8:9]", "last trip: refill with V tiles 0..")
    a(f"v_mov_b32 v{VB}, v{VVO}")
    a("s_mov_b32 s41, 0")
    for p in range(RH):
        K = VR + PERM[p] * 16
        lab(f"L_kp{p}")
        scores(K, p, True)
        guarded(lambda: issue(K, VB, "s[72:75]", WS))
    a(f"v_add_u32 v{VSW}, {RH*256}, v{VSW}")
    a("s_sub_u32 s76, s76, 1")
    a("s_cbranch_scc0 L_kloop")
    a(f"ds_read_b32 v9, v{VSR} offset:{L_SC}")
    a(f"v_mov_b32_dpp v1, v{VM} quad_perm:[0,0,0,0] {DPP}")
    a(f"v_mov_b32_dpp v2, v{VM} quad_perm:[0,0,0,0] {DPP}")
    a("s_mov_b32 s78, 1")
    a("s_nop 0")
    rowmax(VM)
    if mimic: scale1(VM, VM)
    a(f"v_mul_f32 v3, s53, v{VM}")
    WL = [f"global_load_dwordx4 v[{RD+4*i}:{RD+4*i+3}], v{T_D0 + i//2}, s[20:21] offset:{(i&1)*1024} {woflags}" for i in range(4)]
    WL += [f"global_load_dwordx4 v[{RW+4*i}:{RW+4*i+3}], v{T_WO}, s[12:13] offset:{i*1024-4096} {woflags}" for i in range(8)]
    assert nV in (0, 4, 8, 12) and nA >= nV and not (nV and r0)
    vsn = []
    align("v")
    lab("L_vloop")
    a("s_cmp_lg_u32 s77, 0")
    a("s_cbranch_scc1 L_v0")
    a("s_mov_b64 s[72:73], s[6:7]", f"last trip: refill only slots 0, 1 with K, V of tile {NA}")
    a(f"v_mov_b32 v{VB}, v{VKO}")
    a("s_mov_b32 s78, 0")
    lab("L_v0")
    for p in range(RH):
        sl = PERM[p]
        V = VR + sl * 16
        a("v_readlane_b32 s52, v10, s41")
        a("s_waitcnt lgkmcnt(0)")
        if mimic:
            scale1(4, 9)
            a("v_fma_f32 v4, v4, s53, -v3")
        else:
            a("v_fma_f32 v4, v9, s53, -v3")
        a(f"ds_read_b32 v9, v{VSR} offset:{L_SC + (p+1)*256}")
        a("v_exp_f32 v4, v4")
        a("s_add_u32 s41, s41, 1" if sl == 1 else "s_add_u32 s41, s41, s78")
        a("v_cvt_pk_bf16_f32 v5, v4, v4")
        a(f"v_add_f32 v{VL}, v{VL}, v4")
        a("s_nop 0")
        for t in range(4):
            a(f"v_and_b32_dpp v{VA+2*t}, v5, v{VM0} quad_perm:[{t},{t},{t},{t}] {DPP}")
            a(f"v_and_b32_dpp v{VA+2*t+1}, v5, v{VM1} quad_perm:[{t},{t},{t},{t}] {DPP}")
        if p == RH - 1:
            a("s_cmp_lg_u32 s77, 0", "last trip: only the K refill is younger than this slot's loads")
            a("s_cbranch_scc1 L_vw")
            a(f"s_waitcnt vmcnt({4 + nV})")
            lab("L_vw")
        pv(V)
        if sl >= 2:
            a("s_cmp_eq_u32 s77, 0")
            k4 = sl - 4
            if 0 <= k4 < nV // 4:
                a(f"s_cbranch_scc1 L_vx{p}")
                vsn.append((p, WL[4*k4:4*k4+4]))
            else:
                a(f"s_cbranch_scc1 L_vs{p}")
            issue(V, VVO, "s[48:51]", WS)
            lab(f"L_vs{p}")
        elif sl == 0:
            if rq == 4: guarded(lambda: issue(V, VB, "s[72:75]", WS))
            if NS == NA + 1:
                a("s_cmp_lg_u32 s77, 0")
                a("s_cbranch_scc1 L_vnc")
                guarded(lambda: claim(first=True))
                lab("L_vnc")
            if rq < 4: guarded(lambda: issue(V, VB, "s[72:75]", WS))
        else:
            guarded(lambda: issue(V, VVO, "s[48:51]", WS))
    a(f"v_add_u32 v{VSR}, {RH*256}, v{VSR}")
    a("s_sub_u32 s77, s77, 1")
    a("s_cbranch_scc0 L_vloop")
    a(f"v_add_f32_dpp v{VL}, v{VL}, v{VL} quad_perm:[1,0,3,2] {DPP}")
    a("s_waitcnt lgkmcnt(0)")
    a("s_nop 0")
    a(f"v_add_f32_dpp v{VL}, v{VL}, v{VL} quad_perm:[2,3,0,1] {DPP}")
    a("s_cbranch_execnz L_loop")
    a("s_mov_b32 s41, 63")
    align("m")
    lab("L_loop")
    assert int(WM[0]) <= 4
    for slot in range(2):
        oth = 1 - slot
        a("v_readlane_b32 s52, v10, s41")
        a(f"s_cmp_ge_u32 s41, {NS}")
        a(f"s_cbranch_scc1 L_tk{slot}")
        a("s_nop 1")
        lab(f"L_gk{slot}")
        issue(VR + oth * 32, VKO, "s[44:47]", WM, ks=(0,) if mi else range(rq))
        a("s_add_u32 s41, s41, 1")
        a(f"s_cmp_lt_u32 s41, {NS}")
        a(f"s_cbranch_scc1 L_nc{slot}")
        claim()
        lab(f"L_nc{slot}")
        if not mi: issue(VR + oth * 32, VKO, "s[44:47]", WM, ks=range(rq, 4))
        lab(f"L_rk{slot}")
        qk(VR + slot * 32)
        a("s_nop 4")
        def hook(k):
            a("s_cmp_lt_u32 s54, 2")
            a(f"s_cbranch_scc1 L_mk{slot}{k}")
            issue(VR + oth * 32, VKO, "s[44:47]", WM, ks=(k,))
            lab(f"L_mk{slot}{k}")
        softmax(hook) if mi else softmax()
        a("s_cmp_lt_u32 s54, 2")
        a(f"s_cbranch_scc1 L_dv{slot}")
        issue(VR + oth * 32 + 16, VVO, "s[48:51]", WM, down=True, ks=(0,) if mi else range(4))
        lab(f"L_rv{slot}")
        pv(VR + slot * 32 + 16)
        a("s_sub_u32 s54, s54, 1")
        a("s_cbranch_scc1 L_done")
        if mi: guarded(lambda: issue(VR + oth * 32 + 16, VVO, "s[48:51]", WM, down=True, ks=(1, 2, 3)))
    a("s_branch L_loop")
    for p, ls in vsn:
        lab(f"L_vx{p}")
        a(f"s_cbranch_execz L_vs{p}")
        for k, x in enumerate(ls):
            if WS[k] != "-": a(f"s_waitcnt vmcnt({WS[k]})")
            a(x)
        a(f"s_branch L_vs{p}")
    for slot in range(2):
        lab(f"L_tk{slot}")
        a(f"s_cbranch_execz L_rk{slot}")
        a("s_lshl_b32 s35, s41, 2")
        a(f"s_add_u32 s35, s35, {L_TK - 4 * NS}")
        a("v_mov_b32 v15, s35")
        a(f"s_mov_b32 s40, {spin * 8}")
        lab(f"L_tp{slot}")
        a("ds_read_b32 v16, v15", "-1: not served yet, -2: pool empty")
        a("s_sub_u32 s40, s40, 1")
        a(f"s_cbranch_scc1 L_tf{slot}")
        a("s_waitcnt lgkmcnt(0)")
        a("v_readfirstlane_b32 s35, v16")
        a("s_nop 1")
        a("s_cmp_eq_u32 s35, -1")
        a(f"s_cbranch_scc1 L_tp{slot}")
        a("s_xor_b32 s52, s35, s55")
        a("s_cmp_lt_u32 s35, -3")
        a(f"s_cbranch_scc1 L_gk{slot}")
        if r0: a("s_and_b32 s78, s35, 1", "early finisher")
        lab(f"L_tf{slot}")
        a("s_mov_b32 s54, 0")
        a("s_waitcnt vmcnt(4)")
        a(f"s_branch L_rk{slot}")
        lab(f"L_dv{slot}")
        if r0 and nA:
            a("s_cmp_lg_u32 s78, 0")
            a(f"s_cbranch_scc1 L_de{slot}")
        if nA > nV: guard(WL[nV:nA])
        if r0 and nA: lab(f"L_de{slot}")
        a(f"v_mov_b32 v2, v{VL}")
        a(f"v_mul_f32 v10, s53, v{VM}")
        a("s_nop 0")
        a(f"v_permlane16_swap_b32 v{VL}, v2")
        a("s_nop 0")
        a(f"v_add_f32 v11, v{VL}, v2")
        a("v_mov_b32 v2, v11")
        a("s_nop 1")
        a("v_permlane32_swap_b32 v11, v2")
        a("s_nop 0")
        a("v_add_f32 v11, v11, v2")
        a(f"ds_write_b64 v{T_SW}, v[10:11] offset:{L_ST}")
        a(f"s_waitcnt vmcnt({nA - nV})")
        if r0 and nA:
            a(f"s_cbranch_scc0 L_rv{slot}")
            a("s_waitcnt vmcnt(0)")
        a(f"s_branch L_rv{slot}")
    align("d")
    lab("L_done")
    stamp(3)
    if tt:
        a("s_mov_b32 s94, s41")
        a(f"v_mov_b32 v{VR}, v13")
    poll1 = f"global_load_dwordx4 v[8:11], v{T_P1L}, s[26:27] sc1"
    if gap1 == "prio": a("s_setprio 3")
    a("s_nop 4")
    a(f"ds_write_b128 v{T_OW}, v[{VO}:{VO+3}] offset:{L_O}")
    a(f"ds_write_b128 v{T_OW}, v[{VO+4}:{VO+7}] offset:{L_O+16}")
    a("s_waitcnt lgkmcnt(0)")
    guard(["s_barrier"])
    a(f"ds_read_b128 v[8:11], v{T_SR} offset:{L_ST}")
    a(f"ds_read_b128 v[12:15], v{T_SR} offset:{L_ST+16}")
    for w in range(4): a(f"ds_read_b64 v[{24+2*w}:{25+2*w}], v{T_OR} offset:{L_O + w*2048}")
    a("v_mov_b32 v39, v17")
    a("s_waitcnt lgkmcnt(4)")
    a("v_max3_f32 v2, v8, v10, v12")
    a("v_max_f32 v2, v2, v14")
    for w in range(4): a(f"v_sub_f32 v{8+2*w}, v{8+2*w}, v2")
    for w in range(4): a(f"v_exp_f32 v{8+2*w}, v{8+2*w}")
    a("v_mul_f32 v16, v8, v9")
    a("v_fmac_f32 v16, v10, v11")
    a("v_fmac_f32 v16, v12, v13")
    a("v_fmac_f32 v16, v14, v15")
    a("s_waitcnt lgkmcnt(0)")
    a("v_rcp_f32 v5, v16")
    a("v_log_f32 v16, v16")
    a("v_mul_f32 v36, v8, v24")
    a("v_mul_f32 v37, v8, v25")
    for w in range(1, 4):
        a(f"v_fmac_f32 v36, v{8+2*w}, v{24+2*w}")
        a(f"v_fmac_f32 v37, v{8+2*w}, v{25+2*w}")
    a("v_add_f32 v38, v2, v16", "log2 of the partial sum")
    a("v_mul_f32 v36, v36, v5")
    a("v_mul_f32 v37, v37, v5")
    assert not pollfirst
    def gap(kind):
        if kind == "bar": a("s_barrier", "all four stores go out before any wave's loads")
        if kind == "prio": a("s_setprio 0")
    if not r0:
        def f():
            a(f"global_store_dwordx4 v{T_P1S}, v[36:39], s[26:27] sc1")
            stamp(4)
            gap(gap1)
            for x in WL[nA:] + [poll1]: a(x)
        guarded(f)
    else:
        def f():
            a(f"global_store_dwordx4 v{T_P1S}, v[36:39], s[26:27] sc1")
            stamp(4)
            a("s_cmp_eq_u32 s78, 0")
            a("s_cbranch_scc1 L_wlate")
            a(f"s_mov_b32 s40, {spin}")
            lab("L_pre")
            a(poll1)
            a("s_waitcnt vmcnt(0)")
            a("v_cmp_eq_u32 vcc, s33, v11")
            a("s_sub_u32 s40, s40, 1")
            a("s_cbranch_scc1 L_pre_done")
            a("s_bcnt1_i32_b64 s35, vcc")
            a(f"s_cmp_lt_u32 s35, {4 * cnt}")
            a("s_cbranch_scc1 L_pre")
            lab("L_pre_done")
            for x in WL[:nA]: a(x)
            lab("L_wlate")
            for x in WL[nA:] + [poll1]: a(x)
        guarded(f)
    a(f"ds_read_b32 v{T_X}, v{T_XO} offset:{L_XR}")
    a(f"ds_read_b64 v[24:25], v{T_H} offset:{L_H}")
    def younger(k): return (11 - k) + (1 if k < nA and not r0 else 0) + 1
    def pairup(raw, dst, p):
        for d in range(4):
            a(f"v_perm_b32 v{dst+8*p+2*d}, v{raw+8*p+4+d}, v{raw+8*p+d}, s64")
            a(f"v_perm_b32 v{dst+8*p+2*d+1}, v{raw+8*p+4+d}, v{raw+8*p+d}, s65")
    def dots(pairs, vec, npairs):
        for p in range(npairs):
            for c in range(8):
                a(f"v_dot2_f32_bf16 v{VS+c}, v{pairs+8*p+c}, v{vec+p}, {'0' if p == 0 else 'v%d' % (VS+c)}")
    def fold(dst):
        for k in range(4): a(f"v_permlane32_swap_b32 v{VS+k}, v{VS+4+k}")
        for k in range(4): a(f"v_add_f32 v{VS+k}, v{VS+k}, v{VS+4+k}")
        a("s_nop 0")
        for k in range(2): a(f"v_permlane16_swap_b32 v{VS+k}, v{VS+2+k}")
        for k in range(2): a(f"v_add_f32 v{dst+k}, v{VS+k}, v{VS+2+k}")
    a(f"s_waitcnt vmcnt({younger(3)})")
    for p in range(2): pairup(RD, PD, p)
    a("s_waitcnt lgkmcnt(0)")
    dots(PD, 24, 2)
    fold(42)
    a("v_perm_b32 v42, v42, v17, s62")
    a("v_perm_b32 v43, v43, v17, s63")
    nearly = (nA - 4) // 2 if pollfirst else 4
    for p in range(nearly):
        a(f"s_waitcnt vmcnt({younger(4 + 2*p + 1)})")
        pairup(RW, PW, p)
    a(f"s_mov_b32 s40, {spin}")
    if probe is None: stamp(11)
    a(f"s_waitcnt vmcnt({12 - nA if pollfirst else 0})")
    a("s_branch L_p1chk")
    align("p")
    lab("L_p1poll")
    if sleep1: a(f"s_sleep {sleep1}")
    a(poll1)
    a("s_waitcnt vmcnt(0)")
    lab("L_p1chk")
    a("v_cmp_ne_u32 vcc, s33, v11")
    pollend("L_p1poll")
    stamp(5)
    if tt: a(f"s_sub_u32 s92, {spin + 1}, s40")
    a(f"v_max_f32_dpp v2, v10, v10 row_ror:8 {DPP}")
    a("s_nop 1")
    for r in (4, 2, 1):
        a(f"v_max_f32_dpp v2, v2, v2 row_ror:{r} {DPP}")
        if r > 1: a("s_nop 1")
    a("v_sub_f32 v10, v10, v2")
    a("v_exp_f32 v10, v10")
    a("s_nop 0")
    a("v_mul_f32 v8, v8, v10")
    a("v_mul_f32 v9, v9, v10")
    for r in (8, 4, 2, 1):
        for v in (10, 8, 9): a(f"v_add_f32_dpp v{v}, v{v}, v{v} row_ror:{r} {DPP}")
    a("v_rcp_f32 v10, v10")
    a("s_nop 0")
    a("v_mul_f32 v8, v8, v10")
    a("v_mul_f32 v9, v9, v10")
    a("v_cvt_pk_bf16_f32 v8, v8, v9")
    a(f"ds_write_b32 v{T_OBW}, v8 offset:{L_OB}")
    a("s_waitcnt lgkmcnt(0)")
    guard(["s_barrier"])
    if gap2 == "prio": a("s_setprio 3")
    a(f"ds_read_b128 v[24:27], v{T_OBR} offset:{L_OB}")
    for p in range(nearly, 4):
        a(f"s_waitcnt vmcnt({6 - 2*p})")
        pairup(RW, PW, p)
    a("s_waitcnt lgkmcnt(0)")
    dots(PW, 24, 4)
    fold(40)
    a("v_perm_b32 v40, v40, v17, s60")
    a("v_perm_b32 v41, v41, v17, s61")
    guard([f"global_store_dwordx4 v{T_P2S}, v[40:43], s[26:27] sc1"])
    stamp(6)
    a("s_and_b32 s35, s29, 3")
    a("s_cbranch_scc1 L_end" if lite else "s_cbranch_scc1 L_sexit")
    a(f"s_mov_b32 s40, {spin}")
    if gap2: guarded(lambda: gap(gap2))
    align("q")
    lab("L_p2poll")
    if sleep2: a(f"s_sleep {sleep2}")
    guard([f"global_load_dwordx4 v[{VP2+4*i}:{VP2+4*i+3}], v{T_F0+i}, s[26:27] sc1" for i in range(4)])
    a("s_waitcnt vmcnt(0)")
    check([VP2 + 4 * i for i in range(4)], 2)
    pollend("L_p2poll")
    stamp(7)
    if tt: a(f"s_sub_u32 s93, {spin + 1}, s40")
    for i in range(16): a(f"v_and_b32 v{24+i}, s39, v{VP2+i}")
    for i in (0, 2):
        a(f"v_pk_add_f32 v[{24+i}:{25+i}], v[{24+i}:{25+i}], v[{28+i}:{29+i}]")
        a(f"v_pk_add_f32 v[{32+i}:{33+i}], v[{32+i}:{33+i}], v[{36+i}:{37+i}]")
    for i in (0, 2): a(f"v_pk_add_f32 v[{8+i}:{9+i}], v[{24+i}:{25+i}], v[{32+i}:{33+i}]")
    a("s_nop 1")
    a("v_permlane32_swap_b32 v8, v10", "afterwards row r of the wave holds dword r of granule lane&7")
    a("v_permlane32_swap_b32 v9, v11")
    a("s_nop 0")
    a("v_add_f32 v8, v8, v10")
    a("v_add_f32 v9, v9, v11")
    a("s_nop 1")
    a("v_permlane16_swap_b32 v8, v9")
    a("s_nop 0")
    a("v_add_f32 v8, v8, v9")
    a("s_nop 1")
    a(f"v_add_f32_dpp v8, v8, v8 row_ror:8 {DPP}")
    a(f"ds_write_b32 v{T_FW}, v8 offset:{L_O}")
    a("s_waitcnt lgkmcnt(0)")
    guard(["s_barrier"])
    a("s_cmp_lg_u32 s42, 0")
    a("s_cbranch_scc1 L_epoch" if ep1 else "s_cbranch_scc1 L_end" if lite else "s_cbranch_scc1 L_sexit")
    for w in range(4): a(f"ds_read_b128 v[{24+4*w}:{27+4*w}], v{T_FR} offset:{L_O + 128*w}")
    a(f"v_lshlrev_b32 v14, 16, v{T_X}")
    a(f"v_and_b32 v15, 0xffff0000, v{T_X}")
    a("s_waitcnt lgkmcnt(2)")
    for i in (2, 0): a(f"v_pk_add_f32 v[{24+i}:{25+i}], v[{24+i}:{25+i}], v[{28+i}:{29+i}]")
    a("s_waitcnt lgkmcnt(0)")
    for i in (2, 0): a(f"v_pk_add_f32 v[{32+i}:{33+i}], v[{32+i}:{33+i}], v[{36+i}:{37+i}]")
    for i in (2, 0): a(f"v_pk_add_f32 v[{8+i}:{9+i}], v[{24+i}:{25+i}], v[{32+i}:{33+i}]")
    a("v_cvt_pk_bf16_f32 v10, v10, v11", "FFN output")
    a("v_cvt_pk_bf16_f32 v8, v8, v9", "attention output")
    a("v_and_b32 v11, 0xffff0000, v10")
    a("v_lshlrev_b32 v10, 16, v10")
    a(f"v_mul_f32 v13, {f2u(-math.log2(math.e)):#x}, v11")
    a(f"v_mul_f32 v12, {f2u(-math.log2(math.e)):#x}, v10")
    a("v_exp_f32 v13, v13")
    a("v_exp_f32 v12, v12")
    a("v_and_b32 v9, 0xffff0000, v8")
    a("v_add_f32 v13, 1.0, v13")
    a("v_add_f32 v12, 1.0, v12")
    a("v_rcp_f32 v13, v13")
    a("v_rcp_f32 v12, v12")
    a("v_lshlrev_b32 v8, 16, v8")
    a("v_mul_f32 v11, v11, v13")
    a("v_mul_f32 v10, v10, v12")
    a("v_cvt_pk_bf16_f32 v10, v10, v11", "silu")
    a("v_and_b32 v11, 0xffff0000, v10")
    a("v_lshlrev_b32 v10, 16, v10")
    a("v_mul_f32 v9, v9, v11")
    a("v_mul_f32 v8, v8, v10")
    a("v_cvt_pk_bf16_f32 v8, v8, v9")
    a("v_and_b32 v9, 0xffff0000, v8")
    a("v_lshlrev_b32 v8, 16, v8")
    a("v_add_f32 v9, v9, v15")
    a("v_add_f32 v8, v8, v14")
    a("v_cvt_pk_bf16_f32 v8, v8, v9")
    a("s_cbranch_execz L_end")
    a("s_mov_b64 exec, 0xff")
    if endexp is not None:
        if endexp == "before": a(f"global_store_dword v{T_XO}, v8, s[22:23] {outflags}")
        a("s_add_u32 s72, s80, 10000")
        lab("L_hold")
        a("s_memrealtime s[70:71]")
        a("s_waitcnt lgkmcnt(0)")
        a("s_sub_u32 s73, s70, s72")
        a("s_cmp_lt_i32 s73, 0")
        a("s_cbranch_scc1 L_hold")
    if endexp != "before": a(f"global_store_dword v{T_XO}, v8, s[22:23] {outflags}")
    if ep1:
        a("s_branch L_sexit" if ts else "s_endpgm")
        lab("L_epoch")
    if ep1: a("s_lshl2_add_u32 s35, s2, s42")
    a("s_cmp_lg_u32 s35, 17" if ep1 else "s_cmp_lg_u32 s2, 4")
    a("s_cbranch_scc1 L_end" if (ep1 and lite) else "s_cbranch_scc1 L_sexit")
    a("s_mov_b64 exec, 1")
    a("v_mov_b32 v6, 0")
    a(f"global_store_dword v6, v17, s[26:27] {outflags}")
    if ep1 and lite: a("s_endpgm")
    lab("L_sexit")
    stamp(8)
    if tt:
        a("s_mov_b64 exec, -1")
        a("s_lshl_b32 s70, s2, 2")
        a("s_add_u32 s70, s70, s42")
        a("s_lshl_b32 s70, s70, 8")
        a(f"s_add_u32 s70, s70, {WS_TT}")
        a("v_lshl_add_u32 v1, v0, 2, s70")
        a(f"global_store_dword v1, v{VR}, s[26:27]")
    dump_stamps("S")
    lab("L_end")
    a("s_endpgm")

    section("X2")
    align("x")
    lab("L_x2")
    a("v_lshrrev_b32 v46, 4, v0", "g")
    a("v_bfe_u32 v7, v0, 2, 2")
    a("v_and_b32 v5, 3, v0")
    a("v_lshlrev_b32 v44, 10, v46")
    a("v_lshl_add_u32 v44, v7, 7, v44")
    a("v_lshl_add_u32 v44, v5, 3, v44", "weight fragment address (transposing reads)")
    a("v_and_b32 v45, 1, v0", "batch row of this column of D")
    a("v_lshlrev_b32 v4, 10, v45")
    a("v_lshl_add_u32 v4, v46, 4, v4")
    a("v_bfe_u32 v47, v0, 1, 3", "which 16-column block lands in this column of D")
    a("v_bfe_u32 v2, v0, 1, 2")
    a("v_lshlrev_b32 v2, 6, v2")
    a("v_lshl_add_u32 v2, v46, 4, v2")
    a("s_bitcmp1_b32 s2, 3")
    a("s_cbranch_scc1 L_fsetup")
    a("s_lshr_b32 s35, s39, 21")
    a("s_lshl_b32 s43, s35, 9")
    a("s_add_u32 s52, s43, 256")
    a("s_mov_b32 s53, 0")
    a("s_bfe_u32 s36, s39, 0x3000a")
    a("s_lshl_b32 s36, s36, 13")
    a("s_lshl_b32 s37, s35, 11")
    a("s_add_u32 s36, s36, s37")
    a("s_bfe_u32 s37, s39, 0x30007")
    a("s_lshl_b32 s37, s37, 8")
    a("s_add_u32 s36, s36, s37")
    a(f"s_add_u32 s36, s36, {WS_QP}")
    a("v_lshl_add_u32 v3, v45, 12, s36")
    a("s_mov_b32 s54, 0x00ff00ff")
    a("s_branch L_jobset")
    lab("L_fsetup")
    a("s_and_b32 s35, s38, 3")
    a("s_lshl_b32 s43, s35, 8")
    a("s_mov_b32 s52, s43")
    a("s_mov_b32 s53, 4")
    a("s_and_b32 s37, s29, 24")
    a("s_min_u32 s37, s37, 22")
    a("s_add_u32 s37, s37, s28")
    a("s_lshl_b32 s37, s37, 8")
    a("s_mul_i32 s36, s35, 7168")
    a("s_add_u32 s36, s36, s37")
    a(f"s_add_u32 s36, s36, {WS_FP}")
    a("v_bfe_u32 v3, v0, 3, 1")
    a("v_lshl_add_u32 v3, v45, 1, v3")
    a(f"v_mul_u32_u24 v3, {4*7168}, v3")
    a("v_add_u32 v3, s36, v3")
    a("s_mov_b32 s54, -1")
    lab("L_jobset")
    a("v_add_u32 v35, v2, v3", "publish address")
    a("s_mov_b32 s55, s54")
    a(f"v_mov_b32 v34, {L_Z - L_XN}")
    for hh in range(2):
        a(f"v_add_u32 v5, s{43 if hh == 0 else 52}, v4")
        if hh: a("v_subrev_u32 v47, s53, v47")
        for k in range(4): a(f"v_cmp_eq_u32 s[{44+2*k}:{45+2*k}], {k}, v47")
        a("s_nop 0")
        for k in range(4): a(f"v_cndmask_b32 v{36+4*hh+k}, v34, v5, s[{44+2*k}:{45+2*k}]", "xn fragment address, or the zero block" if k == 0 else None)
    if tt: a("s_memrealtime s[72:73]")
    if not lnfirst: a("s_barrier", "barrier 0")
    a("s_waitcnt vmcnt(1)")
    a("s_cmp_eq_u32 s67, 0", "these still have the counter store in flight")
    a("s_cbranch_scc1 L_xok")
    a("s_waitcnt vmcnt(0)")
    lab("L_xok")
    stamp(1)
    if tt: a("s_mov_b32 s89, s72")
    a(f"ds_write_b128 v1, v[8:11] offset:{L_XR}", "raw x for the residual")
    a(f"ds_write_b128 v1, v[12:15] offset:{L_XR+16}")
    for i in range(8):
        a(f"v_lshlrev_b32 v{16+2*i}, 16, v{8+i}")
        a(f"v_and_b32 v{17+2*i}, 0xffff0000, v{8+i}")
    def red32(v, t):
        a("s_nop 1")
        for r in (8, 4, 2, 1):
            a(f"v_add_f32_dpp {v}, {v}, {v} row_ror:{r} {DPP}")
            a("s_nop 1")
        a(f"v_mov_b32 {t}, {v}")
        a("s_nop 1")
        a(f"v_permlane16_swap_b32 {v}, {t}")
        a("s_nop 0")
        a(f"v_add_f32 {v}, {v}, {t}")
    a("v_add_f32 v6, v16, v17")
    for i in range(2, 16): a(f"v_add_f32 v6, v6, v{16+i}")
    red32("v6", "v7")
    a(f"v_mul_f32 v6, {f2u(1.0/512):#x}, v6", "mean")
    a("v_sub_f32 v32, v16, v6")
    a("v_mul_f32 v33, v32, v32")
    for i in range(1, 16):
        a(f"v_sub_f32 v32, v{16+i}, v6")
        a("v_fmac_f32 v33, v32, v32")
    red32("v33", "v7")
    a(f"v_mul_f32 v33, {f2u(1.0/512):#x}, v33", "variance")
    a("v_cvt_pk_bf16_f32 v6, v6, v33")
    a("v_and_b32 v33, 0xffff0000, v6")
    a("v_lshlrev_b32 v6, 16, v6")
    a(f"v_add_f32 v33, {f2u(1e-5):#x}, v33")
    a("v_cvt_pk_bf16_f32 v33, v33, v33")
    a("v_lshlrev_b32 v33, 16, v33")
    a("v_sqrt_f32 v33, v33")
    a("s_nop 0")
    a("v_cvt_pk_bf16_f32 v33, v33, v33")
    a("v_lshlrev_b32 v33, 16, v33")
    a("v_rcp_f32 v33, v33")
    for i in range(8):
        a(f"v_sub_f32 v{16+2*i}, v{16+2*i}, v6")
        a(f"v_sub_f32 v{17+2*i}, v{17+2*i}, v6")
        a(f"v_cvt_pk_bf16_f32 v{8+i}, v{16+2*i}, v{17+2*i}")
        a(f"v_lshlrev_b32 v{16+2*i}, 16, v{8+i}")
        a(f"v_and_b32 v{17+2*i}, 0xffff0000, v{8+i}")
        a(f"v_mul_f32 v{16+2*i}, v{16+2*i}, v33")
        a(f"v_mul_f32 v{17+2*i}, v{17+2*i}, v33")
        a(f"v_cvt_pk_bf16_f32 v{8+i}, v{16+2*i}, v{17+2*i}")
    a(f"ds_write_b128 v1, v[8:11] offset:{L_XN}")
    a(f"ds_write_b128 v1, v[12:15] offset:{L_XN+16}")
    a("s_waitcnt lgkmcnt(0)")
    a(f"s_add_u32 s33, s33, {PHI:#x}", "tag")
    tagregs()
    a("v_mov_b32 v32, s33")
    a("v_mov_b32 v33, 1")
    if lnfirst: a("s_barrier", "barrier 0")
    stamp(2)
    a("s_andn2_b32 s35, 0x8e, s2")
    a("s_cbranch_scc0 L_nojob")
    steps = [(ks, blk) for ks in range(8) for blk in range(4)]
    def rd(n):
        ks, blk = steps[n]
        o = (n % 4) * 8
        a(f"ds_read_b128 v[{48+o}:{51+o}], v{36 + 4*(ks>>2) + blk} offset:{L_XN + (ks&3)*64}")
        a(f"ds_read_b64_tr_b16 v[{52+o}:{53+o}], v44 offset:{L_W + ks*4096 + blk*32}")
        a(f"ds_read_b64_tr_b16 v[{54+o}:{55+o}], v44 offset:{L_W + ks*4096 + blk*32 + 512}")
    for n in range(3): rd(n)
    for n in range(32):
        if n + 3 < 32: rd(n + 3)
        a(f"s_waitcnt lgkmcnt({3 * min(3, 31 - n)})")
        o = (n % 4) * 8
        a(f"v_mfma_f32_16x16x32_bf16 v[8:11], v[{52+o}:{55+o}], v[{48+o}:{51+o}], {'0' if n == 0 else 'v[8:11]'}")
    a("s_nop 7")
    if rnd:
        for i in range(4): a(f"v_add_u32 v{8+i}, 0x80, v{8+i}", "round to the 24 bits a granule keeps" if i == 0 else None)
    for i in range(4): a(f"v_perm_b32 v{8+i}, v{8+i}, v32, s{60+i}")
    a("s_mov_b64 exec, s[54:55]")
    a("s_waitcnt vmcnt(0)")
    if "st" not in skip: a("global_store_dwordx4 v35, v[8:11], s[26:27] sc1")
    a("s_mov_b64 exec, -1")
    lab("L_nojob")
    stamp(3)
    scalar_part("s55", {"g": ("s38", 4)})
    if torder == "n":
        a(f"v_mul_u32_u24 v2, {(65536 + KP - 1) // KP}, v0")
        a("v_lshrrev_b32 v2, 16, v2")
        a(f"v_mul_u32_u24 v3, {KP}, v2")
        a("v_sub_u32 v3, v0, v3")
    else:
        a("v_and_b32 v2, 15, v0")
        a("v_lshrrev_b32 v3, 4, v0")
    a(f"v_add_u32 v3, {NS}, v3")
    a("v_mov_b32 v20, s55")
    lane_bits(20, 3, "n", 5)
    lane_bits(20, 2, "r", 4)
    a(f"s_mul_i32 s36, s38, {ctstride}")
    a(f"s_add_u32 s36, s36, {WS_CT}")
    a("s_add_u32 s68, s26, s36")
    a("s_addc_u32 s69, s27, 0")
    if pf:
        a("v_and_b32 v1, 31, v0")
        a("s_and_b32 s36, s28, 3")
        a("s_lshl_b32 s36, s36, 3")
        a("s_lshr_b32 s37, s29, 2")
        a("s_add_u32 s36, s36, s37")
        a("v_add_u32 v2, s36, v1")
        a("v_and_b32 v2, 31, v2")
        a("s_and_b32 s36, s28, 4")
        a("s_and_b32 s37, s29, 3")
        a("s_add_u32 s36, s36, s37")
        a("s_lshl_b32 s36, s36, 17")
        a(f"s_add_u32 s36, s36, {WS_P2}")
        a("v_lshl_add_u32 v22, v1, 12, s36")
        a("v_lshl_add_u32 v22, v2, 7, v22")
        if pf1:
            a("v_bfe_u32 v1, v0, 1, 4")
            a("v_and_b32 v2, 1, v0")
            a("s_lshl_b32 s36, s38, 16")
            a("s_lshl_b32 s37, s32, 8")
            a("s_add_u32 s36, s36, s37")
            a(f"s_add_u32 s36, s36, {WS_P1}")
            a("v_lshl_add_u32 v3, v1, 12, s36")
            a("v_lshl_add_u32 v3, v2, 7, v3")
            a("v_cmp_lt_u32 vcc, 31, v0")
            a("s_nop 1")
            a("v_cndmask_b32 v22, v22, v3, vcc")
    a("v_mov_b32 v6, -1")
    a("v_mov_b32 v7, -1")
    a("v_lshlrev_b32 v21, 3, v0")
    a(f"ds_write_b64 v21, v[6:7] offset:{L_TK}")
    a("s_lshl_b32 s36, s30, 13")
    a("s_lshl_b32 s37, s31, 12")
    a("s_add_u32 s36, s36, s37")
    a(f"s_add_u32 s36, s36, {WS_QP}")
    a("v_lshl_add_u32 v1, v0, 4, s36")
    a("s_mul_i32 s36, s34, 56")
    a("s_andn2_b32 s36, s36, 15")
    a(f"s_mul_i32 s37, s31, {8*7168}")
    a("s_add_u32 s36, s36, s37")
    a(f"s_add_u32 s36, s36, {WS_FP}")
    a("v_lshrrev_b32 v2, 5, v0")
    a("v_bfe_u32 v3, v0, 2, 2")
    a("v_lshl_add_u32 v2, v2, 2, v3")
    a("v_mul_u32_u24 v2, 7168, v2")
    a("v_and_b32 v3, 3, v0")
    a("v_lshl_add_u32 v2, v3, 4, v2")
    a("v_add_u32 v2, s36, v2")
    if pq is not None:
        note("reads that race with the other workgroups' stores stall this CU's stream: start when an S wave asks")
        a("v_and_b32 v5, 12, v0")
        a(f"s_mov_b32 s40, {spin * 8}")
        lab("L_go")
        a(f"ds_read_b32 v6, v5 offset:{L_GO}")
        a("s_waitcnt lgkmcnt(0)")
        a("v_cmp_ne_u32 vcc, 0, v6")
        a("s_cbranch_vccnz L_go_done")
        a("s_sleep 1")
        a("s_sub_u32 s40, s40, 1")
        a("s_cbranch_scc0 L_go")
        lab("L_go_done")
    a(f"s_mov_b32 s40, {0 if 'wait' in skip else spin}")
    if qdelay: a(f"s_sleep {qdelay}")
    stamp(7)
    lab("L_qpoll")
    if "ld" not in skip:
        for i in range(4): a(f"global_load_dwordx4 v[{48+4*i}:{51+4*i}], v1, s[26:27] offset:{i*1024} sc1")
        if merge: a("global_load_dwordx4 v[8:11], v2, s[26:27] sc1")
    a("s_waitcnt vmcnt(0)")
    check([48, 52, 56, 60] + ([8] if merge else []), 6)
    pollend("L_qpoll")
    for i in range(16): a(f"v_and_b32 v{48+i}, 0xffffff00, v{48+i}")
    for i in range(8): a(f"v_add_f32 v{48+i}, v{48+i}, v{56+i}")
    for i in range(4): a(f"v_cvt_pk_bf16_f32 v{48+i}, v{48+2*i}, v{49+2*i}")
    a("v_mov_b32 v6, 0")
    a(f"ds_write_b64 v21, v[48:49] offset:{L_Q}")
    a(f"ds_write_b64 v21, v[50:51] offset:{L_Q+512}")
    a("s_waitcnt lgkmcnt(0)")
    a(f"ds_write_b64 v6, v[32:33] offset:{L_TAG}", "{tag, ready}")
    stamp(5)
    a("s_setprio 0")
    if not merge:
        a(f"s_mov_b32 s40, {0 if 'wait' in skip else spin}")
        lab("L_hpoll")
        if "ld" not in skip: a("global_load_dwordx4 v[8:11], v2, s[26:27] sc1")
        a("s_waitcnt vmcnt(0)")
        check([8], 5)
        pollend("L_hpoll")
    for i in range(4): a(f"v_and_b32 v{8+i}, 0xffffff00, v{8+i}")
    for r in (4, 8):
        for i in range(4): a(f"v_add_f32_dpp v{8+i}, v{8+i}, v{8+i} row_ror:{r} {DPP}")
    a("v_cvt_pk_bf16_f32 v8, v8, v9")
    a("v_cvt_pk_bf16_f32 v9, v10, v11")
    a("v_mov_b32 v10, v8")
    a("v_mov_b32 v11, v9")
    a("s_nop 1")
    a("v_permlane32_swap_b32 v8, v10", "v8,v9 = gate pairs, v10,v11 = up pairs")
    a("v_permlane32_swap_b32 v9, v11")
    for p in range(2):
        a(f"v_lshlrev_b32 v12, 16, v{8+p}")
        a(f"v_and_b32 v13, 0xffff0000, v{8+p}")
        a(f"v_lshlrev_b32 v14, 16, v{10+p}")
        a(f"v_and_b32 v15, 0xffff0000, v{10+p}")
        a("v_max_f32 v12, 0, v12")
        a("v_max_f32 v13, 0, v13")
        a("v_mul_f32 v12, v12, v14")
        a("v_mul_f32 v13, v13, v15")
        a(f"v_cvt_pk_bf16_f32 v{16+p}, v12, v13")
    a("v_lshlrev_b32 v3, 3, v3")
    a(f"ds_write_b64 v3, v[16:17] offset:{L_H}")
    a("s_bitcmp1_b32 s34, 0", "the 16-column window holds one pair of the neighbour's rows: clear it")
    a("s_cselect_b32 s36, 0, 28")
    a("v_mov_b32 v3, s36")
    a(f"ds_write_b32 v3, v6 offset:{L_H}")
    stamp(6)
    a("s_mov_b32 s41, 0")
    a(f"v_mov_b32 v5, {L_TK}")
    a(f"s_mov_b32 s40, {spin * 8}")
    a(f"s_setprio {xprio}")
    align("i")
    lab("L_disp")
    a(f"ds_read_b128 v[8:11], v6 offset:{L_REQ}")
    a("s_sub_u32 s40, s40, 1")
    a("s_cbranch_scc1 L_disp_done")
    a("s_waitcnt lgkmcnt(0)")
    if reqfn == "med":
        a("v_min_u32 v12, v8, v9")
        a("v_max_u32 v8, v8, v9")
        a("v_min_u32 v13, v10, v11")
        a("v_max_u32 v10, v10, v11")
        a("v_max_u32 v12, v12, v13")
        a("v_min3_u32 v8, v8, v10, v12")
    else:
        a(f"v_{reqfn}3_u32 v8, v8, v9, v10")
        a(f"v_{reqfn}_u32 v8, v8, v11")
    a("v_cmp_lt_u32 vcc, s41, v8")
    a("s_cbranch_vccnz L_serve")
    a(f"s_sleep {xsleep}")
    a("s_branch L_disp")
    lab("L_serve")
    if tt:
        a("s_memrealtime s[72:73]")
        a("s_waitcnt lgkmcnt(0)")
    if vat:
        a("s_mov_b64 exec, 1")
        a("global_atomic_add v12, v6, v33, s[68:69] sc0")
        a("s_mov_b64 exec, -1")
        a("s_add_u32 s41, s41, 1")
        a("s_waitcnt vmcnt(0)")
        a("v_readfirstlane_b32 s67, v12")
        a("s_nop 3")
    else:
        a("s_mov_b32 s67, 1")
        a("s_atomic_add s67, s[68:69], 0 glc")
        a("s_add_u32 s41, s41, 1")
        a("s_waitcnt lgkmcnt(0)")
    if tt:
        a("s_memrealtime s[70:71]")
        a("s_waitcnt lgkmcnt(0)")
        a("s_sub_u32 s70, s70, s72")
        a("s_max_u32 s92, s92, s70")
        a("s_add_u32 s93, s93, s70")
        a("s_mov_b32 s94, s41")
    a("v_readlane_b32 s36, v20, s67")
    if r0:
        a(f"s_cmp_lt_u32 s67, {POOL + r0}")
        a("s_cselect_b32 s37, -3, -2")
        a(f"s_cmp_lt_u32 s67, {POOL}")
        a("s_cselect_b32 s36, s36, s37")
    else:
        a(f"s_cmp_lt_u32 s67, {POOL}")
        a("s_nop 0")
        a("s_cselect_b32 s36, s36, -2")
    a("v_mov_b32 v7, s36")
    a("ds_write_b32 v5, v7")
    a("v_add_u32 v5, 4, v5")
    a("s_cbranch_scc1 L_disp")
    lab("L_disp_done")
    def prefetch():
        if not pf1: a("s_mov_b32 exec_hi, 0")
        a(f"global_load_dword v23, v22, s[26:27] {pfflags}", "pull a quarter of the lines the final task polls (result unused)")
    if pf and pfat == "fail": prefetch()
    a("s_waitcnt lgkmcnt(0)")
    a("s_barrier")
    if pf and pfat == "late":
        a("s_barrier")
        prefetch()
    dump_stamps("X")
    a("s_endpgm")

    L = [HEADER.rstrip("\n"), f"; @launch grid=(256,1,1) block=(384,1,1) lds={L_END}", DOC,
         '.amdgcn_target "amdgcn-amd-amdhsa--gfx950"', ".text", f".globl {KN}", ".p2align 8", f".type {KN},@function"]
    for name in "E X1 S W X2".split(): L.extend(SEC[name])
    L.append("L_codeend:")
    L += ['.section .rodata,"a"', ".p2align 6", f".amdhsa_kernel {KN}",
          f"  .amdhsa_next_free_vgpr {NV}", "  .amdhsa_next_free_sgpr 102", f"  .amdhsa_accum_offset {NV}",
          "  .amdhsa_group_segment_fixed_size 0", "  .amdhsa_kernarg_size 96", "  .amdhsa_user_sgpr_count 2",
          "  .amdhsa_user_sgpr_kernarg_segment_ptr 1", "  .amdhsa_system_sgpr_workgroup_id_x 1",
          "  .amdhsa_float_denorm_mode_32 3", ".end_amdhsa_kernel"]
    if tune8: L = align_runs("\n".join(L).split("\n"))
    return "\n".join(L) + "\n"

WIDEN = ("v_mov_b32", "v_add_f32", "v_sub_f32", "v_mul_f32", "v_max_f32", "v_exp_f32", "v_rcp_f32", "v_log_f32", "v_and_b32", "v_xor_b32",
         "v_lshlrev_b32", "v_lshrrev_b32", "v_add_u32", "v_fmac_f32", "v_sqrt_f32", "v_min_u32", "v_or_b32")

def sizes_of(lines):
    import subprocess, re
    out = subprocess.run(["llvm-mc", "-triple=amdgcn-amd-amdhsa", "-mcpu=gfx950", "-show-encoding"],
                         input="\n".join(lines) + "\n", capture_output=True, text=True, check=True).stdout
    return [m.count(",") + 1 for m in re.findall(r"; encoding: \[(.*?)\]", out)]

def align_runs(lines):
    isins = [l.startswith("    ") and not l.strip().startswith(";") for l in lines]
    sz = iter(sizes_of(lines))
    size = [next(sz) if f else 0 for f in isins]
    out, osz, addr, active = [], [], 0, False
    for i, l in enumerate(lines):
        if l.startswith(".p2align"):
            k = 1 << int(l.split()[1]); addr = (addr + k - 1) // k * k
        elif l.startswith(".fill"):
            addr += 4 * int(l.split()[1].rstrip(","))
        elif l.startswith("L_xwave"):
            active = True
        if isins[i] and active and size[i] == 8 and addr % 8 == 4 and (not osz or osz[-1] != 8):
            run, j = 0, i
            while j < len(lines) and (size[j] == 8 or not isins[j]) and not lines[j].startswith("."):
                run += size[j] == 8 and "mfma" not in lines[j]; j += 1
            if run >= 3:
                j = len(out) - 1
                while j >= 0 and osz[j] in (0, 4) and not out[j].startswith("."):
                    op = out[j].split()[0] if osz[j] else ""
                    if op in WIDEN:
                        out[j] = out[j].replace(op + " ", op + "_e64 ", 1).replace("    ;", ";", 1); osz[j] = 8; addr += 4
                        break
                    if op == "s_nop" and int(out[j].split()[1]) > 0:
                        out[j] = f"    s_nop {int(out[j].split()[1]) - 1}"
                        out.insert(j, "    s_nop 0"); osz.insert(j, 4); addr += 4
                        break
                    j -= 1
                if addr % 8 == 4 and run >= 6:
                    out.append("    s_nop 0"); osz.append(4); addr += 4
        out.append(l); osz.append(size[i]); addr += size[i]
    return out

if __name__ == "__main__":
    import json
    cfg = json.loads(sys.argv[1]) if len(sys.argv) > 1 else {}
    sys.stdout.write(gen(**cfg))
```

```python
import struct, sys, math

KN = "recurrent_scan__gqa_block_cached__glu_gated_reglu__decode_kernel"
HEADER = open("recurrent_scan__gqa_block_cached__glu_gated_reglu__decode.s.ref").read().split("; @launch")[0]

def f2u(x):
    return struct.unpack("<I", struct.pack("<f", x))[0]

WS_EPOCH = 0
WS_QP = 0x10000
WS_FP = 0x40000
WS_CT = 0x80000
WS_P1 = 0x100000
WS_P2 = 0x200000
WS_TS = 0x400000
WS_TT = 0x500000
L_W = 0
L_SC = 0
L_XN = 32768
L_XR = 34816
L_Q = 36864
L_Z = 37888
L_TAG = 38144
L_GO = 38160
L_REQ = 38176
L_H = 38400
L_ST = 38464
L_OB = 38592
L_TK = 38656
L_O = 39424
L_END = 47616
PHI = 0x9E3779B9

ROLES = [('X', slice(0, 1)), ('S', slice(1, 5))]

DOC = """;
; and streams about 1/16 of the group's keys.
;               o.wo and h.W_down partial rows, hand-off 2 (64 workgroups sum 128 partials each), gate, residual, store.
;   wave 5 (W): touches the code and the pages used later, then walks the S code with EXEC = 0 (instruction cache).
; Hand-offs carry a tag = (first word of d_ws at entry) + constant; the word is advanced at the end of the launch."""

def gen(RH=4, NE=4, peel=True, mimic=True, rnd=True, mi=False, rq=4, reqfn="min", vat=False, WL0=None, NA=28, NS=29, WS="4444", WP="4444", WM="4555", NP=8, nA=4, xsleep=1, xprio=1, sprio=0, al="kvmdws", outflags="", endexp=None, r0=0, cnt=8, nV=0, pads={}, gap1="bar", gap2=None, tune8=True, ep1=True, pre_bar=1, lnfirst=True, tlb="", l2pf=False, dry=True, pf=True, pfflags="sc1", pf1=False, pfat="fail", sleep1=0, sleep2=0, merge=True,
        kvflags="nt", wflags="nt", woflags="", pmap="w0 w1 n0^r3^g0 n2^r0 n1 n3^r1 n4 r0 r1 r2 r3", i1bit=15, torder="r", ctstride=1280,
        qdelay=0, pq=4, pollfirst=False, lite=False, skip=(), ts=False, spin=1 << 20, probe=None):
    KP = 32 - NS
    POOL = 16 * KP
    assert 0 < POOL <= 64 and NA % RH == 0 and NA >= 2 * RH and RH >= 4 and NS >= NA + 1
    SEC = {}
    cur = [None]
    def section(name): cur[0] = SEC.setdefault(name, [])
    if probe is not None: ts = True
    if lite: ts = True
    tt = ts and probe is None and not lite
    def a(s, c=None): cur[0].append("    " + (s if c is None else f"{s:<72}; {c}"))
    def lab(s): cur[0].append(s + ":")
    def note(s): cur[0].append("    ; " + s)
    def align(key):
        if key in pads:
            cur[0].append(".p2align 6")
            if pads[key]: cur[0].append(f".fill {pads[key]}, 4, 0xbf800000")
        elif key in al: cur[0].append(".p2align 6")
        if key.upper() in al: cur[0].append(".p2align 3")
    skn = [0]
    def guarded(f):
        skn[0] += 1
        n = skn[0]
        a(f"s_cbranch_execz L_g{n}")
        f()
        lab(f"L_g{n}")
    def guard(lines): guarded(lambda: [a(x) for x in lines])
    def stamp(idx):
        if probe is not None and len(probe) > 4 and idx not in (probe[1], probe[4]): return
        if ts and (not lite or idx == 8):
            a("s_waitcnt lgkmcnt(0)")
            a("s_memrealtime s[70:71]")
            a("s_waitcnt lgkmcnt(0)")
            a(f"s_mov_b32 s{80+idx}, s70")
    def zero_stamps():
        if ts:
            a("s_mov_b32 s80, s70")
            for i in range(1, 16): a(f"s_mov_b32 s{80+i}, 0")
    def tstamp():
        if tt:
            a("s_memrealtime s[70:71]")
            a("s_add_u32 s79, s79, 1")
            a("s_lshr_b32 m0, s79, 1")
            a("s_waitcnt lgkmcnt(0)")
            a("v_writelane_b32 v13, s70, m0")
    def dump_stamps(role):
        if probe is not None:
            if role == probe[0] and len(probe) > 2 and probe[2] in ("mean", "maxmean", "maxmax"):
                def hold(name):
                    lab(name)
                    a("s_memrealtime s[70:71]")
                    a("s_waitcnt lgkmcnt(0)")
                    a("s_sub_u32 s73, s70, s72")
                    a("s_cmp_lt_i32 s73, 0")
                    a(f"s_cbranch_scc1 {name}")
                a("s_add_u32 s72, s80, 5000")
                hold("L_h0")
                a(f"s_sub_u32 s72, s{80+probe[1]}, s{80+probe[4]}")
                a("s_mov_b64 exec, 1")
                a("v_mov_b32 v1, 0")
                a("v_mov_b32 v2, s72")
                if probe[2] == "mean":
                    a("global_atomic_add v1, v2, s[24:25]")
                else:
                    a(f"s_and_b32 s72, s{80+probe[4]}, 0xfffff")
                    a("v_mov_b32 v2, s72")
                    a("global_atomic_add v1, v2, s[24:25]" if probe[2] == "maxmean" else "global_atomic_umax v1, v2, s[24:25]")
                    a(f"s_and_b32 s72, s{80+probe[1]}, 0xfffff")
                    a("v_mov_b32 v3, s72")
                    a("global_atomic_umax v1, v3, s[24:25] offset:128")
                a("s_lshl2_add_u32 s73, s2, s42")
                a("s_cmp_lg_u32 s73, 16")
                a("s_cbranch_scc1 L_pe")
                a("s_add_u32 s72, s80, 9000")
                hold("L_h1")
                a("global_load_dword v2, v1, s[24:25] sc1")
                a("global_load_dword v3, v1, s[24:25] offset:128 sc1")
                a("s_waitcnt vmcnt(0)")
                a("v_readfirstlane_b32 s72, v2")
                a("v_readfirstlane_b32 s73, v3")
                a("s_nop 3")
                a("s_lshr_b32 s72, s72, 6" if probe[2] != "maxmax" else "s_lshl_b32 s72, s72, 4")
                if probe[2] != "mean":
                    a("s_lshl_b32 s73, s73, 4")
                    a("s_sub_u32 s72, s73, s72")
                    a("s_min_u32 s72, s72, 200000")
                a("s_add_u32 s72, s72, s80")
                a("s_add_u32 s72, s72, 10000")
                hold("L_h2")
                lab("L_pe")
            elif role == probe[0]:
                pidx = probe[1]
                if len(probe) > 2:
                    a(f"s_and_b32 s73, s2, {probe[2]}")
                    a(f"s_cmp_lg_u32 s73, {probe[3]}")
                    a("s_cbranch_scc1 L_pe")
                a(f"s_cmp_eq_u32 s{80+pidx}, 0")
                a("s_cbranch_scc1 L_pe")
                if len(probe) > 4:
                    a(f"s_sub_u32 s72, s{80+pidx}, s{80+probe[4]}")
                    a("s_lshl_b32 s72, s72, 4")
                    a("s_add_u32 s72, s72, s80")
                    a("s_add_u32 s72, s72, 10000")
                else:
                    a(f"s_add_u32 s72, s{80+pidx}, 10000")
                lab("L_pl")
                a("s_memrealtime s[70:71]")
                a("s_waitcnt lgkmcnt(0)")
                a("s_sub_u32 s73, s70, s72")
                a("s_cmp_lt_i32 s73, 0")
                a("s_cbranch_scc1 L_pl")
                lab("L_pe")
        elif ts and not (lite and role == "X"):
            a("s_mov_b64 exec, 1")
            a("s_mul_i32 s70, s2, 5")
            a("s_add_u32 s70, s70, s3")
            a("s_lshl_b32 s70, s70, 6")
            a(f"s_add_u32 s70, s70, {WS_TS}")
            a("v_mov_b32 v1, s70")
            a("s_getreg_b32 s95, hwreg(HW_REG_XCC_ID)")
            for q in range(4):
                for i in range(4): a(f"v_mov_b32 v{4+i}, s{80+q*4+i}")
                a(f"global_store_dwordx4 v1, v[4:7], s[26:27] offset:{q*16}")
                a("s_nop 1")
    def tagregs():
        a("s_mov_b32 s56, s33", "s56..s59 = tag >> 8i, s60..s63 = byte-insert selectors")
        a("s_lshr_b32 s57, s33, 8")
        a("s_lshr_b32 s58, s33, 16")
        a("s_lshr_b32 s59, s33, 24")
        for i in range(4): a(f"s_mov_b32 s{60+i}, {0x07060500 + i:#x}")
    def check(regs, acc):
        first = True
        for r in regs:
            for i in range(4):
                if first: a(f"v_xor_b32 v{acc}, s{56+i}, v{r+i}"); first = False
                else: a(f"v_bitop3_b32 v{acc}, v{acc}, v{r+i}, s{56+i} bitop3:0xf6")
        a(f"v_and_b32 v{acc}, 0xff, v{acc}")
        a(f"v_cmp_ne_u32 vcc, 0, v{acc}")
    def pollend(name):
        a(f"s_cbranch_vccz {name}_done")
        a("s_sub_u32 s40, s40, 1")
        a(f"s_cbranch_scc0 {name}")
        lab(f"{name}_done")

    VB, VSW, VSR = 11, 12, 16
    VKO, VVO, VM, VL, VM0, VM1 = 18, 19, 20, 21, 22, 23
    VA, VQ, VO, VS, VR = 24, 32, 36, 44, 60
    VT = VR + 16 * max(RH + NE, 8)
    (T_OW, T_SW, T_OR, T_SR, T_P1S, T_P1L, T_OBW, T_P2S, T_WO, T_H, T_F0, _, _, _, T_XO, T_X, T_D0, T_D1, T_OBR, T_FW, T_FR) = range(VT, VT + 21)
    NV = VT + 24
    RD, RW = VR + 64, VR + 80
    PD, PW = VR + 4, VR + 20
    VP2 = VR + 112
    def decode():
        a("s_and_b32 s28, s2, 7", "x")
        a("s_lshr_b32 s29, s2, 3", "j")
        a("s_bfe_u32 s30, s2, 0x30004", "kv head")
        a("s_lshr_b32 s31, s2, 7", "batch row")
        a("s_and_b32 s32, s2, 15", "split")
        a("s_and_b32 s34, s2, 127", "idx")
        a("s_lshr_b32 s38, s2, 4", "group")
    def srds():
        a("s_mov_b64 s[44:45], s[6:7]", "K"); a("s_brev_b32 s46, 16"); a("s_mov_b32 s47, 0x20000")
        a("s_mov_b64 s[48:49], s[8:9]", "V"); a("s_brev_b32 s50, 16"); a("s_mov_b32 s51, 0x20000")
        a("s_mov_b64 s[72:73], s[6:7]", "K or V"); a("s_brev_b32 s74, 16"); a("s_mov_b32 s75, 0x20000")
    pm = [set(x.split("^")) for x in pmap.split()]
    PB = [b for b in range(11, 23) if b != i1bit]
    assert len(pm) == 11 and i1bit != 11
    def mask_of(sym): return sum(1 << PB[p] for p in range(11) if sym in pm[p])
    def scalar_part(dst, srcs, base=True):
        a(f"s_lshl_b32 {dst}, s38, 23" if base else f"s_mov_b32 {dst}, 0")
        for pre, (reg, nb) in srcs.items():
            masks = [mask_of(f"{pre}{i}") for i in range(nb)]
            if masks[0] and all(masks[i] == masks[0] << i for i in range(nb)) and bin(masks[0]).count("1") == 1:
                a(f"s_lshl_b32 s35, {reg}, {masks[0].bit_length()-1}")
                a(f"s_xor_b32 {dst}, {dst}, s35")
                continue
            for i in range(nb):
                if masks[i]:
                    a(f"s_bfe_i32 s35, {reg}, {0x10000 + i:#x}")
                    a(f"s_and_b32 s35, s35, {masks[i]:#x}")
                    a(f"s_xor_b32 {dst}, {dst}, s35")
    def lane_bits(vdst, vsrc, pre, nb):
        for i in range(nb):
            a(f"v_bfe_i32 v7, v{vsrc}, {i}, 1")
            a(f"v_and_b32 v7, {mask_of(pre + str(i)):#x}, v7")
            a(f"v_xor_b32 v{vdst}, v{vdst}, v7")
    def nconst(n):
        c = 0
        for i in range(5):
            if n >> i & 1: c ^= mask_of(f"n{i}")
        return c
    def issue(reg, voff, srd, pat, down=False, ks=range(4)):
        last = max(k for k in range(4) if pat[k] != "-")
        assert pat[0] != "-" and (int(pat[last]) + 4 - last <= 8 or pat == f"{NP}---")
        seq = (2, 0, 3, 1) if down else (0, 2, 1, 3)
        for k, u in enumerate(seq):
            if k not in ks: continue
            if k: a(f"s_bitset{u >> 1}_b32 s52, {i1bit}")
            if pat[k] != "-": a(f"s_waitcnt vmcnt({pat[k]})")
            a(f"buffer_load_dwordx4 v[{reg+4*u}:{reg+4*u+3}], v{voff}, {srd}, s52 offen offset:{(u&1)*1024} {kvflags}")
        if 3 in ks: tstamp()
    rest = list(range(2, RH))
    PERM = [0 if p == (RH - 1) // 2 else 1 if p == RH - 1 else rest.pop(0) for p in range(RH)]
    def preg(n): return VR + 16 * (RH + n if n < NE else PERM[n % RH])

    section("E")
    lab(KN)
    a("s_load_dwordx16 s[4:19], s[0:1], 0", "s[4:5]=x s[6:7]=K s[8:9]=V s[12:13]=wo")
    a("s_load_dwordx8 s[20:27], s[0:1], 64", "s[20:21]=W_down s[22:23]=out s[26:27]=ws")
    if ts: a("s_memrealtime s[70:71]")
    a("v_lshrrev_b32 v1, 6, v0")
    a("s_cmpk_ge_u32 s2, 256")
    a("s_cbranch_scc1 L_end")
    a("v_readfirstlane_b32 s3, v1", "wave")
    a("v_and_b32 v0, 63, v0", "lane")
    a("s_mul_i32 s39, s2, 0x200408", "wq tile as a byte offset: bits 7..12 column block, bit 21 k-half")
    a("s_and_b32 s39, s39, 0x201f80")
    assert len({(w * 0x200408) & 0x201f80 for w in range(256) if not w & 8}) == 128
    a("s_sub_u32 s42, s3, 1", "w")
    a("s_cbranch_scc1 L_xwave")
    a("s_cmp_eq_u32 s3, 5")
    a("s_cbranch_scc1 L_wwave")
    a("s_lshl_b32 s36, s42, 19", "wg bit 3 clear: wq tile, wave w loads rows 64w..")
    a("s_or_b32 s36, s36, s39")
    a("s_movk_i32 s37, 8192")
    a("s_mov_b32 s35, 24")
    a("s_bitcmp0_b32 s2, 3")
    a("s_cbranch_scc1 L_job")
    a("s_andn2_b32 s35, 0x86, s2", "wg bit 3 set: gate (waves 0,1) / up (waves 2,3) tile; 16 workgroups have none")
    a("s_cbranch_scc0 L_srest")
    a("s_lshr_b32 s36, s2, 3")
    a("s_and_b32 s37, s36, 24")
    a("s_min_u32 s37, s37, 22")
    a("s_and_b32 s35, s2, 7")
    a("s_add_u32 s37, s37, s35", "column block")
    a("s_and_b32 s36, s36, 6")
    a("s_and_b32 s35, s42, 1")
    a("s_or_b32 s36, s36, s35", "64-row block")
    a("s_mulk_i32 s36, 1792")
    a("s_add_u32 s36, s36, s37")
    a("s_lshl_b32 s36, s36, 7")
    a("s_movk_i32 s37, 3584")
    a("s_lshr_b32 s35, s42, 1")
    a("s_lshl3_add_u32 s35, s35, 48")
    lab("L_job")
    a("s_load_dwordx2 s[40:41], s[0:1], s35", "wq, W_gate or W_up")
    a("v_lshrrev_b32 v2, 3, v0")
    a("v_and_b32 v3, 7, v0")
    a("v_mul_u32_u24 v2, s37, v2")
    a("v_lshl_add_u32 v2, v3, 4, v2")
    a("v_add_u32 v2, s36, v2")
    a("s_lshl_b32 m0, s42, 13")
    a("s_lshl_b32 s37, s37, 3")
    a("s_lshl_b32 s36, s3, 13")
    a("s_waitcnt lgkmcnt(0)")
    lab("L_wdma")
    a(f"global_load_lds_dwordx4 v2, s[40:41] {wflags}")
    a("s_addk_i32 m0, 1024")
    a("v_add_u32 v2, s37, v2")
    a("s_cmp_lg_u32 m0, s36")
    a("s_cbranch_scc1 L_wdma")
    a("s_branch L_srest")

    section("X1")
    cur[0].append(".p2align 8")
    lab("L_xwave")
    a("v_lshlrev_b32 v1, 5, v0")
    a("v_mov_b32 v6, 0")
    a("v_mov_b32 v7, 0")
    a("v_lshlrev_b32 v5, 3, v0")
    a(f"ds_write_b64 v5, v[6:7] offset:{L_Z}", "zero block + flags")
    a("s_waitcnt lgkmcnt(0)")
    a("global_load_dwordx4 v[8:11], v1, s[4:5]")
    a("global_load_dwordx4 v[12:15], v1, s[4:5] offset:16")
    a("s_load_dword s33, s[26:27], 0", "epoch")
    a("s_setprio 2")
    zero_stamps()
    decode()
    a("s_and_b32 s67, s39, 0x200300")
    a("s_and_b32 s36, s2, 8")
    a("s_or_b32 s67, s67, s36")
    a("s_cbranch_scc1 L_x2")
    a("s_bfe_u32 s36, s39, 0x3000a")
    a("s_bfe_u32 s37, s39, 0x10007")
    a("s_lshl3_add_u32 s36, s37, s36")
    a(f"s_mul_i32 s36, s36, {ctstride}")
    a(f"s_add_u32 s36, s36, {WS_CT}")
    a("v_lshl_add_u32 v5, v0, 2, s36")
    a("global_store_dword v5, v6, s[26:27] sc1")
    a("s_branch L_x2")

    section("W")
    align("w")
    lab("L_wwave")
    if l2pf:
        a("s_getpc_b64 s[68:69]", "touch every 128-B line of the code (results unused)")
        lab("L_wpc")
        a(f"s_sub_u32 s68, s68, L_wpc-{KN}")
        a("s_subb_u32 s69, s69, 0")
        a("v_lshlrev_b32 v7, 7, v0")
        a("v_add_u32 v8, L_codeend-" + KN + "-8192, v7")
    if l2pf is True:
        a("global_load_dword v9, v7, s[68:69]")
        a("global_load_dword v9, v8, s[68:69]")
    elif l2pf:
        a(f"s_cmp_ge_u32 s2, {l2pf}")
        a("s_cbranch_scc1 L_nl2")
        a("global_load_dword v9, v7, s[68:69]")
        a("global_load_dword v9, v8, s[68:69]")
        lab("L_nl2")
    a("s_waitcnt lgkmcnt(0)")
    if tlb:
        note("touch pages this workgroup uses later (one dword each, results unused)")
        a("s_and_b32 s34, s2, 127")
        a("s_mov_b64 exec, 1")
        a("s_lshl_b32 s36, s2, 19")
        a("v_mov_b32 v3, s36")
        if "k" in tlb: a("global_load_dword v9, v3, s[6:7] nt")
        if "v" in tlb: a("global_load_dword v9, v3, s[8:9] nt")
        if "w" in tlb:
            a(f"s_mul_i32 s36, s34, {14*1024}")
            a("v_mov_b32 v3, s36")
            a("global_load_dword v9, v3, s[20:21] nt")
            a("s_lshl_b32 s36, s34, 15")
            a("v_mov_b32 v3, s36")
            a("global_load_dword v9, v3, s[12:13] nt")
        if "q" in tlb:
            a("v_mov_b32 v3, 1024")
            a("global_load_dword v9, v3, s[26:27] nt")
        if "p" in tlb:
            a("s_lshl_b32 s36, s2, 12")
            a(f"s_add_u32 s36, s36, {WS_P1}")
            a("v_mov_b32 v3, s36")
            a("global_load_dword v9, v3, s[26:27] nt")
            a(f"v_add_u32 v3, {WS_P2 - WS_P1}, v3")
            a("global_load_dword v9, v3, s[26:27] nt")
            a("v_xor_b32 v3, 0x80000, v3")
            a("global_load_dword v9, v3, s[26:27] nt")
        a("s_mov_b64 exec, -1")
    a("s_barrier", "barrier 0")
    if not dry: a("s_endpgm")
    srds()
    for r in [6, 14, VKO, VVO, VB] + list(range(VT, VT + 21)): a(f"v_mov_b32 v{r}, 0")
    a("s_mov_b64 exec, 0")
    for r in (42, 41, 33, 29, 76, 77): a(f"s_mov_b32 s{r}, 0")
    a("s_mov_b32 s54, 1")
    a("s_mov_b64 s[96:97], 0")
    a("s_mov_b64 s[98:99], 0")
    if dry == "tail": a("s_mov_b32 s41, 63")
    a("s_branch L_loop" if dry == "tail" else "s_branch L_vloop" if dry == "v" else "s_branch L_kpre")

    section("S")
    align("s")
    lab("L_srest")
    a("s_waitcnt lgkmcnt(0)")
    zero_stamps()
    if ts:
        a("v_mov_b32 v13, 0")
        a("s_mov_b32 s79, 1")
    stamp(9)
    decode()
    srds()
    scalar_part("s66", {"w": ("s42", 2), "r": ("s32", 4), "g": ("s38", 4)})
    a("v_lshrrev_b32 v2, 4, v0")
    a("v_and_b32 v3, 3, v0")
    a("v_bfe_u32 v4, v0, 2, 2")
    a("v_lshlrev_b32 v5, 8, v4")
    a("v_lshl_add_u32 v5, v2, 6, v5")
    a(f"v_lshl_add_u32 v{VKO}, v3, 4, v5", "K lane offset: key (lane>>2)&3, 16-B chunk 4(lane>>4) + (lane&3)")
    a("s_mov_b32 s52, s66")
    issue(preg(0), VKO, "s[44:47]", f"{NP}---")
    a(f"v_lshlrev_b32 v{VVO}, 4, v0", "V lane offset")
    a("v_mov_b32 v10, s66", "v10[n] = offset of this wave's tile n")
    lane_bits(10, 0, "n", 5)
    scalar_part("s55", {"w": ("s42", 2)}, base=False)
    a("s_lshl_b32 s36, s42, 2")
    a("v_mov_b32 v14, s36", "request slot")
    a("v_mov_b32 v6, 0xffff")
    a("v_mov_b32 v7, 0xffff0000")
    a("v_and_b32 v8, 1, v0")
    a("v_cmp_eq_u32 vcc, 1, v8")
    a("v_and_b32 v8, 2, v0")
    a("s_nop 0")
    a("v_cndmask_b32 v6, v6, v7, vcc")
    a("v_cmp_eq_u32 vcc, 2, v8")
    a(f"v_mov_b32 v{VM}, {f2u(-3.0e38):#x}")
    a(f"v_mov_b32 v{VL}, 0")
    a(f"v_cndmask_b32 v{VM1}, 0, v6, vcc", "P.V selector masks: bf16 slot lane&3 of the A fragment")
    a(f"v_xor_b32 v{VM0}, v{VM1}, v6")
    for i in range(8): a(f"v_mov_b32 v{VO+i}, 0")
    if mimic:
        a(f"s_mov_b32 s53, {f2u(math.log2(math.e)):#x}", "log2(e)")
        a(f"s_mov_b32 s43, {f2u(128.0 ** -0.5):#x}", "1/sqrt(128)")
        a("s_mov_b32 s67, 0xffff0000")
    else:
        a(f"s_mov_b32 s53, {f2u(math.log2(math.e) / math.sqrt(128.0)):#x}", "log2(e)/sqrt(128)")
    a("s_mov_b32 s54, 1000", "counts down; set to 0 for the last tile")
    a(f"s_mov_b32 s41, {RH + NE}", "next tile to issue")
    a(f"s_mov_b32 s76, {NA // RH - (3 if peel else 1)}")
    a(f"s_mov_b32 s77, {NA // RH - 1}")
    a("s_mov_b64 s[96:97], -1", "EXEC: all lanes")
    a("s_mov_b32 s98, 0x11111111", "EXEC: lane 0 of every quad")
    a("s_mov_b32 s99, 0x11111111")
    a(f"v_mov_b32 v{VB}, v{VKO}")
    a(f"s_mul_i32 s36, s42, {NA * 256}")
    a(f"v_lshl_add_u32 v{VSR}, v0, 2, s36")
    a(f"v_and_b32 v{VSW}, -16, v{VSR}")
    a("v_lshrrev_b32 v3, 4, v0", "g")
    a("v_and_b32 v4, 15, v0", "c")
    a("v_bfe_u32 v5, v0, 2, 2")
    a("s_lshl_b32 s35, s42, 11")
    a(f"v_lshl_add_u32 v{T_OW}, v0, 5, s35")
    a("s_lshl_b32 s36, s42, 3")
    a(f"v_lshl_add_u32 v{T_SW}, v5, 5, s36")
    a("s_lshl_b32 s35, s42, 9")
    a(f"v_lshl_add_u32 v{T_OR}, v0, 3, s35")
    a("s_lshl_b32 s36, s42, 5")
    a(f"v_mov_b32 v{T_SR}, s36")
    a("s_lshl_b32 s35, s2, 12")
    a("s_lshl_b32 s36, s42, 10")
    a("s_add_u32 s36, s35, s36")
    a(f"s_add_u32 s37, s36, {WS_P1}")
    a(f"v_lshl_add_u32 v{T_P1S}, v0, 4, s37", "P1 + wg*4096 + thread*16")
    a("s_lshl_b32 s36, s38, 16")
    a("s_lshl_b32 s37, s32, 8")
    a("s_add_u32 s36, s36, s37")
    a("s_lshl_b32 s37, s42, 6")
    a("s_add_u32 s36, s36, s37")
    a(f"s_add_u32 s36, s36, {WS_P1}")
    a(f"v_lshl_add_u32 v{T_P1L}, v4, 12, s36")
    a(f"v_lshl_add_u32 v{T_P1L}, v3, 4, v{T_P1L}", "P1 + (group*16 + c)*4096 + (16 split + 4w + g)*16")
    a("s_lshl_b32 s36, s42, 4")
    a(f"v_lshl_add_u32 v{T_OBW}, v3, 2, s36")
    a("s_lshl_b32 s36, s42, 6")
    a("s_lshl_b32 s37, s2, 3")
    a("s_add_u32 s36, s36, s37")
    a("v_lshl_add_u32 v1, v4, 2, v3")
    a("v_add_u32 v1, s36, v1")
    a("v_and_b32 v1, 255, v1")
    a(f"s_add_u32 s37, s35, {WS_P2}")
    a(f"v_lshl_add_u32 v{T_P2S}, v1, 4, s37", "P2 + wg*4096 + ((64w + 4c + g + 8wg) & 255)*16")
    a("s_lshl_b32 s36, s42, 8")
    a("v_lshl_add_u32 v1, v4, 4, s36")
    a("s_lshl_b32 s36, s34, 15")
    a("s_add_u32 s36, s36, 4096")
    a("v_lshl_add_u32 v2, v3, 13, s36")
    a(f"v_add_u32 v{T_WO}, v1, v2", "wo rows 32 idx + 8g + i, columns 128w + 8c..")
    a(f"s_mul_i32 s36, s34, {14*1024}")
    a("v_add_u32 v1, s36, v1")
    a("s_and_b32 s36, s34, 1")
    a("v_lshlrev_b32 v2, 1, v3")
    a("v_subrev_u32 v2, s36, v2")
    a("v_max_i32 v5, 0, v2")
    a(f"v_lshl_add_u32 v{T_D0}, v5, 11, v1", "W_down rows 14 idx + 2 clamp(2g + p - (idx&1), 0, 6) + i")
    a("v_add_u32 v2, 1, v2")
    a("v_min_i32 v5, 6, v2")
    a(f"v_lshl_add_u32 v{T_D1}, v5, 11, v1")
    a(f"v_lshlrev_b32 v{T_H}, 3, v3")
    a(f"v_lshlrev_b32 v{T_OBR}, 4, v3")
    a("v_and_b32 v2, 7, v0")
    a(f"v_lshlrev_b32 v{T_FR}, 4, v2")
    a("s_lshl_b32 s35, s42, 7")
    a(f"v_lshl_add_u32 v1, v3, 2, v{T_FR}")
    a(f"v_add_u32 v{T_FW}, s35, v1")
    a("s_lshr_b32 s35, s28, 2")
    a("s_and_b32 s36, s28, 3")
    a("s_lshl_b32 s36, s36, 3")
    a("s_lshr_b32 s37, s29, 2")
    a("s_add_u32 s36, s36, s37")
    a("v_lshrrev_b32 v3, 3, v0")
    a("s_lshl2_add_u32 s37, s35, s42")
    a("s_lshl_b32 s37, s37, 17")
    a(f"s_add_u32 s37, s37, {WS_P2}")
    a(f"v_add_u32 v5, s37, v{T_FR}")
    for k in range(4):
        a(f"v_add_u32 v1, {8*k}, v3")
        a("v_add_u32 v4, s36, v1")
        a("v_and_b32 v4, 31, v4")
        a("v_lshl_add_u32 v4, v4, 7, v5")
        a(f"v_lshl_add_u32 v{T_F0+k}, v1, 12, v4")
    a("s_lshl_b32 s37, s35, 10")
    a("s_lshl_b32 s36, s36, 5")
    a("s_add_u32 s37, s37, s36")
    a(f"v_lshl_add_u32 v{T_XO}, v2, 2, s37")
    a("s_mov_b32 s64, 0x05040100")
    a("s_mov_b32 s65, 0x07060302")
    a("s_mov_b32 s39, 0xffffff00")
    a("v_mov_b32 v6, 0")
    for p in range(RH + NE):
        if p:
            a(f"s_xor_b32 s52, s66, {nconst(p):#x}")
            issue(preg(p), VKO, "s[44:47]", (WL0 if WL0 and p == RH + NE - 1 else WP) if p >= pre_bar else "4---")
        if p == pre_bar - 1:
            a(f"s_waitcnt vmcnt({4 * pre_bar})")
            if probe is not None: stamp(11)
            a("s_barrier", "barrier 0: weight tile landed, LDS flags cleared")
            stamp(10)
        if p == pq:
            a("s_mov_b64 exec, 1", "q is needed soon: let the X wave gather it")
            a("v_mov_b32 v15, 1")
            a(f"ds_write_b32 v14, v15 offset:{L_GO}")
            a("s_mov_b64 exec, -1")
    stamp(1)
    a(f"s_mov_b32 s40, {spin * 8}")
    lab("L_qflag")
    a(f"ds_read_b64 v[2:3], v6 offset:{L_TAG}")
    a("s_waitcnt lgkmcnt(0)")
    a("v_cmp_eq_u32 vcc, 0, v3")
    a("s_cbranch_vccz L_qflag_done")
    a("s_sleep 1")
    a("s_sub_u32 s40, s40, 1")
    a("s_cbranch_scc0 L_qflag")
    lab("L_qflag_done")
    if sprio: a(f"s_setprio {sprio}")
    a(f"ds_read_b128 v[{VQ}:{VQ+3}], v{VKO} offset:{L_Q}")
    a("v_mov_b32 v17, v2", "tag")
    a("v_readfirstlane_b32 s33, v2")
    stamp(2)
    a("s_nop 1")
    tagregs()
    a("s_waitcnt lgkmcnt(0)")
    def claim(first=False):
        a("s_mov_b32 s35, 1" if first else f"s_sub_u32 s35, s41, {NS - 1}", "ask the X wave for step s41")
        a("s_mov_b64 exec, 1")
        a("v_mov_b32 v15, s35")
        a(f"ds_write_b32 v14, v15 offset:{L_REQ}")
        a("s_mov_b64 exec, -1")
    def qk(K):
        for u in range(4):
            a(f"v_mfma_f32_16x16x32_bf16 v[{VS+4*u}:{VS+4*u+3}], v[{K+4*u}:{K+4*u+3}], v[{VQ}:{VQ+3}], 0")
    def pv(V):
        for t in range(4):
            a(f"v_mfma_f32_16x16x16_bf16 v[{VO}:{VO+3}], v[{VA+2*t}:{VA+2*t+1}], v[{V+4*t}:{V+4*t+1}], v[{VO}:{VO+3}]")
            a(f"v_mfma_f32_16x16x16_bf16 v[{VO+4}:{VO+7}], v[{VA+2*t}:{VA+2*t+1}], v[{V+4*t+2}:{V+4*t+3}], v[{VO+4}:{VO+7}]")
    DPP = "row_mask:0xf bank_mask:0xf"
    def rowmax(dst):
        a("v_permlane16_swap_b32 v1, v2")
        a("s_nop 0")
        a("v_max_f32 v1, v1, v2")
        a("v_mov_b32 v2, v1")
        a("s_nop 1")
        a("v_permlane32_swap_b32 v1, v2")
        a("s_nop 0")
        a(f"v_max_f32 v{dst}, v1, v2")
    def scale1(dst, src):
        a(f"v_cvt_pk_bf16_f32 v{dst}, v{src}, v{src}")
        a(f"v_and_b32 v{dst}, s67, v{dst}")
        a(f"v_mul_f32 v{dst}, s43, v{dst}")
        a(f"v_cvt_pk_bf16_f32 v{dst}, v{dst}, v{dst}")
        a(f"v_and_b32 v{dst}, s67, v{dst}")
    def scale4():
        for rep in range(2):
            a("v_cvt_pk_bf16_f32 v5, v4, v5")
            a("v_cvt_pk_bf16_f32 v7, v6, v7")
            a("v_lshlrev_b32 v4, 16, v5")
            a("v_lshlrev_b32 v6, 16, v7")
            a("v_and_b32 v5, s67, v5")
            a("v_and_b32 v7, s67, v7")
            if rep == 0:
                for i in range(4): a(f"v_mul_f32 v{4+i}, s43, v{4+i}")
    def softmax(hook=lambda k: None):
        for u in range(4): a(f"v_mov_b32_dpp v{4+u}, v{VS+4*u} quad_perm:[0,0,0,0] {DPP}")
        for p in range(1, 4):
            for u in range(4): a(f"v_add_f32_dpp v{4+u}, v{VS+4*u+p}, v{4+u} quad_perm:[{p},{p},{p},{p}] {DPP}")
        hook(1)
        if mimic: scale4()
        a("v_max3_f32 v1, v4, v5, v6")
        a(f"v_max3_f32 v1, v1, v7, v{VM}")
        a("v_mov_b32 v2, v1")
        a("s_nop 1")
        rowmax(1)
        a(f"v_sub_f32 v2, v{VM}, v1")
        a("v_mul_f32 v3, s53, v1")
        a("v_mul_f32 v2, s53, v2")
        a(f"v_mov_b32 v{VM}, v1")
        a("v_exp_f32 v2, v2", "rescale factor")
        for i in range(4): a(f"v_fma_f32 v{4+i}, v{4+i}, s53, -v3")
        hook(2)
        for i in range(4): a(f"v_exp_f32 v{4+i}, v{4+i}")
        for g in range(4): a(f"v_mov_b32_dpp v8, v2 row_newbcast:{4*g} row_mask:{1<<g:#x} bank_mask:0xf")
        a(f"v_fma_f32 v{VL}, v{VL}, v2, v4")
        a("v_add_f32 v9, v5, v6")
        a(f"v_add_f32 v{VL}, v{VL}, v7")
        a(f"v_add_f32 v{VL}, v{VL}, v9")
        for i in range(4): a(f"v_cvt_pk_bf16_f32 v{4+i}, v{4+i}, v{4+i}")
        hook(3)
        for i in range(8): a(f"v_mul_f32 v{VO+i}, v{VO+i}, v8")
        for i in range(4):
            a(f"v_and_b32 v{VA+2*i}, v{4+i}, v{VM0}")
            a(f"v_and_b32 v{VA+2*i+1}, v{4+i}, v{VM1}")
    def scores(K, p, ring):
        qk(K)
        if ring:
            a("v_readlane_b32 s52, v10, s41")
            a("s_add_u32 s41, s41, 1")
            a("s_nop 2")
        else:
            a("s_nop 4")
        for u in range(4): a(f"v_add_f32_dpp v{4+u}, v{VS+4*u+1}, v{VS+4*u} quad_perm:[1,1,1,1] {DPP}")
        for q_ in (2, 3):
            for u in range(4): a(f"v_add_f32_dpp v{4+u}, v{VS+4*u+q_}, v{4+u} quad_perm:[{q_},{q_},{q_},{q_}] {DPP}")
        a("s_mov_b64 exec, s[98:99]")
        a(f"v_max3_f32 v{VM}, v4, v5, v{VM}")
        a(f"ds_write_b128 v{VSW}, v[4:7] offset:{L_SC + p*256}")
        a(f"v_max3_f32 v{VM}, v6, v7, v{VM}")
        a("s_mov_b64 exec, s[96:97]")
    lab("L_kpre")
    if peel:
        assert NE == RH and NA >= 3 * RH
        for p in range(RH):
            K = VR + PERM[p] * 16
            scores(K, RH + p, True)
            guarded(lambda: issue(K, VKO, "s[44:47]", WS, ks=(0, 1)))
            scores(preg(p), p, False)
            guarded(lambda: issue(K, VKO, "s[44:47]", WS, ks=(2, 3)))
        a(f"v_add_u32 v{VSW}, {2*RH*256}, v{VSW}")
    else:
        assert NE < RH
        for p in range(NE): scores(preg(p), p, False)
        if NE: a(f"s_cbranch_execnz L_kp{NE}", "their ring slots already hold later tiles")
    align("k")
    lab("L_kloop")
    a("s_cmp_lg_u32 s76, 0")
    a("s_cbranch_scc1 L_kp0")
    if probe is not None: stamp(12)
    a("s_mov_b64 s[72:73], s[8:9]", "last trip: refill with V tiles 0..")
    a(f"v_mov_b32 v{VB}, v{VVO}")
    a("s_mov_b32 s41, 0")
    for p in range(RH):
        K = VR + PERM[p] * 16
        lab(f"L_kp{p}")
        scores(K, p, True)
        guarded(lambda: issue(K, VB, "s[72:75]", WS))
    a(f"v_add_u32 v{VSW}, {RH*256}, v{VSW}")
    a("s_sub_u32 s76, s76, 1")
    a("s_cbranch_scc0 L_kloop")
    a(f"ds_read_b32 v9, v{VSR} offset:{L_SC}")
    a(f"v_mov_b32_dpp v1, v{VM} quad_perm:[0,0,0,0] {DPP}")
    a(f"v_mov_b32_dpp v2, v{VM} quad_perm:[0,0,0,0] {DPP}")
    a("s_mov_b32 s78, 1")
    a("s_nop 0")
    rowmax(VM)
    if mimic: scale1(VM, VM)
    a(f"v_mul_f32 v3, s53, v{VM}")
    WL = [f"global_load_dwordx4 v[{RD+4*i}:{RD+4*i+3}], v{T_D0 + i//2}, s[20:21] offset:{(i&1)*1024} {woflags}" for i in range(4)]
    WL += [f"global_load_dwordx4 v[{RW+4*i}:{RW+4*i+3}], v{T_WO}, s[12:13] offset:{i*1024-4096} {woflags}" for i in range(8)]
    assert nV in (0, 4, 8, 12) and nA >= nV and not (nV and r0)
    vsn = []
    align("v")
    lab("L_vloop")
    a("s_cmp_lg_u32 s77, 0")
    a("s_cbranch_scc1 L_v0")
    a("s_mov_b64 s[72:73], s[6:7]", f"last trip: refill only slots 0, 1 with K, V of tile {NA}")
    a(f"v_mov_b32 v{VB}, v{VKO}")
    a("s_mov_b32 s78, 0")
    lab("L_v0")
    for p in range(RH):
        sl = PERM[p]
        V = VR + sl * 16
        a("v_readlane_b32 s52, v10, s41")
        a("s_waitcnt lgkmcnt(0)")
        if mimic:
            scale1(4, 9)
            a("v_fma_f32 v4, v4, s53, -v3")
        else:
            a("v_fma_f32 v4, v9, s53, -v3")
        a(f"ds_read_b32 v9, v{VSR} offset:{L_SC + (p+1)*256}")
        a("v_exp_f32 v4, v4")
        a("s_add_u32 s41, s41, 1" if sl == 1 else "s_add_u32 s41, s41, s78")
        a("v_cvt_pk_bf16_f32 v5, v4, v4")
        a(f"v_add_f32 v{VL}, v{VL}, v4")
        a("s_nop 0")
        for t in range(4):
            a(f"v_and_b32_dpp v{VA+2*t}, v5, v{VM0} quad_perm:[{t},{t},{t},{t}] {DPP}")
            a(f"v_and_b32_dpp v{VA+2*t+1}, v5, v{VM1} quad_perm:[{t},{t},{t},{t}] {DPP}")
        if p == RH - 1:
            a("s_cmp_lg_u32 s77, 0", "last trip: only the K refill is younger than this slot's loads")
            a("s_cbranch_scc1 L_vw")
            a(f"s_waitcnt vmcnt({4 + nV})")
            lab("L_vw")
        pv(V)
        if sl >= 2:
            a("s_cmp_eq_u32 s77, 0")
            k4 = sl - 4
            if 0 <= k4 < nV // 4:
                a(f"s_cbranch_scc1 L_vx{p}")
                vsn.append((p, WL[4*k4:4*k4+4]))
            else:
                a(f"s_cbranch_scc1 L_vs{p}")
            issue(V, VVO, "s[48:51]", WS)
            lab(f"L_vs{p}")
        elif sl == 0:
            if rq == 4: guarded(lambda: issue(V, VB, "s[72:75]", WS))
            if NS == NA + 1:
                a("s_cmp_lg_u32 s77, 0")
                a("s_cbranch_scc1 L_vnc")
                guarded(lambda: claim(first=True))
                lab("L_vnc")
            if rq < 4: guarded(lambda: issue(V, VB, "s[72:75]", WS))
        else:
            guarded(lambda: issue(V, VVO, "s[48:51]", WS))
    a(f"v_add_u32 v{VSR}, {RH*256}, v{VSR}")
    a("s_sub_u32 s77, s77, 1")
    a("s_cbranch_scc0 L_vloop")
    a(f"v_add_f32_dpp v{VL}, v{VL}, v{VL} quad_perm:[1,0,3,2] {DPP}")
    a("s_waitcnt lgkmcnt(0)")
    a("s_nop 0")
    a(f"v_add_f32_dpp v{VL}, v{VL}, v{VL} quad_perm:[2,3,0,1] {DPP}")
    a("s_cbranch_execnz L_loop")
    a("s_mov_b32 s41, 63")
    align("m")
    lab("L_loop")
    assert int(WM[0]) <= 4
    for slot in range(2):
        oth = 1 - slot
        a("v_readlane_b32 s52, v10, s41")
        a(f"s_cmp_ge_u32 s41, {NS}")
        a(f"s_cbranch_scc1 L_tk{slot}")
        a("s_nop 1")
        lab(f"L_gk{slot}")
        issue(VR + oth * 32, VKO, "s[44:47]", WM, ks=(0,) if mi else range(rq))
        a("s_add_u32 s41, s41, 1")
        a(f"s_cmp_lt_u32 s41, {NS}")
        a(f"s_cbranch_scc1 L_nc{slot}")
        claim()
        lab(f"L_nc{slot}")
        if not mi: issue(VR + oth * 32, VKO, "s[44:47]", WM, ks=range(rq, 4))
        lab(f"L_rk{slot}")
        qk(VR + slot * 32)
        a("s_nop 4")
        def hook(k):
            a("s_cmp_lt_u32 s54, 2")
            a(f"s_cbranch_scc1 L_mk{slot}{k}")
            issue(VR + oth * 32, VKO, "s[44:47]", WM, ks=(k,))
            lab(f"L_mk{slot}{k}")
        softmax(hook) if mi else softmax()
        a("s_cmp_lt_u32 s54, 2")
        a(f"s_cbranch_scc1 L_dv{slot}")
        issue(VR + oth * 32 + 16, VVO, "s[48:51]", WM, down=True, ks=(0,) if mi else range(4))
        lab(f"L_rv{slot}")
        pv(VR + slot * 32 + 16)
        a("s_sub_u32 s54, s54, 1")
        a("s_cbranch_scc1 L_done")
        if mi: guarded(lambda: issue(VR + oth * 32 + 16, VVO, "s[48:51]", WM, down=True, ks=(1, 2, 3)))
    a("s_branch L_loop")
    for p, ls in vsn:
        lab(f"L_vx{p}")
        a(f"s_cbranch_execz L_vs{p}")
        for k, x in enumerate(ls):
            if WS[k] != "-": a(f"s_waitcnt vmcnt({WS[k]})")
            a(x)
        a(f"s_branch L_vs{p}")
    for slot in range(2):
        lab(f"L_tk{slot}")
        a(f"s_cbranch_execz L_rk{slot}")
        a("s_lshl_b32 s35, s41, 2")
        a(f"s_add_u32 s35, s35, {L_TK - 4 * NS}")
        a("v_mov_b32 v15, s35")
        a(f"s_mov_b32 s40, {spin * 8}")
        lab(f"L_tp{slot}")
        a("ds_read_b32 v16, v15", "-1: not served yet, -2: pool empty")
        a("s_sub_u32 s40, s40, 1")
        a(f"s_cbranch_scc1 L_tf{slot}")
        a("s_waitcnt lgkmcnt(0)")
        a("v_readfirstlane_b32 s35, v16")
        a("s_nop 1")
        a("s_cmp_eq_u32 s35, -1")
        a(f"s_cbranch_scc1 L_tp{slot}")
        a("s_xor_b32 s52, s35, s55")
        a("s_cmp_lt_u32 s35, -3")
        a(f"s_cbranch_scc1 L_gk{slot}")
        if r0: a("s_and_b32 s78, s35, 1", "early finisher")
        lab(f"L_tf{slot}")
        a("s_mov_b32 s54, 0")
        a("s_waitcnt vmcnt(4)")
        a(f"s_branch L_rk{slot}")
        lab(f"L_dv{slot}")
        if r0 and nA:
            a("s_cmp_lg_u32 s78, 0")
            a(f"s_cbranch_scc1 L_de{slot}")
        if nA > nV: guard(WL[nV:nA])
        if r0 and nA: lab(f"L_de{slot}")
        a(f"v_mov_b32 v2, v{VL}")
        a(f"v_mul_f32 v10, s53, v{VM}")
        a("s_nop 0")
        a(f"v_permlane16_swap_b32 v{VL}, v2")
        a("s_nop 0")
        a(f"v_add_f32 v11, v{VL}, v2")
        a("v_mov_b32 v2, v11")
        a("s_nop 1")
        a("v_permlane32_swap_b32 v11, v2")
        a("s_nop 0")
        a("v_add_f32 v11, v11, v2")
        a(f"ds_write_b64 v{T_SW}, v[10:11] offset:{L_ST}")
        a(f"s_waitcnt vmcnt({nA - nV})")
        if r0 and nA:
            a(f"s_cbranch_scc0 L_rv{slot}")
            a("s_waitcnt vmcnt(0)")
        a(f"s_branch L_rv{slot}")
    align("d")
    lab("L_done")
    stamp(3)
    if tt:
        a("s_mov_b32 s94, s41")
        a(f"v_mov_b32 v{VR}, v13")
    poll1 = f"global_load_dwordx4 v[8:11], v{T_P1L}, s[26:27] sc1"
    if gap1 == "prio": a("s_setprio 3")
    a("s_nop 4")
    a(f"ds_write_b128 v{T_OW}, v[{VO}:{VO+3}] offset:{L_O}")
    a(f"ds_write_b128 v{T_OW}, v[{VO+4}:{VO+7}] offset:{L_O+16}")
    a("s_waitcnt lgkmcnt(0)")
    guard(["s_barrier"])
    a(f"ds_read_b128 v[8:11], v{T_SR} offset:{L_ST}")
    a(f"ds_read_b128 v[12:15], v{T_SR} offset:{L_ST+16}")
    for w in range(4): a(f"ds_read_b64 v[{24+2*w}:{25+2*w}], v{T_OR} offset:{L_O + w*2048}")
    a("v_mov_b32 v39, v17")
    a("s_waitcnt lgkmcnt(4)")
    a("v_max3_f32 v2, v8, v10, v12")
    a("v_max_f32 v2, v2, v14")
    for w in range(4): a(f"v_sub_f32 v{8+2*w}, v{8+2*w}, v2")
    for w in range(4): a(f"v_exp_f32 v{8+2*w}, v{8+2*w}")
    a("v_mul_f32 v16, v8, v9")
    a("v_fmac_f32 v16, v10, v11")
    a("v_fmac_f32 v16, v12, v13")
    a("v_fmac_f32 v16, v14, v15")
    a("s_waitcnt lgkmcnt(0)")
    a("v_rcp_f32 v5, v16")
    a("v_log_f32 v16, v16")
    a("v_mul_f32 v36, v8, v24")
    a("v_mul_f32 v37, v8, v25")
    for w in range(1, 4):
        a(f"v_fmac_f32 v36, v{8+2*w}, v{24+2*w}")
        a(f"v_fmac_f32 v37, v{8+2*w}, v{25+2*w}")
    a("v_add_f32 v38, v2, v16", "log2 of the partial sum")
    a("v_mul_f32 v36, v36, v5")
    a("v_mul_f32 v37, v37, v5")
    assert not pollfirst
    def gap(kind):
        if kind == "bar": a("s_barrier", "all four stores go out before any wave's loads")
        if kind == "prio": a("s_setprio 0")
    if not r0:
        def f():
            a(f"global_store_dwordx4 v{T_P1S}, v[36:39], s[26:27] sc1")
            stamp(4)
            gap(gap1)
            for x in WL[nA:] + [poll1]: a(x)
        guarded(f)
    else:
        def f():
            a(f"global_store_dwordx4 v{T_P1S}, v[36:39], s[26:27] sc1")
            stamp(4)
            a("s_cmp_eq_u32 s78, 0")
            a("s_cbranch_scc1 L_wlate")
            a(f"s_mov_b32 s40, {spin}")
            lab("L_pre")
            a(poll1)
            a("s_waitcnt vmcnt(0)")
            a("v_cmp_eq_u32 vcc, s33, v11")
            a("s_sub_u32 s40, s40, 1")
            a("s_cbranch_scc1 L_pre_done")
            a("s_bcnt1_i32_b64 s35, vcc")
            a(f"s_cmp_lt_u32 s35, {4 * cnt}")
            a("s_cbranch_scc1 L_pre")
            lab("L_pre_done")
            for x in WL[:nA]: a(x)
            lab("L_wlate")
            for x in WL[nA:] + [poll1]: a(x)
        guarded(f)
    a(f"ds_read_b32 v{T_X}, v{T_XO} offset:{L_XR}")
    a(f"ds_read_b64 v[24:25], v{T_H} offset:{L_H}")
    def younger(k): return (11 - k) + (1 if k < nA and not r0 else 0) + 1
    def pairup(raw, dst, p):
        for d in range(4):
            a(f"v_perm_b32 v{dst+8*p+2*d}, v{raw+8*p+4+d}, v{raw+8*p+d}, s64")
            a(f"v_perm_b32 v{dst+8*p+2*d+1}, v{raw+8*p+4+d}, v{raw+8*p+d}, s65")
    def dots(pairs, vec, npairs):
        for p in range(npairs):
            for c in range(8):
                a(f"v_dot2_f32_bf16 v{VS+c}, v{pairs+8*p+c}, v{vec+p}, {'0' if p == 0 else 'v%d' % (VS+c)}")
    def fold(dst):
        for k in range(4): a(f"v_permlane32_swap_b32 v{VS+k}, v{VS+4+k}")
        for k in range(4): a(f"v_add_f32 v{VS+k}, v{VS+k}, v{VS+4+k}")
        a("s_nop 0")
        for k in range(2): a(f"v_permlane16_swap_b32 v{VS+k}, v{VS+2+k}")
        for k in range(2): a(f"v_add_f32 v{dst+k}, v{VS+k}, v{VS+2+k}")
    a(f"s_waitcnt vmcnt({younger(3)})")
    for p in range(2): pairup(RD, PD, p)
    a("s_waitcnt lgkmcnt(0)")
    dots(PD, 24, 2)
    fold(42)
    a("v_perm_b32 v42, v42, v17, s62")
    a("v_perm_b32 v43, v43, v17, s63")
    nearly = (nA - 4) // 2 if pollfirst else 4
    for p in range(nearly):
        a(f"s_waitcnt vmcnt({younger(4 + 2*p + 1)})")
        pairup(RW, PW, p)
    a(f"s_mov_b32 s40, {spin}")
    if probe is None: stamp(11)
    a(f"s_waitcnt vmcnt({12 - nA if pollfirst else 0})")
    a("s_branch L_p1chk")
    align("p")
    lab("L_p1poll")
    if sleep1: a(f"s_sleep {sleep1}")
    a(poll1)
    a("s_waitcnt vmcnt(0)")
    lab("L_p1chk")
    a("v_cmp_ne_u32 vcc, s33, v11")
    pollend("L_p1poll")
    stamp(5)
    if tt: a(f"s_sub_u32 s92, {spin + 1}, s40")
    a(f"v_max_f32_dpp v2, v10, v10 row_ror:8 {DPP}")
    a("s_nop 1")
    for r in (4, 2, 1):
        a(f"v_max_f32_dpp v2, v2, v2 row_ror:{r} {DPP}")
        if r > 1: a("s_nop 1")
    a("v_sub_f32 v10, v10, v2")
    a("v_exp_f32 v10, v10")
    a("s_nop 0")
    a("v_mul_f32 v8, v8, v10")
    a("v_mul_f32 v9, v9, v10")
    for r in (8, 4, 2, 1):
        for v in (10, 8, 9): a(f"v_add_f32_dpp v{v}, v{v}, v{v} row_ror:{r} {DPP}")
    a("v_rcp_f32 v10, v10")
    a("s_nop 0")
    a("v_mul_f32 v8, v8, v10")
    a("v_mul_f32 v9, v9, v10")
    a("v_cvt_pk_bf16_f32 v8, v8, v9")
    a(f"ds_write_b32 v{T_OBW}, v8 offset:{L_OB}")
    a("s_waitcnt lgkmcnt(0)")
    guard(["s_barrier"])
    if gap2 == "prio": a("s_setprio 3")
    a(f"ds_read_b128 v[24:27], v{T_OBR} offset:{L_OB}")
    for p in range(nearly, 4):
        a(f"s_waitcnt vmcnt({6 - 2*p})")
        pairup(RW, PW, p)
    a("s_waitcnt lgkmcnt(0)")
    dots(PW, 24, 4)
    fold(40)
    a("v_perm_b32 v40, v40, v17, s60")
    a("v_perm_b32 v41, v41, v17, s61")
    guard([f"global_store_dwordx4 v{T_P2S}, v[40:43], s[26:27] sc1"])
    stamp(6)
    a("s_and_b32 s35, s29, 3")
    a("s_cbranch_scc1 L_end" if lite else "s_cbranch_scc1 L_sexit")
    a(f"s_mov_b32 s40, {spin}")
    if gap2: guarded(lambda: gap(gap2))
    align("q")
    lab("L_p2poll")
    if sleep2: a(f"s_sleep {sleep2}")
    guard([f"global_load_dwordx4 v[{VP2+4*i}:{VP2+4*i+3}], v{T_F0+i}, s[26:27] sc1" for i in range(4)])
    a("s_waitcnt vmcnt(0)")
    check([VP2 + 4 * i for i in range(4)], 2)
    pollend("L_p2poll")
    stamp(7)
    if tt: a(f"s_sub_u32 s93, {spin + 1}, s40")
    for i in range(16): a(f"v_and_b32 v{24+i}, s39, v{VP2+i}")
    for i in (0, 2):
        a(f"v_pk_add_f32 v[{24+i}:{25+i}], v[{24+i}:{25+i}], v[{28+i}:{29+i}]")
        a(f"v_pk_add_f32 v[{32+i}:{33+i}], v[{32+i}:{33+i}], v[{36+i}:{37+i}]")
    for i in (0, 2): a(f"v_pk_add_f32 v[{8+i}:{9+i}], v[{24+i}:{25+i}], v[{32+i}:{33+i}]")
    a("s_nop 1")
    a("v_permlane32_swap_b32 v8, v10", "afterwards row r of the wave holds dword r of granule lane&7")
    a("v_permlane32_swap_b32 v9, v11")
    a("s_nop 0")
    a("v_add_f32 v8, v8, v10")
    a("v_add_f32 v9, v9, v11")
    a("s_nop 1")
    a("v_permlane16_swap_b32 v8, v9")
    a("s_nop 0")
    a("v_add_f32 v8, v8, v9")
    a("s_nop 1")
    a(f"v_add_f32_dpp v8, v8, v8 row_ror:8 {DPP}")
    a(f"ds_write_b32 v{T_FW}, v8 offset:{L_O}")
    a("s_waitcnt lgkmcnt(0)")
    guard(["s_barrier"])
    a("s_cmp_lg_u32 s42, 0")
    a("s_cbranch_scc1 L_epoch" if ep1 else "s_cbranch_scc1 L_end" if lite else "s_cbranch_scc1 L_sexit")
    for w in range(4): a(f"ds_read_b128 v[{24+4*w}:{27+4*w}], v{T_FR} offset:{L_O + 128*w}")
    a(f"v_lshlrev_b32 v14, 16, v{T_X}")
    a(f"v_and_b32 v15, 0xffff0000, v{T_X}")
    a("s_waitcnt lgkmcnt(2)")
    for i in (2, 0): a(f"v_pk_add_f32 v[{24+i}:{25+i}], v[{24+i}:{25+i}], v[{28+i}:{29+i}]")
    a("s_waitcnt lgkmcnt(0)")
    for i in (2, 0): a(f"v_pk_add_f32 v[{32+i}:{33+i}], v[{32+i}:{33+i}], v[{36+i}:{37+i}]")
    for i in (2, 0): a(f"v_pk_add_f32 v[{8+i}:{9+i}], v[{24+i}:{25+i}], v[{32+i}:{33+i}]")
    a("v_cvt_pk_bf16_f32 v10, v10, v11", "FFN output")
    a("v_cvt_pk_bf16_f32 v8, v8, v9", "attention output")
    a("v_and_b32 v11, 0xffff0000, v10")
    a("v_lshlrev_b32 v10, 16, v10")
    a(f"v_mul_f32 v13, {f2u(-math.log2(math.e)):#x}, v11")
    a(f"v_mul_f32 v12, {f2u(-math.log2(math.e)):#x}, v10")
    a("v_exp_f32 v13, v13")
    a("v_exp_f32 v12, v12")
    a("v_and_b32 v9, 0xffff0000, v8")
    a("v_add_f32 v13, 1.0, v13")
    a("v_add_f32 v12, 1.0, v12")
    a("v_rcp_f32 v13, v13")
    a("v_rcp_f32 v12, v12")
    a("v_lshlrev_b32 v8, 16, v8")
    a("v_mul_f32 v11, v11, v13")
    a("v_mul_f32 v10, v10, v12")
    a("v_cvt_pk_bf16_f32 v10, v10, v11", "silu")
    a("v_and_b32 v11, 0xffff0000, v10")
    a("v_lshlrev_b32 v10, 16, v10")
    a("v_mul_f32 v9, v9, v11")
    a("v_mul_f32 v8, v8, v10")
    a("v_cvt_pk_bf16_f32 v8, v8, v9")
    a("v_and_b32 v9, 0xffff0000, v8")
    a("v_lshlrev_b32 v8, 16, v8")
    a("v_add_f32 v9, v9, v15")
    a("v_add_f32 v8, v8, v14")
    a("v_cvt_pk_bf16_f32 v8, v8, v9")
    a("s_cbranch_execz L_end")
    a("s_mov_b64 exec, 0xff")
    if endexp is not None:
        if endexp == "before": a(f"global_store_dword v{T_XO}, v8, s[22:23] {outflags}")
        a("s_add_u32 s72, s80, 10000")
        lab("L_hold")
        a("s_memrealtime s[70:71]")
        a("s_waitcnt lgkmcnt(0)")
        a("s_sub_u32 s73, s70, s72")
        a("s_cmp_lt_i32 s73, 0")
        a("s_cbranch_scc1 L_hold")
    if endexp != "before": a(f"global_store_dword v{T_XO}, v8, s[22:23] {outflags}")
    if ep1:
        a("s_branch L_sexit" if ts else "s_endpgm")
        lab("L_epoch")
    if ep1: a("s_lshl2_add_u32 s35, s2, s42")
    a("s_cmp_lg_u32 s35, 17" if ep1 else "s_cmp_lg_u32 s2, 4")
    a("s_cbranch_scc1 L_end" if (ep1 and lite) else "s_cbranch_scc1 L_sexit")
    a("s_mov_b64 exec, 1")
    a("v_mov_b32 v6, 0")
    a(f"global_store_dword v6, v17, s[26:27] {outflags}")
    if ep1 and lite: a("s_endpgm")
    lab("L_sexit")
    stamp(8)
    if tt:
        a("s_mov_b64 exec, -1")
        a("s_lshl_b32 s70, s2, 2")
        a("s_add_u32 s70, s70, s42")
        a("s_lshl_b32 s70, s70, 8")
        a(f"s_add_u32 s70, s70, {WS_TT}")
        a("v_lshl_add_u32 v1, v0, 2, s70")
        a(f"global_store_dword v1, v{VR}, s[26:27]")
    dump_stamps("S")
    lab("L_end")
    a("s_endpgm")

    section("X2")
    align("x")
    lab("L_x2")
    a("v_lshrrev_b32 v46, 4, v0", "g")
    a("v_bfe_u32 v7, v0, 2, 2")
    a("v_and_b32 v5, 3, v0")
    a("v_lshlrev_b32 v44, 10, v46")
    a("v_lshl_add_u32 v44, v7, 7, v44")
    a("v_lshl_add_u32 v44, v5, 3, v44", "weight fragment address (transposing reads)")
    a("v_and_b32 v45, 1, v0", "batch row of this column of D")
    a("v_lshlrev_b32 v4, 10, v45")
    a("v_lshl_add_u32 v4, v46, 4, v4")
    a("v_bfe_u32 v47, v0, 1, 3", "which 16-column block lands in this column of D")
    a("v_bfe_u32 v2, v0, 1, 2")
    a("v_lshlrev_b32 v2, 6, v2")
    a("v_lshl_add_u32 v2, v46, 4, v2")
    a("s_bitcmp1_b32 s2, 3")
    a("s_cbranch_scc1 L_fsetup")
    a("s_lshr_b32 s35, s39, 21")
    a("s_lshl_b32 s43, s35, 9")
    a("s_add_u32 s52, s43, 256")
    a("s_mov_b32 s53, 0")
    a("s_bfe_u32 s36, s39, 0x3000a")
    a("s_lshl_b32 s36, s36, 13")
    a("s_lshl_b32 s37, s35, 11")
    a("s_add_u32 s36, s36, s37")
    a("s_bfe_u32 s37, s39, 0x30007")
    a("s_lshl_b32 s37, s37, 8")
    a("s_add_u32 s36, s36, s37")
    a(f"s_add_u32 s36, s36, {WS_QP}")
    a("v_lshl_add_u32 v3, v45, 12, s36")
    a("s_mov_b32 s54, 0x00ff00ff")
    a("s_branch L_jobset")
    lab("L_fsetup")
    a("s_and_b32 s35, s38, 3")
    a("s_lshl_b32 s43, s35, 8")
    a("s_mov_b32 s52, s43")
    a("s_mov_b32 s53, 4")
    a("s_and_b32 s37, s29, 24")
    a("s_min_u32 s37, s37, 22")
    a("s_add_u32 s37, s37, s28")
    a("s_lshl_b32 s37, s37, 8")
    a("s_mul_i32 s36, s35, 7168")
    a("s_add_u32 s36, s36, s37")
    a(f"s_add_u32 s36, s36, {WS_FP}")
    a("v_bfe_u32 v3, v0, 3, 1")
    a("v_lshl_add_u32 v3, v45, 1, v3")
    a(f"v_mul_u32_u24 v3, {4*7168}, v3")
    a("v_add_u32 v3, s36, v3")
    a("s_mov_b32 s54, -1")
    lab("L_jobset")
    a("v_add_u32 v35, v2, v3", "publish address")
    a("s_mov_b32 s55, s54")
    a(f"v_mov_b32 v34, {L_Z - L_XN}")
    for hh in range(2):
        a(f"v_add_u32 v5, s{43 if hh == 0 else 52}, v4")
        if hh: a("v_subrev_u32 v47, s53, v47")
        for k in range(4): a(f"v_cmp_eq_u32 s[{44+2*k}:{45+2*k}], {k}, v47")
        a("s_nop 0")
        for k in range(4): a(f"v_cndmask_b32 v{36+4*hh+k}, v34, v5, s[{44+2*k}:{45+2*k}]", "xn fragment address, or the zero block" if k == 0 else None)
    if tt: a("s_memrealtime s[72:73]")
    if not lnfirst: a("s_barrier", "barrier 0")
    a("s_waitcnt vmcnt(1)")
    a("s_cmp_eq_u32 s67, 0", "these still have the counter store in flight")
    a("s_cbranch_scc1 L_xok")
    a("s_waitcnt vmcnt(0)")
    lab("L_xok")
    stamp(1)
    if tt: a("s_mov_b32 s89, s72")
    a(f"ds_write_b128 v1, v[8:11] offset:{L_XR}", "raw x for the residual")
    a(f"ds_write_b128 v1, v[12:15] offset:{L_XR+16}")
    for i in range(8):
        a(f"v_lshlrev_b32 v{16+2*i}, 16, v{8+i}")
        a(f"v_and_b32 v{17+2*i}, 0xffff0000, v{8+i}")
    def red32(v, t):
        a("s_nop 1")
        for r in (8, 4, 2, 1):
            a(f"v_add_f32_dpp {v}, {v}, {v} row_ror:{r} {DPP}")
            a("s_nop 1")
        a(f"v_mov_b32 {t}, {v}")
        a("s_nop 1")
        a(f"v_permlane16_swap_b32 {v}, {t}")
        a("s_nop 0")
        a(f"v_add_f32 {v}, {v}, {t}")
    a("v_add_f32 v6, v16, v17")
    for i in range(2, 16): a(f"v_add_f32 v6, v6, v{16+i}")
    red32("v6", "v7")
    a(f"v_mul_f32 v6, {f2u(1.0/512):#x}, v6", "mean")
    a("v_sub_f32 v32, v16, v6")
    a("v_mul_f32 v33, v32, v32")
    for i in range(1, 16):
        a(f"v_sub_f32 v32, v{16+i}, v6")
        a("v_fmac_f32 v33, v32, v32")
    red32("v33", "v7")
    a(f"v_mul_f32 v33, {f2u(1.0/512):#x}, v33", "variance")
    a("v_cvt_pk_bf16_f32 v6, v6, v33")
    a("v_and_b32 v33, 0xffff0000, v6")
    a("v_lshlrev_b32 v6, 16, v6")
    a(f"v_add_f32 v33, {f2u(1e-5):#x}, v33")
    a("v_cvt_pk_bf16_f32 v33, v33, v33")
    a("v_lshlrev_b32 v33, 16, v33")
    a("v_sqrt_f32 v33, v33")
    a("s_nop 0")
    a("v_cvt_pk_bf16_f32 v33, v33, v33")
    a("v_lshlrev_b32 v33, 16, v33")
    a("v_rcp_f32 v33, v33")
    for i in range(8):
        a(f"v_sub_f32 v{16+2*i}, v{16+2*i}, v6")
        a(f"v_sub_f32 v{17+2*i}, v{17+2*i}, v6")
        a(f"v_cvt_pk_bf16_f32 v{8+i}, v{16+2*i}, v{17+2*i}")
        a(f"v_lshlrev_b32 v{16+2*i}, 16, v{8+i}")
        a(f"v_and_b32 v{17+2*i}, 0xffff0000, v{8+i}")
        a(f"v_mul_f32 v{16+2*i}, v{16+2*i}, v33")
        a(f"v_mul_f32 v{17+2*i}, v{17+2*i}, v33")
        a(f"v_cvt_pk_bf16_f32 v{8+i}, v{16+2*i}, v{17+2*i}")
    a(f"ds_write_b128 v1, v[8:11] offset:{L_XN}")
    a(f"ds_write_b128 v1, v[12:15] offset:{L_XN+16}")
    a("s_waitcnt lgkmcnt(0)")
    a(f"s_add_u32 s33, s33, {PHI:#x}", "tag")
    tagregs()
    a("v_mov_b32 v32, s33")
    a("v_mov_b32 v33, 1")
    if lnfirst: a("s_barrier", "barrier 0")
    stamp(2)
    a("s_andn2_b32 s35, 0x8e, s2")
    a("s_cbranch_scc0 L_nojob")
    steps = [(ks, blk) for ks in range(8) for blk in range(4)]
    def rd(n):
        ks, blk = steps[n]
        o = (n % 4) * 8
        a(f"ds_read_b128 v[{48+o}:{51+o}], v{36 + 4*(ks>>2) + blk} offset:{L_XN + (ks&3)*64}")
        a(f"ds_read_b64_tr_b16 v[{52+o}:{53+o}], v44 offset:{L_W + ks*4096 + blk*32}")
        a(f"ds_read_b64_tr_b16 v[{54+o}:{55+o}], v44 offset:{L_W + ks*4096 + blk*32 + 512}")
    for n in range(3): rd(n)
    for n in range(32):
        if n + 3 < 32: rd(n + 3)
        a(f"s_waitcnt lgkmcnt({3 * min(3, 31 - n)})")
        o = (n % 4) * 8
        a(f"v_mfma_f32_16x16x32_bf16 v[8:11], v[{52+o}:{55+o}], v[{48+o}:{51+o}], {'0' if n == 0 else 'v[8:11]'}")
    a("s_nop 7")
    if rnd:
        for i in range(4): a(f"v_add_u32 v{8+i}, 0x80, v{8+i}", "round to the 24 bits a granule keeps" if i == 0 else None)
    for i in range(4): a(f"v_perm_b32 v{8+i}, v{8+i}, v32, s{60+i}")
    a("s_mov_b64 exec, s[54:55]")
    a("s_waitcnt vmcnt(0)")
    if "st" not in skip: a("global_store_dwordx4 v35, v[8:11], s[26:27] sc1")
    a("s_mov_b64 exec, -1")
    lab("L_nojob")
    stamp(3)
    scalar_part("s55", {"g": ("s38", 4)})
    if torder == "n":
        a(f"v_mul_u32_u24 v2, {(65536 + KP - 1) // KP}, v0")
        a("v_lshrrev_b32 v2, 16, v2")
        a(f"v_mul_u32_u24 v3, {KP}, v2")
        a("v_sub_u32 v3, v0, v3")
    else:
        a("v_and_b32 v2, 15, v0")
        a("v_lshrrev_b32 v3, 4, v0")
    a(f"v_add_u32 v3, {NS}, v3")
    a("v_mov_b32 v20, s55")
    lane_bits(20, 3, "n", 5)
    lane_bits(20, 2, "r", 4)
    a(f"s_mul_i32 s36, s38, {ctstride}")
    a(f"s_add_u32 s36, s36, {WS_CT}")
    a("s_add_u32 s68, s26, s36")
    a("s_addc_u32 s69, s27, 0")
    if pf:
        a("v_and_b32 v1, 31, v0")
        a("s_and_b32 s36, s28, 3")
        a("s_lshl_b32 s36, s36, 3")
        a("s_lshr_b32 s37, s29, 2")
        a("s_add_u32 s36, s36, s37")
        a("v_add_u32 v2, s36, v1")
        a("v_and_b32 v2, 31, v2")
        a("s_and_b32 s36, s28, 4")
        a("s_and_b32 s37, s29, 3")
        a("s_add_u32 s36, s36, s37")
        a("s_lshl_b32 s36, s36, 17")
        a(f"s_add_u32 s36, s36, {WS_P2}")
        a("v_lshl_add_u32 v22, v1, 12, s36")
        a("v_lshl_add_u32 v22, v2, 7, v22")
        if pf1:
            a("v_bfe_u32 v1, v0, 1, 4")
            a("v_and_b32 v2, 1, v0")
            a("s_lshl_b32 s36, s38, 16")
            a("s_lshl_b32 s37, s32, 8")
            a("s_add_u32 s36, s36, s37")
            a(f"s_add_u32 s36, s36, {WS_P1}")
            a("v_lshl_add_u32 v3, v1, 12, s36")
            a("v_lshl_add_u32 v3, v2, 7, v3")
            a("v_cmp_lt_u32 vcc, 31, v0")
            a("s_nop 1")
            a("v_cndmask_b32 v22, v22, v3, vcc")
    a("v_mov_b32 v6, -1")
    a("v_mov_b32 v7, -1")
    a("v_lshlrev_b32 v21, 3, v0")
    a(f"ds_write_b64 v21, v[6:7] offset:{L_TK}")
    a("s_lshl_b32 s36, s30, 13")
    a("s_lshl_b32 s37, s31, 12")
    a("s_add_u32 s36, s36, s37")
    a(f"s_add_u32 s36, s36, {WS_QP}")
    a("v_lshl_add_u32 v1, v0, 4, s36")
    a("s_mul_i32 s36, s34, 56")
    a("s_andn2_b32 s36, s36, 15")
    a(f"s_mul_i32 s37, s31, {8*7168}")
    a("s_add_u32 s36, s36, s37")
    a(f"s_add_u32 s36, s36, {WS_FP}")
    a("v_lshrrev_b32 v2, 5, v0")
    a("v_bfe_u32 v3, v0, 2, 2")
    a("v_lshl_add_u32 v2, v2, 2, v3")
    a("v_mul_u32_u24 v2, 7168, v2")
    a("v_and_b32 v3, 3, v0")
    a("v_lshl_add_u32 v2, v3, 4, v2")
    a("v_add_u32 v2, s36, v2")
    if pq is not None:
        note("reads that race with the other workgroups' stores stall this CU's stream: start when an S wave asks")
        a("v_and_b32 v5, 12, v0")
        a(f"s_mov_b32 s40, {spin * 8}")
        lab("L_go")
        a(f"ds_read_b32 v6, v5 offset:{L_GO}")
        a("s_waitcnt lgkmcnt(0)")
        a("v_cmp_ne_u32 vcc, 0, v6")
        a("s_cbranch_vccnz L_go_done")
        a("s_sleep 1")
        a("s_sub_u32 s40, s40, 1")
        a("s_cbranch_scc0 L_go")
        lab("L_go_done")
    a(f"s_mov_b32 s40, {0 if 'wait' in skip else spin}")
    if qdelay: a(f"s_sleep {qdelay}")
    stamp(7)
    lab("L_qpoll")
    if "ld" not in skip:
        for i in range(4): a(f"global_load_dwordx4 v[{48+4*i}:{51+4*i}], v1, s[26:27] offset:{i*1024} sc1")
        if merge: a("global_load_dwordx4 v[8:11], v2, s[26:27] sc1")
    a("s_waitcnt vmcnt(0)")
    check([48, 52, 56, 60] + ([8] if merge else []), 6)
    pollend("L_qpoll")
    for i in range(16): a(f"v_and_b32 v{48+i}, 0xffffff00, v{48+i}")
    for i in range(8): a(f"v_add_f32 v{48+i}, v{48+i}, v{56+i}")
    for i in range(4): a(f"v_cvt_pk_bf16_f32 v{48+i}, v{48+2*i}, v{49+2*i}")
    a("v_mov_b32 v6, 0")
    a(f"ds_write_b64 v21, v[48:49] offset:{L_Q}")
    a(f"ds_write_b64 v21, v[50:51] offset:{L_Q+512}")
    a("s_waitcnt lgkmcnt(0)")
    a(f"ds_write_b64 v6, v[32:33] offset:{L_TAG}", "{tag, ready}")
    stamp(5)
    a("s_setprio 0")
    if not merge:
        a(f"s_mov_b32 s40, {0 if 'wait' in skip else spin}")
        lab("L_hpoll")
        if "ld" not in skip: a("global_load_dwordx4 v[8:11], v2, s[26:27] sc1")
        a("s_waitcnt vmcnt(0)")
        check([8], 5)
        pollend("L_hpoll")
    for i in range(4): a(f"v_and_b32 v{8+i}, 0xffffff00, v{8+i}")
    for r in (4, 8):
        for i in range(4): a(f"v_add_f32_dpp v{8+i}, v{8+i}, v{8+i} row_ror:{r} {DPP}")
    a("v_cvt_pk_bf16_f32 v8, v8, v9")
    a("v_cvt_pk_bf16_f32 v9, v10, v11")
    a("v_mov_b32 v10, v8")
    a("v_mov_b32 v11, v9")
    a("s_nop 1")
    a("v_permlane32_swap_b32 v8, v10", "v8,v9 = gate pairs, v10,v11 = up pairs")
    a("v_permlane32_swap_b32 v9, v11")
    for p in range(2):
        a(f"v_lshlrev_b32 v12, 16, v{8+p}")
        a(f"v_and_b32 v13, 0xffff0000, v{8+p}")
        a(f"v_lshlrev_b32 v14, 16, v{10+p}")
        a(f"v_and_b32 v15, 0xffff0000, v{10+p}")
        a("v_max_f32 v12, 0, v12")
        a("v_max_f32 v13, 0, v13")
        a("v_mul_f32 v12, v12, v14")
        a("v_mul_f32 v13, v13, v15")
        a(f"v_cvt_pk_bf16_f32 v{16+p}, v12, v13")
    a("v_lshlrev_b32 v3, 3, v3")
    a(f"ds_write_b64 v3, v[16:17] offset:{L_H}")
    a("s_bitcmp1_b32 s34, 0", "the 16-column window holds one pair of the neighbour's rows: clear it")
    a("s_cselect_b32 s36, 0, 28")
    a("v_mov_b32 v3, s36")
    a(f"ds_write_b32 v3, v6 offset:{L_H}")
    stamp(6)
    a("s_mov_b32 s41, 0")
    a(f"v_mov_b32 v5, {L_TK}")
    a(f"s_mov_b32 s40, {spin * 8}")
    a(f"s_setprio {xprio}")
    align("i")
    lab("L_disp")
    a(f"ds_read_b128 v[8:11], v6 offset:{L_REQ}")
    a("s_sub_u32 s40, s40, 1")
    a("s_cbranch_scc1 L_disp_done")
    a("s_waitcnt lgkmcnt(0)")
    if reqfn == "med":
        a("v_min_u32 v12, v8, v9")
        a("v_max_u32 v8, v8, v9")
        a("v_min_u32 v13, v10, v11")
        a("v_max_u32 v10, v10, v11")
        a("v_max_u32 v12, v12, v13")
        a("v_min3_u32 v8, v8, v10, v12")
    else:
        a(f"v_{reqfn}3_u32 v8, v8, v9, v10")
        a(f"v_{reqfn}_u32 v8, v8, v11")
    a("v_cmp_lt_u32 vcc, s41, v8")
    a("s_cbranch_vccnz L_serve")
    a(f"s_sleep {xsleep}")
    a("s_branch L_disp")
    lab("L_serve")
    if tt:
        a("s_memrealtime s[72:73]")
        a("s_waitcnt lgkmcnt(0)")
    if vat:
        a("s_mov_b64 exec, 1")
        a("global_atomic_add v12, v6, v33, s[68:69] sc0")
        a("s_mov_b64 exec, -1")
        a("s_add_u32 s41, s41, 1")
        a("s_waitcnt vmcnt(0)")
        a("v_readfirstlane_b32 s67, v12")
        a("s_nop 3")
    else:
        a("s_mov_b32 s67, 1")
        a("s_atomic_add s67, s[68:69], 0 glc")
        a("s_add_u32 s41, s41, 1")
        a("s_waitcnt lgkmcnt(0)")
    if tt:
        a("s_memrealtime s[70:71]")
        a("s_waitcnt lgkmcnt(0)")
        a("s_sub_u32 s70, s70, s72")
        a("s_max_u32 s92, s92, s70")
        a("s_add_u32 s93, s93, s70")
        a("s_mov_b32 s94, s41")
    a("v_readlane_b32 s36, v20, s67")
    if r0:
        a(f"s_cmp_lt_u32 s67, {POOL + r0}")
        a("s_cselect_b32 s37, -3, -2")
        a(f"s_cmp_lt_u32 s67, {POOL}")
        a("s_cselect_b32 s36, s36, s37")
    else:
        a(f"s_cmp_lt_u32 s67, {POOL}")
        a("s_nop 0")
        a("s_cselect_b32 s36, s36, -2")
    a("v_mov_b32 v7, s36")
    a("ds_write_b32 v5, v7")
    a("v_add_u32 v5, 4, v5")
    a("s_cbranch_scc1 L_disp")
    lab("L_disp_done")
    def prefetch():
        if not pf1: a("s_mov_b32 exec_hi, 0")
        a(f"global_load_dword v23, v22, s[26:27] {pfflags}", "pull a quarter of the lines the final task polls (result unused)")
    if pf and pfat == "fail": prefetch()
    a("s_waitcnt lgkmcnt(0)")
    a("s_barrier")
    if pf and pfat == "late":
        a("s_barrier")
        prefetch()
    dump_stamps("X")
    a("s_endpgm")

    L = [HEADER.rstrip("\n"), f"; @launch grid=(256,1,1) block=(384,1,1) lds={L_END}", DOC,
         '.amdgcn_target "amdgcn-amd-amdhsa--gfx950"', ".text", f".globl {KN}", ".p2align 8", f".type {KN},@function"]
    for name in "E X1 S W X2".split(): L.extend(SEC[name])
    L.append("L_codeend:")
    L += ['.section .rodata,"a"', ".p2align 6", f".amdhsa_kernel {KN}",
          f"  .amdhsa_next_free_vgpr {NV}", "  .amdhsa_next_free_sgpr 102", f"  .amdhsa_accum_offset {NV}",
          "  .amdhsa_group_segment_fixed_size 0", "  .amdhsa_kernarg_size 96", "  .amdhsa_user_sgpr_count 2",
          "  .amdhsa_user_sgpr_kernarg_segment_ptr 1", "  .amdhsa_system_sgpr_workgroup_id_x 1",
          "  .amdhsa_float_denorm_mode_32 3", ".end_amdhsa_kernel"]
    if tune8: L = align_runs("\n".join(L).split("\n"))
    return "\n".join(L) + "\n"

WIDEN = ("v_mov_b32", "v_add_f32", "v_sub_f32", "v_mul_f32", "v_max_f32", "v_exp_f32", "v_rcp_f32", "v_log_f32", "v_and_b32", "v_xor_b32",
         "v_lshlrev_b32", "v_lshrrev_b32", "v_add_u32", "v_fmac_f32", "v_sqrt_f32", "v_min_u32", "v_or_b32")

def sizes_of(lines):
    import subprocess, re
    out = subprocess.run(["llvm-mc", "-triple=amdgcn-amd-amdhsa", "-mcpu=gfx950", "-show-encoding"],
                         input="\n".join(lines) + "\n", capture_output=True, text=True, check=True).stdout
    return [m.count(",") + 1 for m in re.findall(r"; encoding: \[(.*?)\]", out)]

def align_runs(lines):
    isins = [l.startswith("    ") and not l.strip().startswith(";") for l in lines]
    sz = iter(sizes_of(lines))
    size = [next(sz) if f else 0 for f in isins]
    out, osz, addr, active = [], [], 0, False
    for i, l in enumerate(lines):
        if l.startswith(".p2align"):
            k = 1 << int(l.split()[1]); addr = (addr + k - 1) // k * k
        elif l.startswith(".fill"):
            addr += 4 * int(l.split()[1].rstrip(","))
        elif l.startswith("L_xwave"):
            active = True
        if isins[i] and active and size[i] == 8 and addr % 8 == 4 and (not osz or osz[-1] != 8):
            run, j = 0, i
            while j < len(lines) and (size[j] == 8 or not isins[j]) and not lines[j].startswith("."):
                run += size[j] == 8 and "mfma" not in lines[j]; j += 1
            if run >= 3:
                j = len(out) - 1
                while j >= 0 and osz[j] in (0, 4) and not out[j].startswith("."):
                    op = out[j].split()[0] if osz[j] else ""
                    if op in WIDEN:
                        out[j] = out[j].replace(op + " ", op + "_e64 ", 1).replace("    ;", ";", 1); osz[j] = 8; addr += 4
                        break
                    if op == "s_nop" and int(out[j].split()[1]) > 0:
                        out[j] = f"    s_nop {int(out[j].split()[1]) - 1}"
                        out.insert(j, "    s_nop 0"); osz.insert(j, 4); addr += 4
                        break
                    j -= 1
                if addr % 8 == 4 and run >= 6:
                    out.append("    s_nop 0"); osz.append(4); addr += 4
        out.append(l); osz.append(size[i]); addr += size[i]
    return out

if __name__ == "__main__":
    import json
    cfg = json.loads(sys.argv[1]) if len(sys.argv) > 1 else {}
    sys.stdout.write(gen(**cfg))
```

```python
import struct, sys, math

KN = "recurrent_scan__gqa_block_cached__glu_gated_reglu__decode_kernel"
HEADER = open("recurrent_scan__gqa_block_cached__glu_gated_reglu__decode.s.ref").read().split("; @launch")[0]

def f2u(x):
    return struct.unpack("<I", struct.pack("<f", x))[0]

WS_EPOCH = 0
WS_QP = 0x10000
WS_FP = 0x40000
WS_CT = 0x80000
WS_P1 = 0x100000
WS_P2 = 0x200000
WS_TS = 0x400000
WS_TT = 0x500000
L_W = 0
L_SC = 0
L_XN = 32768
L_XR = 34816
L_Q = 36864
L_Z = 37888
L_TAG = 38144
L_GO = 38160
L_REQ = 38176
L_H = 38400
L_ST = 38464
L_OB = 38592
L_TK = 38656
L_O = 39424
L_END = 47616
PHI = 0x9E3779B9

ROLES = [('X', slice(0, 1)), ('S', slice(1, 5))]

DOC = """;
; and streams about 1/16 of the group's keys.
;               o.wo and h.W_down partial rows, hand-off 2 (64 workgroups sum 128 partials each), gate, residual, store.
;   wave 5 (W): touches the code and the pages used later, then walks the S code with EXEC = 0 (instruction cache).
; Hand-offs carry a tag = (first word of d_ws at entry) + constant; the word is advanced at the end of the launch."""

def gen(RH=4, NE=4, peel=True, pre2=False, xb=1, lastpv=True, wat="dv", nr3=False, tag1=True, fin1=True, mimic=True, rnd=True, mi=False, rq=4, reqfn="min", vat=False, WL0=None, NA=28, NS=29, WS="4444", WP="4444", WM="4555", NP=8, nA=4, xsleep=1, xprio=1, sprio=0, al="kvmdws", outflags="", endexp=None, r0=0, cnt=8, nV=0, pads={}, gap1="bar", gap2=None, tune8=True, ep1=True, pre_bar=1, lnfirst=True, tlb="", l2pf=False, dry=True, pf=True, pfflags="sc1", pf1=False, pfat="fail", sleep1=0, sleep2=0, merge=True,
        kvflags="nt", wflags="nt", woflags="", pmap="w0 w1 n0^r3^g0 n2^r0 n1 n3^r1 n4 r0 r1 r2 r3", i1bit=15, torder="r", ctstride=1280,
        qdelay=0, pq=4, pollfirst=False, own=True, cross=False, pollat=None, lite=False, skip=(), ts=False, spin=1 << 20, probe=None):
    KP = 32 - NS
    POOL = 16 * KP
    assert 0 < POOL <= 64 and NA % RH == 0 and NA >= 2 * RH and RH >= 4 and NS >= NA + 1
    SEC = {}
    cur = [None]
    def section(name): cur[0] = SEC.setdefault(name, [])
    if probe is not None: ts = True
    if lite: ts = True
    tt = ts and probe is None and not lite
    def a(s, c=None): cur[0].append("    " + (s if c is None else f"{s:<72}; {c}"))
    def lab(s): cur[0].append(s + ":")
    def note(s): cur[0].append("    ; " + s)
    def align(key):
        if key in pads:
            cur[0].append(".p2align 6")
            if pads[key]: cur[0].append(f".fill {pads[key]}, 4, 0xbf800000")
        elif key in al: cur[0].append(".p2align 6")
        if key.upper() in al: cur[0].append(".p2align 3")
    skn = [0]
    def guarded(f):
        skn[0] += 1
        n = skn[0]
        a(f"s_cbranch_execz L_g{n}")
        f()
        lab(f"L_g{n}")
    def guard(lines): guarded(lambda: [a(x) for x in lines])
    def stamp(idx):
        if probe is not None and len(probe) > 4 and idx not in (probe[1], probe[4]): return
        if ts and (not lite or idx == 8):
            a("s_waitcnt lgkmcnt(0)")
            a("s_memrealtime s[70:71]")
            a("s_waitcnt lgkmcnt(0)")
            a(f"s_mov_b32 s{80+idx}, s70")
    def zero_stamps():
        if ts:
            a("s_mov_b32 s80, s70")
            for i in range(1, 16): a(f"s_mov_b32 s{80+i}, 0")
    def tstamp():
        if tt:
            a("s_memrealtime s[70:71]")
            a("s_add_u32 s79, s79, 1")
            a("s_lshr_b32 m0, s79, 1")
            a("s_waitcnt lgkmcnt(0)")
            a("v_writelane_b32 v13, s70, m0")
    def dump_stamps(role):
        if probe is not None:
            if role == probe[0] and len(probe) > 2 and probe[2] in ("mean", "maxmean", "maxmax"):
                def hold(name):
                    lab(name)
                    a("s_memrealtime s[70:71]")
                    a("s_waitcnt lgkmcnt(0)")
                    a("s_sub_u32 s73, s70, s72")
                    a("s_cmp_lt_i32 s73, 0")
                    a(f"s_cbranch_scc1 {name}")
                a("s_add_u32 s72, s80, 5000")
                hold("L_h0")
                a(f"s_sub_u32 s72, s{80+probe[1]}, s{80+probe[4]}")
                a("s_mov_b64 exec, 1")
                a("v_mov_b32 v1, 0")
                a("v_mov_b32 v2, s72")
                if probe[2] == "mean":
                    a("global_atomic_add v1, v2, s[24:25]")
                else:
                    a(f"s_and_b32 s72, s{80+probe[4]}, 0xfffff")
                    a("v_mov_b32 v2, s72")
                    a("global_atomic_add v1, v2, s[24:25]" if probe[2] == "maxmean" else "global_atomic_umax v1, v2, s[24:25]")
                    a(f"s_and_b32 s72, s{80+probe[1]}, 0xfffff")
                    a("v_mov_b32 v3, s72")
                    a("global_atomic_umax v1, v3, s[24:25] offset:128")
                a("s_lshl2_add_u32 s73, s2, s42")
                a("s_cmp_lg_u32 s73, 16")
                a("s_cbranch_scc1 L_pe")
                a("s_add_u32 s72, s80, 9000")
                hold("L_h1")
                a("global_load_dword v2, v1, s[24:25] sc1")
                a("global_load_dword v3, v1, s[24:25] offset:128 sc1")
                a("s_waitcnt vmcnt(0)")
                a("v_readfirstlane_b32 s72, v2")
                a("v_readfirstlane_b32 s73, v3")
                a("s_nop 3")
                a("s_lshr_b32 s72, s72, 6" if probe[2] != "maxmax" else "s_lshl_b32 s72, s72, 4")
                if probe[2] != "mean":
                    a("s_lshl_b32 s73, s73, 4")
                    a("s_sub_u32 s72, s73, s72")
                    a("s_min_u32 s72, s72, 200000")
                a("s_add_u32 s72, s72, s80")
                a("s_add_u32 s72, s72, 10000")
                hold("L_h2")
                lab("L_pe")
            elif role == probe[0]:
                pidx = probe[1]
                if len(probe) > 2:
                    a(f"s_and_b32 s73, s2, {probe[2]}")
                    a(f"s_cmp_lg_u32 s73, {probe[3]}")
                    a("s_cbranch_scc1 L_pe")
                a(f"s_cmp_eq_u32 s{80+pidx}, 0")
                a("s_cbranch_scc1 L_pe")
                if len(probe) > 4:
                    a(f"s_sub_u32 s72, s{80+pidx}, s{80+probe[4]}")
                    a("s_lshl_b32 s72, s72, 4")
                    a("s_add_u32 s72, s72, s80")
                    a("s_add_u32 s72, s72, 10000")
                else:
                    a(f"s_add_u32 s72, s{80+pidx}, 10000")
                lab("L_pl")
                a("s_memrealtime s[70:71]")
                a("s_waitcnt lgkmcnt(0)")
                a("s_sub_u32 s73, s70, s72")
                a("s_cmp_lt_i32 s73, 0")
                a("s_cbranch_scc1 L_pl")
                lab("L_pe")
        elif ts and not (lite and role == "X"):
            a("s_mov_b64 exec, 1")
            a("s_mul_i32 s70, s2, 5")
            a("s_add_u32 s70, s70, s3")
            a("s_lshl_b32 s70, s70, 6")
            a(f"s_add_u32 s70, s70, {WS_TS}")
            a("v_mov_b32 v1, s70")
            a("s_getreg_b32 s95, hwreg(HW_REG_XCC_ID)")
            for q in range(4):
                for i in range(4): a(f"v_mov_b32 v{4+i}, s{80+q*4+i}")
                a(f"global_store_dwordx4 v1, v[4:7], s[26:27] offset:{q*16}")
                a("s_nop 1")
    def tagregs():
        a("s_mov_b32 s56, s33", "s56..s59 = tag >> 8i, s60..s63 = byte-insert selectors")
        a("s_lshr_b32 s57, s33, 8")
        a("s_lshr_b32 s58, s33, 16")
        a("s_lshr_b32 s59, s33, 24")
        for i in range(4): a(f"s_mov_b32 s{60+i}, {0x07060500 + i:#x}")
    def check(regs, acc):
        first = True
        for r in regs:
            for i in range(4):
                if first: a(f"v_xor_b32 v{acc}, s{56+i}, v{r+i}"); first = False
                else: a(f"v_bitop3_b32 v{acc}, v{acc}, v{r+i}, s{56+i} bitop3:0xf6")
        a(f"v_and_b32 v{acc}, 0xff, v{acc}")
        a(f"v_cmp_ne_u32 vcc, 0, v{acc}")
    def pollend(name):
        a(f"s_cbranch_vccz {name}_done")
        a("s_sub_u32 s40, s40, 1")
        a(f"s_cbranch_scc0 {name}")
        lab(f"{name}_done")

    VB, VSW, VSR = 11, 12, 16
    VKO, VVO, VM, VL, VM0, VM1 = 18, 19, 20, 21, 22, 23
    VA, VQ, VO, VS, VR = 24, 32, 36, 44, 60
    VT = VR + 16 * max(RH + NE, 8)
    (T_OW, T_SW, T_OR, T_SR, T_P1S, T_P1L, T_OBW, T_P2S, T_WO, T_H, T_F0, _, _, _, T_XO, T_X, T_D0, T_D1, T_OBR, T_FW, T_FR, T_OWN, _) = range(VT, VT + 23)
    NV = VT + 24
    RD, RW = VR + 64, VR + 80
    PD, PW = VR + 4, VR + 20
    VP2 = VR + 112
    def decode():
        a("s_and_b32 s28, s2, 7", "x")
        a("s_lshr_b32 s29, s2, 3", "j")
        a("s_bfe_u32 s30, s2, 0x30004", "kv head")
        a("s_lshr_b32 s31, s2, 7", "batch row")
        a("s_and_b32 s32, s2, 15", "split")
        a("s_and_b32 s34, s2, 127", "idx")
        a("s_lshr_b32 s38, s2, 4", "group")
    def srds():
        a("s_mov_b64 s[44:45], s[6:7]", "K"); a("s_brev_b32 s46, 16"); a("s_mov_b32 s47, 0x20000")
        a("s_mov_b64 s[48:49], s[8:9]", "V"); a("s_brev_b32 s50, 16"); a("s_mov_b32 s51, 0x20000")
        a("s_mov_b64 s[72:73], s[6:7]", "K or V"); a("s_brev_b32 s74, 16"); a("s_mov_b32 s75, 0x20000")
    pm = [set(x.split("^")) for x in pmap.split()]
    PB = [b for b in range(11, 23) if b != i1bit]
    assert len(pm) == 11 and i1bit != 11
    def mask_of(sym): return sum(1 << PB[p] for p in range(11) if sym in pm[p])
    def scalar_part(dst, srcs, base=True):
        a(f"s_lshl_b32 {dst}, s38, 23" if base else f"s_mov_b32 {dst}, 0")
        for pre, (reg, nb) in srcs.items():
            masks = [mask_of(f"{pre}{i}") for i in range(nb)]
            if masks[0] and all(masks[i] == masks[0] << i for i in range(nb)) and bin(masks[0]).count("1") == 1:
                a(f"s_lshl_b32 s35, {reg}, {masks[0].bit_length()-1}")
                a(f"s_xor_b32 {dst}, {dst}, s35")
                continue
            for i in range(nb):
                if masks[i]:
                    a(f"s_bfe_i32 s35, {reg}, {0x10000 + i:#x}")
                    a(f"s_and_b32 s35, s35, {masks[i]:#x}")
                    a(f"s_xor_b32 {dst}, {dst}, s35")
    def lane_bits(vdst, vsrc, pre, nb):
        for i in range(nb):
            a(f"v_bfe_i32 v7, v{vsrc}, {i}, 1")
            a(f"v_and_b32 v7, {mask_of(pre + str(i)):#x}, v7")
            a(f"v_xor_b32 v{vdst}, v{vdst}, v7")
    def nconst(n):
        c = 0
        for i in range(5):
            if n >> i & 1: c ^= mask_of(f"n{i}")
        return c
    def issue(reg, voff, srd, pat, down=False, ks=range(4)):
        last = max(k for k in range(4) if pat[k] != "-")
        assert pat[0] != "-" and (int(pat[last]) + 4 - last <= 8 or pat == f"{NP}---")
        seq = (2, 0, 3, 1) if down else (0, 2, 1, 3)
        for k, u in enumerate(seq):
            if k not in ks: continue
            if k: a(f"s_bitset{u >> 1}_b32 s52, {i1bit}")
            if pat[k] != "-": a(f"s_waitcnt vmcnt({pat[k]})")
            a(f"buffer_load_dwordx4 v[{reg+4*u}:{reg+4*u+3}], v{voff}, {srd}, s52 offen offset:{(u&1)*1024} {kvflags}")
        if 3 in ks: tstamp()
    rest = list(range(2, RH))
    PERM = [0 if p == (RH - 1) // 2 else 1 if p == RH - 1 else rest.pop(0) for p in range(RH)]
    def preg(n): return VR + 16 * (RH + n if n < NE else PERM[n % RH])

    section("E")
    lab(KN)
    a("s_load_dwordx16 s[4:19], s[0:1], 0", "s[4:5]=x s[6:7]=K s[8:9]=V s[12:13]=wo")
    a("s_load_dwordx8 s[20:27], s[0:1], 64", "s[20:21]=W_down s[22:23]=out s[26:27]=ws")
    if ts: a("s_memrealtime s[70:71]")
    a("v_lshrrev_b32 v1, 6, v0")
    a("s_cmpk_ge_u32 s2, 256")
    a("s_cbranch_scc1 L_end")
    a("v_readfirstlane_b32 s3, v1", "wave")
    a("v_and_b32 v0, 63, v0", "lane")
    a("s_mul_i32 s39, s2, 0x200408", "wq tile as a byte offset: bits 7..12 column block, bit 21 k-half")
    a("s_and_b32 s39, s39, 0x201f80")
    assert len({(w * 0x200408) & 0x201f80 for w in range(256) if not w & 8}) == 128
    a("s_sub_u32 s42, s3, 1", "w")
    a("s_cbranch_scc1 L_xwave")
    a("s_cmp_eq_u32 s3, 5")
    a("s_cbranch_scc1 L_wwave")
    a("s_lshl_b32 s36, s42, 19", "wg bit 3 clear: wq tile, wave w loads rows 64w..")
    a("s_or_b32 s36, s36, s39")
    a("s_movk_i32 s37, 8192")
    a("s_mov_b32 s35, 24")
    a("s_bitcmp0_b32 s2, 3")
    a("s_cbranch_scc1 L_job")
    a("s_andn2_b32 s35, 0x86, s2", "wg bit 3 set: gate (waves 0,1) / up (waves 2,3) tile; 16 workgroups have none")
    a("s_cbranch_scc0 L_srest")
    a("s_lshr_b32 s36, s2, 3")
    a("s_and_b32 s37, s36, 24")
    a("s_min_u32 s37, s37, 22")
    a("s_and_b32 s35, s2, 7")
    a("s_add_u32 s37, s37, s35", "column block")
    a("s_and_b32 s36, s36, 6")
    a("s_and_b32 s35, s42, 1")
    a("s_or_b32 s36, s36, s35", "64-row block")
    a("s_mulk_i32 s36, 1792")
    a("s_add_u32 s36, s36, s37")
    a("s_lshl_b32 s36, s36, 7")
    a("s_movk_i32 s37, 3584")
    a("s_lshr_b32 s35, s42, 1")
    a("s_lshl3_add_u32 s35, s35, 48")
    lab("L_job")
    a("s_load_dwordx2 s[40:41], s[0:1], s35", "wq, W_gate or W_up")
    a("v_lshrrev_b32 v2, 3, v0")
    a("v_and_b32 v3, 7, v0")
    a("v_mul_u32_u24 v2, s37, v2")
    a("v_lshl_add_u32 v2, v3, 4, v2")
    a("v_add_u32 v2, s36, v2")
    a("s_lshl_b32 m0, s42, 13")
    a("s_lshl_b32 s37, s37, 3")
    a("s_lshl_b32 s36, s3, 13")
    a("s_waitcnt lgkmcnt(0)")
    lab("L_wdma")
    a(f"global_load_lds_dwordx4 v2, s[40:41] {wflags}")
    a("s_addk_i32 m0, 1024")
    a("v_add_u32 v2, s37, v2")
    a("s_cmp_lg_u32 m0, s36")
    a("s_cbranch_scc1 L_wdma")
    a("s_branch L_srest")

    section("X1")
    cur[0].append(".p2align 8")
    lab("L_xwave")
    a("v_lshlrev_b32 v1, 5, v0")
    a("v_mov_b32 v6, 0")
    a("v_mov_b32 v7, 0")
    a("v_lshlrev_b32 v5, 3, v0")
    a(f"ds_write_b64 v5, v[6:7] offset:{L_Z}", "zero block + flags")
    a("s_waitcnt lgkmcnt(0)")
    a("global_load_dwordx4 v[8:11], v1, s[4:5]")
    a("global_load_dwordx4 v[12:15], v1, s[4:5] offset:16")
    a("s_load_dword s33, s[26:27], 0", "epoch")
    a("s_setprio 2")
    zero_stamps()
    decode()
    a("s_and_b32 s67, s39, 0x200300")
    a("s_and_b32 s36, s2, 8")
    a("s_or_b32 s67, s67, s36")
    a("s_cbranch_scc1 L_x2")
    a("s_bfe_u32 s36, s39, 0x3000a")
    a("s_bfe_u32 s37, s39, 0x10007")
    a("s_lshl3_add_u32 s36, s37, s36")
    a(f"s_mul_i32 s36, s36, {ctstride}")
    a(f"s_add_u32 s36, s36, {WS_CT}")
    a("v_lshl_add_u32 v5, v0, 2, s36")
    a("global_store_dword v5, v6, s[26:27] sc1")
    a("s_branch L_x2")

    section("W")
    align("w")
    lab("L_wwave")
    if l2pf:
        a("s_getpc_b64 s[68:69]", "touch every 128-B line of the code (results unused)")
        lab("L_wpc")
        a(f"s_sub_u32 s68, s68, L_wpc-{KN}")
        a("s_subb_u32 s69, s69, 0")
        a("v_lshlrev_b32 v7, 7, v0")
        a("v_add_u32 v8, L_codeend-" + KN + "-8192, v7")
    if l2pf is True:
        a("global_load_dword v9, v7, s[68:69]")
        a("global_load_dword v9, v8, s[68:69]")
    elif l2pf:
        a(f"s_cmp_ge_u32 s2, {l2pf}")
        a("s_cbranch_scc1 L_nl2")
        a("global_load_dword v9, v7, s[68:69]")
        a("global_load_dword v9, v8, s[68:69]")
        lab("L_nl2")
    a("s_waitcnt lgkmcnt(0)")
    if tlb:
        note("touch pages this workgroup uses later (one dword each, results unused)")
        a("s_and_b32 s34, s2, 127")
        a("s_mov_b64 exec, 1")
        a("s_lshl_b32 s36, s2, 19")
        a("v_mov_b32 v3, s36")
        if "k" in tlb: a("global_load_dword v9, v3, s[6:7] nt")
        if "v" in tlb: a("global_load_dword v9, v3, s[8:9] nt")
        if "w" in tlb:
            a(f"s_mul_i32 s36, s34, {14*1024}")
            a("v_mov_b32 v3, s36")
            a("global_load_dword v9, v3, s[20:21] nt")
            a("s_lshl_b32 s36, s34, 15")
            a("v_mov_b32 v3, s36")
            a("global_load_dword v9, v3, s[12:13] nt")
        if "q" in tlb:
            a("v_mov_b32 v3, 1024")
            a("global_load_dword v9, v3, s[26:27] nt")
        if "p" in tlb:
            a("s_lshl_b32 s36, s2, 12")
            a(f"s_add_u32 s36, s36, {WS_P1}")
            a("v_mov_b32 v3, s36")
            a("global_load_dword v9, v3, s[26:27] nt")
            a(f"v_add_u32 v3, {WS_P2 - WS_P1}, v3")
            a("global_load_dword v9, v3, s[26:27] nt")
            a("v_xor_b32 v3, 0x80000, v3")
            a("global_load_dword v9, v3, s[26:27] nt")
        a("s_mov_b64 exec, -1")
    a("s_barrier", "barrier 0")
    if not dry: a("s_endpgm")
    srds()
    for r in [6, 14, VKO, VVO, VB] + list(range(VT, VT + 21)): a(f"v_mov_b32 v{r}, 0")
    a("s_mov_b64 exec, 0")
    for r in (42, 41, 33, 29, 76, 77): a(f"s_mov_b32 s{r}, 0")
    a("s_mov_b32 s54, 1")
    a("s_mov_b64 s[96:97], 0")
    a("s_mov_b64 s[98:99], 0")
    if dry == "tail": a("s_mov_b32 s41, 63")
    a("s_branch L_loop" if dry == "tail" else "s_branch L_vloop" if dry == "v" else "s_branch L_kpre")

    section("S")
    align("s")
    lab("L_srest")
    a("s_waitcnt lgkmcnt(0)")
    zero_stamps()
    if ts:
        a("v_mov_b32 v13, 0")
        a("s_mov_b32 s79, 1")
    stamp(9)
    decode()
    srds()
    scalar_part("s66", {"w": ("s42", 2), "r": ("s32", 4), "g": ("s38", 4)})
    a("v_lshrrev_b32 v2, 4, v0")
    a("v_and_b32 v3, 3, v0")
    a("v_bfe_u32 v4, v0, 2, 2")
    a("v_lshlrev_b32 v5, 8, v4")
    a("v_lshl_add_u32 v5, v2, 6, v5")
    a(f"v_lshl_add_u32 v{VKO}, v3, 4, v5", "K lane offset: key (lane>>2)&3, 16-B chunk 4(lane>>4) + (lane&3)")
    a("s_mov_b32 s52, s66")
    issue(preg(0), VKO, "s[44:47]", f"{NP}---")
    a(f"v_lshlrev_b32 v{VVO}, 4, v0", "V lane offset")
    a("v_mov_b32 v10, s66", "v10[n] = offset of this wave's tile n")
    lane_bits(10, 0, "n", 5)
    scalar_part("s55", {"w": ("s42", 2)}, base=False)
    a("s_lshl_b32 s36, s42, 2")
    a("v_mov_b32 v14, s36", "request slot")
    a("v_mov_b32 v6, 0xffff")
    a("v_mov_b32 v7, 0xffff0000")
    a("v_and_b32 v8, 1, v0")
    a("v_cmp_eq_u32 vcc, 1, v8")
    a("v_and_b32 v8, 2, v0")
    a("s_nop 0")
    a("v_cndmask_b32 v6, v6, v7, vcc")
    a("v_cmp_eq_u32 vcc, 2, v8")
    a(f"v_mov_b32 v{VM}, {f2u(-3.0e38):#x}")
    a(f"v_mov_b32 v{VL}, 0")
    a(f"v_cndmask_b32 v{VM1}, 0, v6, vcc", "P.V selector masks: bf16 slot lane&3 of the A fragment")
    a(f"v_xor_b32 v{VM0}, v{VM1}, v6")
    for i in range(8): a(f"v_mov_b32 v{VO+i}, 0")
    if mimic:
        a(f"s_mov_b32 s53, {f2u(math.log2(math.e)):#x}", "log2(e)")
        a(f"s_mov_b32 s43, {f2u(128.0 ** -0.5):#x}", "1/sqrt(128)")
        a("s_mov_b32 s67, 0xffff0000")
    else:
        a(f"s_mov_b32 s53, {f2u(math.log2(math.e) / math.sqrt(128.0)):#x}", "log2(e)/sqrt(128)")
    a("s_mov_b32 s54, 1000", "counts down; set to 0 for the last tile")
    a(f"s_mov_b32 s41, {RH + NE}", "next tile to issue")
    a(f"s_mov_b32 s76, {NA // RH - (3 if peel else 1)}")
    a(f"s_mov_b32 s77, {NA // RH - 1}")
    a("s_mov_b64 s[96:97], -1", "EXEC: all lanes")
    a("s_mov_b32 s98, 0x11111111", "EXEC: lane 0 of every quad")
    a("s_mov_b32 s99, 0x11111111")
    if nr3:
        a("s_mov_b32 s100, 0xaaaaaaaa", "lane & 1")
        a("s_mov_b32 s101, 0xaaaaaaaa")
        a("s_mov_b32 s68, 0xcccccccc", "lane & 2")
        a("s_mov_b32 s69, 0xcccccccc")
    a(f"v_mov_b32 v{VB}, v{VKO}")
    a(f"s_mul_i32 s36, s42, {NA * 256}")
    a(f"v_lshl_add_u32 v{VSR}, v0, 2, s36")
    a(f"v_and_b32 v{VSW}, -16, v{VSR}")
    a("v_lshrrev_b32 v3, 4, v0", "g")
    a("v_and_b32 v4, 15, v0", "c")
    a("v_bfe_u32 v5, v0, 2, 2")
    a("s_lshl_b32 s35, s42, 11")
    a(f"v_lshl_add_u32 v{T_OW}, v0, 5, s35")
    a("s_lshl_b32 s36, s42, 3")
    a(f"v_lshl_add_u32 v{T_SW}, v5, 5, s36")
    a("s_lshl_b32 s35, s42, 9")
    a(f"v_lshl_add_u32 v{T_OR}, v0, 3, s35")
    a("s_lshl_b32 s36, s42, 5")
    a(f"v_mov_b32 v{T_SR}, s36")
    a("s_lshl_b32 s35, s2, 12")
    a("s_lshl_b32 s36, s42, 10")
    a("s_add_u32 s36, s35, s36")
    a(f"s_add_u32 s37, s36, {WS_P1}")
    a(f"v_lshl_add_u32 v{T_P1S}, v0, 4, s37", "P1 + wg*4096 + thread*16")
    a("s_lshl_b32 s36, s38, 16")
    a(f"s_lshl_b32 s37, s32, {7 if 'halfP1' in skip else 8}")
    a("s_add_u32 s36, s36, s37")
    a("s_lshl_b32 s37, s42, 6")
    if "halfP1" in skip: a("s_and_b32 s37, s37, 64")
    a("s_add_u32 s36, s36, s37")
    a(f"s_add_u32 s36, s36, {WS_P1}")
    a(f"v_lshl_add_u32 v{T_P1L}, v4, 12, s36")
    a(f"v_lshl_add_u32 v{T_P1L}, v3, 4, v{T_P1L}", "P1 + (group*16 + c)*4096 + (16 split + 4w + g)*16")
    a("s_lshl_b32 s36, s42, 4")
    a(f"v_lshl_add_u32 v{T_OBW}, v3, 2, s36")
    a("s_lshl_b32 s36, s42, 6")
    a("s_lshl_b32 s37, s2, 3")
    a("s_add_u32 s36, s36, s37")
    a("v_lshl_add_u32 v1, v4, 2, v3")
    a("v_add_u32 v1, s36, v1")
    a("v_and_b32 v1, 255, v1")
    a(f"s_add_u32 s37, s35, {WS_P2}")
    a(f"v_lshl_add_u32 v{T_P2S}, v1, 4, s37", "P2 + wg*4096 + ((64w + 4c + g + 8wg) & 255)*16")
    a("s_lshl_b32 s36, s42, 8")
    a("v_lshl_add_u32 v1, v4, 4, s36")
    a("s_lshl_b32 s36, s34, 15")
    a("s_add_u32 s36, s36, 4096")
    a("v_lshl_add_u32 v2, v3, 13, s36")
    a(f"v_add_u32 v{T_WO}, v1, v2", "wo rows 32 idx + 8g + i, columns 128w + 8c..")
    a(f"s_mul_i32 s36, s34, {14*1024}")
    a("v_add_u32 v1, s36, v1")
    a("s_and_b32 s36, s34, 1")
    a("v_lshlrev_b32 v2, 1, v3")
    a("v_subrev_u32 v2, s36, v2")
    a("v_max_i32 v5, 0, v2")
    a(f"v_lshl_add_u32 v{T_D0}, v5, 11, v1", "W_down rows 14 idx + 2 clamp(2g + p - (idx&1), 0, 6) + i")
    a("v_add_u32 v2, 1, v2")
    a("v_min_i32 v5, 6, v2")
    a(f"v_lshl_add_u32 v{T_D1}, v5, 11, v1")
    a(f"v_lshlrev_b32 v{T_H}, 3, v3")
    a(f"v_lshlrev_b32 v{T_OBR}, 4, v3")
    note("final task (workgroups with j&3 == 0): the other batch row, columns 16 lg.. with lg = 4x + ((j>>2)&3)" if cross else
         "final task (workgroups with j&3 == 0): batch row x>>2, columns 16 lg.. with lg = 8(x&3) + (j>>2)")
    a("v_and_b32 v2, 7, v0")
    a(f"v_lshlrev_b32 v{T_FR}, 4, v2")
    a("s_lshl_b32 s35, s42, 7")
    a(f"v_lshl_add_u32 v1, v3, 2, v{T_FR}")
    a(f"v_add_u32 v{T_FW}, s35, v1")
    def task():
        if cross:
            a("s_xor_b32 s35, s31, 1")
            a("s_bfe_u32 s37, s29, 0x20002")
            a("s_lshl2_add_u32 s36, s28, s37")
        else:
            a("s_lshr_b32 s35, s28, 2")
            a("s_and_b32 s36, s28, 3")
            a("s_lshl_b32 s36, s36, 3")
            a("s_lshr_b32 s37, s29, 2")
            a("s_add_u32 s36, s36, s37")
    task()
    a("v_lshrrev_b32 v3, 3, v0")
    a("s_lshl2_add_u32 s37, s35, s42")
    a("s_lshl_b32 s37, s37, 17")
    a(f"s_add_u32 s37, s37, {WS_P2}")
    a(f"v_add_u32 v5, s37, v{T_FR}")
    for k in range(4):
        a(f"v_add_u32 v1, {8*k}, v3")
        a("v_add_u32 v4, s36, v1")
        a("v_and_b32 v4, 31, v4")
        a("v_lshl_add_u32 v4, v4, 7, v5")
        a(f"v_lshl_add_u32 v{T_F0+k}, v1, 12, v4")
    a("s_lshl_b32 s37, s35, 10")
    a("s_lshl_b32 s36, s36, 5")
    a("s_add_u32 s37, s37, s36")
    if fin1:
        assert mimic
        a("v_and_b32 v2, 15, v0")
        a(f"v_lshl_add_u32 v{T_XO}, v2, 1, s37")
        a("v_and_b32 v1, 1, v0")
        a("v_lshrrev_b32 v2, 1, v2")
        a("v_lshlrev_b32 v2, 4, v2")
        a("v_lshl_add_u32 v2, v1, 2, v2")
        a(f"v_add_u32 v{T_FR}, {L_O}, v2")
    else:
        a(f"v_lshl_add_u32 v{T_XO}, v2, 2, s37")
    if own:
        assert not nr3
        a(f"v_and_b32 v{T_OWN}, 0xfff, v{T_P1S}")
        a(f"v_and_b32 v{T_OWN+1}, 0xfff, v{T_P1L}")
        a("s_lshl_b32 s100, 0x10001, s32")
        a("s_not_b32 s100, s100")
        a("s_mov_b32 s101, s100")
    a("s_mov_b32 s64, 0x05040100")
    a("s_mov_b32 s65, 0x07060302")
    a("s_mov_b32 s39, 0xffffff00")
    a("v_mov_b32 v6, 0")
    for p in range(RH + NE):
        if p:
            a(f"s_xor_b32 s52, s66, {nconst(p):#x}")
            issue(preg(p), VKO, "s[44:47]", (WL0 if WL0 and p == RH + NE - 1 else WP) if p >= pre_bar else "4---")
        if p == pre_bar - 1:
            a(f"s_waitcnt vmcnt({4 * pre_bar})")
            if probe is not None: stamp(11)
            a("s_barrier", "barrier 0: weight tile landed, LDS flags cleared")
            stamp(10)
        if p == pq:
            a("s_mov_b64 exec, 1", "q is needed soon: let the X wave gather it")
            a("v_mov_b32 v15, 1")
            a(f"ds_write_b32 v14, v15 offset:{L_GO}")
            a("s_mov_b64 exec, -1")
    stamp(1)
    a(f"s_mov_b32 s40, {spin * 8}")
    lab("L_qflag")
    a(f"ds_read_b64 v[2:3], v6 offset:{L_TAG}")
    a("s_waitcnt lgkmcnt(0)")
    a("v_cmp_eq_u32 vcc, 0, v3")
    a("s_cbranch_vccz L_qflag_done")
    a("s_sleep 1")
    a("s_sub_u32 s40, s40, 1")
    a("s_cbranch_scc0 L_qflag")
    lab("L_qflag_done")
    if sprio: a(f"s_setprio {sprio}")
    a(f"ds_read_b128 v[{VQ}:{VQ+3}], v{VKO} offset:{L_Q}")
    a("v_mov_b32 v17, v2", "tag")
    a("v_readfirstlane_b32 s33, v2")
    stamp(2)
    a("s_nop 1")
    tagregs()
    a("s_waitcnt lgkmcnt(0)")
    def claim(first=False):
        a("s_mov_b32 s35, 1" if first else f"s_sub_u32 s35, s41, {NS - 1}", "ask the X wave for step s41")
        a("s_mov_b64 exec, 1")
        a("v_mov_b32 v15, s35")
        a(f"ds_write_b32 v14, v15 offset:{L_REQ}")
        a("s_mov_b64 exec, -1")
    def qk(K):
        for u in range(4):
            a(f"v_mfma_f32_16x16x32_bf16 v[{VS+4*u}:{VS+4*u+3}], v[{K+4*u}:{K+4*u+3}], v[{VQ}:{VQ+3}], 0")
    def pv(V):
        for t in range(4):
            a(f"v_mfma_f32_16x16x16_bf16 v[{VO}:{VO+3}], v[{VA+2*t}:{VA+2*t+1}], v[{V+4*t}:{V+4*t+1}], v[{VO}:{VO+3}]")
            a(f"v_mfma_f32_16x16x16_bf16 v[{VO+4}:{VO+7}], v[{VA+2*t}:{VA+2*t+1}], v[{V+4*t+2}:{V+4*t+3}], v[{VO+4}:{VO+7}]")
    DPP = "row_mask:0xf bank_mask:0xf"
    def rowmax(dst):
        a("v_permlane16_swap_b32 v1, v2")
        a("s_nop 0")
        a("v_max_f32 v1, v1, v2")
        a("v_mov_b32 v2, v1")
        a("s_nop 1")
        a("v_permlane32_swap_b32 v1, v2")
        a("s_nop 0")
        a(f"v_max_f32 v{dst}, v1, v2")
    def scale1(dst, src):
        a(f"v_cvt_pk_bf16_f32 v{dst}, v{src}, v{src}")
        a(f"v_and_b32 v{dst}, s67, v{dst}")
        a(f"v_mul_f32 v{dst}, s43, v{dst}")
        a(f"v_cvt_pk_bf16_f32 v{dst}, v{dst}, v{dst}")
        a(f"v_and_b32 v{dst}, s67, v{dst}")
    def scale4():
        for rep in range(2):
            a("v_cvt_pk_bf16_f32 v5, v4, v5")
            a("v_cvt_pk_bf16_f32 v7, v6, v7")
            a("v_lshlrev_b32 v4, 16, v5")
            a("v_lshlrev_b32 v6, 16, v7")
            a("v_and_b32 v5, s67, v5")
            a("v_and_b32 v7, s67, v7")
            if rep == 0:
                for i in range(4): a(f"v_mul_f32 v{4+i}, s43, v{4+i}")
    def softmax(hook=lambda k: None):
        for u in range(4): a(f"v_mov_b32_dpp v{4+u}, v{VS+4*u} quad_perm:[0,0,0,0] {DPP}")
        for p in range(1, 4):
            for u in range(4): a(f"v_add_f32_dpp v{4+u}, v{VS+4*u+p}, v{4+u} quad_perm:[{p},{p},{p},{p}] {DPP}")
        hook(1)
        if nr3:
            assert mimic and lastpv and not pre2 and not mi
            a("v_cndmask_b32 v4, v4, v5, s[100:101]", "lane keeps the score of key quad lane&3")
            a("v_cndmask_b32 v6, v6, v7, s[100:101]")
            a("v_cndmask_b32 v4, v4, v6, s[68:69]")
            scale1(4, 4)
            a(f"v_max_f32 v1, v4, v{VM}")
            a("s_nop 1")
            a(f"v_max_f32_dpp v1, v1, v1 quad_perm:[1,0,3,2] {DPP}")
            a("s_nop 1")
            a(f"v_max_f32_dpp v2, v1, v1 quad_perm:[2,3,0,1] {DPP}")
            a(f"v_max_f32_dpp v1, v1, v1 quad_perm:[2,3,0,1] {DPP}")
            a("s_nop 1")
            rowmax(1)
            a(f"v_sub_f32 v2, v{VM}, v1")
            a("v_sub_f32 v4, v4, v1")
            a("v_mul_f32 v2, s53, v2")
            a("v_mul_f32 v4, s53, v4")
            a("v_exp_f32 v2, v2", "rescale factor")
            a("v_exp_f32 v4, v4")
            a(f"v_mov_b32 v{VM}, v1")
            a("v_cvt_pk_bf16_f32 v5, v4, v4")
            for g in range(4): a(f"v_mov_b32_dpp v8, v2 row_newbcast:{4*g} row_mask:{1<<g:#x} bank_mask:0xf")
            a(f"v_fma_f32 v{VL}, v{VL}, v2, v4")
            for i in range(0, 8, 2): a(f"v_pk_mul_f32 v[{VO+i}:{VO+i+1}], v[{VO+i}:{VO+i+1}], v[8:9] op_sel_hi:[1,0]")
            for t in range(4):
                a(f"v_and_b32_dpp v{VA+2*t}, v5, v{VM0} quad_perm:[{t},{t},{t},{t}] {DPP}")
                a(f"v_and_b32_dpp v{VA+2*t+1}, v5, v{VM1} quad_perm:[{t},{t},{t},{t}] {DPP}")
            return
        if mimic: scale4()
        a("v_max3_f32 v1, v4, v5, v6")
        a(f"v_max3_f32 v1, v1, v7, v{VM}")
        a("v_mov_b32 v2, v1")
        a("s_nop 1")
        rowmax(1)
        a(f"v_sub_f32 v2, v{VM}, v1")
        a("v_mul_f32 v3, s53, v1")
        a("v_mul_f32 v2, s53, v2")
        a(f"v_mov_b32 v{VM}, v1")
        a("v_exp_f32 v2, v2", "rescale factor")
        for i in range(4): a(f"v_fma_f32 v{4+i}, v{4+i}, s53, -v3")
        hook(2)
        for i in range(4): a(f"v_exp_f32 v{4+i}, v{4+i}")
        for g in range(4): a(f"v_mov_b32_dpp v8, v2 row_newbcast:{4*g} row_mask:{1<<g:#x} bank_mask:0xf")
        a(f"v_fma_f32 v{VL}, v{VL}, v2, v4")
        a("v_add_f32 v9, v5, v6")
        a(f"v_add_f32 v{VL}, v{VL}, v7")
        a(f"v_add_f32 v{VL}, v{VL}, v9")
        for i in range(4): a(f"v_cvt_pk_bf16_f32 v{4+i}, v{4+i}, v{4+i}")
        hook(3)
        for i in range(8): a(f"v_mul_f32 v{VO+i}, v{VO+i}, v8")
        for i in range(4):
            a(f"v_and_b32 v{VA+2*i}, v{4+i}, v{VM0}")
            a(f"v_and_b32 v{VA+2*i+1}, v{4+i}, v{VM1}")
    def scores(K, p, ring):
        qk(K)
        if ring:
            a("v_readlane_b32 s52, v10, s41")
            a("s_add_u32 s41, s41, 1")
            a("s_nop 2")
        else:
            a("s_nop 4")
        for u in range(4): a(f"v_add_f32_dpp v{4+u}, v{VS+4*u+1}, v{VS+4*u} quad_perm:[1,1,1,1] {DPP}")
        for q_ in (2, 3):
            for u in range(4): a(f"v_add_f32_dpp v{4+u}, v{VS+4*u+q_}, v{4+u} quad_perm:[{q_},{q_},{q_},{q_}] {DPP}")
        a("s_mov_b64 exec, s[98:99]")
        a(f"v_max3_f32 v{VM}, v4, v5, v{VM}")
        a(f"ds_write_b128 v{VSW}, v[4:7] offset:{L_SC + p*256}")
        a(f"v_max3_f32 v{VM}, v6, v7, v{VM}")
        a("s_mov_b64 exec, s[96:97]")
    lab("L_kpre")
    if peel:
        assert NE == RH and NA >= 3 * RH
        for p in range(RH):
            K = VR + PERM[p] * 16
            scores(K, RH + p, True)
            guarded(lambda: issue(K, VKO, "s[44:47]", WS, ks=(0, 1)))
            scores(preg(p), p, False)
            guarded(lambda: issue(K, VKO, "s[44:47]", WS, ks=(2, 3)))
        a(f"v_add_u32 v{VSW}, {2*RH*256}, v{VSW}")
    else:
        assert NE < RH
        for p in range(NE): scores(preg(p), p, False)
        if NE: a(f"s_cbranch_execnz L_kp{NE}", "their ring slots already hold later tiles")
    align("k")
    lab("L_kloop")
    a("s_cmp_lg_u32 s76, 0")
    a("s_cbranch_scc1 L_kp0")
    if probe is not None: stamp(12)
    a("s_mov_b64 s[72:73], s[8:9]", "last trip: refill with V tiles 0..")
    a(f"v_mov_b32 v{VB}, v{VVO}")
    a("s_mov_b32 s41, 0")
    for p in range(RH):
        K = VR + PERM[p] * 16
        lab(f"L_kp{p}")
        scores(K, p, True)
        guarded(lambda: issue(K, VB, "s[72:75]", WS))
    a(f"v_add_u32 v{VSW}, {RH*256}, v{VSW}")
    a("s_sub_u32 s76, s76, 1")
    a("s_cbranch_scc0 L_kloop")
    a(f"ds_read_b32 v9, v{VSR} offset:{L_SC}")
    a(f"v_mov_b32_dpp v1, v{VM} quad_perm:[0,0,0,0] {DPP}")
    a(f"v_mov_b32_dpp v2, v{VM} quad_perm:[0,0,0,0] {DPP}")
    a("s_mov_b32 s78, 1")
    a("s_nop 0")
    rowmax(VM)
    if mimic: scale1(VM, VM)
    a(f"v_mul_f32 v3, s53, v{VM}")
    WL = [f"global_load_dwordx4 v[{RD+4*i}:{RD+4*i+3}], v{T_D0 + i//2}, s[20:21] offset:{(i&1)*1024} {woflags}" for i in range(4)]
    WL += [f"global_load_dwordx4 v[{RW+4*i}:{RW+4*i+3}], v{T_WO}, s[12:13] offset:{i*1024-4096} {woflags}" for i in range(8)]
    assert nV in (0, 4, 8, 12) and nA >= nV and not (nV and r0)
    vsn = []
    align("v")
    lab("L_vloop")
    a("s_cmp_lg_u32 s77, 0")
    a("s_cbranch_scc1 L_v0")
    a("s_mov_b64 s[72:73], s[6:7]", f"last trip: refill only slots 0, 1 with K, V of tile {NA}")
    a(f"v_mov_b32 v{VB}, v{VKO}")
    a("s_mov_b32 s78, 0")
    lab("L_v0")
    for p in range(RH):
        sl = PERM[p]
        V = VR + sl * 16
        a("v_readlane_b32 s52, v10, s41")
        a("s_waitcnt lgkmcnt(0)")
        if mimic:
            scale1(4, 9)
            a("v_fma_f32 v4, v4, s53, -v3")
        else:
            a("v_fma_f32 v4, v9, s53, -v3")
        a(f"ds_read_b32 v9, v{VSR} offset:{L_SC + (p+1)*256}")
        a("v_exp_f32 v4, v4")
        a("s_add_u32 s41, s41, 1" if sl == 1 else "s_add_u32 s41, s41, s78")
        a("v_cvt_pk_bf16_f32 v5, v4, v4")
        a(f"v_add_f32 v{VL}, v{VL}, v4")
        a("s_nop 0")
        for t in range(4):
            a(f"v_and_b32_dpp v{VA+2*t}, v5, v{VM0} quad_perm:[{t},{t},{t},{t}] {DPP}")
            a(f"v_and_b32_dpp v{VA+2*t+1}, v5, v{VM1} quad_perm:[{t},{t},{t},{t}] {DPP}")
        if p == RH - 1:
            a("s_cmp_lg_u32 s77, 0", "last trip: only the K refill is younger than this slot's loads")
            a("s_cbranch_scc1 L_vw")
            a(f"s_waitcnt vmcnt({4 + nV})")
            lab("L_vw")
        pv(V)
        if sl >= 2:
            a("s_cmp_eq_u32 s77, 0")
            k4 = sl - 4
            if 0 <= k4 < nV // 4:
                a(f"s_cbranch_scc1 L_vx{p}")
                vsn.append((p, WL[4*k4:4*k4+4]))
            else:
                a(f"s_cbranch_scc1 L_vs{p}")
            issue(V, VVO, "s[48:51]", WS)
            lab(f"L_vs{p}")
        elif sl == 0:
            if rq == 4: guarded(lambda: issue(V, VB, "s[72:75]", WS))
            if NS == NA + 1:
                a("s_cmp_lg_u32 s77, 0")
                a("s_cbranch_scc1 L_vnc")
                guarded(lambda: claim(first=True))
                lab("L_vnc")
            if rq < 4: guarded(lambda: issue(V, VB, "s[72:75]", WS))
        else:
            guarded(lambda: issue(V, VVO, "s[48:51]", WS))
    a(f"v_add_u32 v{VSR}, {RH*256}, v{VSR}")
    a("s_sub_u32 s77, s77, 1")
    a("s_cbranch_scc0 L_vloop")
    if not nr3:
        a(f"v_add_f32_dpp v{VL}, v{VL}, v{VL} quad_perm:[1,0,3,2] {DPP}")
        a("s_waitcnt lgkmcnt(0)")
        a("s_nop 0")
        a(f"v_add_f32_dpp v{VL}, v{VL}, v{VL} quad_perm:[2,3,0,1] {DPP}")
    a("s_cbranch_execnz L_loop")
    a("s_mov_b32 s41, 63")
    align("m")
    lab("L_loop")
    assert int(WM[0]) <= 4
    for slot in range(2):
        oth = 1 - slot
        a("v_readlane_b32 s52, v10, s41")
        a(f"s_cmp_ge_u32 s41, {NS}")
        a(f"s_cbranch_scc1 L_tk{slot}")
        a("s_nop 1")
        lab(f"L_gk{slot}")
        issue(VR + oth * 32, VKO, "s[44:47]", WM, ks=(0,) if mi else range(rq))
        a("s_add_u32 s41, s41, 1")
        a(f"s_cmp_lt_u32 s41, {NS}")
        a(f"s_cbranch_scc1 L_nc{slot}")
        claim()
        lab(f"L_nc{slot}")
        if not mi: issue(VR + oth * 32, VKO, "s[44:47]", WM, ks=range(rq, 4))
        lab(f"L_rk{slot}")
        qk(VR + slot * 32)
        a("s_nop 4")
        def hook(k):
            a("s_cmp_lt_u32 s54, 2")
            a(f"s_cbranch_scc1 L_mk{slot}{k}")
            issue(VR + oth * 32, VKO, "s[44:47]", WM, ks=(k,))
            lab(f"L_mk{slot}{k}")
        softmax(hook) if mi else softmax()
        a("s_cmp_lt_u32 s54, 2")
        a(f"s_cbranch_scc1 L_dv{slot}")
        issue(VR + oth * 32 + 16, VVO, "s[48:51]", WM, down=True, ks=(0,) if mi else range(4))
        lab(f"L_rv{slot}")
        pv(VR + slot * 32 + 16)
        if not pre2 and not lastpv:
            a("s_sub_u32 s54, s54, 1")
            a("s_cbranch_scc1 L_done")
        if mi: guarded(lambda: issue(VR + oth * 32 + 16, VVO, "s[48:51]", WM, down=True, ks=(1, 2, 3)))
    a("s_branch L_loop")
    for p, ls in vsn:
        lab(f"L_vx{p}")
        a(f"s_cbranch_execz L_vs{p}")
        for k, x in enumerate(ls):
            if WS[k] != "-": a(f"s_waitcnt vmcnt({WS[k]})")
            a(x)
        a(f"s_branch L_vs{p}")
    for slot in range(2):
        lab(f"L_tk{slot}")
        a(f"s_cbranch_execz L_rk{slot}")
        a("s_lshl_b32 s35, s41, 2")
        a(f"s_add_u32 s35, s35, {L_TK - 4 * NS}")
        a("v_mov_b32 v15, s35")
        a(f"s_mov_b32 s40, {spin * 8}")
        lab(f"L_tp{slot}")
        a("ds_read_b32 v16, v15", "-1: not served yet, -2: pool empty")
        a("s_sub_u32 s40, s40, 1")
        a(f"s_cbranch_scc1 L_tf{slot}")
        a("s_waitcnt lgkmcnt(0)")
        a("v_readfirstlane_b32 s35, v16")
        a("s_nop 1")
        a("s_cmp_eq_u32 s35, -1")
        a(f"s_cbranch_scc1 L_tp{slot}")
        a("s_xor_b32 s52, s35, s55")
        a("s_cmp_lt_u32 s35, -3")
        a(f"s_cbranch_scc1 L_gk{slot}")
        if r0: a("s_and_b32 s78, s35, 1", "early finisher")
        lab(f"L_tf{slot}")
        a("s_mov_b32 s54, 0")
        if wat == "tf":
            for x in WL[nV:nA]: a(x)
        a(f"s_waitcnt vmcnt({4 + (nA - nV if wat == 'tf' else 0)})")
        a(f"s_branch L_rk{slot}")
        lab(f"L_dv{slot}")
        if tt: a(f"v_mov_b32 v{NV-1}, v13")
        if r0 and nA:
            a("s_cmp_lg_u32 s78, 0")
            a(f"s_cbranch_scc1 L_de{slot}")
        if nA > nV and wat == "dv": guard(WL[nV:nA])
        if lastpv and not pre2:
            fill = []
            if nr3:
                fill += [f"v_add_f32_dpp v{VL}, v{VL}, v{VL} quad_perm:[1,0,3,2] {DPP}", f"v_mul_f32 v10, s53, v{VM}",
                         f"v_add_f32_dpp v{VL}, v{VL}, v{VL} quad_perm:[2,3,0,1] {DPP}", None]
            fill += [f"v_mov_b32 v2, v{VL}", "s_nop 0" if nr3 else f"v_mul_f32 v10, s53, v{VM}", f"v_permlane16_swap_b32 v{VL}, v2", None,
                     f"v_add_f32 v11, v{VL}, v2", "v_mov_b32 v2, v11", "s_nop 0", "v_permlane32_swap_b32 v11, v2",
                     "v_add_f32 v11, v11, v2", f"ds_write_b64 v{T_SW}, v[10:11] offset:{L_ST}"]
            a(f"s_waitcnt vmcnt({nA - nV if wat != 'pv' else 0})")
            V = VR + slot * 32 + 16
            for t in range(8):
                o = 4 * (t & 1)
                a(f"v_mfma_f32_16x16x16_bf16 v[{VO+o}:{VO+o+3}], v[{VA+2*(t>>1)}:{VA+2*(t>>1)+1}], v[{V+2*t}:{V+2*t+1}], v[{VO+o}:{VO+o+3}]")
                for x in fill[2*t:2*t+2]:
                    if x: a(x)
            a("s_nop 0")
            a("s_cbranch_execnz L_done")
            if slot == 0:
                a("s_mov_b32 s54, 0")
                a("s_branch L_rk1")
            continue
        if r0 and nA: lab(f"L_de{slot}")
        a(f"v_mov_b32 v2, v{VL}")
        a(f"v_mul_f32 v10, s53, v{VM}")
        a("s_nop 0")
        a(f"v_permlane16_swap_b32 v{VL}, v2")
        a("s_nop 0")
        a(f"v_add_f32 v11, v{VL}, v2")
        a("v_mov_b32 v2, v11")
        a("s_nop 1")
        a("v_permlane32_swap_b32 v11, v2")
        a("s_nop 0")
        a("v_add_f32 v11, v11, v2")
        a(f"ds_write_b64 v{T_SW}, v[10:11] offset:{L_ST}")
        if pre2:
            assert not r0
            guard(["s_waitcnt lgkmcnt(0)", "s_barrier"])
            a(f"ds_read_b128 v[8:11], v{T_SR} offset:{L_ST}")
            a(f"ds_read_b128 v[12:15], v{T_SR} offset:{L_ST+16}")
            fill = ["v_max3_f32 v2, v8, v10, v12", "v_max_f32 v2, v2, v14"]
            fill += [f"v_sub_f32 v{8+2*w}, v{8+2*w}, v2" for w in range(4)]
            fill += [f"v_exp_f32 v{8+2*w}, v{8+2*w}" for w in range(4)]
            fill += ["v_mul_f32 v16, v8, v9", "v_fmac_f32 v16, v10, v11", "v_fmac_f32 v16, v12, v13", "v_fmac_f32 v16, v14, v15",
                     "v_rcp_f32 v5, v16", "v_log_f32 v16, v16"]
            a(f"s_waitcnt vmcnt({nA - nV}) lgkmcnt(0)")
            V = VR + slot * 32 + 16
            for t in range(8):
                o = 4 * (t & 1)
                a(f"v_mfma_f32_16x16x16_bf16 v[{VO+o}:{VO+o+3}], v[{VA+2*(t>>1)}:{VA+2*(t>>1)+1}], v[{V+2*t}:{V+2*t+1}], v[{VO+o}:{VO+o+3}]")
                for x in fill[2*t:2*t+2]: a(x)
            a("v_mov_b32 v7, v17")
            for w in range(4): a(f"v_mul_f32 v{8+2*w}, v{8+2*w}, v5", "weights of the four waves" if w == 0 else None)
            a("v_add_f32 v6, v2, v16", "log2 of the partial sum")
            if slot == 0:
                a("s_cbranch_execnz L_done")
                a("s_mov_b32 s54, 0")
                a("s_branch L_rk1")
            continue
        a(f"s_waitcnt vmcnt({nA - nV})")
        if r0 and nA:
            a(f"s_cbranch_scc0 L_rv{slot}")
            a("s_waitcnt vmcnt(0)")
        a(f"s_branch L_rv{slot}")
    if not pre2: align("d")
    lab("L_done")
    stamp(3)
    if tt:
        a("s_mov_b32 s94, s41")
    poll1 = f"global_load_dwordx4 v[8:11], v{T_P1L}, s[26:27] sc1"
    if own: poll1 = "s_mov_b64 exec, s[100:101]\n    " + poll1 + "\n    s_mov_b64 exec, -1"
    P1D = 4 if pre2 else 36
    if pre2:
        a(f"ds_write_b128 v{T_OW}, v[{VO}:{VO+3}] offset:{L_O}")
        a(f"ds_write_b128 v{T_OW}, v[{VO+4}:{VO+7}] offset:{L_O+16}")
        guard(["s_waitcnt lgkmcnt(0)", "s_barrier"])
        for w in range(4): a(f"ds_read_b64 v[{24+2*w}:{25+2*w}], v{T_OR} offset:{L_O + w*2048}")
        a("s_waitcnt lgkmcnt(3)")
        a("v_pk_mul_f32 v[4:5], v[24:25], v[8:9] op_sel_hi:[1,0]")
        for w in range(1, 4):
            a(f"s_waitcnt lgkmcnt({3-w})")
            a(f"v_pk_fma_f32 v[4:5], v[{24+2*w}:{25+2*w}], v[{8+2*w}:{9+2*w}], v[4:5] op_sel_hi:[1,0,1]")
    else:
        if gap1 == "prio": a("s_setprio 3")
        a("s_nop 4")
        a(f"ds_write_b128 v{T_OW}, v[{VO}:{VO+3}] offset:{L_O}")
        a(f"ds_write_b128 v{T_OW}, v[{VO+4}:{VO+7}] offset:{L_O+16}")
        a("s_waitcnt lgkmcnt(0)")
        guard(["s_barrier"])
        a(f"ds_read_b128 v[8:11], v{T_SR} offset:{L_ST}")
        a(f"ds_read_b128 v[12:15], v{T_SR} offset:{L_ST+16}")
        for w in range(4): a(f"ds_read_b64 v[{24+2*w}:{25+2*w}], v{T_OR} offset:{L_O + w*2048}")
        a("v_mov_b32 v39, v17")
        a("s_waitcnt lgkmcnt(4)")
        a("v_max3_f32 v2, v8, v10, v12")
        a("v_max_f32 v2, v2, v14")
        for w in range(4): a(f"v_sub_f32 v{8+2*w}, v{8+2*w}, v2")
        for w in range(4): a(f"v_exp_f32 v{8+2*w}, v{8+2*w}")
        a("v_mul_f32 v16, v8, v9")
        a("v_fmac_f32 v16, v10, v11")
        a("v_fmac_f32 v16, v12, v13")
        a("v_fmac_f32 v16, v14, v15")
        a("s_waitcnt lgkmcnt(0)")
        a("v_rcp_f32 v5, v16")
        a("v_log_f32 v16, v16")
        a("v_mul_f32 v36, v8, v24")
        a("v_mul_f32 v37, v8, v25")
        for w in range(1, 4):
            a(f"v_fmac_f32 v36, v{8+2*w}, v{24+2*w}")
            a(f"v_fmac_f32 v37, v{8+2*w}, v{25+2*w}")
        a("v_add_f32 v38, v2, v16", "log2 of the partial sum")
        a("v_mul_f32 v36, v36, v5")
        a("v_mul_f32 v37, v37, v5")
    assert not pollfirst or (nA >= 4 and nA % 2 == 0 and not r0)
    def gap(kind):
        if kind == "bar": a("s_barrier", "all four stores go out before any wave's loads")
        if kind == "prio": a("s_setprio 0")
    if not r0:
        def f():
            if "halfP1" in skip:
                a("s_cmp_ge_u32 s42, 2")
                a("s_cbranch_scc1 L_hp1")
            a(f"global_store_dwordx4 v{T_P1S}, v[{P1D}:{P1D+3}], s[26:27] sc1")
            if "halfP1" in skip: lab("L_hp1")
            stamp(4)
            if own:
                a(f"ds_write_b128 v{T_OWN}, v[{P1D}:{P1D+3}] offset:{L_SC}", "this workgroup's own granules go through LDS")
                a("s_waitcnt lgkmcnt(0)")
                a("s_barrier")
                if own == 1:
                    a("s_not_b64 exec, s[100:101]")
                    a(f"ds_read_b128 v[8:11], v{T_OWN+1} offset:{L_SC}")
                    a("s_mov_b64 exec, -1")
                else:
                    a(f"ds_read_b128 v[8:11], v{T_OWN+1} offset:{L_SC}")
                    a("s_waitcnt lgkmcnt(0)")
            if pollfirst == 2 and not own: gap(gap1)
            if pollfirst: a(poll1)
            if pollfirst or not own: gap(gap1)
            for x in (WL[nA:] if (pollfirst or pollat is not None) else WL[nA:] + [poll1]): a(x)
        guarded(f)
    else:
        def f():
            a(f"global_store_dwordx4 v{T_P1S}, v[{P1D}:{P1D+3}], s[26:27] sc1")
            stamp(4)
            a("s_cmp_eq_u32 s78, 0")
            a("s_cbranch_scc1 L_wlate")
            a(f"s_mov_b32 s40, {spin}")
            lab("L_pre")
            a(poll1)
            a("s_waitcnt vmcnt(0)")
            a("v_cmp_eq_u32 vcc, s33, v11")
            a("s_sub_u32 s40, s40, 1")
            a("s_cbranch_scc1 L_pre_done")
            a("s_bcnt1_i32_b64 s35, vcc")
            a(f"s_cmp_lt_u32 s35, {4 * cnt}")
            a("s_cbranch_scc1 L_pre")
            lab("L_pre_done")
            for x in WL[:nA]: a(x)
            lab("L_wlate")
            for x in WL[nA:] + [poll1]: a(x)
        guarded(f)
    a(f"ds_read_{'u16' if fin1 else 'b32'} v{T_X}, v{T_XO} offset:{L_XR}")
    a(f"ds_read_b64 v[24:25], v{T_H} offset:{L_H}")
    def younger(k, polled=True): return (11 - k) + (1 if k < nA and not r0 else 0) + (1 if polled else 0)
    def pairup(raw, dst, p):
        for d in range(4):
            a(f"v_perm_b32 v{dst+8*p+2*d}, v{raw+8*p+4+d}, v{raw+8*p+d}, s64")
            a(f"v_perm_b32 v{dst+8*p+2*d+1}, v{raw+8*p+4+d}, v{raw+8*p+d}, s65")
    def dots(pairs, vec, npairs):
        for p in range(npairs):
            for c in range(8):
                a(f"v_dot2_f32_bf16 v{VS+c}, v{pairs+8*p+c}, v{vec+p}, {'0' if p == 0 else 'v%d' % (VS+c)}")
    def fold(dst):
        for k in range(4): a(f"v_permlane32_swap_b32 v{VS+k}, v{VS+4+k}")
        for k in range(4): a(f"v_add_f32 v{VS+k}, v{VS+k}, v{VS+4+k}")
        a("s_nop 0")
        for k in range(2): a(f"v_permlane16_swap_b32 v{VS+k}, v{VS+2+k}")
        for k in range(2): a(f"v_add_f32 v{dst+k}, v{VS+k}, v{VS+2+k}")
    a(f"s_waitcnt vmcnt({younger(3, pollat is None)})")
    for p in range(2): pairup(RD, PD, p)
    a("s_waitcnt lgkmcnt(0)")
    dots(PD, 24, 2)
    fold(42)
    if tag1:
        a(f"v_lshrrev_b32 v12, v{T_H}, v17", "hand-off 2 tag: byte (granule & 3) of the tag in the low byte of dword 3")
        a("v_and_b32 v13, 3, v0")
        a("v_lshlrev_b32 v13, 3, v13")
        a("v_perm_b32 v43, v43, v12, s60")
        a("v_lshrrev_b32 v13, v13, v17")
    else:
        a("v_perm_b32 v42, v42, v17, s62")
        a("v_perm_b32 v43, v43, v17, s63")
    nearly = (nA - 4) // 2 if pollfirst else 4
    for p in range(nearly):
        a(f"s_waitcnt vmcnt({younger(4 + 2*p + 1, pollat is None or p > pollat)})")
        if p == pollat: guard([poll1])
        pairup(RW, PW, p)
    a(f"s_mov_b32 s40, {spin}")
    if probe is None: stamp(11)
    if pollfirst:
        a("s_mov_b32 s78, 0")
        a(f"s_waitcnt vmcnt({12 - nA})")
        a("v_cmp_ne_u32 vcc, s33, v11")
        a("s_cbranch_vccz L_p1poll_done")
        a(poll1)
        a("s_mov_b32 s78, 1")
        for p in range(nearly, 4):
            a(f"s_waitcnt vmcnt({7 - 2*p})")
            pairup(RW, PW, p)
    a("s_waitcnt vmcnt(0)")
    a("s_branch L_p1chk")
    align("p")
    lab("L_p1poll")
    if sleep1: a(f"s_sleep {sleep1}")
    a(poll1)
    a("s_waitcnt vmcnt(0)")
    lab("L_p1chk")
    a("v_cmp_ne_u32 vcc, s33, v11")
    pollend("L_p1poll")
    stamp(5)
    if tt: a(f"s_sub_u32 s92, {spin + 1}, s40")
    a(f"v_max_f32_dpp v2, v10, v10 row_ror:8 {DPP}")
    a("s_nop 1")
    for r in (4, 2, 1):
        a(f"v_max_f32_dpp v2, v2, v2 row_ror:{r} {DPP}")
        if r > 1: a("s_nop 1")
    a("v_sub_f32 v10, v10, v2")
    a("v_exp_f32 v10, v10")
    a("s_nop 0")
    a("v_mul_f32 v8, v8, v10")
    a("v_mul_f32 v9, v9, v10")
    for r in (8, 4, 2, 1):
        for v in (10, 8, 9): a(f"v_add_f32_dpp v{v}, v{v}, v{v} row_ror:{r} {DPP}")
    a("v_rcp_f32 v10, v10")
    a("s_nop 0")
    a("v_mul_f32 v8, v8, v10")
    a("v_mul_f32 v9, v9, v10")
    a("v_cvt_pk_bf16_f32 v8, v8, v9")
    a(f"ds_write_b32 v{T_OBW}, v8 offset:{L_OB}")
    guard(["s_waitcnt lgkmcnt(0)", "s_barrier"])
    if gap2 == "prio": a("s_setprio 3")
    a(f"ds_read_b128 v[24:27], v{T_OBR} offset:{L_OB}")
    if pollfirst:
        a("s_cmp_lg_u32 s78, 0")
        a("s_cbranch_scc1 L_paired")
        for p in range(nearly, 4):
            a(f"s_waitcnt vmcnt({6 - 2*p})")
            pairup(RW, PW, p)
        lab("L_paired")
    a("s_waitcnt lgkmcnt(0)")
    dots(PW, 24, 4)
    fold(40)
    if not tag1:
        a("v_perm_b32 v40, v40, v17, s60")
        a("v_perm_b32 v41, v41, v17, s61")
    guard([f"global_store_dwordx4 v{T_P2S}, v[40:43], s[26:27] sc1"])
    stamp(6)
    a("s_and_b32 s35, s29, 3")
    a("s_cbranch_scc1 L_end" if lite else "s_cbranch_scc1 L_sexit")
    a(f"s_mov_b32 s40, {spin}")
    a("v_mov_b32 v6, 0")
    if gap2: guarded(lambda: gap(gap2))
    align("q")
    lab("L_p2poll")
    if sleep2: a(f"s_sleep {sleep2}")
    guard([f"global_load_dwordx4 v[{VP2+4*i}:{VP2+4*i+3}], v{T_F0+i}, s[26:27] sc1" for i in range(4)])
    a("s_waitcnt vmcnt(0)")
    if tag1:
        a(f"v_xor_b32 v2, v13, v{VP2+3}")
        for i in range(1, 4): a(f"v_bitop3_b32 v2, v2, v{VP2+4*i+3}, v13 bitop3:0xf6")
        a("v_cmp_ne_u32_sdwa vcc, v2, v6 src0_sel:BYTE_0 src1_sel:DWORD")
    else:
        check([VP2 + 4 * i for i in range(4)], 2)
    pollend("L_p2poll")
    stamp(7)
    if tt: a(f"s_sub_u32 s93, {spin + 1}, s40")
    for i in range(16):
        if not tag1 or i % 4 == 3: a(f"v_and_b32 v{VP2+i}, s39, v{VP2+i}")
    for i in (0, 2):
        a(f"v_pk_add_f32 v[{24+i}:{25+i}], v[{VP2+i}:{VP2+1+i}], v[{VP2+4+i}:{VP2+5+i}]")
        a(f"v_pk_add_f32 v[{32+i}:{33+i}], v[{VP2+8+i}:{VP2+9+i}], v[{VP2+12+i}:{VP2+13+i}]")
    for i in (0, 2): a(f"v_pk_add_f32 v[{8+i}:{9+i}], v[{24+i}:{25+i}], v[{32+i}:{33+i}]")
    a("s_nop 1")
    a("v_permlane32_swap_b32 v8, v10", "afterwards row r of the wave holds dword r of granule lane&7")
    a("v_permlane32_swap_b32 v9, v11")
    a("s_nop 0")
    a("v_add_f32 v8, v8, v10")
    a("v_add_f32 v9, v9, v11")
    a("s_nop 1")
    a("v_permlane16_swap_b32 v8, v9")
    a("s_nop 0")
    a("v_add_f32 v8, v8, v9")
    a("s_nop 1")
    a(f"v_add_f32_dpp v8, v8, v8 row_ror:8 {DPP}")
    a(f"ds_write_b32 v{T_FW}, v8 offset:{L_O}")
    a("s_cmp_lg_u32 s42, 0")
    guard(["s_waitcnt lgkmcnt(0)", "s_barrier"])
    a("s_cbranch_scc1 L_epoch" if ep1 else "s_cbranch_scc1 L_end" if lite else "s_cbranch_scc1 L_sexit")
    if fin1:
        for w in range(4): a(f"ds_read2_b32 v[{24+2*w}:{25+2*w}], v{T_FR} offset0:{32*w} offset1:{32*w+2}", "one column per lane: {attention, FFN}" if w == 0 else None)
        a(f"v_lshlrev_b32 v14, 16, v{T_X}")
        a("s_waitcnt lgkmcnt(2)")
        a("v_pk_add_f32 v[24:25], v[24:25], v[26:27]")
        a("s_waitcnt lgkmcnt(0)")
        a("v_pk_add_f32 v[28:29], v[28:29], v[30:31]")
        a("v_pk_add_f32 v[8:9], v[24:25], v[28:29]")
        a("v_cvt_pk_bf16_f32 v8, v8, v9")
        a("v_and_b32 v9, s67, v8")
        a("v_mul_f32 v12, s53, v9")
        a("v_exp_f32 v12, -v12")
        a("v_lshlrev_b32 v8, 16, v8")
        a("v_add_f32 v12, 1.0, v12")
        a("v_rcp_f32 v12, v12")
        a("s_nop 0")
        a("v_mul_f32 v9, v9, v12")
        a("v_cvt_pk_bf16_f32 v9, v9, v9", "silu")
        a("v_and_b32 v9, s67, v9")
        a("v_mul_f32 v8, v8, v9")
        a("v_cvt_pk_bf16_f32 v8, v8, v8")
        a("v_and_b32 v8, s67, v8")
        a("v_add_f32 v8, v8, v14")
        a("v_cvt_pk_bf16_f32 v8, v8, v8")
    else:
        for w in range(4): a(f"ds_read_b128 v[{24+4*w}:{27+4*w}], v{T_FR} offset:{L_O + 128*w}")
        a(f"v_lshlrev_b32 v14, 16, v{T_X}")
        a(f"v_and_b32 v15, 0xffff0000, v{T_X}")
        a("s_waitcnt lgkmcnt(2)")
        for i in (2, 0): a(f"v_pk_add_f32 v[{24+i}:{25+i}], v[{24+i}:{25+i}], v[{28+i}:{29+i}]")
        a("s_waitcnt lgkmcnt(0)")
        for i in (2, 0): a(f"v_pk_add_f32 v[{32+i}:{33+i}], v[{32+i}:{33+i}], v[{36+i}:{37+i}]")
        for i in (2, 0): a(f"v_pk_add_f32 v[{8+i}:{9+i}], v[{24+i}:{25+i}], v[{32+i}:{33+i}]")
        a("v_cvt_pk_bf16_f32 v10, v10, v11", "FFN output")
        a("v_cvt_pk_bf16_f32 v8, v8, v9", "attention output")
        a("v_and_b32 v11, 0xffff0000, v10")
        a("v_lshlrev_b32 v10, 16, v10")
        a(f"v_mul_f32 v13, {f2u(-math.log2(math.e)):#x}, v11")
        a(f"v_mul_f32 v12, {f2u(-math.log2(math.e)):#x}, v10")
        a("v_exp_f32 v13, v13")
        a("v_exp_f32 v12, v12")
        a("v_and_b32 v9, 0xffff0000, v8")
        a("v_add_f32 v13, 1.0, v13")
        a("v_add_f32 v12, 1.0, v12")
        a("v_rcp_f32 v13, v13")
        a("v_rcp_f32 v12, v12")
        a("v_lshlrev_b32 v8, 16, v8")
        a("v_mul_f32 v11, v11, v13")
        a("v_mul_f32 v10, v10, v12")
        a("v_cvt_pk_bf16_f32 v10, v10, v11", "silu")
        a("v_and_b32 v11, 0xffff0000, v10")
        a("v_lshlrev_b32 v10, 16, v10")
        a("v_mul_f32 v9, v9, v11")
        a("v_mul_f32 v8, v8, v10")
        a("v_cvt_pk_bf16_f32 v8, v8, v9")
        a("v_and_b32 v9, 0xffff0000, v8")
        a("v_lshlrev_b32 v8, 16, v8")
        a("v_add_f32 v9, v9, v15")
        a("v_add_f32 v8, v8, v14")
        a("v_cvt_pk_bf16_f32 v8, v8, v9")
    a("s_cbranch_execz L_end")
    a("s_mov_b64 exec, 0xffff" if fin1 else "s_mov_b64 exec, 0xff")
    if endexp is not None:
        if endexp == "before": a(f"global_store_dword v{T_XO}, v8, s[22:23] {outflags}")
        a("s_add_u32 s72, s80, 10000")
        lab("L_hold")
        a("s_memrealtime s[70:71]")
        a("s_waitcnt lgkmcnt(0)")
        a("s_sub_u32 s73, s70, s72")
        a("s_cmp_lt_i32 s73, 0")
        a("s_cbranch_scc1 L_hold")
    if endexp != "before": a(f"global_store_{'short' if fin1 else 'dword'} v{T_XO}, v8, s[22:23] {outflags}")
    if ep1:
        a("s_branch L_sexit" if ts else "s_endpgm")
        lab("L_epoch")
    if ep1: a("s_lshl2_add_u32 s35, s2, s42")
    a(f"s_cmp_lg_u32 s35, {1 if cross else 17}" if ep1 else f"s_cmp_lg_u32 s2, {0 if cross else 4}")
    a("s_cbranch_scc1 L_end" if (ep1 and lite) else "s_cbranch_scc1 L_sexit")
    a("s_mov_b64 exec, 1")
    a("v_mov_b32 v6, 0")
    a(f"global_store_dword v6, v17, s[26:27] {outflags}")
    if ep1 and lite: a("s_endpgm")
    lab("L_sexit")
    stamp(8)
    if tt:
        a("s_mov_b64 exec, -1")
        a("s_lshl_b32 s70, s2, 2")
        a("s_add_u32 s70, s70, s42")
        a("s_lshl_b32 s70, s70, 8")
        a(f"s_add_u32 s70, s70, {WS_TT}")
        a("v_lshl_add_u32 v1, v0, 2, s70")
        a(f"global_store_dword v1, v{NV-1}, s[26:27]")
    dump_stamps("S")
    lab("L_end")
    a("s_endpgm")

    section("X2")
    align("x")
    lab("L_x2")
    a("v_lshrrev_b32 v46, 4, v0", "g")
    a("v_bfe_u32 v7, v0, 2, 2")
    a("v_and_b32 v5, 3, v0")
    a("v_lshlrev_b32 v44, 10, v46")
    a("v_lshl_add_u32 v44, v7, 7, v44")
    a("v_lshl_add_u32 v44, v5, 3, v44", "weight fragment address (transposing reads)")
    a("v_and_b32 v45, 1, v0", "batch row of this column of D")
    a("v_lshlrev_b32 v4, 10, v45")
    a("v_lshl_add_u32 v4, v46, 4, v4")
    a("v_bfe_u32 v47, v0, 1, 3", "which 16-column block lands in this column of D")
    a("v_bfe_u32 v2, v0, 1, 2")
    a("v_lshlrev_b32 v2, 6, v2")
    a("v_lshl_add_u32 v2, v46, 4, v2")
    a("s_bitcmp1_b32 s2, 3")
    a("s_cbranch_scc1 L_fsetup")
    a("s_lshr_b32 s35, s39, 21")
    a("s_lshl_b32 s43, s35, 9")
    a("s_add_u32 s52, s43, 256")
    a("s_mov_b32 s53, 0")
    a("s_bfe_u32 s36, s39, 0x3000a")
    a("s_lshl_b32 s36, s36, 13")
    a("s_lshl_b32 s37, s35, 11")
    a("s_add_u32 s36, s36, s37")
    a("s_bfe_u32 s37, s39, 0x30007")
    a("s_lshl_b32 s37, s37, 8")
    a("s_add_u32 s36, s36, s37")
    a(f"s_add_u32 s36, s36, {WS_QP}")
    a("v_lshl_add_u32 v3, v45, 12, s36")
    a("s_mov_b32 s54, 0x00ff00ff")
    a("s_branch L_jobset")
    lab("L_fsetup")
    a("s_and_b32 s35, s38, 3")
    a("s_lshl_b32 s43, s35, 8")
    a("s_mov_b32 s52, s43")
    a("s_mov_b32 s53, 4")
    a("s_and_b32 s37, s29, 24")
    a("s_min_u32 s37, s37, 22")
    a("s_add_u32 s37, s37, s28")
    a("s_lshl_b32 s37, s37, 8")
    a("s_mul_i32 s36, s35, 7168")
    a("s_add_u32 s36, s36, s37")
    a(f"s_add_u32 s36, s36, {WS_FP}")
    a("v_bfe_u32 v3, v0, 3, 1")
    a("v_lshl_add_u32 v3, v45, 1, v3")
    a(f"v_mul_u32_u24 v3, {4*7168}, v3")
    a("v_add_u32 v3, s36, v3")
    a("s_mov_b32 s54, -1")
    lab("L_jobset")
    a("v_add_u32 v35, v2, v3", "publish address")
    a("s_mov_b32 s55, s54")
    a(f"v_mov_b32 v34, {L_Z - L_XN}")
    for hh in range(2):
        a(f"v_add_u32 v5, s{43 if hh == 0 else 52}, v4")
        if hh: a("v_subrev_u32 v47, s53, v47")
        for k in range(4): a(f"v_cmp_eq_u32 s[{44+2*k}:{45+2*k}], {k}, v47")
        a("s_nop 0")
        for k in range(4): a(f"v_cndmask_b32 v{36+4*hh+k}, v34, v5, s[{44+2*k}:{45+2*k}]", "xn fragment address, or the zero block" if k == 0 else None)
    if tt: a("s_memrealtime s[72:73]")
    if not lnfirst: a("s_barrier", "barrier 0")
    a("s_waitcnt vmcnt(1)")
    a("s_cmp_eq_u32 s67, 0", "these still have the counter store in flight")
    a("s_cbranch_scc1 L_xok")
    a("s_waitcnt vmcnt(0)")
    lab("L_xok")
    stamp(1)
    if tt: a("s_mov_b32 s89, s72")
    a(f"ds_write_b128 v1, v[8:11] offset:{L_XR}", "raw x for the residual")
    a(f"ds_write_b128 v1, v[12:15] offset:{L_XR+16}")
    for i in range(8):
        a(f"v_lshlrev_b32 v{16+2*i}, 16, v{8+i}")
        a(f"v_and_b32 v{17+2*i}, 0xffff0000, v{8+i}")
    def red32(v, t):
        a("s_nop 1")
        for r in (8, 4, 2, 1):
            a(f"v_add_f32_dpp {v}, {v}, {v} row_ror:{r} {DPP}")
            a("s_nop 1")
        a(f"v_mov_b32 {t}, {v}")
        a("s_nop 1")
        a(f"v_permlane16_swap_b32 {v}, {t}")
        a("s_nop 0")
        a(f"v_add_f32 {v}, {v}, {t}")
    a("v_add_f32 v6, v16, v17")
    for i in range(2, 16): a(f"v_add_f32 v6, v6, v{16+i}")
    red32("v6", "v7")
    a(f"v_mul_f32 v6, {f2u(1.0/512):#x}, v6", "mean")
    a("v_sub_f32 v32, v16, v6")
    a("v_mul_f32 v33, v32, v32")
    for i in range(1, 16):
        a(f"v_sub_f32 v32, v{16+i}, v6")
        a("v_fmac_f32 v33, v32, v32")
    red32("v33", "v7")
    a(f"v_mul_f32 v33, {f2u(1.0/512):#x}, v33", "variance")
    a("v_cvt_pk_bf16_f32 v6, v6, v33")
    a("v_and_b32 v33, 0xffff0000, v6")
    a("v_lshlrev_b32 v6, 16, v6")
    a(f"v_add_f32 v33, {f2u(1e-5):#x}, v33")
    a("v_cvt_pk_bf16_f32 v33, v33, v33")
    a("v_lshlrev_b32 v33, 16, v33")
    a("v_sqrt_f32 v33, v33")
    a("s_nop 0")
    a("v_cvt_pk_bf16_f32 v33, v33, v33")
    a("v_lshlrev_b32 v33, 16, v33")
    a("v_rcp_f32 v33, v33")
    for i in range(8):
        a(f"v_sub_f32 v{16+2*i}, v{16+2*i}, v6")
        a(f"v_sub_f32 v{17+2*i}, v{17+2*i}, v6")
        a(f"v_cvt_pk_bf16_f32 v{8+i}, v{16+2*i}, v{17+2*i}")
        a(f"v_lshlrev_b32 v{16+2*i}, 16, v{8+i}")
        a(f"v_and_b32 v{17+2*i}, 0xffff0000, v{8+i}")
        a(f"v_mul_f32 v{16+2*i}, v{16+2*i}, v33")
        a(f"v_mul_f32 v{17+2*i}, v{17+2*i}, v33")
        a(f"v_cvt_pk_bf16_f32 v{8+i}, v{16+2*i}, v{17+2*i}")
    a(f"ds_write_b128 v1, v[8:11] offset:{L_XN}")
    a(f"ds_write_b128 v1, v[12:15] offset:{L_XN+16}")
    a("s_waitcnt lgkmcnt(0)")
    a(f"s_add_u32 s33, s33, {PHI:#x}", "tag")
    tagregs()
    a("v_mov_b32 v32, s33")
    a("v_mov_b32 v33, 1")
    if lnfirst: a("s_barrier", "barrier 0")
    stamp(2)
    a("s_andn2_b32 s35, 0x8e, s2")
    a("s_cbranch_scc0 L_nojob")
    steps = [(ks, blk) for ks in range(8) for blk in range(4)]
    def rd(n):
        ks, blk = steps[n]
        o = (n % 4) * 8
        a(f"ds_read_b128 v[{48+o}:{51+o}], v{36 + 4*(ks>>2) + blk} offset:{L_XN + (ks&3)*64}")
        a(f"ds_read_b64_tr_b16 v[{52+o}:{53+o}], v44 offset:{L_W + ks*4096 + blk*32}")
        a(f"ds_read_b64_tr_b16 v[{54+o}:{55+o}], v44 offset:{L_W + ks*4096 + blk*32 + 512}")
    for n in range(3): rd(n)
    for n in range(32):
        if n + 3 < 32: rd(n + 3)
        a(f"s_waitcnt lgkmcnt({3 * min(3, 31 - n)})")
        o = (n % 4) * 8
        a(f"v_mfma_f32_16x16x32_bf16 v[8:11], v[{52+o}:{55+o}], v[{48+o}:{51+o}], {'0' if n == 0 else 'v[8:11]'}")
    a("s_nop 7")
    if rnd:
        for i in range(4): a(f"v_add_u32 v{8+i}, 0x80, v{8+i}", "round to the 24 bits a granule keeps" if i == 0 else None)
    for i in range(4): a(f"v_perm_b32 v{8+i}, v{8+i}, v32, s{60+i}")
    a("s_mov_b64 exec, s[54:55]")
    a("s_waitcnt vmcnt(0)")
    if "st" not in skip: a("global_store_dwordx4 v35, v[8:11], s[26:27] sc1")
    a("s_mov_b64 exec, -1")
    lab("L_nojob")
    stamp(3)
    scalar_part("s55", {"g": ("s38", 4)})
    if torder == "n":
        a(f"v_mul_u32_u24 v2, {(65536 + KP - 1) // KP}, v0")
        a("v_lshrrev_b32 v2, 16, v2")
        a(f"v_mul_u32_u24 v3, {KP}, v2")
        a("v_sub_u32 v3, v0, v3")
    else:
        a("v_and_b32 v2, 15, v0")
        a("v_lshrrev_b32 v3, 4, v0")
    a(f"v_add_u32 v3, {NS}, v3")
    a("v_mov_b32 v20, s55")
    lane_bits(20, 3, "n", 5)
    lane_bits(20, 2, "r", 4)
    a(f"s_mul_i32 s36, s38, {ctstride}")
    a(f"s_add_u32 s36, s36, {WS_CT}")
    a("s_add_u32 s68, s26, s36")
    a("s_addc_u32 s69, s27, 0")
    if pf:
        a("v_and_b32 v1, 31, v0")
        task()
        a("v_add_u32 v2, s36, v1")
        a("v_and_b32 v2, 31, v2")
        a("s_and_b32 s37, s29, 3")
        a("s_lshl2_add_u32 s36, s35, s37")
        a("s_lshl_b32 s36, s36, 17")
        a(f"s_add_u32 s36, s36, {WS_P2}")
        a("v_lshl_add_u32 v22, v1, 12, s36")
        a("v_lshl_add_u32 v22, v2, 7, v22")
        if pf1:
            a("v_bfe_u32 v1, v0, 1, 4")
            a("v_and_b32 v2, 1, v0")
            a("s_lshl_b32 s36, s38, 16")
            a("s_lshl_b32 s37, s32, 8")
            a("s_add_u32 s36, s36, s37")
            a(f"s_add_u32 s36, s36, {WS_P1}")
            a("v_lshl_add_u32 v3, v1, 12, s36")
            a("v_lshl_add_u32 v3, v2, 7, v3")
            a("v_cmp_lt_u32 vcc, 31, v0")
            a("s_nop 1")
            a("v_cndmask_b32 v22, v22, v3, vcc")
    a("v_mov_b32 v6, -1")
    a("v_mov_b32 v7, -1")
    a("v_lshlrev_b32 v21, 3, v0")
    a(f"ds_write_b64 v21, v[6:7] offset:{L_TK}")
    a("s_lshl_b32 s36, s30, 13")
    a("s_lshl_b32 s37, s31, 12")
    a("s_add_u32 s36, s36, s37")
    a(f"s_add_u32 s36, s36, {WS_QP}")
    a("v_lshl_add_u32 v1, v0, 4, s36")
    a("s_mul_i32 s36, s34, 56")
    a("s_andn2_b32 s36, s36, 15")
    a(f"s_mul_i32 s37, s31, {8*7168}")
    a("s_add_u32 s36, s36, s37")
    a(f"s_add_u32 s36, s36, {WS_FP}")
    a("v_lshrrev_b32 v2, 5, v0")
    a("v_bfe_u32 v3, v0, 2, 2")
    a("v_lshl_add_u32 v2, v2, 2, v3")
    a("v_mul_u32_u24 v2, 7168, v2")
    a("v_and_b32 v3, 3, v0")
    a("v_lshl_add_u32 v2, v3, 4, v2")
    a("v_add_u32 v2, s36, v2")
    if pq is not None:
        note("reads that race with the other workgroups' stores stall this CU's stream: start when an S wave asks")
        a("v_and_b32 v5, 12, v0")
        a(f"s_mov_b32 s40, {spin * 8}")
        lab("L_go")
        a(f"ds_read_b32 v6, v5 offset:{L_GO}")
        a("s_waitcnt lgkmcnt(0)")
        a("v_cmp_ne_u32 vcc, 0, v6")
        a("s_cbranch_vccnz L_go_done")
        a("s_sleep 1")
        a("s_sub_u32 s40, s40, 1")
        a("s_cbranch_scc0 L_go")
        lab("L_go_done")
    a(f"s_mov_b32 s40, {0 if 'wait' in skip else spin}")
    if qdelay: a(f"s_sleep {qdelay}")
    stamp(7)
    lab("L_qpoll")
    if "ld" not in skip:
        for i in range(4): a(f"global_load_dwordx4 v[{48+4*i}:{51+4*i}], v1, s[26:27] offset:{i*1024} sc1")
        if merge: a("global_load_dwordx4 v[8:11], v2, s[26:27] sc1")
    a("s_waitcnt vmcnt(0)")
    check([48, 52, 56, 60] + ([8] if merge else []), 6)
    pollend("L_qpoll")
    for i in range(16): a(f"v_and_b32 v{48+i}, 0xffffff00, v{48+i}")
    for i in range(8): a(f"v_add_f32 v{48+i}, v{48+i}, v{56+i}")
    for i in range(4): a(f"v_cvt_pk_bf16_f32 v{48+i}, v{48+2*i}, v{49+2*i}")
    a("v_mov_b32 v6, 0")
    a(f"ds_write_b64 v21, v[48:49] offset:{L_Q}")
    a(f"ds_write_b64 v21, v[50:51] offset:{L_Q+512}")
    a("s_waitcnt lgkmcnt(0)")
    a(f"ds_write_b64 v6, v[32:33] offset:{L_TAG}", "{tag, ready}")
    stamp(5)
    a("s_setprio 0")
    if not merge:
        a(f"s_mov_b32 s40, {0 if 'wait' in skip else spin}")
        lab("L_hpoll")
        if "ld" not in skip: a("global_load_dwordx4 v[8:11], v2, s[26:27] sc1")
        a("s_waitcnt vmcnt(0)")
        check([8], 5)
        pollend("L_hpoll")
    for i in range(4): a(f"v_and_b32 v{8+i}, 0xffffff00, v{8+i}")
    for r in (4, 8):
        for i in range(4): a(f"v_add_f32_dpp v{8+i}, v{8+i}, v{8+i} row_ror:{r} {DPP}")
    a("v_cvt_pk_bf16_f32 v8, v8, v9")
    a("v_cvt_pk_bf16_f32 v9, v10, v11")
    a("v_mov_b32 v10, v8")
    a("v_mov_b32 v11, v9")
    a("s_nop 1")
    a("v_permlane32_swap_b32 v8, v10", "v8,v9 = gate pairs, v10,v11 = up pairs")
    a("v_permlane32_swap_b32 v9, v11")
    for p in range(2):
        a(f"v_lshlrev_b32 v12, 16, v{8+p}")
        a(f"v_and_b32 v13, 0xffff0000, v{8+p}")
        a(f"v_lshlrev_b32 v14, 16, v{10+p}")
        a(f"v_and_b32 v15, 0xffff0000, v{10+p}")
        a("v_max_f32 v12, 0, v12")
        a("v_max_f32 v13, 0, v13")
        a("v_mul_f32 v12, v12, v14")
        a("v_mul_f32 v13, v13, v15")
        a(f"v_cvt_pk_bf16_f32 v{16+p}, v12, v13")
    a("v_lshlrev_b32 v3, 3, v3")
    a(f"ds_write_b64 v3, v[16:17] offset:{L_H}")
    a("s_bitcmp1_b32 s34, 0", "the 16-column window holds one pair of the neighbour's rows: clear it")
    a("s_cselect_b32 s36, 0, 28")
    a("v_mov_b32 v3, s36")
    a(f"ds_write_b32 v3, v6 offset:{L_H}")
    stamp(6)
    a("s_mov_b32 s41, 0")
    a(f"v_mov_b32 v5, {L_TK}")
    a(f"s_mov_b32 s40, {spin * 8}")
    a(f"s_setprio {xprio}")
    align("i")
    lab("L_disp")
    a(f"ds_read_b128 v[8:11], v6 offset:{L_REQ}")
    a("s_sub_u32 s40, s40, 1")
    a("s_cbranch_scc1 L_disp_done")
    a("s_waitcnt lgkmcnt(0)")
    if reqfn == "med":
        a("v_min_u32 v12, v8, v9")
        a("v_max_u32 v8, v8, v9")
        a("v_min_u32 v13, v10, v11")
        a("v_max_u32 v10, v10, v11")
        a("v_max_u32 v12, v12, v13")
        a("v_min3_u32 v8, v8, v10, v12")
    else:
        a(f"v_{reqfn}3_u32 v8, v8, v9, v10")
        a(f"v_{reqfn}_u32 v8, v8, v11")
    a("v_cmp_lt_u32 vcc, s41, v8")
    a("s_cbranch_vccnz L_serve")
    a(f"s_sleep {xsleep}")
    a("s_branch L_disp")
    lab("L_serve")
    if tt:
        a("s_memrealtime s[72:73]")
        a("s_waitcnt lgkmcnt(0)")
    if vat:
        a("s_mov_b64 exec, 1")
        a("global_atomic_add v12, v6, v33, s[68:69] sc0")
        a("s_mov_b64 exec, -1")
        a("s_add_u32 s41, s41, 1")
        a("s_waitcnt vmcnt(0)")
        a("v_readfirstlane_b32 s67, v12")
        a("s_nop 3")
    else:
        a("s_mov_b32 s67, 1")
        a("s_atomic_add s67, s[68:69], 0 glc")
        a("s_add_u32 s41, s41, 1")
        a("s_waitcnt lgkmcnt(0)")
    if tt:
        a("s_memrealtime s[70:71]")
        a("s_waitcnt lgkmcnt(0)")
        a("s_sub_u32 s70, s70, s72")
        a("s_max_u32 s92, s92, s70")
        a("s_add_u32 s93, s93, s70")
        a("s_mov_b32 s94, s41")
    a("v_readlane_b32 s36, v20, s67")
    if r0:
        a(f"s_cmp_lt_u32 s67, {POOL + r0}")
        a("s_cselect_b32 s37, -3, -2")
        a(f"s_cmp_lt_u32 s67, {POOL}")
        a("s_cselect_b32 s36, s36, s37")
    else:
        a(f"s_cmp_lt_u32 s67, {POOL}")
        a("s_nop 0")
        a("s_cselect_b32 s36, s36, -2")
    a("v_mov_b32 v7, s36")
    a("ds_write_b32 v5, v7")
    a("v_add_u32 v5, 4, v5")
    a("s_cbranch_scc1 L_disp")
    lab("L_disp_done")
    def prefetch():
        if not pf1: a("s_mov_b32 exec_hi, 0")
        a(f"global_load_dword v23, v22, s[26:27] {pfflags}", "pull a quarter of the lines the final task polls (result unused)")
    if pf and pfat == "fail": prefetch()
    a("s_waitcnt lgkmcnt(0)")
    a("s_barrier")
    for i in range(xb if pre2 else 0): a("s_barrier")
    if pf and pfat == "late":
        a("s_barrier")
        prefetch()
    dump_stamps("X")
    a("s_endpgm")

    L = [HEADER.rstrip("\n"), f"; @launch grid=(256,1,1) block=(384,1,1) lds={L_END}", DOC,
         '.amdgcn_target "amdgcn-amd-amdhsa--gfx950"', ".text", f".globl {KN}", ".p2align 8", f".type {KN},@function"]
    for name in "E X1 S W X2".split(): L.extend(SEC[name])
    L.append("L_codeend:")
    L += ['.section .rodata,"a"', ".p2align 6", f".amdhsa_kernel {KN}",
          f"  .amdhsa_next_free_vgpr {NV}", "  .amdhsa_next_free_sgpr 102", f"  .amdhsa_accum_offset {NV}",
          "  .amdhsa_group_segment_fixed_size 0", "  .amdhsa_kernarg_size 96", "  .amdhsa_user_sgpr_count 2",
          "  .amdhsa_user_sgpr_kernarg_segment_ptr 1", "  .amdhsa_system_sgpr_workgroup_id_x 1",
          "  .amdhsa_float_denorm_mode_32 3", ".end_amdhsa_kernel"]
    if tune8: L = align_runs("\n".join(L).split("\n"))
    return "\n".join(L) + "\n"

WIDEN = ("v_mov_b32", "v_add_f32", "v_sub_f32", "v_mul_f32", "v_max_f32", "v_exp_f32", "v_rcp_f32", "v_log_f32", "v_and_b32", "v_xor_b32",
         "v_lshlrev_b32", "v_lshrrev_b32", "v_add_u32", "v_fmac_f32", "v_sqrt_f32", "v_min_u32", "v_or_b32")

def sizes_of(lines):
    import subprocess, re
    out = subprocess.run(["llvm-mc", "-triple=amdgcn-amd-amdhsa", "-mcpu=gfx950", "-show-encoding"],
                         input="\n".join(lines) + "\n", capture_output=True, text=True, check=True).stdout
    return [m.count(",") + 1 for m in re.findall(r"; encoding: \[(.*?)\]", out)]

def align_runs(lines):
    isins = [l.startswith("    ") and not l.strip().startswith(";") for l in lines]
    sz = iter(sizes_of(lines))
    size = [next(sz) if f else 0 for f in isins]
    out, osz, addr, active = [], [], 0, False
    for i, l in enumerate(lines):
        if l.startswith(".p2align"):
            k = 1 << int(l.split()[1]); addr = (addr + k - 1) // k * k
        elif l.startswith(".fill"):
            addr += 4 * int(l.split()[1].rstrip(","))
        elif l.startswith("L_xwave"):
            active = True
        if isins[i] and active and size[i] == 8 and addr % 8 == 4 and (not osz or osz[-1] != 8):
            run, j = 0, i
            while j < len(lines) and (size[j] == 8 or not isins[j]) and not lines[j].startswith("."):
                run += size[j] == 8 and "mfma" not in lines[j]; j += 1
            if run >= 3:
                j = len(out) - 1
                while j >= 0 and osz[j] in (0, 4) and not out[j].startswith("."):
                    op = out[j].split()[0] if osz[j] else ""
                    if op in WIDEN:
                        out[j] = out[j].replace(op + " ", op + "_e64 ", 1).replace("    ;", ";", 1); osz[j] = 8; addr += 4
                        break
                    if op == "s_nop" and int(out[j].split()[1]) > 0:
                        out[j] = f"    s_nop {int(out[j].split()[1]) - 1}"
                        out.insert(j, "    s_nop 0"); osz.insert(j, 4); addr += 4
                        break
                    j -= 1
                if addr % 8 == 4 and run >= 6:
                    out.append("    s_nop 0"); osz.append(4); addr += 4
        out.append(l); osz.append(size[i]); addr += size[i]
    return out

if __name__ == "__main__":
    import json
    cfg = json.loads(sys.argv[1]) if len(sys.argv) > 1 else {}
    sys.stdout.write(gen(**cfg))
```

```python
import struct, sys, math

KN = "recurrent_scan__gqa_block_cached__glu_gated_reglu__decode_kernel"
HEADER = open("recurrent_scan__gqa_block_cached__glu_gated_reglu__decode.s.ref").read().split("; @launch")[0]

def f2u(x):
    return struct.unpack("<I", struct.pack("<f", x))[0]

WS_EPOCH = 0
WS_QP = 0x10000
WS_FP = 0x40000
WS_CT = 0x80000
WS_P1 = 0x100000
WS_P2 = 0x180000
WS_TS = 0x400000
WS_TT = 0x500000
L_W = 0
L_SC = 0
L_XN = 32768
L_XR = 34816
L_Q = 36864
L_Z = 37888
L_TAG = 38144
L_GO = 38160
L_REQ = 38176
L_H = 38400
L_ST = 38464
L_OB = 38592
L_TK = 38720
L_O = 39424
L_END = 47616
PHI = 0x9E3779B9

ROLES = [('X', slice(0, 1)), ('S', slice(1, 5))]

DOC = """;
; Hand-offs carry a tag = (first word of d_ws at entry) + constant; the word is advanced at the end of the launch."""

def gen(NA=28, NS=29, WS="4444", WP="4444", WM="4555", NP=8, nA=4, pq=4, pf=True, own=True, vat=False, tune8=True,
        kvflags="nt", wflags="nt", woflags="", pmap="w0 w1 n0^r3^g0 n2^r0 n1 n3^r1 n4 r0 r1 r2 r3", i1bit=15, ctstride=1280,
        lite=False, ts=False, spin=1 << 20, probe=None):
    RH = 4
    POOL = 16 * (32 - NS)
    assert 0 < POOL <= 64 and NA % RH == 0 and NA >= 3 * RH and NS >= NA + 1 and int(WM[0]) <= 4
    SEC = {}
    cur = [None]
    def section(name): cur[0] = SEC.setdefault(name, [])
    if probe is not None or lite: ts = True
    tt = ts and probe is None and not lite
    def a(s, c=None): cur[0].append("    " + (s.rstrip() if c is None else f"{s:<72}; {c}"))
    def lab(s): cur[0].append(s + ":")
    def note(s): cur[0].append("    ; " + s)
    def align(): cur[0].append(".p2align 6")
    skn = [0]
    def guarded(f):
        skn[0] += 1
        n = skn[0]
        a(f"s_cbranch_execz L_g{n}")
        f()
        lab(f"L_g{n}")
    def guard(lines): guarded(lambda: [a(x) for x in lines])
    def stamp(idx):
        if probe is not None and idx not in (probe[1], probe[4]): return
        if ts and (not lite or idx == 8):
            a("s_waitcnt lgkmcnt(0)")
            a("s_memrealtime s[70:71]")
            a("s_waitcnt lgkmcnt(0)")
            a(f"s_mov_b32 s{80+idx}, s70")
    def zero_stamps():
        if lite: a("s_mov_b32 s80, s70")
        elif ts:
            a("s_mov_b32 s80, s70")
            for i in range(1, 16): a(f"s_mov_b32 s{80+i}, 0")
    def tstamp():
        if tt:
            a("s_memrealtime s[70:71]")
            a("s_add_u32 s79, s79, 1")
            a("s_lshr_b32 m0, s79, 1")
            a("s_waitcnt lgkmcnt(0)")
            a("v_writelane_b32 v13, s70, m0")
    def dump_stamps(role):
        if probe is not None:
            if role != probe[0]: return
            def hold(name):
                lab(name)
                a("s_memrealtime s[70:71]")
                a("s_waitcnt lgkmcnt(0)")
                a("s_sub_u32 s73, s70, s72")
                a("s_cmp_lt_i32 s73, 0")
                a(f"s_cbranch_scc1 {name}")
            a("s_add_u32 s72, s80, 5000")
            hold("L_h0")
            a(f"s_sub_u32 s72, s{80+probe[1]}, s{80+probe[4]}")
            a("s_mov_b64 exec, 1")
            a("v_mov_b32 v1, 0")
            a("v_mov_b32 v2, s72")
            if probe[2] == "mean":
                a("global_atomic_add v1, v2, s[24:25]")
            else:
                a(f"s_and_b32 s72, s{80+probe[4]}, 0xfffff")
                a("v_mov_b32 v2, s72")
                a("global_atomic_add v1, v2, s[24:25]" if probe[2] == "maxmean" else "global_atomic_umax v1, v2, s[24:25]")
                a(f"s_and_b32 s72, s{80+probe[1]}, 0xfffff")
                a("v_mov_b32 v3, s72")
                a("global_atomic_umax v1, v3, s[24:25] offset:128")
            a("s_lshl2_add_u32 s73, s2, s42")
            a("s_cmp_lg_u32 s73, 16")
            a("s_cbranch_scc1 L_pe")
            a("s_add_u32 s72, s80, 9000")
            hold("L_h1")
            a("global_load_dword v2, v1, s[24:25] sc1")
            a("global_load_dword v3, v1, s[24:25] offset:128 sc1")
            a("s_waitcnt vmcnt(0)")
            a("v_readfirstlane_b32 s72, v2")
            a("v_readfirstlane_b32 s73, v3")
            a("s_nop 3")
            a("s_lshr_b32 s72, s72, 6" if probe[2] != "maxmax" else "s_lshl_b32 s72, s72, 4")
            if probe[2] != "mean":
                a("s_lshl_b32 s73, s73, 4")
                a("s_sub_u32 s72, s73, s72")
                a("s_min_u32 s72, s72, 200000")
            a("s_add_u32 s72, s72, s80")
            a("s_add_u32 s72, s72, 10000")
            hold("L_h2")
            lab("L_pe")
        elif ts and not (lite and role == "X"):
            a("s_mov_b64 exec, 1")
            a("s_mul_i32 s70, s2, 5")
            a("s_add_u32 s70, s70, s3")
            a("s_lshl_b32 s70, s70, 6")
            a(f"s_add_u32 s70, s70, {WS_TS}")
            a("v_mov_b32 v1, s70")
            a("s_getreg_b32 s95, hwreg(HW_REG_XCC_ID)")
            for q in range(4):
                for i in range(4): a(f"v_mov_b32 v{4+i}, s{80+q*4+i}")
                a(f"global_store_dwordx4 v1, v[4:7], s[26:27] offset:{q*16}")
                a("s_nop 1")
    OUT = "L_end" if (lite or not ts) else "L_sexit"
    def pollend(name):
        a(f"s_cbranch_vccz {name}_done")
        a("s_sub_u32 s40, s40, 1")
        a(f"s_cbranch_scc0 {name}")
        lab(f"{name}_done")
    def ldswait(name, read, cmp_stay):
        a(f"s_mov_b32 s40, {spin * 8}")
        lab(name)
        a(read)
        a("s_waitcnt lgkmcnt(0)")
        a(cmp_stay)
        a(f"s_cbranch_vccnz {name}_done")
        a("s_sleep 1")
        a("s_sub_u32 s40, s40, 1")
        a(f"s_cbranch_scc0 {name}")
        lab(f"{name}_done")

    VB, VSW, VSR = 11, 12, 16
    VKO, VVO, VM, VL, VM0, VM1 = 18, 19, 20, 21, 22, 23
    VA, VQ, VO, VS, VR = 24, 32, 36, 44, 60
    VT = VR + 32 * RH
    (T_OW, T_SW, T_OR, T_SR, T_P1S, T_P1L, T_OBW, T_P2S, T_WO, T_H, T_F0, T_F1, T_XO, T_X, T_D, T_OBR, T_FW, T_FR,
     T_OWW, T_OWR, T_SH, T_SEL, T_TGL, T_TGG) = range(VT, VT + 24)
    NV = VT + 28
    RD, RW = VR + 64, VR + 80
    PD, PW = VR, VR + 16
    VP2 = VR + 112
    DPP = "row_mask:0xf bank_mask:0xf"
    def decode():
        a("s_and_b32 s28, s2, 7", "x = row block of the tail")
        a("s_lshr_b32 s29, s2, 3", "j; bit 0 = column half of the tail")
        a("s_bfe_u32 s30, s2, 0x30004", "kv head")
        a("s_lshr_b32 s31, s2, 7", "batch row")
        a("s_and_b32 s32, s2, 15", "split")
        a("s_lshl3_add_u32 s34, s30, s28", "idx = 8 head + x")
        a("s_lshr_b32 s38, s2, 4", "group")
    def srds():
        a("s_mov_b64 s[44:45], s[6:7]", "K"); a("s_brev_b32 s46, 16"); a("s_mov_b32 s47, 0x20000")
        a("s_mov_b64 s[48:49], s[8:9]", "V"); a("s_brev_b32 s50, 16"); a("s_mov_b32 s51, 0x20000")
        a("s_mov_b64 s[72:73], s[6:7]", "K or V"); a("s_brev_b32 s74, 16"); a("s_mov_b32 s75, 0x20000")
    def task():
        a("s_lshr_b32 s35, s28, 1", "final task: (batch row, column half) = x>>1, line 8(x&1) + (j>>2) of that half")
        a("s_and_b32 s36, s28, 1")
        a("s_lshr_b32 s37, s29, 2")
        a("s_lshl3_add_u32 s36, s36, s37")
    pm = [set(x.split("^")) for x in pmap.split()]
    PB = [b for b in range(11, 23) if b != i1bit]
    assert len(pm) == 11 and i1bit != 11
    def mask_of(sym): return sum(1 << PB[p] for p in range(11) if sym in pm[p])
    def scalar_part(dst, srcs, base=True):
        a(f"s_lshl_b32 {dst}, s38, 23" if base else f"s_mov_b32 {dst}, 0")
        for pre, (reg, nb) in srcs.items():
            masks = [mask_of(f"{pre}{i}") for i in range(nb)]
            if masks[0] and all(masks[i] == masks[0] << i for i in range(nb)) and bin(masks[0]).count("1") == 1:
                a(f"s_lshl_b32 s35, {reg}, {masks[0].bit_length()-1}")
                a(f"s_xor_b32 {dst}, {dst}, s35")
                continue
            for i in range(nb):
                if masks[i]:
                    a(f"s_bfe_i32 s35, {reg}, {0x10000 + i:#x}")
                    a(f"s_and_b32 s35, s35, {masks[i]:#x}")
                    a(f"s_xor_b32 {dst}, {dst}, s35")
    def lane_bits(vdst, vsrc, pre, nb):
        for i in range(nb):
            a(f"v_bfe_i32 v7, v{vsrc}, {i}, 1")
            a(f"v_and_b32 v7, {mask_of(pre + str(i)):#x}, v7")
            a(f"v_xor_b32 v{vdst}, v{vdst}, v7")
    def nconst(n):
        c = 0
        for i in range(5):
            if n >> i & 1: c ^= mask_of(f"n{i}")
        return c
    def issue(reg, voff, srd, pat, down=False, ks=range(4)):
        last = max(k for k in range(4) if pat[k] != "-")
        assert pat[0] != "-" and (int(pat[last]) + 4 - last <= 8 or pat == f"{NP}---")
        for k, u in enumerate((2, 0, 3, 1) if down else (0, 2, 1, 3)):
            if k not in ks: continue
            if k: a(f"s_bitset{u >> 1}_b32 s52, {i1bit}")
            if pat[k] != "-": a(f"s_waitcnt vmcnt({pat[k]})")
            a(f"buffer_load_dwordx4 v[{reg+4*u}:{reg+4*u+3}], v{voff}, {srd}, s52 offen offset:{(u&1)*1024} {kvflags}")
        if 3 in ks: tstamp()
    PERM = [2, 0, 3, 1]
    def preg(n): return VR + 16 * (RH + n if n < RH else PERM[n % RH])

    section("E")
    lab(KN)
    a("s_load_dwordx16 s[4:19], s[0:1], 0", "s[4:5]=x s[6:7]=K s[8:9]=V s[12:13]=wo")
    a("s_load_dwordx8 s[20:27], s[0:1], 64", "s[20:21]=W_down s[22:23]=out s[26:27]=ws")
    if ts: a("s_memrealtime s[70:71]")
    a("v_lshrrev_b32 v1, 6, v0")
    a("s_cmpk_ge_u32 s2, 256")
    a("s_cbranch_scc1 L_end")
    a("v_readfirstlane_b32 s3, v1", "wave")
    a("v_and_b32 v0, 63, v0", "lane")
    a("s_mul_i32 s39, s2, 0x200408", "wq tile as a byte offset: bits 7..12 column block, bit 21 k-half")
    a("s_and_b32 s39, s39, 0x201f80")
    assert len({(w * 0x200408) & 0x201f80 for w in range(256) if not w & 8}) == 128
    a("s_sub_u32 s42, s3, 1", "w")
    a("s_cbranch_scc1 L_xwave")
    a("s_cmp_eq_u32 s3, 5")
    a("s_cbranch_scc1 L_wwave")
    a("s_lshl_b32 s36, s42, 19", "wg bit 3 clear: wq tile, wave w loads rows 64w..")
    a("s_or_b32 s36, s36, s39")
    a("s_movk_i32 s37, 8192")
    a("s_mov_b32 s35, 24")
    a("s_bitcmp0_b32 s2, 3")
    a("s_cbranch_scc1 L_job")
    a("s_andn2_b32 s35, 0x86, s2", "wg bit 3 set: gate (waves 0,1) / up (waves 2,3) tile; 16 workgroups have none")
    a("s_cbranch_scc0 L_srest")
    a("s_lshr_b32 s36, s2, 3")
    a("s_and_b32 s37, s36, 24")
    a("s_min_u32 s37, s37, 22")
    a("s_and_b32 s35, s2, 7")
    a("s_add_u32 s37, s37, s35", "column block")
    a("s_and_b32 s36, s36, 6")
    a("s_and_b32 s35, s42, 1")
    a("s_or_b32 s36, s36, s35", "64-row block")
    a("s_mulk_i32 s36, 1792")
    a("s_add_u32 s36, s36, s37")
    a("s_lshl_b32 s36, s36, 7")
    a("s_movk_i32 s37, 3584")
    a("s_lshr_b32 s35, s42, 1")
    a("s_lshl3_add_u32 s35, s35, 48")
    lab("L_job")
    a("s_load_dwordx2 s[40:41], s[0:1], s35", "wq, W_gate or W_up")
    a("v_lshrrev_b32 v2, 3, v0")
    a("v_and_b32 v3, 7, v0")
    a("v_mul_u32_u24 v2, s37, v2")
    a("v_lshl_add_u32 v2, v3, 4, v2")
    a("v_add_u32 v2, s36, v2")
    a("s_lshl_b32 m0, s42, 13")
    a("s_lshl_b32 s37, s37, 3")
    a("s_lshl_b32 s36, s3, 13")
    a("s_waitcnt lgkmcnt(0)")
    lab("L_wdma")
    a(f"global_load_lds_dwordx4 v2, s[40:41] {wflags}")
    a("s_addk_i32 m0, 1024")
    a("v_add_u32 v2, s37, v2")
    a("s_cmp_lg_u32 m0, s36")
    a("s_cbranch_scc1 L_wdma")
    a("s_branch L_srest")

    section("X1")
    cur[0].append(".p2align 8")
    lab("L_xwave")
    a("v_lshlrev_b32 v1, 5, v0")
    a("v_mov_b32 v6, 0")
    a("v_mov_b32 v7, 0")
    a("v_lshlrev_b32 v5, 3, v0")
    a(f"ds_write_b64 v5, v[6:7] offset:{L_Z}", "zero block + flags")
    a("s_waitcnt lgkmcnt(0)")
    a("global_load_dwordx4 v[8:11], v1, s[4:5]")
    a("global_load_dwordx4 v[12:15], v1, s[4:5] offset:16")
    a("s_load_dword s33, s[26:27], 0", "epoch")
    a("s_setprio 2")
    zero_stamps()
    decode()
    a("s_and_b32 s67, s39, 0x200300")
    a("s_and_b32 s36, s2, 8")
    a("s_or_b32 s67, s67, s36")
    a("s_cbranch_scc1 L_x2")
    a("s_bfe_u32 s36, s39, 0x3000a")
    a("s_bfe_u32 s37, s39, 0x10007")
    a("s_lshl3_add_u32 s36, s37, s36")
    a(f"s_mul_i32 s36, s36, {ctstride}")
    a(f"s_add_u32 s36, s36, {WS_CT}")
    a("v_lshl_add_u32 v5, v0, 2, s36")
    a("global_store_dword v5, v6, s[26:27] sc1")
    a("s_branch L_x2")

    section("W")
    align()
    lab("L_wwave")
    a("s_waitcnt lgkmcnt(0)")
    a("s_barrier", "barrier 0")
    srds()
    for r in [VKO, VVO, VB, T_P1S, T_P1L, T_P2S, T_WO, T_F0, T_F1, T_XO, T_D]: a(f"v_mov_b32 v{r}, 0")
    a("s_mov_b64 exec, 0")
    for r in (42, 41, 29, 76, 77, 54): a(f"s_mov_b32 s{r}, 0")
    a("s_mov_b64 s[96:97], 0")
    a("s_mov_b64 s[98:99], 0")
    a("s_branch L_kpre")

    section("S")
    align()
    lab("L_srest")
    a("s_waitcnt lgkmcnt(0)")
    zero_stamps()
    if tt:
        a("v_mov_b32 v13, 0")
        a("s_mov_b32 s79, 1")
    stamp(9)
    decode()
    srds()
    scalar_part("s66", {"w": ("s42", 2), "r": ("s32", 4), "g": ("s38", 4)})
    a("v_lshrrev_b32 v2, 4, v0")
    a("v_and_b32 v3, 3, v0")
    a("v_bfe_u32 v4, v0, 2, 2")
    a("v_lshlrev_b32 v5, 8, v4")
    a("v_lshl_add_u32 v5, v2, 6, v5")
    a(f"v_lshl_add_u32 v{VKO}, v3, 4, v5", "K lane offset: key (lane>>2)&3, 16-B chunk 4(lane>>4) + (lane&3)")
    a("s_mov_b32 s52, s66")
    issue(preg(0), VKO, "s[44:47]", f"{NP}---")
    a(f"v_lshlrev_b32 v{VVO}, 4, v0", "V lane offset")
    a("v_mov_b32 v10, s66", "v10[n] = offset of this wave's tile n")
    lane_bits(10, 0, "n", 5)
    scalar_part("s55", {"w": ("s42", 2)}, base=False)
    a("s_lshl_b32 s36, s42, 2")
    a("v_mov_b32 v14, s36", "flag slot")
    a("v_mov_b32 v6, 0xffff")
    a("v_mov_b32 v7, 0xffff0000")
    a("v_and_b32 v8, 1, v0")
    a("v_cmp_eq_u32 vcc, 1, v8")
    a(f"v_lshlrev_b32 v{T_SH}, 4, v8")
    a("v_and_b32 v8, 2, v0")
    a("v_cndmask_b32 v6, v6, v7, vcc")
    a("v_cmp_eq_u32 vcc, 2, v8")
    a(f"v_mov_b32 v{VM}, {f2u(-3.0e38):#x}")
    a(f"v_mov_b32 v{VL}, 0")
    a(f"v_cndmask_b32 v{VM1}, 0, v6, vcc", "P.V selector masks: bf16 slot lane&3 of the A fragment")
    a(f"v_xor_b32 v{VM0}, v{VM1}, v6")
    for i in range(8): a(f"v_mov_b32 v{VO+i}, 0")
    a(f"s_mov_b32 s53, {f2u(math.log2(math.e)):#x}", "log2(e)")
    a(f"s_mov_b32 s43, {f2u(128.0 ** -0.5):#x}", "1/sqrt(128)")
    a("s_mov_b32 s67, 0xffff0000")
    a("s_mov_b32 s54, 1", "cleared for the last tile")
    a(f"s_mov_b32 s41, {2 * RH}", "next tile to issue")
    a(f"s_mov_b32 s76, {NA // RH - 3}")
    a(f"s_mov_b32 s77, {NA // RH - 1}")
    a("s_mov_b64 s[96:97], -1", "EXEC: all lanes")
    a("s_mov_b32 s98, 0x11111111", "EXEC: lane 0 of every quad")
    a("s_mov_b32 s99, 0x11111111")
    a(f"v_mov_b32 v{VB}, v{VKO}")
    a(f"s_mul_i32 s36, s42, {NA * 256}")
    a(f"v_lshl_add_u32 v{VSR}, v0, 2, s36")
    a(f"v_and_b32 v{VSW}, -16, v{VSR}")
    a(f"v_lshlrev_b32 v{T_TGL}, 3, v3", "8(lane&3), 8g: become tag >> that once the tag is known")
    a(f"v_lshlrev_b32 v{T_TGG}, 3, v2")
    a("v_and_b32 v8, 16, v0")
    a("v_mov_b32 v6, 0x0c0c0400")
    a(f"v_alignbit_b32 v{T_SEL}, v6, v6, v8", "byte selector: two low bytes -> low (even row) or high half (odd row)")
    a("s_lshl_b32 s35, s42, 11")
    a(f"v_lshl_add_u32 v{T_OW}, v0, 5, s35")
    a("s_lshl_b32 s36, s42, 3")
    a(f"v_lshl_add_u32 v{T_SW}, v4, 5, s36")
    a("v_and_b32 v1, 31, v0")
    a("s_lshl_b32 s35, s42, 9")
    a(f"v_lshl_add_u32 v{T_OR}, v1, 4, s35", "head w, 4 values per lane; also granule 32w + lane of hand-off 1")
    a("s_lshl_b32 s36, s42, 5")
    a(f"v_mov_b32 v{T_SR}, s36")
    a(f"v_lshl_add_u32 v{T_OBW}, v2, 3, s36")
    a("s_lshl_b32 s35, s2, 11")
    a(f"s_add_u32 s35, s35, {WS_P1}")
    a(f"v_add_u32 v{T_P1S}, s35, v{T_OR}")
    a("s_lshl_b32 s36, s28, 8")
    a("s_lshl_b32 s37, s42, 6")
    a("s_add_u32 s36, s36, s37")
    a(f"v_lshl_add_u32 v{T_OWR}, v2, 4, s36", "granule 16x + 4w + g")
    a("v_and_b32 v5, 15, v0")
    a("s_lshl_b32 s36, s38, 15")
    a(f"s_add_u32 s36, s36, {WS_P1}")
    a(f"v_lshl_add_u32 v{T_P1L}, v5, 11, s36")
    a(f"v_add_u32 v{T_P1L}, v{T_P1L}, v{T_OWR}", "... of group member lane&15")
    a("s_lshl_b32 s100, 0x10001, s32", "EXEC: every lane but this workgroup's own block")
    a("s_not_b32 s100, s100")
    a("s_mov_b32 s101, s100")
    a("v_and_b32 v5, 7, v0", "c")
    a("v_lshrrev_b32 v3, 3, v0", "row group")
    a("s_lshl_b32 s36, s42, 2")
    a("s_add_u32 s36, s36, s34")
    a("s_lshl_b32 s36, s36, 3")
    a("v_lshl_add_u32 v1, v5, 2, v2")
    a("v_add_u32 v1, s36, v1")
    a("v_and_b32 v1, 127, v1")
    a("s_and_b32 s35, s29, 1")
    a("s_lshl1_add_u32 s36, s31, s35")
    a("s_lshl_b32 s36, s36, 6")
    a("s_add_u32 s36, s36, s34")
    a("s_lshl_b32 s36, s36, 11")
    a(f"s_add_u32 s36, s36, {WS_P2}")
    a(f"v_lshl_add_u32 v{T_P2S}, v1, 4, s36", "P2 + ((2b + half)*64 + idx)*2048 + ((32w + 4c + g + 8idx) & 127)*16")
    a("s_lshl2_add_u32 s36, s35, s42")
    a("s_lshl_b32 s36, s36, 7")
    a("v_lshl_add_u32 v1, v5, 4, s36", "columns 256 half + 64w + 8c..")
    a("s_lshl_b32 s36, s34, 16")
    a("s_add_u32 s36, s36, 4096")
    a("v_lshl_add_u32 v6, v3, 13, s36")
    a(f"v_add_u32 v{T_WO}, v1, v6", "wo rows 64 idx + 8 rg + i")
    a(f"s_mul_i32 s36, s34, {28*1024}")
    a("v_min_u32 v6, 6, v3")
    a("v_lshl_add_u32 v6, v6, 12, s36")
    a(f"v_add_u32 v{T_D}, v1, v6", "W_down rows 28 idx + 4 min(rg, 6) + i")
    a(f"v_lshlrev_b32 v{T_H}, 3, v3")
    a(f"v_lshlrev_b32 v{T_OBR}, 4, v3")
    task()
    a("v_lshlrev_b32 v5, 4, v5")
    a("s_lshl_b32 s37, s42, 7")
    a("v_lshl_add_u32 v1, v2, 2, v5")
    a(f"v_add_u32 v{T_FW}, s37, v1")
    a("s_lshl2_add_u32 s37, s35, s42")
    a("s_lshl_b32 s37, s37, 15")
    a(f"s_add_u32 s37, s37, {WS_P2}")
    a("v_add_u32 v5, s37, v5")
    for k in range(2):
        a(f"v_add_u32 v1, {8*k}, v3")
        a("v_add_u32 v6, s36, v1")
        a("v_and_b32 v6, 15, v6")
        a("v_lshl_add_u32 v6, v6, 7, v5")
        a(f"v_lshl_add_u32 v{T_F0+k}, v1, 11, v6")
    a("s_lshl_b32 s37, s35, 9")
    a("s_lshl_b32 s36, s36, 5")
    a("s_add_u32 s37, s37, s36")
    a("v_and_b32 v1, 15, v0")
    a(f"v_lshl_add_u32 v{T_XO}, v1, 1, s37")
    a("v_lshrrev_b32 v1, 1, v1")
    a("v_lshlrev_b32 v1, 4, v1")
    a(f"v_lshrrev_b32 v5, 2, v{T_SH}")
    a("v_add_u32 v1, v1, v5")
    a(f"v_add_u32 v{T_FR}, {L_O}, v1")
    a("s_mov_b32 s60, 0x07060500")
    a("s_mov_b32 s61, 0x07060501")
    a("s_mov_b32 s64, 0x05040100")
    a("s_mov_b32 s65, 0x07060302")
    a("s_mov_b32 s68, 0x00ff00ff")
    a("s_mov_b32 s69, 0x00ff00ff")
    a("s_mov_b32 s39, 0xffffff00")
    a("v_mov_b32 v6, 0")
    a("s_waitcnt vmcnt(4)")
    a("s_barrier", "barrier 0: weight tile landed, LDS flags cleared")
    stamp(10)
    for p in range(1, 2 * RH):
        a(f"s_xor_b32 s52, s66, {nconst(p):#x}")
        issue(preg(p), VKO, "s[44:47]", WP)
        if p == pq:
            a("s_mov_b64 exec, 1", "q is needed soon: let the X wave gather it")
            a("v_mov_b32 v15, 1")
            a(f"ds_write_b32 v14, v15 offset:{L_GO}")
            a("s_mov_b64 exec, -1")
    stamp(1)
    ldswait("L_qflag", f"ds_read_b64 v[2:3], v6 offset:{L_TAG}", "v_cmp_ne_u32 vcc, 0, v3")
    a(f"ds_read_b128 v[{VQ}:{VQ+3}], v{VKO} offset:{L_Q}")
    a("v_mov_b32 v17, v2", "tag")
    a(f"v_lshrrev_b32 v{T_TGL}, v{T_TGL}, v2")
    a(f"v_lshrrev_b32 v{T_TGG}, v{T_TGG}, v2")
    stamp(2)
    a("s_waitcnt lgkmcnt(0)")
    def claim(first=False):
        a("s_mov_b32 s35, 1" if first else f"s_sub_u32 s35, s41, {NS - 1}", "ask the X wave for step s41")
        a("s_mov_b64 exec, 1")
        a("v_mov_b32 v15, s35")
        a(f"ds_write_b32 v14, v15 offset:{L_REQ}")
        a("s_mov_b64 exec, -1")
    def qk(K):
        for u in range(4):
            a(f"v_mfma_f32_16x16x32_bf16 v[{VS+4*u}:{VS+4*u+3}], v[{K+4*u}:{K+4*u+3}], v[{VQ}:{VQ+3}], 0")
    def pv(V, fill=()):
        for t in range(8):
            o = 4 * (t & 1)
            a(f"v_mfma_f32_16x16x16_bf16 v[{VO+o}:{VO+o+3}], v[{VA+2*(t>>1)}:{VA+2*(t>>1)+1}], v[{V+2*t}:{V+2*t+1}], v[{VO+o}:{VO+o+3}]")
            for x in fill[2*t:2*t+2]:
                if x: a(x)
    def rowmax(dst):
        a("v_permlane16_swap_b32 v1, v2")
        a("s_nop 0")
        a("v_max_f32 v1, v1, v2")
        a("v_mov_b32 v2, v1")
        a("s_nop 1")
        a("v_permlane32_swap_b32 v1, v2")
        a("s_nop 0")
        a(f"v_max_f32 v{dst}, v1, v2")
    def scale1(dst, src):
        a(f"v_cvt_pk_bf16_f32 v{dst}, v{src}, v{src}", "bf16(bf16(q.k) / sqrt(128))")
        a(f"v_and_b32 v{dst}, s67, v{dst}")
        a(f"v_mul_f32 v{dst}, s43, v{dst}")
        a(f"v_cvt_pk_bf16_f32 v{dst}, v{dst}, v{dst}")
        a(f"v_and_b32 v{dst}, s67, v{dst}")
    def softmax():
        for u in range(4): a(f"v_mov_b32_dpp v{4+u}, v{VS+4*u} quad_perm:[0,0,0,0] {DPP}")
        for p in range(1, 4):
            for u in range(4): a(f"v_add_f32_dpp v{4+u}, v{VS+4*u+p}, v{4+u} quad_perm:[{p},{p},{p},{p}] {DPP}")
        for rep in range(2):
            a("v_cvt_pk_bf16_f32 v5, v4, v5")
            a("v_cvt_pk_bf16_f32 v7, v6, v7")
            a("v_lshlrev_b32 v4, 16, v5")
            a("v_lshlrev_b32 v6, 16, v7")
            a("v_and_b32 v5, s67, v5")
            a("v_and_b32 v7, s67, v7")
            if rep == 0:
                for i in range(4): a(f"v_mul_f32 v{4+i}, s43, v{4+i}")
        a("v_max3_f32 v1, v4, v5, v6")
        a(f"v_max3_f32 v1, v1, v7, v{VM}")
        a("v_mov_b32 v2, v1")
        a("s_nop 1")
        rowmax(1)
        a(f"v_sub_f32 v2, v{VM}, v1")
        a("v_mul_f32 v3, s53, v1")
        a("v_mul_f32 v2, s53, v2")
        a(f"v_mov_b32 v{VM}, v1")
        a("v_exp_f32 v2, v2", "rescale factor")
        for i in range(4): a(f"v_fma_f32 v{4+i}, v{4+i}, s53, -v3")
        for i in range(4): a(f"v_exp_f32 v{4+i}, v{4+i}")
        for g in range(4): a(f"v_mov_b32_dpp v8, v2 row_newbcast:{4*g} row_mask:{1<<g:#x} bank_mask:0xf")
        a(f"v_fma_f32 v{VL}, v{VL}, v2, v4")
        a("v_add_f32 v9, v5, v6")
        a(f"v_add_f32 v{VL}, v{VL}, v7")
        a(f"v_add_f32 v{VL}, v{VL}, v9")
        for i in range(4): a(f"v_cvt_pk_bf16_f32 v{4+i}, v{4+i}, v{4+i}")
        for i in range(8): a(f"v_mul_f32 v{VO+i}, v{VO+i}, v8")
        for i in range(4):
            a(f"v_and_b32 v{VA+2*i}, v{4+i}, v{VM0}")
            a(f"v_and_b32 v{VA+2*i+1}, v{4+i}, v{VM1}")
    def scores(K, p, ring):
        qk(K)
        if ring:
            a("v_readlane_b32 s52, v10, s41")
            a("s_add_u32 s41, s41, 1")
            a("s_nop 2")
        else:
            a("s_nop 4")
        for u in range(4): a(f"v_add_f32_dpp v{4+u}, v{VS+4*u+1}, v{VS+4*u} quad_perm:[1,1,1,1] {DPP}")
        for q_ in (2, 3):
            for u in range(4): a(f"v_add_f32_dpp v{4+u}, v{VS+4*u+q_}, v{4+u} quad_perm:[{q_},{q_},{q_},{q_}] {DPP}")
        a("s_mov_b64 exec, s[98:99]")
        a(f"v_max3_f32 v{VM}, v4, v5, v{VM}")
        a(f"ds_write_b128 v{VSW}, v[4:7] offset:{L_SC + p*256}")
        a(f"v_max3_f32 v{VM}, v6, v7, v{VM}")
        a("s_mov_b64 exec, s[96:97]")
    lab("L_kpre")
    for p in range(RH):
        K = VR + PERM[p] * 16
        scores(K, RH + p, True)
        guarded(lambda: issue(K, VKO, "s[44:47]", WS, ks=(0, 1)))
        scores(preg(p), p, False)
        guarded(lambda: issue(K, VKO, "s[44:47]", WS, ks=(2, 3)))
    a(f"v_add_u32 v{VSW}, {2*RH*256}, v{VSW}")
    align()
    lab("L_kloop")
    a("s_cmp_lg_u32 s76, 0")
    a("s_cbranch_scc1 L_k0")
    if probe is not None: stamp(12)
    a("s_mov_b64 s[72:73], s[8:9]", "last trip: refill with V tiles 0..")
    a(f"v_mov_b32 v{VB}, v{VVO}")
    a("s_mov_b32 s41, 0")
    lab("L_k0")
    for p in range(RH):
        K = VR + PERM[p] * 16
        scores(K, p, True)
        guarded(lambda: issue(K, VB, "s[72:75]", WS))
    a(f"v_add_u32 v{VSW}, {RH*256}, v{VSW}")
    a("s_sub_u32 s76, s76, 1")
    a("s_cbranch_scc0 L_kloop")
    a(f"ds_read_b32 v9, v{VSR} offset:{L_SC}")
    a(f"v_mov_b32_dpp v1, v{VM} quad_perm:[0,0,0,0] {DPP}")
    a(f"v_mov_b32_dpp v2, v{VM} quad_perm:[0,0,0,0] {DPP}")
    a("s_mov_b32 s78, 1")
    a("s_nop 0")
    rowmax(VM)
    scale1(VM, VM)
    a(f"v_mul_f32 v3, s53, v{VM}")
    align()
    lab("L_vloop")
    a("s_cmp_lg_u32 s77, 0")
    a("s_cbranch_scc1 L_v0")
    a("s_mov_b64 s[72:73], s[6:7]", f"last trip: refill only slots 0, 1 with K, V of tile {NA}")
    a(f"v_mov_b32 v{VB}, v{VKO}")
    a("s_mov_b32 s78, 0")
    lab("L_v0")
    for p in range(RH):
        sl = PERM[p]
        V = VR + sl * 16
        a("v_readlane_b32 s52, v10, s41")
        a("s_waitcnt lgkmcnt(0)")
        scale1(4, 9)
        a("v_fma_f32 v4, v4, s53, -v3")
        a(f"ds_read_b32 v9, v{VSR} offset:{L_SC + (p+1)*256}")
        a("v_exp_f32 v4, v4")
        a("s_add_u32 s41, s41, 1" if sl == 1 else "s_add_u32 s41, s41, s78")
        a("v_cvt_pk_bf16_f32 v5, v4, v4")
        a(f"v_add_f32 v{VL}, v{VL}, v4")
        a("s_nop 0")
        for t in range(4):
            a(f"v_and_b32_dpp v{VA+2*t}, v5, v{VM0} quad_perm:[{t},{t},{t},{t}] {DPP}")
            a(f"v_and_b32_dpp v{VA+2*t+1}, v5, v{VM1} quad_perm:[{t},{t},{t},{t}] {DPP}")
        if p == RH - 1:
            a("s_cmp_lg_u32 s77, 0", "last trip: only the K refill is younger than this slot's loads")
            a("s_cbranch_scc1 L_vw")
            a("s_waitcnt vmcnt(4)")
            lab("L_vw")
        pv(V)
        if sl >= 2:
            a("s_cmp_eq_u32 s77, 0")
            a(f"s_cbranch_scc1 L_vs{p}")
            issue(V, VVO, "s[48:51]", WS)
            lab(f"L_vs{p}")
        elif sl == 0:
            guarded(lambda: issue(V, VB, "s[72:75]", WS))
            if NS == NA + 1:
                a("s_cmp_lg_u32 s77, 0")
                a("s_cbranch_scc1 L_vnc")
                guarded(lambda: claim(first=True))
                lab("L_vnc")
        else:
            guarded(lambda: issue(V, VVO, "s[48:51]", WS))
    a(f"v_add_u32 v{VSR}, {RH*256}, v{VSR}")
    a("s_sub_u32 s77, s77, 1")
    a("s_cbranch_scc0 L_vloop")
    a(f"v_add_f32_dpp v{VL}, v{VL}, v{VL} quad_perm:[1,0,3,2] {DPP}")
    a("s_waitcnt lgkmcnt(0)")
    a("s_nop 0")
    a(f"v_add_f32_dpp v{VL}, v{VL}, v{VL} quad_perm:[2,3,0,1] {DPP}")
    a("s_cbranch_execz L_rk0")
    align()
    lab("L_loop")
    WL = [f"global_load_dwordx4 v[{RD+4*i}:{RD+4*i+3}], v{T_D}, s[20:21] offset:{i*1024} {woflags}" for i in range(4)]
    WL += [f"global_load_dwordx4 v[{RW+4*i}:{RW+4*i+3}], v{T_WO}, s[12:13] offset:{i*1024-4096} {woflags}" for i in range(8)]
    for slot in range(2):
        oth = 1 - slot
        a("v_readlane_b32 s52, v10, s41")
        a(f"s_cmp_ge_u32 s41, {NS}")
        a(f"s_cbranch_scc1 L_tk{slot}")
        a("s_nop 1")
        lab(f"L_gk{slot}")
        issue(VR + oth * 32, VKO, "s[44:47]", WM)
        a("s_add_u32 s41, s41, 1")
        a(f"s_cmp_lt_u32 s41, {NS}")
        a(f"s_cbranch_scc1 L_rk{slot}")
        claim()
        lab(f"L_rk{slot}")
        qk(VR + slot * 32)
        a("s_nop 4")
        softmax()
        a("s_cmp_eq_u32 s54, 0")
        a(f"s_cbranch_scc1 L_dv{slot}")
        issue(VR + oth * 32 + 16, VVO, "s[48:51]", WM, down=True)
        pv(VR + slot * 32 + 16)
    a("s_branch L_loop")
    for slot in range(2):
        lab(f"L_tk{slot}")
        a("s_lshl_b32 s35, s41, 2")
        a(f"s_add_u32 s35, s35, {L_TK - 4 * NS}")
        a("v_mov_b32 v15, s35")
        a(f"s_mov_b32 s40, {spin * 8}")
        lab(f"L_tp{slot}")
        a("ds_read_b32 v16, v15", "-1: not served yet, -2: pool empty")
        a("s_sub_u32 s40, s40, 1")
        a(f"s_cbranch_scc1 L_tf{slot}")
        a("s_waitcnt lgkmcnt(0)")
        a("v_readfirstlane_b32 s35, v16")
        a("s_nop 1")
        a("s_cmp_eq_u32 s35, -1")
        a(f"s_cbranch_scc1 L_tp{slot}")
        a("s_xor_b32 s52, s35, s55")
        a("s_cmp_lg_u32 s35, -2")
        a(f"s_cbranch_scc1 L_gk{slot}")
        lab(f"L_tf{slot}")
        a("s_mov_b32 s54, 0")
        a("s_waitcnt vmcnt(4)")
        a(f"s_branch L_rk{slot}")
        lab(f"L_dv{slot}")
        if tt: a(f"v_mov_b32 v{NV-1}, v13")
        if nA: guard(WL[:nA])
        a(f"s_waitcnt vmcnt({nA})")
        pv(VR + slot * 32 + 16, [f"v_mov_b32 v2, v{VL}", f"v_mul_f32 v10, s53, v{VM}", f"v_permlane16_swap_b32 v{VL}, v2", None,
                                 f"v_add_f32 v11, v{VL}, v2", "v_mov_b32 v2, v11", "s_nop 0", "v_permlane32_swap_b32 v11, v2",
                                 "v_add_f32 v11, v11, v2", f"ds_write_b64 v{T_SW}, v[10:11] offset:{L_ST}"])
        a("s_nop 0")
        a("s_cbranch_execnz L_done")
        if slot == 0: a("s_branch L_rk1")
    align()
    lab("L_done")
    stamp(3)
    if tt: a("s_mov_b32 s94, s41")
    def poll1():
        if own: a("s_mov_b64 exec, s[100:101]")
        a(f"global_load_dwordx4 v[8:11], v{T_P1L}, s[26:27] sc1")
        if own: a("s_mov_b64 exec, -1")
    a("s_nop 4")
    a(f"ds_write_b128 v{T_OW}, v[{VO}:{VO+3}] offset:{L_O}")
    a(f"ds_write_b128 v{T_OW}, v[{VO+4}:{VO+7}] offset:{L_O+16}")
    guard(["s_waitcnt lgkmcnt(0)", "s_barrier"])
    a(f"ds_read_b128 v[8:11], v{T_SR} offset:{L_ST}")
    a(f"ds_read_b128 v[12:15], v{T_SR} offset:{L_ST+16}")
    for w in range(4): a(f"ds_read_b128 v[{VS+4*w}:{VS+4*w+3}], v{T_OR} offset:{L_O + w*2048}")
    a("s_waitcnt lgkmcnt(4)")
    a("v_max3_f32 v2, v8, v10, v12")
    a("v_max_f32 v2, v2, v14")
    for w in range(4): a(f"v_sub_f32 v{8+2*w}, v{8+2*w}, v2")
    for w in range(4): a(f"v_exp_f32 v{8+2*w}, v{8+2*w}")
    a("v_mul_f32 v16, v8, v9")
    a("v_fmac_f32 v16, v10, v11")
    a("v_fmac_f32 v16, v12, v13")
    a("v_fmac_f32 v16, v14, v15")
    a("s_waitcnt lgkmcnt(0)")
    a("v_rcp_f32 v4, v16")
    a("v_log_f32 v16, v16")
    for h in (0, 2): a(f"v_pk_mul_f32 v[{36+h}:{37+h}], v[{VS+h}:{VS+h+1}], v[8:9] op_sel_hi:[1,0]")
    for w in range(1, 4):
        for h in (0, 2): a(f"v_pk_fma_f32 v[{36+h}:{37+h}], v[{VS+4*w+h}:{VS+4*w+h+1}], v[{8+2*w}:{9+2*w}], v[{36+h}:{37+h}] op_sel_hi:[1,0,1]")
    a("v_add_f32 v2, v2, v16", "log2 of the partial sum")
    a(f"v_lshrrev_b32 v2, v{T_SH}, v2")
    for h in (0, 2): a(f"v_pk_mul_f32 v[{36+h}:{37+h}], v[{36+h}:{37+h}], v[4:5] op_sel_hi:[1,0]")
    a("v_perm_b32 v36, v36, v2, s60")
    a("v_perm_b32 v37, v37, v2, s61")
    a(f"v_perm_b32 v38, v38, v{T_TGL}, s60")
    def f():
        a("s_mov_b32 exec_hi, 0")
        a(f"global_store_dwordx4 v{T_P1S}, v[36:39], s[26:27] sc1")
        stamp(4)
        if own:
            a(f"ds_write_b128 v{T_OR}, v[36:39] offset:{L_SC}", "this workgroup's own granules go through LDS")
            a("s_not_b64 exec, s[100:101]")
            a("s_waitcnt lgkmcnt(0)")
        a("s_barrier", "also: all four stores go out before any wave's loads")
        if own: a(f"ds_read_b128 v[8:11], v{T_OWR} offset:{L_SC}")
        a("s_mov_b64 exec, -1")
        for x in WL[nA:]: a(x)
        poll1()
    guarded(f)
    a(f"ds_read_u16 v{T_X}, v{T_XO} offset:{L_XR}")
    a(f"ds_read_b64 v[24:25], v{T_H} offset:{L_H}")
    def younger(k): return (11 - k) + (1 if k < nA else 0) + 1
    def pairup(raw, dst, p):
        for d in range(4):
            a(f"v_perm_b32 v{dst+8*p+2*d}, v{raw+8*p+4+d}, v{raw+8*p+d}, s64")
            a(f"v_perm_b32 v{dst+8*p+2*d+1}, v{raw+8*p+4+d}, v{raw+8*p+d}, s65")
    def dots(pairs, vec, npairs):
        for p in range(npairs):
            for c in range(8):
                a(f"v_dot2_f32_bf16 v{VS+c}, v{pairs+8*p+c}, v{vec+p}, {'0' if p == 0 else 'v%d' % (VS+c)}")
    def fold(dst):
        for k in range(4): a(f"v_permlane32_swap_b32 v{VS+k}, v{VS+4+k}")
        for k in range(4): a(f"v_add_f32 v{VS+k}, v{VS+k}, v{VS+4+k}")
        a("s_nop 0")
        for k in range(2): a(f"v_permlane16_swap_b32 v{VS+k}, v{VS+2+k}")
        for k in range(2): a(f"v_add_f32 v{VS+k}, v{VS+k}, v{VS+2+k}")
        a("s_nop 0")
        for k in range(2): a(f"v_add_f32_dpp v{dst+k}, v{VS+k}, v{VS+k} row_ror:8 {DPP}")
    a(f"s_waitcnt vmcnt({younger(3)})")
    for p in range(2): pairup(RD, PD, p)
    a("s_waitcnt lgkmcnt(0)")
    dots(PD, 24, 2)
    fold(42)
    a(f"v_perm_b32 v43, v43, v{T_TGG}, s60", "hand-off 2: {y0, y1, f0, f1|tag byte}")
    for p in range(4):
        a(f"s_waitcnt vmcnt({younger(4 + 2*p + 1)})")
        pairup(RW, PW, p)
    a(f"s_mov_b32 s40, {spin}")
    stamp(11)
    a("s_branch L_p1chk")
    lab("L_p1poll")
    poll1()
    lab("L_p1chk")
    a("s_waitcnt vmcnt(0)")
    a(f"v_cmp_ne_u32_sdwa vcc, v10, v{T_TGG} src0_sel:BYTE_0 src1_sel:BYTE_0")
    pollend("L_p1poll")
    stamp(5)
    if tt: a(f"s_sub_u32 s92, {spin + 1}, s40")
    a(f"v_perm_b32 v12, v9, v8, v{T_SEL}")
    a(f"v_perm_b32 v13, v9, v8, v{T_SEL}")
    a("v_and_b32 v8, s39, v8")
    a("v_and_b32 v9, s39, v9")
    a("v_permlane16_swap_b32 v12, v13")
    a("v_and_b32 v10, s39, v10")
    a("v_or_b32 v12, v12, v13", "log2 sum of the member")
    a("s_nop 1")
    a(f"v_max_f32_dpp v2, v12, v12 row_ror:8 {DPP}")
    a("s_nop 1")
    for r in (4, 2, 1):
        a(f"v_max_f32_dpp v2, v2, v2 row_ror:{r} {DPP}")
        if r > 1: a("s_nop 1")
    a("v_sub_f32 v12, v12, v2")
    a("v_exp_f32 v12, v12")
    a("s_nop 0")
    for h in (0, 2): a(f"v_pk_mul_f32 v[{8+h}:{9+h}], v[{8+h}:{9+h}], v[12:13] op_sel_hi:[1,0]")
    for r in (8, 4, 2, 1):
        for v in (12, 8, 9, 10, 11):
            a(f"v_add_f32_dpp v{v}, v{v}, v{v} row_ror:{r} {DPP}")
            if r == 1 and v == 8: a("v_rcp_f32 v12, v12")
    for h in (0, 2): a(f"v_pk_mul_f32 v[{8+h}:{9+h}], v[{8+h}:{9+h}], v[12:13] op_sel_hi:[1,0]")
    a("v_cvt_pk_bf16_f32 v8, v8, v9")
    a("v_cvt_pk_bf16_f32 v9, v10, v11")
    a(f"ds_write_b64 v{T_OBW}, v[8:9] offset:{L_OB}")
    guard(["s_waitcnt lgkmcnt(0)", "s_barrier"])
    a(f"ds_read_b128 v[24:27], v{T_OBR} offset:{L_OB}")
    a("s_waitcnt lgkmcnt(0)")
    dots(PW, 24, 4)
    fold(40)
    guard(["s_mov_b64 exec, s[68:69]", f"global_store_dwordx4 v{T_P2S}, v[40:43], s[26:27] sc1", "s_mov_b64 exec, -1"])
    stamp(6)
    a("s_and_b32 s35, s29, 3")
    a(f"s_cbranch_scc1 {OUT}")
    a(f"s_mov_b32 s40, {spin}")
    a("v_mov_b32 v6, 0")
    lab("L_p2poll")
    guard([f"global_load_dwordx4 v[{VP2+4*i}:{VP2+4*i+3}], v{T_F0+i}, s[26:27] sc1" for i in range(2)])
    a("s_waitcnt vmcnt(0)")
    a(f"v_xor_b32 v2, v{T_TGL}, v{VP2+3}")
    a(f"v_bitop3_b32 v2, v2, v{VP2+7}, v{T_TGL} bitop3:0xf6")
    a("v_cmp_ne_u32_sdwa vcc, v2, v6 src0_sel:BYTE_0 src1_sel:DWORD")
    pollend("L_p2poll")
    stamp(7)
    if tt: a(f"s_sub_u32 s93, {spin + 1}, s40")
    for i in (3, 7): a(f"v_and_b32 v{VP2+i}, s39, v{VP2+i}")
    for i in (0, 2): a(f"v_pk_add_f32 v[{8+i}:{9+i}], v[{VP2+i}:{VP2+1+i}], v[{VP2+4+i}:{VP2+5+i}]")
    a("s_nop 1")
    a("v_permlane32_swap_b32 v8, v10", "afterwards row r of the wave holds dword r of granule lane&7")
    a("v_permlane32_swap_b32 v9, v11")
    a("s_nop 0")
    a("v_add_f32 v8, v8, v10")
    a("v_add_f32 v9, v9, v11")
    a("s_nop 1")
    a("v_permlane16_swap_b32 v8, v9")
    a("s_nop 0")
    a("v_add_f32 v8, v8, v9")
    a("s_nop 1")
    a(f"v_add_f32_dpp v8, v8, v8 row_ror:8 {DPP}")
    a(f"ds_write_b32 v{T_FW}, v8 offset:{L_O}")
    a("s_cmp_lg_u32 s42, 0")
    guard(["s_waitcnt lgkmcnt(0)", "s_barrier"])
    a("s_cbranch_scc1 L_epoch")
    for w in range(4): a(f"ds_read2_b32 v[{24+2*w}:{25+2*w}], v{T_FR} offset0:{32*w} offset1:{32*w+2}", "one column per lane: {attention, FFN}" if w == 0 else None)
    a(f"v_lshlrev_b32 v14, 16, v{T_X}")
    a("s_waitcnt lgkmcnt(2)")
    a("v_pk_add_f32 v[24:25], v[24:25], v[26:27]")
    a("s_waitcnt lgkmcnt(0)")
    a("v_pk_add_f32 v[28:29], v[28:29], v[30:31]")
    a("v_pk_add_f32 v[8:9], v[24:25], v[28:29]")
    a("v_cvt_pk_bf16_f32 v8, v8, v9")
    a("v_and_b32 v9, s67, v8")
    a("v_mul_f32 v12, s53, v9")
    a("v_exp_f32 v12, -v12")
    a("v_lshlrev_b32 v8, 16, v8")
    a("v_add_f32 v12, 1.0, v12")
    a("v_rcp_f32 v12, v12")
    a("s_nop 0")
    a("v_mul_f32 v9, v9, v12")
    a("v_cvt_pk_bf16_f32 v9, v9, v9", "silu")
    a("v_and_b32 v9, s67, v9")
    a("v_mul_f32 v8, v8, v9")
    a("v_cvt_pk_bf16_f32 v8, v8, v8")
    a("v_and_b32 v8, s67, v8")
    a("v_add_f32 v8, v8, v14")
    a("v_cvt_pk_bf16_f32 v8, v8, v8")
    a("s_cbranch_execz L_end")
    a("s_mov_b64 exec, 0xffff")
    a(f"global_store_short v{T_XO}, v8, s[22:23]")
    a("s_branch L_sexit" if ts else "s_endpgm")
    lab("L_epoch")
    a("s_lshl2_add_u32 s35, s2, s42")
    a("s_cmp_lg_u32 s35, 17")
    a(f"s_cbranch_scc1 {OUT}")
    a("s_mov_b64 exec, 1")
    a("global_store_dword v6, v17, s[26:27]")
    if ts:
        if lite: a("s_endpgm")
        lab("L_sexit")
        stamp(8)
        if tt:
            a("s_mov_b64 exec, -1")
            a("s_lshl_b32 s70, s2, 2")
            a("s_add_u32 s70, s70, s42")
            a("s_lshl_b32 s70, s70, 8")
            a(f"s_add_u32 s70, s70, {WS_TT}")
            a("v_lshl_add_u32 v1, v0, 2, s70")
            a(f"global_store_dword v1, v{NV-1}, s[26:27]")
        dump_stamps("S")
    lab("L_end")
    a("s_endpgm")

    section("X2")
    lab("L_x2")
    a("v_lshrrev_b32 v46, 4, v0", "g")
    a("v_bfe_u32 v7, v0, 2, 2")
    a("v_and_b32 v5, 3, v0")
    a("v_lshlrev_b32 v44, 10, v46")
    a("v_lshl_add_u32 v44, v7, 7, v44")
    a("v_lshl_add_u32 v44, v5, 3, v44", "weight fragment address (transposing reads)")
    a("v_and_b32 v45, 1, v0", "batch row of this column of D")
    a("v_lshlrev_b32 v4, 10, v45")
    a("v_lshl_add_u32 v4, v46, 4, v4")
    a("v_bfe_u32 v47, v0, 1, 3", "which 16-column block lands in this column of D")
    a("v_bfe_u32 v2, v0, 1, 2")
    a("v_lshlrev_b32 v2, 6, v2")
    a("v_lshl_add_u32 v2, v46, 4, v2")
    a("s_bitcmp1_b32 s2, 3")
    a("s_cbranch_scc1 L_fsetup")
    a("s_lshr_b32 s35, s39, 21")
    a("s_lshl_b32 s43, s35, 9")
    a("s_add_u32 s52, s43, 256")
    a("s_mov_b32 s53, 0")
    a("s_bfe_u32 s36, s39, 0x3000a")
    a("s_lshl_b32 s36, s36, 13")
    a("s_lshl_b32 s37, s35, 11")
    a("s_add_u32 s36, s36, s37")
    a("s_bfe_u32 s37, s39, 0x30007")
    a("s_lshl_b32 s37, s37, 8")
    a("s_add_u32 s36, s36, s37")
    a(f"s_add_u32 s36, s36, {WS_QP}")
    a("v_lshl_add_u32 v3, v45, 12, s36")
    a("s_mov_b32 s54, 0x00ff00ff")
    a("s_branch L_jobset")
    lab("L_fsetup")
    a("s_and_b32 s35, s38, 3")
    a("s_lshl_b32 s43, s35, 8")
    a("s_mov_b32 s52, s43")
    a("s_mov_b32 s53, 4")
    a("s_and_b32 s37, s29, 24")
    a("s_min_u32 s37, s37, 22")
    a("s_add_u32 s37, s37, s28")
    a("s_lshl_b32 s37, s37, 8")
    a("s_mul_i32 s36, s35, 7168")
    a("s_add_u32 s36, s36, s37")
    a(f"s_add_u32 s36, s36, {WS_FP}")
    a("v_bfe_u32 v3, v0, 3, 1")
    a("v_lshl_add_u32 v3, v45, 1, v3")
    a(f"v_mul_u32_u24 v3, {4*7168}, v3")
    a("v_add_u32 v3, s36, v3")
    a("s_mov_b32 s54, -1")
    lab("L_jobset")
    a("v_add_u32 v35, v2, v3", "publish address")
    a("s_mov_b32 s55, s54")
    a(f"v_mov_b32 v34, {L_Z - L_XN}")
    for hh in range(2):
        a(f"v_add_u32 v5, s{43 if hh == 0 else 52}, v4")
        if hh: a("v_subrev_u32 v47, s53, v47")
        for k in range(4): a(f"v_cmp_eq_u32 s[{44+2*k}:{45+2*k}], {k}, v47")
        a("s_nop 0")
        for k in range(4): a(f"v_cndmask_b32 v{36+4*hh+k}, v34, v5, s[{44+2*k}:{45+2*k}]", "xn fragment address, or the zero block" if k == 0 else None)
    a("s_waitcnt vmcnt(1)")
    a("s_cmp_eq_u32 s67, 0", "these still have the counter store in flight")
    a("s_cbranch_scc1 L_xok")
    a("s_waitcnt vmcnt(0)")
    lab("L_xok")
    stamp(1)
    a(f"ds_write_b128 v1, v[8:11] offset:{L_XR}", "raw x for the residual")
    a(f"ds_write_b128 v1, v[12:15] offset:{L_XR+16}")
    for i in range(8):
        a(f"v_lshlrev_b32 v{16+2*i}, 16, v{8+i}")
        a(f"v_and_b32 v{17+2*i}, 0xffff0000, v{8+i}")
    def red32(v, t):
        a("s_nop 1")
        for r in (8, 4, 2, 1):
            a(f"v_add_f32_dpp {v}, {v}, {v} row_ror:{r} {DPP}")
            a("s_nop 1")
        a(f"v_mov_b32 {t}, {v}")
        a("s_nop 1")
        a(f"v_permlane16_swap_b32 {v}, {t}")
        a("s_nop 0")
        a(f"v_add_f32 {v}, {v}, {t}")
    a("v_add_f32 v6, v16, v17")
    for i in range(2, 16): a(f"v_add_f32 v6, v6, v{16+i}")
    red32("v6", "v7")
    a(f"v_mul_f32 v6, {f2u(1.0/512):#x}, v6", "mean")
    a("v_sub_f32 v32, v16, v6")
    a("v_mul_f32 v33, v32, v32")
    for i in range(1, 16):
        a(f"v_sub_f32 v32, v{16+i}, v6")
        a("v_fmac_f32 v33, v32, v32")
    red32("v33", "v7")
    a(f"v_mul_f32 v33, {f2u(1.0/512):#x}, v33", "variance")
    a("v_cvt_pk_bf16_f32 v6, v6, v33")
    a("v_and_b32 v33, 0xffff0000, v6")
    a("v_lshlrev_b32 v6, 16, v6")
    a(f"v_add_f32 v33, {f2u(1e-5):#x}, v33")
    a("v_cvt_pk_bf16_f32 v33, v33, v33")
    a("v_lshlrev_b32 v33, 16, v33")
    a("v_sqrt_f32 v33, v33")
    a("s_nop 0")
    a("v_cvt_pk_bf16_f32 v33, v33, v33")
    a("v_lshlrev_b32 v33, 16, v33")
    a("v_rcp_f32 v33, v33")
    for i in range(8):
        a(f"v_sub_f32 v{16+2*i}, v{16+2*i}, v6")
        a(f"v_sub_f32 v{17+2*i}, v{17+2*i}, v6")
        a(f"v_cvt_pk_bf16_f32 v{8+i}, v{16+2*i}, v{17+2*i}")
        a(f"v_lshlrev_b32 v{16+2*i}, 16, v{8+i}")
        a(f"v_and_b32 v{17+2*i}, 0xffff0000, v{8+i}")
        a(f"v_mul_f32 v{16+2*i}, v{16+2*i}, v33")
        a(f"v_mul_f32 v{17+2*i}, v{17+2*i}, v33")
        a(f"v_cvt_pk_bf16_f32 v{8+i}, v{16+2*i}, v{17+2*i}")
    a(f"ds_write_b128 v1, v[8:11] offset:{L_XN}")
    a(f"ds_write_b128 v1, v[12:15] offset:{L_XN+16}")
    a("s_waitcnt lgkmcnt(0)")
    a(f"s_add_u32 s33, s33, {PHI:#x}", "tag; byte i replaces the low byte of dword i of a granule of partial sums")
    a("s_mov_b32 s56, s33")
    a("s_lshr_b32 s57, s33, 8")
    a("s_lshr_b32 s58, s33, 16")
    a("s_lshr_b32 s59, s33, 24")
    for i in range(4): a(f"s_mov_b32 s{60+i}, {0x07060500 + i:#x}")
    a("v_mov_b32 v32, s33")
    a("v_mov_b32 v33, 1")
    a("s_barrier", "barrier 0")
    stamp(2)
    a("s_andn2_b32 s35, 0x8e, s2")
    a("s_cbranch_scc0 L_nojob")
    steps = [(ks, blk) for ks in range(8) for blk in range(4)]
    def rd(n):
        ks, blk = steps[n]
        o = (n % 4) * 8
        a(f"ds_read_b128 v[{48+o}:{51+o}], v{36 + 4*(ks>>2) + blk} offset:{L_XN + (ks&3)*64}")
        a(f"ds_read_b64_tr_b16 v[{52+o}:{53+o}], v44 offset:{L_W + ks*4096 + blk*32}")
        a(f"ds_read_b64_tr_b16 v[{54+o}:{55+o}], v44 offset:{L_W + ks*4096 + blk*32 + 512}")
    for n in range(3): rd(n)
    for n in range(32):
        if n + 3 < 32: rd(n + 3)
        a(f"s_waitcnt lgkmcnt({3 * min(3, 31 - n)})")
        o = (n % 4) * 8
        a(f"v_mfma_f32_16x16x32_bf16 v[8:11], v[{52+o}:{55+o}], v[{48+o}:{51+o}], {'0' if n == 0 else 'v[8:11]'}")
    a("s_nop 7")
    for i in range(4): a(f"v_add_u32 v{8+i}, 0x80, v{8+i}", "round to the 24 bits a granule keeps" if i == 0 else None)
    for i in range(4): a(f"v_perm_b32 v{8+i}, v{8+i}, v32, s{60+i}")
    a("s_mov_b64 exec, s[54:55]")
    a("s_waitcnt vmcnt(0)")
    a("global_store_dwordx4 v35, v[8:11], s[26:27] sc1")
    a("s_mov_b64 exec, -1")
    lab("L_nojob")
    stamp(3)
    scalar_part("s55", {"g": ("s38", 4)})
    a("v_lshrrev_b32 v3, 4, v0")
    a(f"v_add_u32 v3, {NS}, v3")
    a("v_mov_b32 v20, s55")
    lane_bits(20, 3, "n", 5)
    lane_bits(20, 0, "r", 4)
    a(f"s_mul_i32 s36, s38, {ctstride}")
    a(f"s_add_u32 s36, s36, {WS_CT}")
    a("s_add_u32 s68, s26, s36")
    a("s_addc_u32 s69, s27, 0")
    if pf:
        task()
        a("v_add_u32 v2, s36, v0")
        a("v_and_b32 v2, 15, v2")
        a("s_and_b32 s37, s29, 3")
        a("s_lshl2_add_u32 s36, s35, s37")
        a("s_lshl_b32 s36, s36, 15")
        a(f"s_add_u32 s36, s36, {WS_P2}")
        a("v_lshl_add_u32 v22, v0, 11, s36")
        a("v_lshl_add_u32 v22, v2, 7, v22")
    a("v_mov_b32 v6, -1")
    a("v_mov_b32 v7, -1")
    a("v_lshlrev_b32 v21, 3, v0")
    a(f"ds_write_b64 v21, v[6:7] offset:{L_TK}")
    a("s_lshl_b32 s36, s30, 13")
    a("s_lshl_b32 s37, s31, 12")
    a("s_add_u32 s36, s36, s37")
    a(f"s_add_u32 s36, s36, {WS_QP}")
    a("v_lshl_add_u32 v1, v0, 4, s36")
    a("s_mul_i32 s36, s34, 112")
    a(f"s_mul_i32 s37, s31, {8*7168}")
    a("s_add_u32 s36, s36, s37")
    a(f"s_add_u32 s36, s36, {WS_FP}")
    a("v_lshrrev_b32 v2, 3, v0")
    a("v_mul_u32_u24 v2, 7168, v2")
    a("v_and_b32 v3, 7, v0")
    a("v_min_u32 v3, 6, v3")
    a("v_lshl_add_u32 v2, v3, 4, v2")
    a("v_add_u32 v2, s36, v2")
    a("v_and_b32 v5, 12, v0")
    ldswait("L_go", f"ds_read_b32 v6, v5 offset:{L_GO}", "v_cmp_ne_u32 vcc, 0, v6")
    a(f"s_mov_b32 s40, {spin}")
    stamp(7)
    lab("L_qpoll")
    for i in range(4): a(f"global_load_dwordx4 v[{48+4*i}:{51+4*i}], v1, s[26:27] offset:{i*1024} sc1")
    a("global_load_dwordx4 v[8:11], v2, s[26:27] sc1")
    a("s_waitcnt vmcnt(0)")
    a("v_xor_b32 v6, s56, v48")
    for r in list(range(49, 64)) + [8, 9, 10, 11]: a(f"v_bitop3_b32 v6, v6, v{r}, s{56 + r % 4} bitop3:0xf6")
    a("v_and_b32 v6, 0xff, v6")
    a("v_cmp_ne_u32 vcc, 0, v6")
    pollend("L_qpoll")
    for i in range(16): a(f"v_and_b32 v{48+i}, 0xffffff00, v{48+i}")
    for i in range(8): a(f"v_add_f32 v{48+i}, v{48+i}, v{56+i}")
    for i in range(4): a(f"v_cvt_pk_bf16_f32 v{48+i}, v{48+2*i}, v{49+2*i}")
    a("v_mov_b32 v6, 0")
    a("v_mov_b32 v7, 0")
    a(f"ds_write_b64 v21, v[48:49] offset:{L_Q}")
    a(f"ds_write_b64 v21, v[50:51] offset:{L_Q+512}")
    a("s_waitcnt lgkmcnt(0)")
    a(f"ds_write_b64 v6, v[32:33] offset:{L_TAG}", "{tag, ready}")
    stamp(5)
    a("s_setprio 0")
    for i in range(4): a(f"v_and_b32 v{8+i}, 0xffffff00, v{8+i}")
    for i in range(4): a(f"v_add_f32_dpp v{8+i}, v{8+i}, v{8+i} row_ror:8 {DPP}")
    for i in range(4): a(f"v_mov_b32 v{12+i}, v{8+i}")
    for i in range(4): a(f"v_permlane16_swap_b32 v{8+i}, v{12+i}")
    for i in range(4): a(f"v_add_f32 v{8+i}, v{8+i}, v{12+i}")
    a("v_cvt_pk_bf16_f32 v8, v8, v9")
    a("v_cvt_pk_bf16_f32 v9, v10, v11")
    a("v_mov_b32 v10, v8")
    a("v_mov_b32 v11, v9")
    a("s_nop 1")
    a("v_permlane32_swap_b32 v8, v10", "v8,v9 = gate pairs, v10,v11 = up pairs")
    a("v_permlane32_swap_b32 v9, v11")
    for p in range(2):
        a(f"v_lshlrev_b32 v12, 16, v{8+p}")
        a(f"v_and_b32 v13, 0xffff0000, v{8+p}")
        a(f"v_lshlrev_b32 v14, 16, v{10+p}")
        a(f"v_and_b32 v15, 0xffff0000, v{10+p}")
        a("v_max_f32 v12, 0, v12")
        a("v_max_f32 v13, 0, v13")
        a("v_mul_f32 v12, v12, v14")
        a("v_mul_f32 v13, v13, v15")
        a(f"v_cvt_pk_bf16_f32 v{16+p}, v12, v13")
    a("v_lshlrev_b32 v3, 3, v3")
    a(f"ds_write_b64 v3, v[16:17] offset:{L_H}")
    a(f"ds_write_b64 v6, v[6:7] offset:{L_H+56}")
    stamp(6)
    a("s_mov_b32 s41, 0")
    a(f"v_mov_b32 v5, {L_TK}")
    a(f"s_mov_b32 s40, {spin * 8}")
    a("s_setprio 1")
    lab("L_disp")
    a(f"ds_read_b128 v[8:11], v6 offset:{L_REQ}")
    a("s_sub_u32 s40, s40, 1")
    a("s_cbranch_scc1 L_disp_done")
    a("s_waitcnt lgkmcnt(0)")
    a("v_min3_u32 v8, v8, v9, v10")
    a("v_min_u32 v8, v8, v11")
    a("v_cmp_lt_u32 vcc, s41, v8")
    a("s_cbranch_vccnz L_serve")
    a("s_sleep 1")
    a("s_branch L_disp")
    lab("L_serve")
    if vat:
        a("s_mov_b64 exec, 1")
        a("global_atomic_add v12, v6, v33, s[68:69] sc0")
        a("s_mov_b64 exec, -1")
        a("s_add_u32 s41, s41, 1")
        a("s_waitcnt vmcnt(0)")
        a("v_readfirstlane_b32 s67, v12")
        a("s_nop 3")
    else:
        a("s_mov_b32 s67, 1")
        a("s_atomic_add s67, s[68:69], 0 glc")
        a("s_add_u32 s41, s41, 1")
        a("s_waitcnt lgkmcnt(0)")
    a("v_readlane_b32 s36, v20, s67")
    a(f"s_cmp_lt_u32 s67, {POOL}")
    a("s_nop 0")
    a("s_cselect_b32 s36, s36, -2")
    a("v_mov_b32 v7, s36")
    a("ds_write_b32 v5, v7")
    a("v_add_u32 v5, 4, v5")
    a("s_cbranch_scc1 L_disp")
    lab("L_disp_done")
    if pf:
        a("s_mov_b64 exec, 0xffff")
        a("global_load_dword v23, v22, s[26:27] sc1", "pull a quarter of the lines a final task polls (result unused)")
    a("s_waitcnt lgkmcnt(0)")
    a("s_barrier")
    dump_stamps("X")
    a("s_endpgm")

    L = [HEADER.rstrip("\n"), f"; @launch grid=(256,1,1) block=(384,1,1) lds={L_END}", DOC,
         '.amdgcn_target "amdgcn-amd-amdhsa--gfx950"', ".text", f".globl {KN}", ".p2align 8", f".type {KN},@function"]
    for name in "E X1 S W X2".split(): L.extend(SEC[name])
    L += ['.section .rodata,"a"', ".p2align 6", f".amdhsa_kernel {KN}",
          f"  .amdhsa_next_free_vgpr {NV}", "  .amdhsa_next_free_sgpr 102", f"  .amdhsa_accum_offset {NV}",
          "  .amdhsa_group_segment_fixed_size 0", "  .amdhsa_kernarg_size 96", "  .amdhsa_user_sgpr_count 2",
          "  .amdhsa_user_sgpr_kernarg_segment_ptr 1", "  .amdhsa_system_sgpr_workgroup_id_x 1",
          "  .amdhsa_float_denorm_mode_32 3", ".end_amdhsa_kernel"]
    if tune8: L = align_runs("\n".join(L).split("\n"))
    return "\n".join(L) + "\n"

WIDEN = ("v_mov_b32", "v_add_f32", "v_sub_f32", "v_mul_f32", "v_max_f32", "v_exp_f32", "v_rcp_f32", "v_log_f32", "v_and_b32", "v_xor_b32",
         "v_lshlrev_b32", "v_lshrrev_b32", "v_add_u32", "v_fmac_f32", "v_sqrt_f32", "v_min_u32", "v_or_b32")

def sizes_of(lines):
    import subprocess, re
    r = subprocess.run(["llvm-mc", "-triple=amdgcn-amd-amdhsa", "-mcpu=gfx950", "-show-encoding"],
                       input="\n".join(lines) + "\n", capture_output=True, text=True)
    assert r.returncode == 0, r.stderr
    return [m.count(",") + 1 for m in re.findall(r"; encoding: \[(.*?)\]", r.stdout)]

def align_runs(lines):
    isins = [l.startswith("    ") and not l.strip().startswith(";") for l in lines]
    sz = iter(sizes_of(lines))
    size = [next(sz) if f else 0 for f in isins]
    out, osz, addr, active = [], [], 0, False
    for i, l in enumerate(lines):
        if l.startswith(".p2align"):
            k = 1 << int(l.split()[1]); addr = (addr + k - 1) // k * k
        elif l.startswith("L_xwave"):
            active = True
        if isins[i] and active and size[i] == 8 and addr % 8 == 4 and (not osz or osz[-1] != 8):
            run, j = 0, i
            while j < len(lines) and (size[j] == 8 or not isins[j]) and not lines[j].startswith("."):
                run += size[j] == 8 and "mfma" not in lines[j]; j += 1
            if run >= 3:
                j = len(out) - 1
                while j >= 0 and osz[j] in (0, 4) and not out[j].startswith("."):
                    op = out[j].split()[0] if osz[j] else ""
                    if op in WIDEN:
                        out[j] = out[j].replace(op + " ", op + "_e64 ", 1).replace("    ;", ";", 1); osz[j] = 8; addr += 4
                        break
                    if op == "s_nop" and int(out[j].split()[1]) > 0:
                        out[j] = f"    s_nop {int(out[j].split()[1]) - 1}"
                        out.insert(j, "    s_nop 0"); osz.insert(j, 4); addr += 4
                        break
                    j -= 1
                if addr % 8 == 4 and run >= 6:
                    out.append("    s_nop 0"); osz.append(4); addr += 4
        out.append(l); osz.append(size[i]); addr += size[i]
    return out

if __name__ == "__main__":
    import json
    cfg = json.loads(sys.argv[1]) if len(sys.argv) > 1 else {}
    sys.stdout.write(gen(**cfg))
```
